```python
import torch

def _softmax(x, axis=-1):
    return torch.softmax(x, dim=axis)
def _gelu(x):
    return torch.nn.functional.gelu(x, approximate="tanh")
def _silu(x):
    return torch.nn.functional.silu(x)
def _sigmoid(x):
    return torch.sigmoid(x)
def _layernorm(x, axis=-1, eps=1e-5):
    m = x.mean(dim=axis, keepdim=True)
    v = x.var(dim=axis, keepdim=True, unbiased=False)
    return (x - m) / torch.sqrt(v + eps)
def _scatter_add(tgt, idx, src, axis=0):
    return tgt.clone().index_add_(axis, idx, src)
def _segment_sum(src, seg, n):
    out = torch.zeros((n,) + src.shape[1:], dtype=src.dtype)
    return out.index_add_(0, seg, src)
def _pad(x, pw):
    flat = tuple(v for pair in reversed(pw) for v in pair)
    return torch.nn.functional.pad(x, flat)

kernel_name = 'gated_mix__gqa_block_cached__gqa_block_cached__decode'

def setup_inputs():

    _w = (lambda a: (lambda t: t.to(torch.bfloat16) if t.is_floating_point() else t)(torch.as_tensor(a)))
    def _A_setup():
        B, Sq, D = 2, 1, 512
        Hq, Hkv, Sk, Dh = 32, 8, 32768, 128
        assert Hq % Hkv == 0, (Hq, Hkv)
        return {
            "x": _w((lambda *s: torch.randn(*s, dtype=torch.bfloat16) * 0.05)(B, Sq, D)),
            "k_cache": _w((lambda *s: torch.randn(*s, dtype=torch.bfloat16) * 6.4)(B, Hkv, Sk, Dh)),
            "v_cache": _w((lambda *s: torch.randn(*s, dtype=torch.bfloat16) * 0.05)(B, Hkv, Sk, Dh)),
            "wq": _w((lambda *s: torch.randn(*s, dtype=torch.bfloat16) * 6.4)(D, Hq * Dh) * (D ** -0.5)),
            "wo": _w((lambda *s: torch.randn(*s, dtype=torch.bfloat16) * 0.05)(Hq * Dh, D) * ((Hq * Dh) ** -0.5)),
        }
    _A_in = _A_setup()

    def _B_setup():
        B, Sq, D = 2, 1, 512
        Hq, Hkv, Sk, Dh = 32, 8, 32768, 128
        assert Hq % Hkv == 0, (Hq, Hkv)
        return {
            "x": _w((lambda *s: torch.randn(*s, dtype=torch.bfloat16) * 0.05)(B, Sq, D)),
            "k_cache": _w((lambda *s: torch.randn(*s, dtype=torch.bfloat16) * 6.4)(B, Hkv, Sk, Dh)),
            "v_cache": _w((lambda *s: torch.randn(*s, dtype=torch.bfloat16) * 0.05)(B, Hkv, Sk, Dh)),
            "wq": _w((lambda *s: torch.randn(*s, dtype=torch.bfloat16) * 6.4)(D, Hq * Dh) * (D ** -0.5)),
            "wo": _w((lambda *s: torch.randn(*s, dtype=torch.bfloat16) * 0.05)(Hq * Dh, D) * ((Hq * Dh) ** -0.5)),
        }
    _B_in = _B_setup()

    return {
        "A_x": _A_in["x"],
        "A_k_cache": _A_in["k_cache"],
        "A_v_cache": _A_in["v_cache"],
        "A_wq": _A_in["wq"],
        "A_wo": _A_in["wo"],
        "B_x": _B_in["x"],
        "B_k_cache": _B_in["k_cache"],
        "B_v_cache": _B_in["v_cache"],
        "B_wq": _B_in["wq"],
        "B_wo": _B_in["wo"],
        "gate_w": _w((lambda *s: torch.randn(*s, dtype=torch.bfloat16) * 0.1)(512) * 16.0),
    }

def reference(A_x, A_k_cache, A_v_cache, A_wq, A_wo, B_x, B_k_cache, B_v_cache, B_wq, B_wo, gate_w):
    def _A_ref(x, k_cache, v_cache, wq, wo):
        B, Sq, D = x.shape
        Hq, Dh = 32, 128
        Hkv = k_cache.shape[1]
        rep = Hq // Hkv
        q = (lambda x, *d: x.permute(*d))((x @ wq).reshape(B, Sq, Hq, Dh), 0, 2, 1, 3)
        k = (lambda x, n, axis: torch.repeat_interleave(x, n, dim=axis))(k_cache, rep, axis=1)
        v = (lambda x, n, axis: torch.repeat_interleave(x, n, dim=axis))(v_cache, rep, axis=1)
        scores = torch.einsum("bhqd,bhkd->bhqk", q, k) * (Dh ** -0.5)
        p = _softmax(scores, axis=-1)
        o = torch.einsum("bhqk,bhkd->bhqd", p, v)
        return (lambda x, *d: x.permute(*d))(o, 0, 2, 1, 3).reshape(B, Sq, Hq * Dh) @ wo

    def _B_ref(x, k_cache, v_cache, wq, wo):
        B, Sq, D = x.shape
        Hq, Dh = 32, 128
        Hkv = k_cache.shape[1]
        rep = Hq // Hkv
        q = (lambda x, *d: x.permute(*d))((x @ wq).reshape(B, Sq, Hq, Dh), 0, 2, 1, 3)
        k = (lambda x, n, axis: torch.repeat_interleave(x, n, dim=axis))(k_cache, rep, axis=1)
        v = (lambda x, n, axis: torch.repeat_interleave(x, n, dim=axis))(v_cache, rep, axis=1)
        scores = torch.einsum("bhqd,bhkd->bhqk", q, k) * (Dh ** -0.5)
        p = _softmax(scores, axis=-1)
        o = torch.einsum("bhqk,bhkd->bhqd", p, v)
        return (lambda x, *d: x.permute(*d))(o, 0, 2, 1, 3).reshape(B, Sq, Hq * Dh) @ wo

    x = A_x
    g = _sigmoid((x * gate_w).sum(-1, keepdims=True))
    a = _A_ref(x, A_k_cache, A_v_cache, A_wq, A_wo)
    b = _B_ref(x, B_k_cache, B_v_cache, B_wq, B_wo)
    return g * a + (1 - g) * b
```

```python
import re

REG = re.compile(r'(?<![\w.])([vas])(\d+)(?![\w\[])|(?<![\w.])([vas])\[(\d+):(\d+)\]|\b(vcc|exec)\b')

def regs_of(op):
    out = []
    for m in REG.finditer(op):
        if m.group(1): out.append(m.group(1) + m.group(2))
        elif m.group(3): out += [m.group(3) + str(i) for i in range(int(m.group(4)), int(m.group(5)) + 1)]
        else: out.append(m.group(6))
    return out

TRANS = ("v_exp_f32", "v_log_f32", "v_rcp_f32", "v_rsq_f32", "v_sqrt_f32")

class Ins:
    def __init__(self, text):
        self.text = text
        t = text.split(";")[0].strip()
        self.label = None; self.op = None; self.target = None
        self.rd = []; self.wr = []; self.kind = "other"; self.states = 1
        self.dpp = False
        if t.endswith(":"):
            self.label = t[:-1]; self.states = 0; return
        if not t or t.startswith("."):
            self.states = 0; self.kind = "dir"; return
        parts = t.split(None, 1)
        op = self.op = parts[0]
        rest = parts[1] if len(parts) > 1 else ""
        ops = []; depth = 0; cur = ""
        for ch in rest:
            if ch in "[(": depth += 1
            if ch in "])": depth -= 1
            if ch == "," and depth == 0: ops.append(cur.strip()); cur = ""
            else: cur += ch
        if cur.strip(): ops.append(cur.strip())
        if ops:
            last = ops[-1].split()
            ops[-1] = last[0]
        R = [regs_of(o) for o in ops]
        flat = lambda l: [x for y in l for x in y]
        if op == "s_nop":
            self.states = int(ops[0], 0) + 1; self.kind = "salu"
        elif op.startswith("s_cbranch") or op == "s_branch":
            self.kind = "branch"; self.target = ops[0]
        elif op.startswith("v_mfma"):
            self.kind = "mfma"; self.wr = R[0]; self.srcA = R[1]; self.srcB = R[2]; self.srcC = R[3]
            self.rd = R[1] + R[2] + R[3]
        elif op.startswith("v_"):
            self.kind = "valu"
            self.dpp = "_dpp" in op
            if op.startswith("v_permlane"):
                self.wr = R[0] + R[1]; self.rd = R[0] + R[1]
            else:
                self.wr = R[0]; self.rd = flat(R[1:])
                if op.startswith("v_fmac") or self.dpp: self.rd = self.rd + R[0]
        elif op.startswith("buffer_load") or op.startswith("global_load"):
            self.kind = "vmem"; self.wr = R[0]; self.rd = flat(R[1:])
        elif op == "buffer_wbl2":
            self.kind = "salu"
        elif op.startswith("buffer_store"):
            self.kind = "vmem"; self.rd = flat(R); self.sdata = R[0]
        elif op.startswith("global_store"):
            self.kind = "vmem"; self.rd = flat(R); self.sdata = R[1]
        elif op.startswith("ds_read") or op.startswith("ds_bpermute") or op.startswith("ds_add_rtn"):
            self.kind = "ds"; self.wr = R[0]; self.rd = flat(R[1:])
        elif op.startswith("ds_"):
            self.kind = "ds"; self.rd = flat(R)
        elif op.startswith("s_"):
            self.kind = "salu"
        else:
            raise ValueError("unknown instruction " + t)

def need(ins, st):
    n = 0
    def req(tag, regs, k):
        nonlocal n
        for r in regs:
            d = st.get((tag, r))
            if d is not None and d < k: n = max(n, k - d)
    if ins.kind == "mfma":
        req("valu", ins.rd, 2)
        req("mfma", ins.srcA + ins.srcB, 8)
        for r in ins.srcC:
            d = st.get(("mfma", r))
            if d is not None and st.get(("mfmaD", r)) != tuple(ins.srcC) and d < 6: n = max(n, 6 - d)
        if ins.srcC != ins.wr: req("mfma", ins.wr, 8)
    elif ins.kind == "valu":
        req("mfma", ins.rd + ins.wr, 8)
        req("mfmaC", ins.wr, 3)
        if ins.dpp or ins.op.startswith("v_permlane"): req("valu", [r for r in ins.rd if r[0] == "v" and r != "vcc"], 2)
        if not ins.op.startswith(TRANS): req("trans", ins.rd, 1)
        else: req("trans", ins.rd, 1)
        req("valus", [r for r in ins.rd if r[0] == "s" or r == "vcc"], 2)
        if ins.op.startswith("v_readfirstlane") or ins.op.startswith("v_readlane"): req("valu", ins.rd, 1)
        req("wstore", ins.wr, 2)
    elif ins.kind in ("vmem", "ds"):
        req("mfma", ins.rd + ins.wr, 8)
        req("valus", [r for r in ins.rd if r[0] == "s"], 5)
        req("wstore", ins.wr, 1)
        req("trans", ins.rd, 1)
    return n

def step(ins, st, extra):
    adv = ins.states + extra
    new = {}
    for k, d in st.items():
        if k[0] == "mfmaD": new[k] = d; continue
        if d + adv < 12: new[k] = d + adv
    if ins.kind == "mfma":
        for r in ins.wr:
            new[("mfma", r)] = 0; new[("mfmaD", r)] = tuple(ins.wr); new.pop(("valu", r), None)
        for r in ins.srcC: new[("mfmaC", r)] = 0
    elif ins.kind == "valu":
        for r in ins.wr:
            if r[0] == "s" or r == "vcc": new[("valus", r)] = 0
            else:
                new[("valu", r)] = 0
                if ins.op.startswith(TRANS): new[("trans", r)] = 0
    elif ins.kind == "vmem" and hasattr(ins, "sdata") and len(ins.sdata) >= 3:
        for r in ins.sdata: new[("wstore", r)] = 0
    for k in [k for k in new if k[0] == "mfmaD" and ("mfma", k[1]) not in new]: del new[k]
    return new

def merge(a, b):
    out = dict(a)
    for k, d in b.items():
        if k[0] == "mfmaD":
            out[k] = d if (k not in a or a[k] == d) else ()
        else:
            out[k] = min(d, a[k]) if k in a else d
    return out

def pad(lines):
    ins = [Ins(l) for l in lines]
    extra = [0] * len(ins)
    at = {}
    for it in range(20):
        changed = False
        st = {}; live = True
        for i, x in enumerate(ins):
            if x.label is not None:
                st = merge(st, at.get(x.label, {})) if live else dict(at.get(x.label, {}))
                live = True
                continue
            if x.kind == "dir": continue
            n = need(x, st)
            if n > extra[i]: extra[i] = n; changed = True
            st2 = {k: (d if k[0] == "mfmaD" else d + extra[i]) for k, d in st.items()}
            st = step(x, st2, 0)
            if x.kind == "branch":
                old = at.get(x.target)
                new = merge(old, st) if old is not None else dict(st)
                if new != old: at[x.target] = new; changed = True
                if x.op == "s_branch": live = False
            if x.op in ("s_endpgm", "s_setpc_b64"): live = False
        if not changed: break
    out = []
    for x, e in zip(ins, extra):
        if e: out.append(f"    s_nop {e-1}")
        out.append(x.text if x.label or x.kind == "dir" else "    " + x.text.strip())
    return out
```

```python
import sys, os
sys.path.insert(0, os.path.dirname(os.path.abspath(__file__)))
from hz import pad

KNAME = "gated_mix__gqa_block_cached__gqa_block_cached__decode_kernel"
LOG2E = 0x3fb8aa3b
SCALE = 0x3db504f3

WS_Q  = 0x10000
WS_ML = 0x30000
WS_O  = 0x100000
WS_P2 = 0x200000
WS_ST = 0x300000
WS_SZ = 0x400000

def gen(NP=5, waits=(4,)*8, R=3, XB=2, wqflags="nt", woflags="nt", kvflags="nt", stamps=False, spin=1 << 17):
    P = max(waits) + 1
    L = []
    def A(s): L.append(s)
    class V: pass
    v = V(); nv = [0]
    def valloc(name, n=1, al=1):
        nv[0] = (nv[0] + al - 1) // al * al
        setattr(v, name, nv[0]); nv[0] += n
    valloc("tid"); valloc("koff"); valloc("voff"); valloc("mask0"); valloc("mask1"); valloc("T");
    valloc("m", 2, 2); v.l = v.m + 1
    valloc("mL"); valloc("y0"); valloc("y1"); valloc("z"); valloc("p"); valloc("pd")
    valloc("q", 4, 2); valloc("acc", 8, 2); valloc("D", 8, 2)
    valloc("W", 18, 2)
    valloc("t", 12, 2)
    valloc("buf", 32 * NP, 4)
    NV = nv[0]
    assert NV <= 256, NV
    def vr(a, n): return f"v[{a}:{a+n-1}]"
    wqr = v.buf + 32 * (NP - 1)
    xr = v.buf + 32 * (NP - 2) + 16
    sK, sV, sWQ, sWO, sWS, sX, sGW, sOUT = 20, 24, 28, 32, 36, 40, 44, 48
    sWave, sTile, sCnt, sE, sL2E, sTmp, sTmp2, sSpin = 3, 52, 53, 54, 55, 56, 57, 58
    sQ1, sQ2, sQ3 = 60, 62, 64
    sRet = 66
    sTag = 68
    sTag16 = 72
    sSave = 74
    sFF = 76
    sStamp = 80
    def sr(a, n=4): return f"s[{a}:{a+n-1}]"
    def stamp(k):
        if stamps: A(f"s_memrealtime s[{sStamp+2*k}:{sStamp+2*k+1}]")

    A(f"{KNAME}:")
    A("s_cmp_ge_u32 s2, 256")
    A("s_cbranch_scc1 L_end")
    stamp(0)
    A("s_lshr_b32 s4, s2, 7")
    A("s_mul_i32 s4, s4, 40")
    A("s_add_u32 s4, s0, s4")
    A("s_addc_u32 s5, s1, 0")
    A("s_load_dwordx8 s[8:15], s[4:5], 8")
    A(f"s_load_dwordx2 {sr(sX,2)}, s[0:1], 0")
    A(f"s_load_dwordx2 {sr(sWS,2)}, s[0:1], 104")
    A("s_load_dwordx4 s[16:19], s[0:1], 80")
    t = v.t
    A(f"v_lshrrev_b32 v{t}, 6, v0")
    A(f"v_and_b32 v0, 63, v0")
    A(f"v_readfirstlane_b32 s{sWave}, v{t}")
    A(f"v_lshrrev_b32 v{t+1}, 3, v0")
    A(f"v_lshl_add_u32 v{t+2}, v{t}, 3, v{t+1}")
    A(f"v_and_b32 v{t+3}, 7, v0")
    A(f"v_lshlrev_b32 v{t+3}, 3, v{t+3}")
    A(f"v_lshl_add_u32 v{t+3}, v{t+2}, 17, v{t+3}")
    A(f"v_bfe_u32 v{t+4}, v0, 2, 1")
    A(f"v_lshlrev_b32 v{t+4}, 10, v{t+4}")
    A(f"v_lshl_add_u32 v{t+4}, v{t+2}, 5, v{t+4}")
    A(f"v_bfe_u32 v{t+5}, v0, 2, 2")
    A(f"v_lshrrev_b32 v{t+6}, 4, v0")
    A(f"v_and_b32 v{t+7}, 3, v0")
    A(f"v_lshlrev_b32 v{v.koff}, 8, v{t+5}")
    A(f"v_lshl_add_u32 v{v.koff}, v{t+6}, 6, v{v.koff}")
    A(f"v_lshl_add_u32 v{v.koff}, v{t+7}, 4, v{v.koff}")
    A(f"v_lshlrev_b32 v{v.voff}, 4, v0")
    A("s_bfe_u32 s77, s2, 0x30004")
    A("s_bfe_u32 s6, s2, 0x10003")
    A("s_and_b32 s7, s2, 7")
    A(f"s_lshl_b32 s{sTmp}, s7, 1")
    A(f"s_add_u32 s{sTmp}, s{sTmp}, s6")
    A(f"s_lshl_b32 s{sTmp}, s{sTmp}, 6")
    A(f"s_lshl_b32 s{sTmp2}, s77, 10")
    A(f"s_add_u32 s{sTmp}, s{sTmp}, s{sTmp2}")
    A(f"s_lshl_b32 s{sTmp2}, s6, 3")
    A(f"s_add_u32 s{sTmp2}, s{sTmp2}, s77")
    A(f"s_lshl_b32 s{sTmp2}, s{sTmp2}, 3")
    A(f"s_add_u32 s{sTmp2}, s{sTmp2}, s7")
    A(f"s_lshl_b32 s{sTmp2}, s{sTmp2}, 20")
    A(f"s_lshl_b32 s{sTile}, s{sWave}, 12")
    A(f"s_mov_b32 s{sX+2}, 2048")
    A(f"s_mov_b32 s{sX+3}, 0x20000")
    A(f"s_mov_b32 s{sWQ+2}, 0x400000")
    A(f"s_mov_b32 s{sWQ+3}, 0x20000")
    A(f"s_mov_b32 s{sK+2}, 0x100000")
    A(f"s_mov_b32 s{sK+3}, 0x20000")
    A(f"s_mov_b32 s{sV+2}, 0x100000")
    A(f"s_mov_b32 s{sV+3}, 0x20000")
    A("s_waitcnt lgkmcnt(0)")
    A(f"s_mov_b32 s{sWQ}, s12")
    A(f"s_mov_b32 s{sWQ+1}, s13")
    A(f"buffer_load_dwordx4 {vr(xr,4)}, v{t+4}, {sr(sX)}, 0 offen")
    A(f"buffer_load_dwordx4 {vr(xr+4,4)}, v{t+4}, {sr(sX)}, 0 offen offset:16")
    for tt in range(16):
        A(f"buffer_load_dwordx2 {vr(wqr+2*tt,2)}, v{t+3}, {sr(sWQ)}, s{sTmp} offen {wqflags}")
        if tt < 15: A(f"s_add_u32 s{sTmp}, s{sTmp}, 8192")
    A(f"s_load_dword s{sE}, {sr(sWS,2)}, 0")
    A(f"s_add_u32 s{sK}, s8, s{sTmp2}")
    A(f"s_addc_u32 s{sK+1}, s9, 0")
    A(f"s_add_u32 s{sV}, s10, s{sTmp2}")
    A(f"s_addc_u32 s{sV+1}, s11, 0")
    bufof = {}
    def slot(i): return v.buf + 32 * bufof[i >> 3] + 4 * (i & 7)
    def issue(i):
        tl, p = i >> 3, i & 7
        if tl not in bufof: bufof[tl] = tl if tl < NP else (tl - NP) & 1
        if p == 0 and i > 0: A(f"s_add_u32 s{sTile}, s{sTile}, 16384")
        off = f" offset:{1024*(p&3)}" if p & 3 else ""
        if p < 4: A(f"buffer_load_dwordx4 {vr(slot(i),4)}, v{v.koff}, {sr(sK)}, s{sTile} offen{off} {kvflags}")
        else:     A(f"buffer_load_dwordx4 {vr(slot(i),4)}, v{v.voff}, {sr(sV)}, s{sTile} offen{off} {kvflags}")
    sel = xr + 8; bq = xr + 12
    A(f"s_mov_b32 s{sWS+2}, {WS_SZ}")
    A(f"s_mov_b32 s{sWS+3}, 0x20000")
    A(f"s_mov_b32 s{sWO}, s14")
    A(f"s_mov_b32 s{sWO+1}, s15")
    A(f"s_mov_b32 s{sWO+2}, 0x400000")
    A(f"s_mov_b32 s{sWO+3}, 0x20000")
    A(f"s_mov_b32 s{sGW}, s16")
    A(f"s_mov_b32 s{sGW+1}, s17")
    A(f"s_mov_b32 s{sGW+2}, 1024")
    A(f"s_mov_b32 s{sGW+3}, 0x20000")
    A(f"s_mov_b32 s{sOUT}, s18")
    A(f"s_mov_b32 s{sOUT+1}, s19")
    A(f"s_mov_b32 s{sOUT+2}, 2048")
    A(f"s_mov_b32 s{sOUT+3}, 0x20000")
    A(f"s_mov_b32 s{sL2E}, {LOG2E:#x}")
    A(f"s_mov_b32 s{sFF}, 0xff")
    for k, s in ((1, sQ1), (2, sQ2), (3, sQ3)):
        A(f"s_mov_b32 s{s}, {0x11111111 << k:#x}")
        A(f"s_mov_b32 s{s+1}, {0x11111111 << k:#x}")
    A(f"v_mov_b32 v{t+8}, 0xffff")
    A(f"v_mov_b32 v{t+9}, 0xffff0000")
    A(f"v_cndmask_b32 v{v.mask1}, 0, v{t+8}, {sr(sQ2,2)}")
    A(f"v_cndmask_b32 v{v.mask1}, v{v.mask1}, v{t+9}, {sr(sQ3,2)}")
    A(f"v_cndmask_b32 v{v.mask0}, v{t+8}, v{t+9}, {sr(sQ1,2)}")
    A(f"v_cmp_gt_u32 vcc, 2, v{t+7}")
    A(f"v_cndmask_b32 v{v.mask0}, 0, v{v.mask0}, vcc")
    A(f"s_mov_b32 s{sTmp}, 0x01000100")
    A(f"s_mov_b32 s{sTmp2}, 0x03020302")
    A(f"v_mov_b32 v{t+8}, 0x0c0c0c0c")
    A(f"v_bfi_b32 v{sel}, v{v.mask0}, s{sTmp}, v{t+8}")
    A(f"v_bfi_b32 v{sel+1}, v{v.mask1}, s{sTmp}, v{t+8}")
    A(f"v_bfi_b32 v{sel+2}, v{v.mask0}, s{sTmp2}, v{t+8}")
    A(f"v_bfi_b32 v{sel+3}, v{v.mask1}, s{sTmp2}, v{t+8}")
    for k in range(18):
        if k % 4 < 2: A(f"v_mov_b32 v{v.W+k}, 0")
    for k in range(8): A(f"v_mov_b32 v{v.acc+k}, 0")
    A(f"v_mov_b32 v{v.m}, 0xff800000")
    A(f"v_mov_b32 v{v.mL}, 0xff800000")
    A(f"v_mov_b32 v{v.l}, 0")
    A(f"v_lshl_add_u32 v{t+8}, v{t}, 10, v{v.voff}")
    i = 0
    for m in range(8):
        A(f"s_waitcnt vmcnt({14 - 2*m + i})")
        if m >= 8 - P:
            issue(i); i += 1
        for k in range(4):
            A(f"v_perm_b32 v{bq+k}, v{xr+m}, v{xr+m}, v{sel+k}")
        c = "0" if m == 0 else vr(v.D, 4)
        A(f"v_mfma_f32_16x16x32_bf16 {vr(v.D,4)}, {vr(wqr+4*m,4)}, {vr(bq,4)}, {c}")
    stamp(1)
    for k in range(XB):
        issue(i); i += 1
    A(f"ds_write_b128 v{t+8}, {vr(v.D,4)}")
    A(f"v_bfe_u32 v{t+9}, v0, 4, 1")
    A(f"v_lshlrev_b32 v{t+9}, 8, v{t+9}")
    A(f"v_lshrrev_b32 v{t+10}, 5, v0")
    A(f"v_lshl_add_u32 v{t+9}, v{t+10}, 6, v{t+9}")
    A(f"v_lshl_add_u32 v{t+9}, v{t+7}, 4, v{t+9}")
    A(f"v_lshl_add_u32 v{t+9}, v{t+5}, 2, v{t+9}")
    A("s_waitcnt lgkmcnt(0)")
    A("s_barrier")
    A(f"s_add_u32 s{sE}, s{sE}, 1")
    A(f"s_and_b32 s{sTag16}, s{sE}, 0xffff")
    for k in range(4):
        A(f"s_add_u32 s{sTag+k}, s{sE}, {37*k}")
        A(f"s_and_b32 s{sTag+k}, s{sTag+k}, 0xff")
    A(f"s_cmp_lg_u32 s{sWave}, 0")
    A("s_cbranch_scc1 L_nopub")
    qr = wqr
    for w in range(4):
        for r1 in range(2):
            A(f"ds_read_b32 v{qr+2*w+r1}, v{t+9} offset:{1024*w + 640*r1}")
    A(f"s_lshr_b32 s{sTmp}, s2, 4")
    A(f"s_lshl_b32 s{sTmp}, s{sTmp}, 12")
    A(f"s_lshl_b32 s{sTmp2}, s7, 1")
    A(f"s_add_u32 s{sTmp2}, s{sTmp2}, s6")
    A(f"s_lshl_b32 s{sTmp2}, s{sTmp2}, 7")
    A(f"s_add_u32 s{sTmp}, s{sTmp}, s{sTmp2}")
    A(f"s_add_u32 s{sTmp}, s{sTmp}, {WS_Q}")
    A(f"v_and_b32 v{t+11}, 31, v0")
    A(f"v_lshlrev_b32 v{t+11}, 2, v{t+11}")
    A(f"v_lshl_add_u32 v{t+11}, v{t+10}, 11, v{t+11}")
    A("s_waitcnt lgkmcnt(0)")
    for k in range(4): A(f"v_add_f32 v{qr+k}, v{qr+k}, v{qr+4+k}")
    A(f"v_add_f32 v{qr}, v{qr}, v{qr+2}")
    A(f"v_add_f32 v{qr+1}, v{qr+1}, v{qr+3}")
    A(f"v_add_f32 v{qr}, v{qr}, v{qr+1}")
    A(f"v_cvt_pk_bf16_f32 v{qr}, 0, v{qr}")
    A(f"v_or_b32 v{t+8}, s{sTag16}, v{qr}")
    A(f"buffer_store_dword v{t+8}, v{t+11}, {sr(sWS)}, s{sTmp} offen sc1")
    A("L_nopub:")
    stamp(2)
    A(f"v_lshl_add_u32 v{t+9}, v{t+5}, 2, v{t+6}")
    A(f"v_lshlrev_b32 v{t+9}, 7, v{t+9}")
    A(f"v_lshl_add_u32 v{t+9}, v{t+7}, 5, v{t+9}")
    A(f"s_lshr_b32 s{sTmp}, s2, 3")
    A(f"s_lshl_b32 s{sTmp}, s{sTmp}, 11")
    A(f"s_add_u32 s{sTmp}, s{sTmp}, {WS_Q}")
    A(f"s_mov_b32 s{sSpin}, {spin}")
    qp = v.D
    def qpoll():
        A(f"buffer_load_dwordx4 {vr(qp,4)}, v{t+9}, {sr(sWS)}, s{sTmp} offen sc1")
        A(f"buffer_load_dwordx4 {vr(qp+4,4)}, v{t+9}, {sr(sWS)}, s{sTmp} offen offset:16 sc1")
    while i < 8 * NP:
        A(f"s_waitcnt vmcnt({waits[i&7]})")
        if i == 8 * NP - P: qpoll()
        issue(i); i += 1
    A(f"s_waitcnt vmcnt({P})")
    A("L_qchk:")
    A(f"v_xor_b32 v{t+8}, s{sTag16}, v{qp}")
    for k in range(1, 8): A(f"v_bitop3_b32 v{t+8}, v{qp+k}, s{sTag16}, v{t+8} bitop3:0xbe")
    A(f"v_and_b32 v{t+8}, 0xffff, v{t+8}")
    A(f"v_cmp_ne_u32 vcc, 0, v{t+8}")
    A("s_cbranch_vccnz L_qretry")
    A(f"s_mov_b32 s{sTmp2}, 0x07060302")
    for k in range(4): A(f"v_perm_b32 v{v.q+k}, v{qp+2*k+1}, v{qp+2*k}, s{sTmp2}")
    stamp(3)
    nstub = [0]
    def red(u):
        D = v.D + 4 * (u & 1)
        A(f"v_add_f32_dpp v{v.y0}, v{D+(u^1)}, v{D+u} quad_perm:[1,0,3,2] row_mask:0xf bank_mask:0xf")
        A(f"v_add_f32_dpp v{v.y1}, v{D+(u^3)}, v{D+(u^2)} quad_perm:[1,0,3,2] row_mask:0xf bank_mask:0xf")
        dst = v.T if u == 0 else v.z
        A(f"v_add_f32_dpp v{dst}, v{v.y1}, v{v.y0} quad_perm:[2,3,0,1] row_mask:0xf bank_mask:0xf")
        if u: A(f"v_cndmask_b32 v{v.T}, v{v.T}, v{v.z}, {sr((sQ1,sQ2,sQ3)[u-1],2)}")
    def ands(u):
        w = v.W + 2 + 4 * u
        A(f"v_and_b32_dpp v{w}, v{v.pd}, v{v.mask0} quad_perm:[{u},{u},{u},{u}] row_mask:0xf bank_mask:0xf")
        A(f"v_and_b32_dpp v{w+1}, v{v.pd}, v{v.mask1} quad_perm:[{u},{u},{u},{u}] row_mask:0xf bank_mask:0xf")
    def process(j, last=False):
        p = j & 7
        if p < 4:
            A(f"v_mfma_f32_16x16x32_bf16 {vr(v.D+4*(p&1),4)}, {vr(slot(j),4)}, {vr(v.q,4)}, 0")
            if p >= 1: red(p - 1)
            if p == 3:
                red(3)
                A(f"v_cvt_pk_bf16_f32 v{v.T}, 0, v{v.T}")
                A(f"v_mul_f32 v{v.T}, {SCALE:#x}, v{v.T}")
                A(f"v_cvt_pk_bf16_f32 v{v.T}, 0, v{v.T}")
                A(f"v_cmp_gt_f32 vcc, v{v.T}, v{v.m}")
                k = nstub[0]; nstub[0] += 1
                A(f"s_cbranch_vccnz L_res{k}")
                A(f"L_back{k}:")
                A(f"v_fma_f32 v{v.p}, v{v.T}, s{sL2E}, -v{v.mL}")
                A(f"v_exp_f32 v{v.p}, v{v.p}")
                A(f"v_cvt_pk_bf16_f32 v{v.pd}, v{v.p}, v{v.p}")
                A(f"v_add_f32 v{v.l}, v{v.l}, v{v.p}")
                ands(0)
                if last:
                    ands(1); ands(2); ands(3)
        else:
            u = p - 4
            w = v.W + 4 * u
            A(f"v_mfma_f32_16x16x32_bf16 {vr(v.acc,4)}, {vr(slot(j),4)}, {vr(w+2,4)}, {vr(v.acc,4)}")
            A(f"v_mfma_f32_16x16x32_bf16 {vr(v.acc+4,4)}, {vr(slot(j),4)}, {vr(w,4)}, {vr(v.acc+4,4)}")
            if u < 3 and not last: ands(u + 1)
    j = 0
    landed = i - P
    def owner(i):
        tl = i >> 3; b = (tl - NP) & 1
        prev = max(x for x in bufof if bufof[x] == b and x < tl)
        return prev * 8 + (i & 7)
    while not (j == i - P and i % 16 == 0 and (j >> 3) >= NP):
        while j <= owner(i):
            assert j < landed, "catch-up needs data not yet landed"
            process(j); j += 1
        A(f"s_waitcnt vmcnt({waits[i&7]})")
        landed = max(landed, i - waits[i & 7])
        issue(i); i += 1
        n = 0
        while n < R and j < i - P:
            assert j < landed
            process(j); j += 1; n += 1
    i0 = i
    assert (512 - i0) % 16 == 0 and i0 < 512
    A(f"s_mov_b32 s{sCnt}, {(512 - i0)//16}")
    stamp(4)
    A(".p2align 6")
    A("L_loop:")
    for k in range(16):
        A(f"s_waitcnt vmcnt({waits[i&7]})")
        issue(i); i += 1
        if k == 15:
            A(f"s_sub_u32 s{sCnt}, s{sCnt}, 1")
        process(j); j += 1
    A(f"s_cmp_lg_u32 s{sCnt}, 0")
    A("s_cbranch_scc1 L_loop")
    wor = v.buf + 64
    gx = v.buf + 96
    assert NP >= 4
    A(f"s_bfe_u32 s{sTmp}, s2, 0x50002")
    A(f"s_lshl_b32 s{sTmp}, s{sTmp}, 2")
    A(f"s_add_u32 s{sTmp}, s{sTmp}, s{sWave}")
    A(f"s_lshl_b32 s{sTmp}, s{sTmp}, 15")
    A(f"s_and_b32 s{sTmp2}, s2, 3")
    A(f"s_lshl_b32 s{sTmp2}, s{sTmp2}, 8")
    A(f"s_add_u32 s{sTmp}, s{sTmp}, s{sTmp2}")
    A(f"v_and_b32 v{t+8}, 0xff, v{v.voff}")
    A(f"v_lshl_add_u32 v{t+8}, v{t+6}, 10, v{t+8}")
    extra = []
    for k in range(8):
        extra.append([f"buffer_load_dwordx4 {vr(wor+4*k,4)}, v{t+8}, {sr(sWO)}, s{sTmp} offen {woflags}",
                      f"s_add_u32 s{sTmp}, s{sTmp}, 4096"])
    jend = j + P
    lastk3 = jend - 5
    while j < jend:
        A(f"s_waitcnt vmcnt({waits[i&7]})")
        for s in extra.pop(0): A(s)
        i += 1
        process(j, last=(j >= lastk3));
        if j == lastk3:
            A(f"v_add_f32_dpp v{v.l}, v{v.l}, v{v.l} quad_perm:[1,0,3,2] row_mask:0xf bank_mask:0xf")
            A(f"v_add_f32_dpp v{v.l}, v{v.l}, v{v.l} quad_perm:[2,3,0,1] row_mask:0xf bank_mask:0xf")
            A(f"v_mov_b32 v{v.y0}, v{v.l}")
            A(f"v_permlane16_swap_b32 v{v.y0}, v{v.l}")
            A(f"v_add_f32 v{v.l}, v{v.l}, v{v.y0}")
            A(f"v_mov_b32 v{v.y0}, v{v.l}")
            A(f"v_permlane32_swap_b32 v{v.y0}, v{v.l}")
            A(f"v_add_f32 v{v.l}, v{v.l}, v{v.y0}")
            A(f"s_lshl_b32 s{sTmp2}, s{sWave}, 9")
            A(f"v_lshl_add_u32 v{t+9}, v0, 3, s{sTmp2}")
            A(f"ds_write_b64 v{t+9}, {vr(v.m,2)} offset:8192")
            A(f"s_lshl_b32 s{sTmp2}, s{sWave}, 11")
            A(f"v_add_u32 v{t+9}, s{sTmp2}, v{v.voff}")
        j += 1
    assert P >= 5
    for e in extra:
        for s in e: A(s)
    A(f"s_and_b32 s{sTmp2}, s2, 1")
    A(f"s_lshl_b32 s{sTmp2}, s{sTmp2}, 10")
    A(f"buffer_load_dwordx4 {vr(gx,4)}, v{v.voff}, {sr(sX)}, s{sTmp2} offen")
    A(f"buffer_load_dwordx4 {vr(gx+4,4)}, v{v.voff}, {sr(sGW)}, 0 offen")
    A(f"ds_write_b128 v{t+9}, {vr(v.acc,4)}")
    A(f"ds_write_b128 v{t+9}, {vr(v.acc+4,4)} offset:1024")
    stamp(5)
    A(f"v_lshlrev_b32 v{t+9}, 3, v0")
    A(f"s_lshl_b32 s{sTmp2}, s{sWave}, 10")
    A(f"v_add_u32 v{t+10}, s{sTmp2}, v{v.voff}")
    A("s_waitcnt lgkmcnt(0)")
    A("s_barrier")
    a = v.buf
    ml = a
    oo = a + 8
    A(f"s_cmp_eq_u32 s{sWave}, 3")
    A("s_cbranch_scc1 L_gate")
    for w in range(4): A(f"ds_read_b64 {vr(ml+2*w,2)}, v{t+9} offset:{8192+512*w}")
    for w in range(4): A(f"ds_read_b128 {vr(oo+4*w,4)}, v{t+10} offset:{2048*w}")
    A(f"s_lshl_b32 s{sTmp}, s2, 11")
    A(f"s_lshl_b32 s{sTmp2}, s{sWave}, 8")
    A(f"s_add_u32 s{sTmp}, s{sTmp}, s{sTmp2}")
    A(f"s_add_u32 s{sTmp}, s{sTmp}, {WS_O}")
    A(f"v_lshl_add_u32 v{t+11}, v{t+6}, 2, v{t+7}")
    A(f"v_lshlrev_b32 v{t+11}, 4, v{t+11}")
    A(f"v_lshl_add_u32 v{t+11}, v{t+5}, 9, v{t+11}")
    A("s_waitcnt lgkmcnt(4)" if not stamps else "s_waitcnt lgkmcnt(0)")
    M = a + 24;
    A(f"v_max3_f32 v{M}, v{ml}, v{ml+2}, v{ml+4}")
    A(f"v_max_f32 v{M}, v{M}, v{ml+6}")
    A(f"v_mul_f32 v{M+1}, s{sL2E}, v{M}")
    for w in range(4): A(f"v_fma_f32 v{ml+2*w}, v{ml+2*w}, s{sL2E}, -v{M+1}")
    for w in range(4): A(f"v_exp_f32 v{ml+2*w}, v{ml+2*w}")
    A(f"s_cmp_eq_u32 s{sWave}, 2")
    A("s_cbranch_scc1 L_pubml")
    A("s_waitcnt lgkmcnt(0)")
    for r in range(4): A(f"v_mul_f32 v{oo+r}, v{ml}, v{oo+r}")
    for w in range(1, 4):
        for r in range(4): A(f"v_fmac_f32 v{oo+r}, v{ml+2*w}, v{oo+4*w+r}")
    for r in range(4):
        A(f"v_and_b32 v{oo+r}, 0xffffff00, v{oo+r}")
        A(f"v_or_b32 v{oo+r}, s{sTag+r}, v{oo+r}")
    A(f"buffer_store_dwordx4 {vr(oo,4)}, v{t+11}, {sr(sWS)}, s{sTmp} offen sc1")
    A("s_branch L_stageB")
    A("L_pubml:")
    A(f"v_mul_f32 v{M+1}, v{ml}, v{ml+1}")
    for w in range(1, 4): A(f"v_fmac_f32 v{M+1}, v{ml+2*w}, v{ml+2*w+1}")
    A(f"v_or_b32 v{M}, s{sTag}, v{M}")
    A(f"v_and_b32 v{M+1}, 0xffffff00, v{M+1}")
    A(f"v_or_b32 v{M+1}, s{sTag+1}, v{M+1}")
    A(f"v_mov_b32 v{M+2}, s{sTag+2}")
    A(f"v_mov_b32 v{M+3}, s{sTag+3}")
    A(f"s_lshr_b32 s{sTmp}, s2, 4")
    A(f"s_lshl_b32 s{sTmp}, s{sTmp}, 10")
    A(f"s_and_b32 s{sTmp2}, s2, 15")
    A(f"s_lshl_b32 s{sTmp2}, s{sTmp2}, 4")
    A(f"s_add_u32 s{sTmp}, s{sTmp}, s{sTmp2}")
    A(f"s_add_u32 s{sTmp}, s{sTmp}, {WS_ML}")
    A(f"v_lshlrev_b32 v{t+11}, 8, v{t+5}")
    A("s_mov_b64 exec, 0x1111")
    A(f"buffer_store_dwordx4 {vr(M,4)}, v{t+11}, {sr(sWS)}, s{sTmp} offen sc1")
    A("s_mov_b64 exec, -1")
    A("s_branch L_stageB")
    A("L_gate:")
    gg = gx + 8
    A("s_cmp_ge_u32 s2, 32")
    A("s_cbranch_scc1 L_stageB")
    A("s_waitcnt vmcnt(0)")
    for k in range(4):
        A(f"v_lshlrev_b32 v{a+2*k}, 16, v{gx+k}")
        A(f"v_and_b32 v{a+2*k+1}, 0xffff0000, v{gx+k}")
        A(f"v_lshlrev_b32 v{a+8+2*k}, 16, v{gx+4+k}")
        A(f"v_and_b32 v{a+8+2*k+1}, 0xffff0000, v{gx+4+k}")
    for k in range(8): A(f"v_mul_f32 v{a+k}, v{a+k}, v{a+8+k}")
    for k in range(8): A(f"v_cvt_pk_bf16_f32 v{a+k}, 0, v{a+k}")
    for k in range(4): A(f"v_add_f32 v{a+k}, v{a+k}, v{a+4+k}")
    A(f"v_add_f32 v{a}, v{a}, v{a+2}")
    A(f"v_add_f32 v{a+1}, v{a+1}, v{a+3}")
    A(f"v_add_f32 v{a}, v{a}, v{a+1}")
    A(f"v_add_f32_dpp v{a}, v{a}, v{a} quad_perm:[1,0,3,2] row_mask:0xf bank_mask:0xf")
    A(f"v_add_f32_dpp v{a}, v{a}, v{a} quad_perm:[2,3,0,1] row_mask:0xf bank_mask:0xf")
    A(f"v_add_f32_dpp v{a}, v{a}, v{a} row_half_mirror row_mask:0xf bank_mask:0xf")
    A(f"v_add_f32_dpp v{a}, v{a}, v{a} row_mirror row_mask:0xf bank_mask:0xf")
    A(f"v_mov_b32 v{a+1}, v{a}")
    A(f"v_permlane16_swap_b32 v{a+1}, v{a}")
    A(f"v_add_f32 v{a}, v{a}, v{a+1}")
    A(f"v_mov_b32 v{a+1}, v{a}")
    A(f"v_permlane32_swap_b32 v{a+1}, v{a}")
    A(f"v_add_f32 v{a}, v{a}, v{a+1}")
    A(f"v_cvt_pk_bf16_f32 v{a}, 0, v{a}")
    A(f"v_mul_f32 v{a}, {LOG2E | 0x80000000:#x}, v{a}")
    A(f"v_exp_f32 v{a}, v{a}")
    A(f"v_add_f32 v{a}, 1.0, v{a}")
    A(f"v_rcp_f32 v{a}, v{a}")
    A(f"v_cvt_pk_bf16_f32 v{gg}, 0, v{a}")
    A(f"v_sub_f32 v{gg+1}, 1.0, v{gg}")
    A(f"v_cvt_pk_bf16_f32 v{gg+1}, 0, v{gg+1}")
    A("L_stageB:")
    stamp(6)
    pa = a + 32
    sb = a + 44
    bb = a + 52
    A(f"s_and_b32 s{sTmp}, s2, 0xf0")
    A(f"s_lshl_b32 s{sTmp}, s{sTmp}, 11")
    A(f"s_bfe_u32 s{sTmp2}, s2, 0x20002")
    A(f"s_lshl_b32 s{sTmp2}, s{sTmp2}, 9")
    A(f"s_add_u32 s{sTmp}, s{sTmp}, s{sTmp2}")
    A(f"s_lshl_b32 s{sTmp2}, s{sWave}, 6")
    A(f"s_add_u32 s{sTmp}, s{sTmp}, s{sTmp2}")
    A(f"s_add_u32 s{sTmp}, s{sTmp}, {WS_O}")
    A(f"v_and_b32 v{t+9}, 15, v0")
    A(f"v_lshlrev_b32 v{t+10}, 4, v{t+9}")
    A(f"v_lshlrev_b32 v{t+9}, 11, v{t+9}")
    A(f"v_lshl_add_u32 v{t+9}, v{t+6}, 4, v{t+9}")
    A(f"s_lshr_b32 s{sTmp2}, s2, 2")
    A(f"s_lshl_b32 s{sTmp2}, s{sTmp2}, 8")
    A(f"s_add_u32 s{sTmp2}, s{sTmp2}, {WS_ML}")
    def bpoll():
        A(f"buffer_load_dwordx4 {vr(pa+8,4)}, v{t+10}, {sr(sWS)}, s{sTmp2} offen sc1")
        A(f"buffer_load_dwordx4 {vr(pa,4)}, v{t+9}, {sr(sWS)}, s{sTmp} offen sc1")
        A(f"buffer_load_dwordx4 {vr(pa+4,4)}, v{t+9}, {sr(sWS)}, s{sTmp} offen offset:256 sc1")
    bpoll()
    A(f"v_or_b32 v{t+11}, v{v.mask0}, v{v.mask1}")
    A(f"v_mov_b32 v{bb}, 0x0c0c0c0c")
    A(f"s_mov_b32 s4, 0x01000100")
    A(f"s_mov_b32 s5, 0x03020302")
    A(f"v_bfi_b32 v{bb+1}, v{t+11}, s4, v{bb}")
    A(f"v_bfi_b32 v{bb+2}, v{t+11}, s5, v{bb}")
    A(f"v_bfe_u32 v{t+11}, v0, 1, 2")
    for d in range(4):
        A(f"v_cmp_eq_u32 vcc, {d}, v{t+11}")
        A(f"v_cndmask_b32 v{sb+d}, v{bb}, v{bb+1}, vcc")
        A(f"v_cndmask_b32 v{sb+4+d}, v{bb}, v{bb+2}, vcc")
    A("L_bchk:")
    A("s_waitcnt vmcnt(0)")
    A(f"v_xor_b32 v{t+11}, s{sTag}, v{pa}")
    for k in range(1, 12): A(f"v_bitop3_b32 v{t+11}, v{pa+k}, s{sTag+(k&3)}, v{t+11} bitop3:0xbe")
    A(f"v_and_b32 v{t+11}, 0xff, v{t+11}")
    A(f"v_cmp_ne_u32 vcc, 0, v{t+11}")
    A("s_cbranch_vccnz L_bretry")
    A("s_mov_b64 exec, -1")
    stamp(7)
    mm, ll = pa + 8, pa + 9
    A(f"v_and_b32 v{mm}, 0xffff0000, v{mm}")
    A(f"v_max_f32_dpp v{pa+10}, v{mm}, v{mm} quad_perm:[1,0,3,2] row_mask:0xf bank_mask:0xf")
    A(f"v_max_f32_dpp v{pa+10}, v{pa+10}, v{pa+10} quad_perm:[2,3,0,1] row_mask:0xf bank_mask:0xf")
    A(f"v_max_f32_dpp v{pa+10}, v{pa+10}, v{pa+10} row_half_mirror row_mask:0xf bank_mask:0xf")
    A(f"v_sub_f32 v{mm}, v{mm}, v{pa+10}")
    A(f"v_mul_f32 v{mm}, s{sL2E}, v{mm}")
    A(f"v_exp_f32 v{mm}, v{mm}")
    A(f"v_mul_f32 v{ll}, v{ll}, v{mm}")
    for k in range(8): A(f"v_mul_f32 v{pa+k}, v{pa+k}, v{mm}")
    for pm in ("quad_perm:[1,0,3,2]", "quad_perm:[2,3,0,1]", "row_half_mirror"):
        A(f"v_add_f32_dpp v{ll}, v{ll}, v{ll} {pm} row_mask:0xf bank_mask:0xf")
        if pm == "row_half_mirror": A(f"v_rcp_f32 v{ll}, v{ll}")
        for k in range(8): A(f"v_add_f32_dpp v{pa+k}, v{pa+k}, v{pa+k} {pm} row_mask:0xf bank_mask:0xf")
    for k in range(8): A(f"v_mul_f32 v{pa+k}, v{pa+k}, v{ll}")
    for r in range(4): A(f"v_cvt_pk_bf16_f32 v{pa+r}, v{pa+r}, v{pa+4+r}")
    for tp in range(8):
        B = bb + 4 * (tp & 1)
        for d in range(4): A(f"v_perm_b32 v{B+d}, v{pa+(tp>>1)}, v{pa+(tp>>1)}, v{sb+4*(tp&1)+d}")
        if tp >= 1:
            c = "0" if tp == 1 else vr(v.D, 4)
            A(f"v_mfma_f32_16x16x32_bf16 {vr(v.D,4)}, {vr(wor+4*(tp-1),4)}, {vr(bb+4*((tp-1)&1),4)}, {c}")
    A(f"s_lshl_b32 s{sTmp2}, s{sWave}, 10")
    A(f"v_add_u32 v{t+10}, s{sTmp2}, v{v.voff}")
    A(f"v_mfma_f32_16x16x32_bf16 {vr(v.D,4)}, {vr(wor+28,4)}, {vr(bb+4,4)}, {vr(v.D,4)}")
    A(f"ds_write_b128 v{t+10}, {vr(v.D,4)} offset:10240")
    A("s_waitcnt lgkmcnt(0)")
    A("s_barrier")
    A(f"s_cmp_eq_u32 s{sWave}, 3")
    A("s_cbranch_scc1 L_stageC")
    A(f"s_cmp_lg_u32 s{sWave}, 0")
    A("s_cbranch_scc1 L_fin")
    for w in range(1, 4): A(f"ds_read_b128 {vr(a+4*w,4)}, v{v.voff} offset:{10240+1024*w}")
    A(f"s_and_b32 s{sTmp}, s2, 3")
    A(f"s_lshl_b32 s{sTmp}, s{sTmp}, 6")
    A(f"s_lshr_b32 s{sTmp2}, s2, 2")
    A(f"s_add_u32 s{sTmp}, s{sTmp}, s{sTmp2}")
    A(f"s_lshl_b32 s{sTmp}, s{sTmp}, 10")
    A(f"s_add_u32 s{sTmp}, s{sTmp}, {WS_P2}")
    A("s_waitcnt lgkmcnt(0)")
    for r in range(4): A(f"v_add_f32 v{a+4+r}, v{a+4+r}, v{v.D+r}")
    for r in range(4): A(f"v_add_f32 v{a+8+r}, v{a+8+r}, v{a+12+r}")
    for r in range(4): A(f"v_add_f32 v{a+4+r}, v{a+4+r}, v{a+8+r}")
    for r in range(4):
        A(f"v_and_b32 v{a+4+r}, 0xffffff00, v{a+4+r}")
        A(f"v_or_b32 v{a+4+r}, s{sTag+r}, v{a+4+r}")
    A(f"buffer_store_dwordx4 {vr(a+4,4)}, v{v.voff}, {sr(sWS)}, s{sTmp} offen sc1")
    A("s_branch L_fin")
    A("L_stageC:")
    A("s_cmp_ge_u32 s2, 32")
    A("s_cbranch_scc1 L_fin")
    pc = a
    A(f"s_lshr_b32 s{sTmp}, s2, 3")
    A(f"s_lshl_b32 s{sTmp}, s{sTmp}, 16")
    A(f"s_and_b32 s{sTmp2}, s2, 7")
    A(f"s_lshl_b32 s{sTmp2}, s{sTmp2}, 7")
    A(f"s_add_u32 s{sTmp}, s{sTmp}, s{sTmp2}")
    A(f"s_add_u32 s8, s{sTmp}, {WS_P2}")
    for k in range(1, 8): A(f"s_add_u32 s{8+k}, s8, {8192*k}")
    A(f"v_and_b32 v{t+9}, 0x70, v{v.voff}")
    A(f"v_lshl_add_u32 v{t+9}, v{t+1}, 10, v{t+9}")
    A(f"s_and_b32 s{sTmp}, s2, 1")
    A(f"s_lshl_b32 s{sTmp}, s{sTmp}, 10")
    A(f"s_lshr_b32 s{sTmp2}, s2, 1")
    A(f"s_lshl_b32 s{sTmp2}, s{sTmp2}, 6")
    A(f"s_add_u32 s{sTmp}, s{sTmp}, s{sTmp2}")
    A(f"v_and_b32 v{t+10}, 7, v0")
    A(f"v_lshl_add_u32 v{t+10}, v{t+6}, 3, v{t+10}")
    A(f"v_lshlrev_b32 v{t+10}, 1, v{t+10}")
    A("L_cpoll:")
    for k in range(8): A(f"buffer_load_dwordx4 {vr(pc+4*k,4)}, v{t+9}, {sr(sWS)}, s{8+k} offen sc1")
    for k in range(8):
        A(f"s_waitcnt vmcnt({7-k})")
        for r in range(4):
            if k == 0 and r == 0: A(f"v_xor_b32 v{t+11}, s{sTag}, v{pc}")
            else: A(f"v_bitop3_b32 v{t+11}, v{pc+4*k+r}, s{sTag+r}, v{t+11} bitop3:0xbe")
    A(f"v_and_b32 v{t+11}, 0xff, v{t+11}")
    A(f"v_cmp_ne_u32 vcc, 0, v{t+11}")
    A("s_cbranch_vccnz L_cretry")
    A("s_mov_b64 exec, -1")
    stamp(8)
    for h in (0, 16):
        for r in range(8): A(f"v_add_f32 v{pc+h+r}, v{pc+h+r}, v{pc+h+8+r}")
    for h in (0, 16):
        for r in range(4): A(f"v_add_f32 v{pc+h+r}, v{pc+h+r}, v{pc+h+4+r}")
    for h in (0, 16):
        for r in range(2): A(f"v_permlane32_swap_b32 v{pc+h+r}, v{pc+h+2+r}")
    for h in (0, 16):
        for r in range(2): A(f"v_add_f32 v{pc+h+r}, v{pc+h+r}, v{pc+h+2+r}")
    for h in (0, 16): A(f"v_permlane16_swap_b32 v{pc+h}, v{pc+h+1}")
    for h in (0, 16): A(f"v_add_f32 v{pc+h}, v{pc+h}, v{pc+h+1}")
    for h in (0, 16): A(f"v_add_f32_dpp v{pc+h}, v{pc+h}, v{pc+h} row_ror:8 row_mask:0xf bank_mask:0xf")
    for h in (0, 16): A(f"v_cvt_pk_bf16_f32 v{pc+h}, 0, v{pc+h}")
    A(f"v_mul_f32 v{pc}, v{gg}, v{pc}")
    A(f"v_mul_f32 v{pc+16}, v{gg+1}, v{pc+16}")
    for h in (0, 16): A(f"v_cvt_pk_bf16_f32 v{pc+h}, 0, v{pc+h}")
    A(f"v_add_f32 v{pc}, v{pc}, v{pc+16}")
    A(f"v_cvt_pk_bf16_f32 v{pc}, v{pc}, v{pc}")
    A("s_mov_b32 s4, 0x00ff00ff")
    A("s_mov_b32 s5, 0x00ff00ff")
    A("s_mov_b64 exec, s[4:5]")
    A(f"buffer_store_short v{pc}, v{t+10}, {sr(sOUT)}, s{sTmp} offen")
    A("s_cmp_lg_u32 s2, 0")
    A("s_cbranch_scc1 L_fin")
    A("s_mov_b64 exec, 1")
    A(f"v_mov_b32 v{pc+1}, s{sE}")
    A(f"buffer_store_dword v{pc+1}, v0, {sr(sWS)}, 0 offen")
    A("L_fin:")
    if stamps:
        A("s_mov_b64 exec, 1")
        stamp(9)
        A("s_waitcnt lgkmcnt(0)")
        A(f"s_lshl_b32 s{sTmp}, s2, 2")
        A(f"s_add_u32 s{sTmp}, s{sTmp}, s{sWave}")
        A(f"s_lshl_b32 s{sTmp}, s{sTmp}, 6")
        A(f"s_add_u32 s{sTmp}, s{sTmp}, {WS_ST}")
        A("s_getreg_b32 s4, hwreg(HW_REG_XCC_ID)")
        A("s_getreg_b32 s5, hwreg(HW_REG_HW_ID)")
        for k in range(10): A(f"v_mov_b32 v{a+k}, s{sStamp+2*k}")
        A(f"v_mov_b32 v{a+10}, s4")
        A(f"v_mov_b32 v{a+11}, s5")
        A(f"v_mov_b32 v{a+12}, s{sSpin}")
        for k in range(4): A(f"buffer_store_dwordx4 {vr(a+4*k,4)}, v0, {sr(sWS)}, s{sTmp} offen offset:{16*k}")
    A("L_end:")
    A("s_endpgm")
    def spinchk():
        A(f"s_sub_u32 s{sSpin}, s{sSpin}, 1")
        A("s_cbranch_scc1 L_end")
    A("L_qretry:")
    spinchk(); qpoll()
    A("s_waitcnt vmcnt(0)")
    A("s_branch L_qchk")
    A("L_bretry:")
    spinchk()
    A("s_mov_b64 exec, vcc")
    bpoll()
    A("s_branch L_bchk")
    A("L_cretry:")
    spinchk()
    A("s_mov_b64 exec, vcc")
    A("s_branch L_cpoll")
    for k in range(nstub[0]):
        A(f"L_res{k}:")
        A(f"s_call_b64 {sr(sRet,2)}, L_rescale")
        A(f"s_branch L_back{k}")
    A("L_rescale:")
    A("s_nop 7")
    x, y = v.y0, v.y1
    A(f"v_max_f32_dpp v{x}, v{v.T}, v{v.T} quad_perm:[1,0,3,2] row_mask:0xf bank_mask:0xf")
    A(f"v_max_f32_dpp v{x}, v{x}, v{x} quad_perm:[2,3,0,1] row_mask:0xf bank_mask:0xf")
    A(f"v_mov_b32 v{y}, v{x}")
    A(f"v_permlane16_swap_b32 v{y}, v{x}")
    A(f"v_max_f32 v{x}, v{x}, v{y}")
    A(f"v_mov_b32 v{y}, v{x}")
    A(f"v_permlane32_swap_b32 v{y}, v{x}")
    A(f"v_max3_f32 v{v.m}, v{x}, v{y}, v{v.m}")
    A(f"v_mul_f32 v{x}, s{sL2E}, v{v.m}")
    A(f"v_sub_f32 v{y}, v{v.mL}, v{x}")
    A(f"v_exp_f32 v{y}, v{y}")
    A(f"v_mov_b32 v{v.mL}, v{x}")
    A(f"v_mul_f32 v{v.l}, v{v.l}, v{y}")
    for k in range(8): A(f"v_mul_f32 v{v.acc+k}, v{v.acc+k}, v{y}")
    A(f"s_setpc_b64 {sr(sRet,2)}")
    body = pad(L)
    ref = open(os.path.join(os.path.dirname(os.path.abspath(__file__)), "header.txt")).read().rstrip("\n").split("\n")
    out = ref + ["; @launch grid=(256,1,1) block=(256,1,1) lds=16384",
                 '.amdgcn_target "amdgcn-amd-amdhsa--gfx950"', ".text", f".globl {KNAME}", ".p2align 8",
                 f".type {KNAME},@function"] + body
    acc = (NV + 3) // 4 * 4
    out += ['.section .rodata,"a"', ".p2align 6", f".amdhsa_kernel {KNAME}",
            f"  .amdhsa_next_free_vgpr {NV}", "  .amdhsa_next_free_sgpr 102", f"  .amdhsa_accum_offset {acc}",
            "  .amdhsa_group_segment_fixed_size 0", "  .amdhsa_kernarg_size 112", "  .amdhsa_user_sgpr_count 2",
            "  .amdhsa_user_sgpr_kernarg_segment_ptr 1", "  .amdhsa_system_sgpr_workgroup_id_x 1",
            "  .amdhsa_float_denorm_mode_32 3", ".end_amdhsa_kernel"]
    return "\n".join(out) + "\n"

if __name__ == "__main__":
    kw = eval("dict(" + (sys.argv[1] if len(sys.argv) > 1 else "") + ")")
    sys.stdout.write(gen(**kw))
```

```python
import sys, os
sys.path.insert(0, os.path.dirname(os.path.abspath(__file__)))
from hz import pad

KNAME = "gated_mix__gqa_block_cached__gqa_block_cached__decode_kernel"
LOG2E = 0x3fb8aa3b
SCALE = 0x3db504f3

WS_Q  = 0x10000
WS_ML = 0x30000
WS_O  = 0x100000
WS_P2 = 0x200000
WS_ST = 0x300000
WS_SZ = 0x400000

def gen(NP=5, waits=(4,)*8, R=3, XB=2, wqflags="nt", woflags="nt", kvflags="nt", stamps=False, spin=1 << 17, rep=1, dbg=False):
    P = max(waits) + 1
    L = []
    def A(s): L.append(s)
    class V: pass
    v = V(); nv = [0]
    def valloc(name, n=1, al=1):
        nv[0] = (nv[0] + al - 1) // al * al
        setattr(v, name, nv[0]); nv[0] += n
    valloc("tid"); valloc("koff"); valloc("voff"); valloc("mask0"); valloc("mask1"); valloc("T");
    valloc("m", 2, 2); v.l = v.m + 1
    valloc("mL"); valloc("y0"); valloc("y1"); valloc("z"); valloc("p"); valloc("pd")
    valloc("q", 4, 2); valloc("acc", 8, 2); valloc("D", 8, 2)
    valloc("W", 18, 2)
    valloc("t", 12, 2)
    valloc("buf", 32 * NP, 4)
    NV = nv[0]
    assert NV <= 256, NV
    def vr(a, n): return f"v[{a}:{a+n-1}]"
    wqr = v.buf + 32 * (NP - 1)
    xr = v.buf + 32 * (NP - 2) + 16
    sK, sV, sWQ, sWO, sWS, sX, sGW, sOUT = 20, 24, 28, 32, 36, 40, 44, 48
    sWave, sTile, sCnt, sE, sL2E, sTmp, sTmp2, sSpin = 3, 52, 53, 54, 55, 56, 57, 58
    sQ1, sQ2, sQ3 = 60, 62, 64
    sRet = 66
    sTag = 68
    sTag16 = 72
    sSave = 74
    sFF = 76
    sStamp = 80
    def sr(a, n=4): return f"s[{a}:{a+n-1}]"
    def stamp(k):
        if stamps: A(f"s_memrealtime s[{sStamp+2*k}:{sStamp+2*k+1}]")

    A(f"{KNAME}:")
    A("s_cmp_ge_u32 s2, 256")
    A("s_cbranch_scc1 L_end")
    stamp(0)
    A("s_lshr_b32 s4, s2, 7")
    A("s_mul_i32 s4, s4, 40")
    A("s_add_u32 s4, s0, s4")
    A("s_addc_u32 s5, s1, 0")
    A("s_load_dwordx8 s[8:15], s[4:5], 8")
    A(f"s_load_dwordx2 {sr(sX,2)}, s[0:1], 0")
    A(f"s_load_dwordx2 {sr(sWS,2)}, s[0:1], 104")
    A("s_load_dwordx4 s[16:19], s[0:1], 80")
    t = v.t
    A(f"v_lshrrev_b32 v{t}, 6, v0")
    A(f"v_and_b32 v0, 63, v0")
    A(f"v_readfirstlane_b32 s{sWave}, v{t}")
    A(f"v_lshrrev_b32 v{t+1}, 3, v0")
    A(f"v_lshl_add_u32 v{t+2}, v{t}, 3, v{t+1}")
    A(f"v_and_b32 v{t+3}, 7, v0")
    A(f"v_lshlrev_b32 v{t+3}, 3, v{t+3}")
    A(f"v_lshl_add_u32 v{t+3}, v{t+2}, 17, v{t+3}")
    A(f"v_bfe_u32 v{t+4}, v0, 2, 1")
    A(f"v_lshlrev_b32 v{t+4}, 10, v{t+4}")
    A(f"v_lshl_add_u32 v{t+4}, v{t+2}, 5, v{t+4}")
    A(f"v_bfe_u32 v{t+5}, v0, 2, 2")
    A(f"v_lshrrev_b32 v{t+6}, 4, v0")
    A(f"v_and_b32 v{t+7}, 3, v0")
    A(f"v_lshlrev_b32 v{v.koff}, 8, v{t+5}")
    A(f"v_lshl_add_u32 v{v.koff}, v{t+6}, 6, v{v.koff}")
    A(f"v_lshl_add_u32 v{v.koff}, v{t+7}, 4, v{v.koff}")
    A(f"v_lshlrev_b32 v{v.voff}, 4, v0")
    A("s_bfe_u32 s77, s2, 0x30004")
    A("s_bfe_u32 s6, s2, 0x10003")
    A("s_and_b32 s7, s2, 7")
    A(f"s_lshl_b32 s{sTmp}, s7, 1")
    A(f"s_add_u32 s{sTmp}, s{sTmp}, s6")
    A(f"s_lshl_b32 s{sTmp}, s{sTmp}, 6")
    A(f"s_lshl_b32 s{sTmp2}, s77, 10")
    A(f"s_add_u32 s{sTmp}, s{sTmp}, s{sTmp2}")
    A(f"s_lshl_b32 s{sTmp2}, s6, 3")
    A(f"s_add_u32 s{sTmp2}, s{sTmp2}, s77")
    A(f"s_lshl_b32 s{sTmp2}, s{sTmp2}, 3")
    A(f"s_add_u32 s{sTmp2}, s{sTmp2}, s7")
    A(f"s_lshl_b32 s{sTmp2}, s{sTmp2}, 20")
    A(f"s_lshl_b32 s{sTile}, s{sWave}, 12")
    A(f"s_mov_b32 s{sX+2}, 2048")
    A(f"s_mov_b32 s{sX+3}, 0x20000")
    A(f"s_mov_b32 s{sWQ+2}, 0x400000")
    A(f"s_mov_b32 s{sWQ+3}, 0x20000")
    A(f"s_mov_b32 s{sK+2}, 0x100000")
    A(f"s_mov_b32 s{sK+3}, 0x20000")
    A(f"s_mov_b32 s{sV+2}, 0x100000")
    A(f"s_mov_b32 s{sV+3}, 0x20000")
    A("s_waitcnt lgkmcnt(0)")
    A(f"s_mov_b32 s{sWQ}, s12")
    A(f"s_mov_b32 s{sWQ+1}, s13")
    A(f"buffer_load_dwordx4 {vr(xr,4)}, v{t+4}, {sr(sX)}, 0 offen")
    A(f"buffer_load_dwordx4 {vr(xr+4,4)}, v{t+4}, {sr(sX)}, 0 offen offset:16")
    for tt in range(16):
        A(f"buffer_load_dwordx2 {vr(wqr+2*tt,2)}, v{t+3}, {sr(sWQ)}, s{sTmp} offen {wqflags}")
        if tt < 15: A(f"s_add_u32 s{sTmp}, s{sTmp}, 8192")
    A(f"s_load_dword s{sE}, {sr(sWS,2)}, 0")
    A(f"s_add_u32 s{sK}, s8, s{sTmp2}")
    A(f"s_addc_u32 s{sK+1}, s9, 0")
    A(f"s_add_u32 s{sV}, s10, s{sTmp2}")
    A(f"s_addc_u32 s{sV+1}, s11, 0")
    bufof = {}
    def slot(i): return v.buf + 32 * bufof[i >> 3] + 4 * (i & 7)
    def issue(i):
        tl, p = i >> 3, i & 7
        if tl not in bufof: bufof[tl] = tl if tl < NP else (tl - NP) & 1
        if p == 0 and i > 0:
            A(f"s_add_u32 s{sTile}, s{sTile}, 16384")
            if rep > 1: A(f"s_and_b32 s{sTile}, s{sTile}, 0xfffff")
        off = f" offset:{1024*(p&3)}" if p & 3 else ""
        if p < 4: A(f"buffer_load_dwordx4 {vr(slot(i),4)}, v{v.koff}, {sr(sK)}, s{sTile} offen{off} {kvflags}")
        else:     A(f"buffer_load_dwordx4 {vr(slot(i),4)}, v{v.voff}, {sr(sV)}, s{sTile} offen{off} {kvflags}")
    sel = xr + 8; bq = xr + 12
    A(f"s_mov_b32 s{sWS+2}, {WS_SZ}")
    A(f"s_mov_b32 s{sWS+3}, 0x20000")
    A(f"s_mov_b32 s{sWO}, s14")
    A(f"s_mov_b32 s{sWO+1}, s15")
    A(f"s_mov_b32 s{sWO+2}, 0x400000")
    A(f"s_mov_b32 s{sWO+3}, 0x20000")
    A(f"s_mov_b32 s{sGW}, s16")
    A(f"s_mov_b32 s{sGW+1}, s17")
    A(f"s_mov_b32 s{sGW+2}, 1024")
    A(f"s_mov_b32 s{sGW+3}, 0x20000")
    A(f"s_mov_b32 s{sOUT}, s18")
    A(f"s_mov_b32 s{sOUT+1}, s19")
    A(f"s_mov_b32 s{sOUT+2}, 2048")
    A(f"s_mov_b32 s{sOUT+3}, 0x20000")
    A(f"s_mov_b32 s{sL2E}, {LOG2E:#x}")
    A(f"s_mov_b32 s{sFF}, 0xff")
    for k, s in ((1, sQ1), (2, sQ2), (3, sQ3)):
        A(f"s_mov_b32 s{s}, {0x11111111 << k:#x}")
        A(f"s_mov_b32 s{s+1}, {0x11111111 << k:#x}")
    A(f"v_mov_b32 v{t+8}, 0xffff")
    A(f"v_mov_b32 v{t+9}, 0xffff0000")
    A(f"v_cndmask_b32 v{v.mask1}, 0, v{t+8}, {sr(sQ2,2)}")
    A(f"v_cndmask_b32 v{v.mask1}, v{v.mask1}, v{t+9}, {sr(sQ3,2)}")
    A(f"v_cndmask_b32 v{v.mask0}, v{t+8}, v{t+9}, {sr(sQ1,2)}")
    A(f"v_cmp_gt_u32 vcc, 2, v{t+7}")
    A(f"v_cndmask_b32 v{v.mask0}, 0, v{v.mask0}, vcc")
    A(f"s_mov_b32 s{sTmp}, 0x01000100")
    A(f"s_mov_b32 s{sTmp2}, 0x03020302")
    A(f"v_mov_b32 v{t+8}, 0x0c0c0c0c")
    A(f"v_bfi_b32 v{sel}, v{v.mask0}, s{sTmp}, v{t+8}")
    A(f"v_bfi_b32 v{sel+1}, v{v.mask1}, s{sTmp}, v{t+8}")
    A(f"v_bfi_b32 v{sel+2}, v{v.mask0}, s{sTmp2}, v{t+8}")
    A(f"v_bfi_b32 v{sel+3}, v{v.mask1}, s{sTmp2}, v{t+8}")
    for k in range(18):
        if k % 4 < 2: A(f"v_mov_b32 v{v.W+k}, 0")
    for k in range(8): A(f"v_mov_b32 v{v.acc+k}, 0")
    A(f"v_mov_b32 v{v.m}, 0xff800000")
    A(f"v_mov_b32 v{v.mL}, 0xff800000")
    A(f"v_mov_b32 v{v.l}, 0")
    A(f"v_lshl_add_u32 v{t+8}, v{t}, 10, v{v.voff}")
    i = 0
    for m in range(8):
        A(f"s_waitcnt vmcnt({14 - 2*m + i})")
        if m >= 8 - P:
            issue(i); i += 1
        for k in range(4):
            A(f"v_perm_b32 v{bq+k}, v{xr+m}, v{xr+m}, v{sel+k}")
        c = "0" if m == 0 else vr(v.D, 4)
        A(f"v_mfma_f32_16x16x32_bf16 {vr(v.D,4)}, {vr(wqr+4*m,4)}, {vr(bq,4)}, {c}")
    stamp(1)
    for k in range(XB):
        issue(i); i += 1
    A(f"ds_write_b128 v{t+8}, {vr(v.D,4)}")
    A(f"v_bfe_u32 v{t+9}, v0, 4, 1")
    A(f"v_lshlrev_b32 v{t+9}, 8, v{t+9}")
    A(f"v_lshrrev_b32 v{t+10}, 5, v0")
    A(f"v_lshl_add_u32 v{t+9}, v{t+10}, 6, v{t+9}")
    A(f"v_lshl_add_u32 v{t+9}, v{t+7}, 4, v{t+9}")
    A(f"v_lshl_add_u32 v{t+9}, v{t+5}, 2, v{t+9}")
    A("s_waitcnt lgkmcnt(0)")
    A("s_barrier")
    A(f"s_add_u32 s{sE}, s{sE}, 1")
    A(f"s_and_b32 s{sTag16}, s{sE}, 0xffff")
    for k in range(4):
        A(f"s_add_u32 s{sTag+k}, s{sE}, {37*k}")
        A(f"s_and_b32 s{sTag+k}, s{sTag+k}, 0xff")
    A(f"s_cmp_lg_u32 s{sWave}, 0")
    A("s_cbranch_scc1 L_nopub")
    qr = wqr
    for w in range(4):
        for r1 in range(2):
            A(f"ds_read_b32 v{qr+2*w+r1}, v{t+9} offset:{1024*w + 640*r1}")
    A(f"s_lshr_b32 s{sTmp}, s2, 4")
    A(f"s_lshl_b32 s{sTmp}, s{sTmp}, 12")
    A(f"s_lshl_b32 s{sTmp2}, s7, 1")
    A(f"s_add_u32 s{sTmp2}, s{sTmp2}, s6")
    A(f"s_lshl_b32 s{sTmp2}, s{sTmp2}, 7")
    A(f"s_add_u32 s{sTmp}, s{sTmp}, s{sTmp2}")
    A(f"s_add_u32 s{sTmp}, s{sTmp}, {WS_Q}")
    A(f"v_and_b32 v{t+11}, 31, v0")
    A(f"v_lshlrev_b32 v{t+11}, 2, v{t+11}")
    A(f"v_lshl_add_u32 v{t+11}, v{t+10}, 11, v{t+11}")
    A("s_waitcnt lgkmcnt(0)")
    for k in range(4): A(f"v_add_f32 v{qr+k}, v{qr+k}, v{qr+4+k}")
    A(f"v_add_f32 v{qr}, v{qr}, v{qr+2}")
    A(f"v_add_f32 v{qr+1}, v{qr+1}, v{qr+3}")
    A(f"v_add_f32 v{qr}, v{qr}, v{qr+1}")
    A(f"v_cvt_pk_bf16_f32 v{qr}, 0, v{qr}")
    A(f"v_or_b32 v{t+8}, s{sTag16}, v{qr}")
    A(f"buffer_store_dword v{t+8}, v{t+11}, {sr(sWS)}, s{sTmp} offen sc1")
    A("L_nopub:")
    stamp(2)
    A(f"v_lshl_add_u32 v{t+9}, v{t+5}, 2, v{t+6}")
    A(f"v_lshlrev_b32 v{t+9}, 7, v{t+9}")
    A(f"v_lshl_add_u32 v{t+9}, v{t+7}, 5, v{t+9}")
    A(f"s_lshr_b32 s{sTmp}, s2, 3")
    A(f"s_lshl_b32 s{sTmp}, s{sTmp}, 11")
    A(f"s_add_u32 s{sTmp}, s{sTmp}, {WS_Q}")
    A(f"s_mov_b32 s{sSpin}, {spin}")
    qp = v.D
    def qpoll():
        A(f"buffer_load_dwordx4 {vr(qp,4)}, v{t+9}, {sr(sWS)}, s{sTmp} offen sc1")
        A(f"buffer_load_dwordx4 {vr(qp+4,4)}, v{t+9}, {sr(sWS)}, s{sTmp} offen offset:16 sc1")
    while i < 8 * NP:
        A(f"s_waitcnt vmcnt({waits[i&7]})")
        if i == 8 * NP - P: qpoll()
        issue(i); i += 1
    A(f"s_waitcnt vmcnt({P})")
    A("L_qchk:")
    A(f"v_xor_b32 v{t+8}, s{sTag16}, v{qp}")
    for k in range(1, 8): A(f"v_bitop3_b32 v{t+8}, v{qp+k}, s{sTag16}, v{t+8} bitop3:0xbe")
    A(f"v_and_b32 v{t+8}, 0xffff, v{t+8}")
    A(f"v_cmp_ne_u32 vcc, 0, v{t+8}")
    A("s_cbranch_vccnz L_qretry")
    A(f"s_mov_b32 s{sTmp2}, 0x07060302")
    for k in range(4): A(f"v_perm_b32 v{v.q+k}, v{qp+2*k+1}, v{qp+2*k}, s{sTmp2}")
    stamp(3)
    nstub = [0]
    def red(u):
        D = v.D + 4 * (u & 1)
        A(f"v_add_f32_dpp v{v.y0}, v{D+(u^1)}, v{D+u} quad_perm:[1,0,3,2] row_mask:0xf bank_mask:0xf")
        A(f"v_add_f32_dpp v{v.y1}, v{D+(u^3)}, v{D+(u^2)} quad_perm:[1,0,3,2] row_mask:0xf bank_mask:0xf")
        dst = v.T if u == 0 else v.z
        A(f"v_add_f32_dpp v{dst}, v{v.y1}, v{v.y0} quad_perm:[2,3,0,1] row_mask:0xf bank_mask:0xf")
        if u: A(f"v_cndmask_b32 v{v.T}, v{v.T}, v{v.z}, {sr((sQ1,sQ2,sQ3)[u-1],2)}")
    def ands(u):
        w = v.W + 2 + 4 * u
        A(f"v_and_b32_dpp v{w}, v{v.pd}, v{v.mask0} quad_perm:[{u},{u},{u},{u}] row_mask:0xf bank_mask:0xf")
        A(f"v_and_b32_dpp v{w+1}, v{v.pd}, v{v.mask1} quad_perm:[{u},{u},{u},{u}] row_mask:0xf bank_mask:0xf")
    def process(j, last=False):
        p = j & 7
        if p < 4:
            A(f"v_mfma_f32_16x16x32_bf16 {vr(v.D+4*(p&1),4)}, {vr(slot(j),4)}, {vr(v.q,4)}, 0")
            if p >= 1: red(p - 1)
            if p == 3:
                red(3)
                A(f"v_cvt_pk_bf16_f32 v{v.T}, 0, v{v.T}")
                A(f"v_mul_f32 v{v.T}, {SCALE:#x}, v{v.T}")
                A(f"v_cvt_pk_bf16_f32 v{v.T}, 0, v{v.T}")
                A(f"v_cmp_gt_f32 vcc, v{v.T}, v{v.m}")
                k = nstub[0]; nstub[0] += 1
                A(f"s_cbranch_vccnz L_res{k}")
                A(f"L_back{k}:")
                A(f"v_fma_f32 v{v.p}, v{v.T}, s{sL2E}, -v{v.mL}")
                A(f"v_exp_f32 v{v.p}, v{v.p}")
                A(f"v_cvt_pk_bf16_f32 v{v.pd}, v{v.p}, v{v.p}")
                A(f"v_add_f32 v{v.l}, v{v.l}, v{v.p}")
                ands(0)
                if last:
                    ands(1); ands(2); ands(3)
        else:
            u = p - 4
            w = v.W + 4 * u
            A(f"v_mfma_f32_16x16x32_bf16 {vr(v.acc,4)}, {vr(slot(j),4)}, {vr(w+2,4)}, {vr(v.acc,4)}")
            A(f"v_mfma_f32_16x16x32_bf16 {vr(v.acc+4,4)}, {vr(slot(j),4)}, {vr(w,4)}, {vr(v.acc+4,4)}")
            if u < 3 and not last: ands(u + 1)
    j = 0
    landed = i - P
    def owner(i):
        tl = i >> 3; b = (tl - NP) & 1
        prev = max(x for x in bufof if bufof[x] == b and x < tl)
        return prev * 8 + (i & 7)
    while not (j == i - P and i % 16 == 0 and (j >> 3) >= NP):
        while j <= owner(i):
            assert j < landed, "catch-up needs data not yet landed"
            process(j); j += 1
        A(f"s_waitcnt vmcnt({waits[i&7]})")
        landed = max(landed, i - waits[i & 7])
        issue(i); i += 1
        n = 0
        while n < R and j < i - P:
            assert j < landed
            process(j); j += 1; n += 1
    i0 = i
    assert (512 - i0) % 16 == 0 and i0 < 512
    A(f"s_mov_b32 s{sCnt}, {(512*rep - i0)//16}")
    stamp(4)
    A(".p2align 6")
    A("L_loop:")
    for k in range(16):
        A(f"s_waitcnt vmcnt({waits[i&7]})")
        issue(i); i += 1
        if k == 15:
            A(f"s_sub_u32 s{sCnt}, s{sCnt}, 1")
        process(j); j += 1
    A(f"s_cmp_lg_u32 s{sCnt}, 0")
    A("s_cbranch_scc1 L_loop")
    wor = v.buf + 64
    gx = v.buf + 96
    assert NP >= 4
    A(f"s_bfe_u32 s{sTmp}, s2, 0x50002")
    A(f"s_lshl_b32 s{sTmp}, s{sTmp}, 2")
    A(f"s_add_u32 s{sTmp}, s{sTmp}, s{sWave}")
    A(f"s_lshl_b32 s{sTmp}, s{sTmp}, 15")
    A(f"s_and_b32 s{sTmp2}, s2, 3")
    A(f"s_lshl_b32 s{sTmp2}, s{sTmp2}, 8")
    A(f"s_add_u32 s{sTmp}, s{sTmp}, s{sTmp2}")
    A(f"v_and_b32 v{t+8}, 0xff, v{v.voff}")
    A(f"v_lshl_add_u32 v{t+8}, v{t+6}, 10, v{t+8}")
    extra = []
    for k in range(8):
        extra.append([f"buffer_load_dwordx4 {vr(wor+4*k,4)}, v{t+8}, {sr(sWO)}, s{sTmp} offen {woflags}",
                      f"s_add_u32 s{sTmp}, s{sTmp}, 4096"])
    jend = j + P
    lastk3 = jend - 5
    while j < jend:
        A(f"s_waitcnt vmcnt({waits[i&7]})")
        for s in extra.pop(0): A(s)
        i += 1
        process(j, last=(j >= lastk3));
        if j == lastk3:
            A(f"v_add_f32_dpp v{v.l}, v{v.l}, v{v.l} quad_perm:[1,0,3,2] row_mask:0xf bank_mask:0xf")
            A(f"v_add_f32_dpp v{v.l}, v{v.l}, v{v.l} quad_perm:[2,3,0,1] row_mask:0xf bank_mask:0xf")
            A(f"v_mov_b32 v{v.y0}, v{v.l}")
            A(f"v_permlane16_swap_b32 v{v.y0}, v{v.l}")
            A(f"v_add_f32 v{v.l}, v{v.l}, v{v.y0}")
            A(f"v_mov_b32 v{v.y0}, v{v.l}")
            A(f"v_permlane32_swap_b32 v{v.y0}, v{v.l}")
            A(f"v_add_f32 v{v.l}, v{v.l}, v{v.y0}")
            A(f"s_lshl_b32 s{sTmp2}, s{sWave}, 9")
            A(f"v_lshl_add_u32 v{t+9}, v0, 3, s{sTmp2}")
            A(f"ds_write_b64 v{t+9}, {vr(v.m,2)} offset:8192")
            A(f"s_lshl_b32 s{sTmp2}, s{sWave}, 11")
            A(f"v_add_u32 v{t+9}, s{sTmp2}, v{v.voff}")
        j += 1
    assert P >= 5
    for e in extra:
        for s in e: A(s)
    A(f"s_and_b32 s{sTmp2}, s2, 1")
    A(f"s_lshl_b32 s{sTmp2}, s{sTmp2}, 10")
    A(f"buffer_load_dwordx4 {vr(gx,4)}, v{v.voff}, {sr(sX)}, s{sTmp2} offen")
    A(f"buffer_load_dwordx4 {vr(gx+4,4)}, v{v.voff}, {sr(sGW)}, 0 offen")
    A(f"ds_write_b128 v{t+9}, {vr(v.acc,4)}")
    A(f"ds_write_b128 v{t+9}, {vr(v.acc+4,4)} offset:1024")
    stamp(5)
    A(f"v_lshlrev_b32 v{t+9}, 3, v0")
    A(f"s_lshl_b32 s{sTmp2}, s{sWave}, 10")
    A(f"v_add_u32 v{t+10}, s{sTmp2}, v{v.voff}")
    A("s_waitcnt lgkmcnt(0)")
    A("s_barrier")
    a = v.buf
    ml = a
    oo = a + 8
    A(f"s_cmp_eq_u32 s{sWave}, 3")
    A("s_cbranch_scc1 L_gate")
    for w in range(4): A(f"ds_read_b64 {vr(ml+2*w,2)}, v{t+9} offset:{8192+512*w}")
    for w in range(4): A(f"ds_read_b128 {vr(oo+4*w,4)}, v{t+10} offset:{2048*w}")
    A(f"s_lshl_b32 s{sTmp}, s2, 11")
    A(f"s_lshl_b32 s{sTmp2}, s{sWave}, 8")
    A(f"s_add_u32 s{sTmp}, s{sTmp}, s{sTmp2}")
    A(f"s_add_u32 s{sTmp}, s{sTmp}, {WS_O}")
    A(f"v_lshl_add_u32 v{t+11}, v{t+6}, 2, v{t+7}")
    A(f"v_lshlrev_b32 v{t+11}, 4, v{t+11}")
    A(f"v_lshl_add_u32 v{t+11}, v{t+5}, 9, v{t+11}")
    A("s_waitcnt lgkmcnt(4)" if not stamps else "s_waitcnt lgkmcnt(0)")
    M = a + 24;
    A(f"v_max3_f32 v{M}, v{ml}, v{ml+2}, v{ml+4}")
    A(f"v_max_f32 v{M}, v{M}, v{ml+6}")
    A(f"v_mul_f32 v{M+1}, s{sL2E}, v{M}")
    for w in range(4): A(f"v_fma_f32 v{ml+2*w}, v{ml+2*w}, s{sL2E}, -v{M+1}")
    for w in range(4): A(f"v_exp_f32 v{ml+2*w}, v{ml+2*w}")
    A(f"s_cmp_eq_u32 s{sWave}, 2")
    A("s_cbranch_scc1 L_pubml")
    A("s_waitcnt lgkmcnt(0)")
    for r in range(4): A(f"v_mul_f32 v{oo+r}, v{ml}, v{oo+r}")
    for w in range(1, 4):
        for r in range(4): A(f"v_fmac_f32 v{oo+r}, v{ml+2*w}, v{oo+4*w+r}")
    for r in range(4):
        A(f"v_and_b32 v{oo+r}, 0xffffff00, v{oo+r}")
        A(f"v_or_b32 v{oo+r}, s{sTag+r}, v{oo+r}")
    A(f"buffer_store_dwordx4 {vr(oo,4)}, v{t+11}, {sr(sWS)}, s{sTmp} offen sc1")
    A("s_branch L_stageB")
    A("L_pubml:")
    A(f"v_mul_f32 v{M+1}, v{ml}, v{ml+1}")
    for w in range(1, 4): A(f"v_fmac_f32 v{M+1}, v{ml+2*w}, v{ml+2*w+1}")
    A(f"v_or_b32 v{M}, s{sTag}, v{M}")
    A(f"v_and_b32 v{M+1}, 0xffffff00, v{M+1}")
    A(f"v_or_b32 v{M+1}, s{sTag+1}, v{M+1}")
    A(f"v_mov_b32 v{M+2}, s{sTag+2}")
    A(f"v_mov_b32 v{M+3}, s{sTag+3}")
    A(f"s_lshr_b32 s{sTmp}, s2, 4")
    A(f"s_lshl_b32 s{sTmp}, s{sTmp}, 10")
    A(f"s_and_b32 s{sTmp2}, s2, 15")
    A(f"s_lshl_b32 s{sTmp2}, s{sTmp2}, 4")
    A(f"s_add_u32 s{sTmp}, s{sTmp}, s{sTmp2}")
    A(f"s_add_u32 s{sTmp}, s{sTmp}, {WS_ML}")
    A(f"v_lshlrev_b32 v{t+11}, 8, v{t+5}")
    A("s_mov_b64 exec, 0x1111")
    A(f"buffer_store_dwordx4 {vr(M,4)}, v{t+11}, {sr(sWS)}, s{sTmp} offen sc1")
    A("s_mov_b64 exec, -1")
    A("s_branch L_stageB")
    A("L_gate:")
    gg = gx + 8
    A("s_cmp_ge_u32 s2, 32")
    A("s_cbranch_scc1 L_stageB")
    A("s_waitcnt vmcnt(0)")
    for k in range(4):
        A(f"v_lshlrev_b32 v{a+2*k}, 16, v{gx+k}")
        A(f"v_and_b32 v{a+2*k+1}, 0xffff0000, v{gx+k}")
        A(f"v_lshlrev_b32 v{a+8+2*k}, 16, v{gx+4+k}")
        A(f"v_and_b32 v{a+8+2*k+1}, 0xffff0000, v{gx+4+k}")
    for k in range(8): A(f"v_mul_f32 v{a+k}, v{a+k}, v{a+8+k}")
    for k in range(8): A(f"v_cvt_pk_bf16_f32 v{a+k}, 0, v{a+k}")
    for k in range(4): A(f"v_add_f32 v{a+k}, v{a+k}, v{a+4+k}")
    A(f"v_add_f32 v{a}, v{a}, v{a+2}")
    A(f"v_add_f32 v{a+1}, v{a+1}, v{a+3}")
    A(f"v_add_f32 v{a}, v{a}, v{a+1}")
    A(f"v_add_f32_dpp v{a}, v{a}, v{a} quad_perm:[1,0,3,2] row_mask:0xf bank_mask:0xf")
    A(f"v_add_f32_dpp v{a}, v{a}, v{a} quad_perm:[2,3,0,1] row_mask:0xf bank_mask:0xf")
    A(f"v_add_f32_dpp v{a}, v{a}, v{a} row_half_mirror row_mask:0xf bank_mask:0xf")
    A(f"v_add_f32_dpp v{a}, v{a}, v{a} row_mirror row_mask:0xf bank_mask:0xf")
    A(f"v_mov_b32 v{a+1}, v{a}")
    A(f"v_permlane16_swap_b32 v{a+1}, v{a}")
    A(f"v_add_f32 v{a}, v{a}, v{a+1}")
    A(f"v_mov_b32 v{a+1}, v{a}")
    A(f"v_permlane32_swap_b32 v{a+1}, v{a}")
    A(f"v_add_f32 v{a}, v{a}, v{a+1}")
    A(f"v_cvt_pk_bf16_f32 v{a}, 0, v{a}")
    A(f"v_mul_f32 v{a}, {LOG2E | 0x80000000:#x}, v{a}")
    A(f"v_exp_f32 v{a}, v{a}")
    A(f"v_add_f32 v{a}, 1.0, v{a}")
    A(f"v_rcp_f32 v{a}, v{a}")
    A(f"v_cvt_pk_bf16_f32 v{gg}, 0, v{a}")
    A(f"v_sub_f32 v{gg+1}, 1.0, v{gg}")
    A(f"v_cvt_pk_bf16_f32 v{gg+1}, 0, v{gg+1}")
    A("L_stageB:")
    stamp(6)
    pa = a + 32
    sb = a + 44
    bb = a + 52
    A(f"s_and_b32 s{sTmp}, s2, 0xf0")
    A(f"s_lshl_b32 s{sTmp}, s{sTmp}, 11")
    A(f"s_bfe_u32 s{sTmp2}, s2, 0x20002")
    A(f"s_lshl_b32 s{sTmp2}, s{sTmp2}, 9")
    A(f"s_add_u32 s{sTmp}, s{sTmp}, s{sTmp2}")
    A(f"s_lshl_b32 s{sTmp2}, s{sWave}, 6")
    A(f"s_add_u32 s{sTmp}, s{sTmp}, s{sTmp2}")
    A(f"s_add_u32 s{sTmp}, s{sTmp}, {WS_O}")
    A(f"v_and_b32 v{t+9}, 15, v0")
    A(f"v_lshlrev_b32 v{t+10}, 4, v{t+9}")
    A(f"v_lshlrev_b32 v{t+9}, 11, v{t+9}")
    A(f"v_lshl_add_u32 v{t+9}, v{t+6}, 4, v{t+9}")
    A(f"s_lshr_b32 s{sTmp2}, s2, 2")
    A(f"s_lshl_b32 s{sTmp2}, s{sTmp2}, 8")
    A(f"s_add_u32 s{sTmp2}, s{sTmp2}, {WS_ML}")
    def bpoll():
        A(f"buffer_load_dwordx4 {vr(pa+8,4)}, v{t+10}, {sr(sWS)}, s{sTmp2} offen sc1")
        A(f"buffer_load_dwordx4 {vr(pa,4)}, v{t+9}, {sr(sWS)}, s{sTmp} offen sc1")
        A(f"buffer_load_dwordx4 {vr(pa+4,4)}, v{t+9}, {sr(sWS)}, s{sTmp} offen offset:256 sc1")
    bpoll()
    A(f"v_or_b32 v{t+11}, v{v.mask0}, v{v.mask1}")
    A(f"v_mov_b32 v{bb}, 0x0c0c0c0c")
    A(f"s_mov_b32 s4, 0x01000100")
    A(f"s_mov_b32 s5, 0x03020302")
    A(f"v_bfi_b32 v{bb+1}, v{t+11}, s4, v{bb}")
    A(f"v_bfi_b32 v{bb+2}, v{t+11}, s5, v{bb}")
    A(f"v_bfe_u32 v{t+11}, v0, 1, 2")
    for d in range(4):
        A(f"v_cmp_eq_u32 vcc, {d}, v{t+11}")
        A(f"v_cndmask_b32 v{sb+d}, v{bb}, v{bb+1}, vcc")
        A(f"v_cndmask_b32 v{sb+4+d}, v{bb}, v{bb+2}, vcc")
    A("L_bchk:")
    A("s_waitcnt vmcnt(0)")
    A(f"v_xor_b32 v{t+11}, s{sTag}, v{pa}")
    for k in range(1, 12): A(f"v_bitop3_b32 v{t+11}, v{pa+k}, s{sTag+(k&3)}, v{t+11} bitop3:0xbe")
    A(f"v_and_b32 v{t+11}, 0xff, v{t+11}")
    A(f"v_cmp_ne_u32 vcc, 0, v{t+11}")
    A("s_cbranch_vccnz L_bretry")
    A("s_mov_b64 exec, -1")
    stamp(7)
    mm, ll = pa + 8, pa + 9
    A(f"v_and_b32 v{mm}, 0xffff0000, v{mm}")
    A(f"v_max_f32_dpp v{pa+10}, v{mm}, v{mm} quad_perm:[1,0,3,2] row_mask:0xf bank_mask:0xf")
    A(f"v_max_f32_dpp v{pa+10}, v{pa+10}, v{pa+10} quad_perm:[2,3,0,1] row_mask:0xf bank_mask:0xf")
    A(f"v_max_f32_dpp v{pa+10}, v{pa+10}, v{pa+10} row_half_mirror row_mask:0xf bank_mask:0xf")
    A(f"v_sub_f32 v{mm}, v{mm}, v{pa+10}")
    A(f"v_mul_f32 v{mm}, s{sL2E}, v{mm}")
    A(f"v_exp_f32 v{mm}, v{mm}")
    A(f"v_mul_f32 v{ll}, v{ll}, v{mm}")
    for k in range(8): A(f"v_mul_f32 v{pa+k}, v{pa+k}, v{mm}")
    for pm in ("quad_perm:[1,0,3,2]", "quad_perm:[2,3,0,1]", "row_half_mirror"):
        A(f"v_add_f32_dpp v{ll}, v{ll}, v{ll} {pm} row_mask:0xf bank_mask:0xf")
        if pm == "row_half_mirror": A(f"v_rcp_f32 v{ll}, v{ll}")
        for k in range(8): A(f"v_add_f32_dpp v{pa+k}, v{pa+k}, v{pa+k} {pm} row_mask:0xf bank_mask:0xf")
    for k in range(8): A(f"v_mul_f32 v{pa+k}, v{pa+k}, v{ll}")
    for r in range(4): A(f"v_cvt_pk_bf16_f32 v{pa+r}, v{pa+r}, v{pa+4+r}")
    for tp in range(8):
        B = bb + 4 * (tp & 1)
        for d in range(4): A(f"v_perm_b32 v{B+d}, v{pa+(tp>>1)}, v{pa+(tp>>1)}, v{sb+4*(tp&1)+d}")
        if tp >= 1:
            c = "0" if tp == 1 else vr(v.D, 4)
            A(f"v_mfma_f32_16x16x32_bf16 {vr(v.D,4)}, {vr(wor+4*(tp-1),4)}, {vr(bb+4*((tp-1)&1),4)}, {c}")
    A(f"s_lshl_b32 s{sTmp2}, s{sWave}, 10")
    A(f"v_add_u32 v{t+10}, s{sTmp2}, v{v.voff}")
    A(f"v_mfma_f32_16x16x32_bf16 {vr(v.D,4)}, {vr(wor+28,4)}, {vr(bb+4,4)}, {vr(v.D,4)}")
    A(f"ds_write_b128 v{t+10}, {vr(v.D,4)} offset:10240")
    A("s_waitcnt lgkmcnt(0)")
    A("s_barrier")
    A(f"s_cmp_eq_u32 s{sWave}, 3")
    A("s_cbranch_scc1 L_stageC")
    A(f"s_cmp_lg_u32 s{sWave}, 0")
    A("s_cbranch_scc1 L_fin")
    for w in range(1, 4): A(f"ds_read_b128 {vr(a+4*w,4)}, v{v.voff} offset:{10240+1024*w}")
    A(f"s_and_b32 s{sTmp}, s2, 3")
    A(f"s_lshl_b32 s{sTmp}, s{sTmp}, 6")
    A(f"s_lshr_b32 s{sTmp2}, s2, 2")
    A(f"s_add_u32 s{sTmp}, s{sTmp}, s{sTmp2}")
    A(f"s_lshl_b32 s{sTmp}, s{sTmp}, 10")
    A(f"s_add_u32 s{sTmp}, s{sTmp}, {WS_P2}")
    A("s_waitcnt lgkmcnt(0)")
    for r in range(4): A(f"v_add_f32 v{a+4+r}, v{a+4+r}, v{v.D+r}")
    for r in range(4): A(f"v_add_f32 v{a+8+r}, v{a+8+r}, v{a+12+r}")
    for r in range(4): A(f"v_add_f32 v{a+4+r}, v{a+4+r}, v{a+8+r}")
    for r in range(4):
        A(f"v_and_b32 v{a+4+r}, 0xffffff00, v{a+4+r}")
        A(f"v_or_b32 v{a+4+r}, s{sTag+r}, v{a+4+r}")
    A(f"buffer_store_dwordx4 {vr(a+4,4)}, v{v.voff}, {sr(sWS)}, s{sTmp} offen sc1")
    A("s_branch L_fin")
    A("L_stageC:")
    A("s_cmp_ge_u32 s2, 32")
    A("s_cbranch_scc1 L_fin")
    pc = a
    A(f"s_lshr_b32 s{sTmp}, s2, 3")
    A(f"s_lshl_b32 s{sTmp}, s{sTmp}, 16")
    A(f"s_and_b32 s{sTmp2}, s2, 7")
    A(f"s_lshl_b32 s{sTmp2}, s{sTmp2}, 7")
    A(f"s_add_u32 s{sTmp}, s{sTmp}, s{sTmp2}")
    A(f"s_add_u32 s8, s{sTmp}, {WS_P2}")
    for k in range(1, 8): A(f"s_add_u32 s{8+k}, s8, {8192*k}")
    A(f"v_and_b32 v{t+9}, 0x70, v{v.voff}")
    A(f"v_lshl_add_u32 v{t+9}, v{t+1}, 10, v{t+9}")
    A(f"s_and_b32 s{sTmp}, s2, 1")
    A(f"s_lshl_b32 s{sTmp}, s{sTmp}, 10")
    A(f"s_lshr_b32 s{sTmp2}, s2, 1")
    A(f"s_lshl_b32 s{sTmp2}, s{sTmp2}, 6")
    A(f"s_add_u32 s{sTmp}, s{sTmp}, s{sTmp2}")
    A(f"v_and_b32 v{t+10}, 7, v0")
    A(f"v_lshl_add_u32 v{t+10}, v{t+6}, 3, v{t+10}")
    A(f"v_lshlrev_b32 v{t+10}, 1, v{t+10}")
    A("L_cpoll:")
    for k in range(8): A(f"buffer_load_dwordx4 {vr(pc+4*k,4)}, v{t+9}, {sr(sWS)}, s{8+k} offen sc1")
    for k in range(8):
        A(f"s_waitcnt vmcnt({7-k})")
        for r in range(4):
            if k == 0 and r == 0: A(f"v_xor_b32 v{t+11}, s{sTag}, v{pc}")
            else: A(f"v_bitop3_b32 v{t+11}, v{pc+4*k+r}, s{sTag+r}, v{t+11} bitop3:0xbe")
    A(f"v_and_b32 v{t+11}, 0xff, v{t+11}")
    A(f"v_cmp_ne_u32 vcc, 0, v{t+11}")
    A("s_cbranch_vccnz L_cretry")
    A("s_mov_b64 exec, -1")
    stamp(8)
    for h in (0, 16):
        for r in range(8): A(f"v_add_f32 v{pc+h+r}, v{pc+h+r}, v{pc+h+8+r}")
    for h in (0, 16):
        for r in range(4): A(f"v_add_f32 v{pc+h+r}, v{pc+h+r}, v{pc+h+4+r}")
    for h in (0, 16):
        for r in range(2): A(f"v_permlane32_swap_b32 v{pc+h+r}, v{pc+h+2+r}")
    for h in (0, 16):
        for r in range(2): A(f"v_add_f32 v{pc+h+r}, v{pc+h+r}, v{pc+h+2+r}")
    for h in (0, 16): A(f"v_permlane16_swap_b32 v{pc+h}, v{pc+h+1}")
    for h in (0, 16): A(f"v_add_f32 v{pc+h}, v{pc+h}, v{pc+h+1}")
    for h in (0, 16): A(f"v_add_f32_dpp v{pc+h}, v{pc+h}, v{pc+h} row_ror:8 row_mask:0xf bank_mask:0xf")
    for h in (0, 16): A(f"v_cvt_pk_bf16_f32 v{pc+h}, 0, v{pc+h}")
    A(f"v_mul_f32 v{pc}, v{gg}, v{pc}")
    A(f"v_mul_f32 v{pc+16}, v{gg+1}, v{pc+16}")
    for h in (0, 16): A(f"v_cvt_pk_bf16_f32 v{pc+h}, 0, v{pc+h}")
    A(f"v_add_f32 v{pc}, v{pc}, v{pc+16}")
    A(f"v_cvt_pk_bf16_f32 v{pc}, v{pc}, v{pc}")
    A("s_mov_b32 s4, 0x00ff00ff")
    A("s_mov_b32 s5, 0x00ff00ff")
    A("s_mov_b64 exec, s[4:5]")
    A(f"buffer_store_short v{pc}, v{t+10}, {sr(sOUT)}, s{sTmp} offen")
    A("s_cmp_lg_u32 s2, 0")
    A("s_cbranch_scc1 L_fin")
    A("s_mov_b64 exec, 1")
    A(f"v_mov_b32 v{pc+1}, s{sE}")
    A(f"buffer_store_dword v{pc+1}, v0, {sr(sWS)}, 0 offen")
    A("L_fin:")
    if stamps:
        A("s_mov_b64 exec, 1")
        stamp(9)
        A("s_waitcnt lgkmcnt(0)")
        A(f"s_lshl_b32 s{sTmp}, s2, 2")
        A(f"s_add_u32 s{sTmp}, s{sTmp}, s{sWave}")
        A(f"s_lshl_b32 s{sTmp}, s{sTmp}, 6")
        A(f"s_add_u32 s{sTmp}, s{sTmp}, {WS_ST}")
        A("s_getreg_b32 s4, hwreg(HW_REG_XCC_ID)")
        A("s_getreg_b32 s5, hwreg(HW_REG_HW_ID)")
        for k in range(10): A(f"v_mov_b32 v{a+k}, s{sStamp+2*k}")
        A(f"v_mov_b32 v{a+10}, s4")
        A(f"v_mov_b32 v{a+11}, s5")
        A(f"v_mov_b32 v{a+12}, s{sSpin}")
        for k in range(4): A(f"buffer_store_dwordx4 {vr(a+4*k,4)}, v0, {sr(sWS)}, s{sTmp} offen offset:{16*k}")
        if dbg:
            A("s_cmp_lg_u32 s2, 0")
            A("s_cbranch_scc1 L_end")
            A(f"s_cmp_lg_u32 s{sWave}, 3")
            A("s_cbranch_scc1 L_end")
            A("s_load_dwordx2 s[8:9], s[0:1], 96")
            A("s_mov_b32 s10, 256")
            A("s_mov_b32 s11, 0x20000")
            for k in range(1, 10): A(f"v_subrev_u32 v{a+16+k}, s{sStamp}, v{a+k}")
            A(f"v_mov_b32 v{a+16}, s{sSpin}")
            A("s_waitcnt lgkmcnt(0)")
            for k in range(3): A(f"buffer_store_dwordx4 {vr(a+16+4*k,4)}, v0, s[8:11], 0 offen offset:{16*k}")
    A("L_end:")
    A("s_endpgm")
    def spinchk():
        A(f"s_sub_u32 s{sSpin}, s{sSpin}, 1")
        A("s_cbranch_scc1 L_end")
    A("L_qretry:")
    spinchk(); qpoll()
    A("s_waitcnt vmcnt(0)")
    A("s_branch L_qchk")
    A("L_bretry:")
    spinchk()
    A("s_mov_b64 exec, vcc")
    bpoll()
    A("s_branch L_bchk")
    A("L_cretry:")
    spinchk()
    A("s_mov_b64 exec, vcc")
    A("s_branch L_cpoll")
    for k in range(nstub[0]):
        A(f"L_res{k}:")
        A(f"s_call_b64 {sr(sRet,2)}, L_rescale")
        A(f"s_branch L_back{k}")
    A("L_rescale:")
    A("s_nop 7")
    x, y = v.y0, v.y1
    A(f"v_max_f32_dpp v{x}, v{v.T}, v{v.T} quad_perm:[1,0,3,2] row_mask:0xf bank_mask:0xf")
    A(f"v_max_f32_dpp v{x}, v{x}, v{x} quad_perm:[2,3,0,1] row_mask:0xf bank_mask:0xf")
    A(f"v_mov_b32 v{y}, v{x}")
    A(f"v_permlane16_swap_b32 v{y}, v{x}")
    A(f"v_max_f32 v{x}, v{x}, v{y}")
    A(f"v_mov_b32 v{y}, v{x}")
    A(f"v_permlane32_swap_b32 v{y}, v{x}")
    A(f"v_max3_f32 v{v.m}, v{x}, v{y}, v{v.m}")
    A(f"v_mul_f32 v{x}, s{sL2E}, v{v.m}")
    A(f"v_sub_f32 v{y}, v{v.mL}, v{x}")
    A(f"v_exp_f32 v{y}, v{y}")
    A(f"v_mov_b32 v{v.mL}, v{x}")
    A(f"v_mul_f32 v{v.l}, v{v.l}, v{y}")
    for k in range(8): A(f"v_mul_f32 v{v.acc+k}, v{v.acc+k}, v{y}")
    A(f"s_setpc_b64 {sr(sRet,2)}")
    body = pad(L)
    ref = open(os.path.join(os.path.dirname(os.path.abspath(__file__)), "header.txt")).read().rstrip("\n").split("\n")
    out = ref + ["; @launch grid=(256,1,1) block=(256,1,1) lds=16384",
                 '.amdgcn_target "amdgcn-amd-amdhsa--gfx950"', ".text", f".globl {KNAME}", ".p2align 8",
                 f".type {KNAME},@function"] + body
    acc = (NV + 3) // 4 * 4
    out += ['.section .rodata,"a"', ".p2align 6", f".amdhsa_kernel {KNAME}",
            f"  .amdhsa_next_free_vgpr {NV}", "  .amdhsa_next_free_sgpr 102", f"  .amdhsa_accum_offset {acc}",
            "  .amdhsa_group_segment_fixed_size 0", "  .amdhsa_kernarg_size 112", "  .amdhsa_user_sgpr_count 2",
            "  .amdhsa_user_sgpr_kernarg_segment_ptr 1", "  .amdhsa_system_sgpr_workgroup_id_x 1",
            "  .amdhsa_float_denorm_mode_32 3", ".end_amdhsa_kernel"]
    return "\n".join(out) + "\n"

if __name__ == "__main__":
    kw = eval("dict(" + (sys.argv[1] if len(sys.argv) > 1 else "") + ")")
    sys.stdout.write(gen(**kw))
```

```python
import sys, os
sys.path.insert(0, os.path.dirname(os.path.abspath(__file__)))
from hz import pad

KNAME = "gated_mix__gqa_block_cached__gqa_block_cached__decode_kernel"
LOG2E = 0x3fb8aa3b
SCALE = 0x3db504f3

WS_Q  = 0x10000
WS_ML = 0x30000
WS_O  = 0x100000
WS_P2 = 0x200000
WS_ST = 0x300000
WS_SZ = 0x400000
L_T, L_O, L_L, L_M, L_P, L_SZ = 0, 32768, 49152, 51200, 53248, 57344
DPPM = "row_mask:0xf bank_mask:0xf"

def gen(NPL=40, waits=(4,)*8, R=3, XB=2, XT=2, wqflags="nt", woflags="nt", kvflags="nt", stamps=False, spin=1 << 17, dbg=False, cut=0, P0=0):
    P = max(waits) + 1
    assert NPL % 8 == 0 and P + XT <= 8
    L = []
    def A(s): L.append(s)
    class V: pass
    v = V(); nv = [0]
    def valloc(name, n=1, al=1):
        nv[0] = (nv[0] + al - 1) // al * al
        setattr(v, name, nv[0]); nv[0] += n
    valloc("tid"); valloc("koff"); valloc("voff"); valloc("mask0"); valloc("mask1"); valloc("ta")
    valloc("T", 2, 2); valloc("TV", 2, 2)
    valloc("m"); valloc("l"); valloc("mL"); valloc("mA"); valloc("y0"); valloc("y1"); valloc("z"); valloc("p"); valloc("pd"); valloc("c00")
    valloc("q", 4, 2); valloc("qB", 4, 2); valloc("acc", 8, 2); valloc("D", 8, 2)
    valloc("W", 18, 2)
    valloc("t", 12, 2)
    valloc("buf", 4 * NPL, 4)
    NV = nv[0]
    assert NV <= 256, NV
    def vr(a, n): return f"v[{a}:{a+n-1}]"
    wqr = v.buf + 4 * NPL - 32
    xr = wqr - 16
    sK, sV, sWQ, sWO, sWS, sX, sGW, sOUT = 20, 24, 28, 32, 36, 40, 44, 48
    sWave, sTile, sCnt, sE, sL2E, sTmp, sTmp2, sSpin, sPh = 3, 52, 53, 54, 55, 56, 57, 58, 59
    sQ1, sQ2, sQ3 = 60, 62, 64
    sTag, sTag16, sT0 = 68, 72, 73
    sKB = 76
    sStamp = 80
    def sr(a, n=4): return f"s[{a}:{a+n-1}]"
    def stamp(k):
        if stamps: A(f"s_memrealtime s[{sStamp+2*k}:{sStamp+2*k+1}]")

    A(f"{KNAME}:")
    A("s_cmp_ge_u32 s2, 256")
    A("s_cbranch_scc1 L_end")
    stamp(0)
    A("s_lshr_b32 s4, s2, 7")
    A("s_mul_i32 s4, s4, 40")
    A("s_add_u32 s4, s0, s4")
    A("s_addc_u32 s5, s1, 0")
    A("s_load_dwordx4 s[12:15], s[4:5], 24")
    A(f"s_load_dwordx2 {sr(sX,2)}, s[0:1], 0")
    A("s_load_dwordx4 s[8:11], s[0:1], 8")
    A(f"s_load_dwordx2 {sr(sWS,2)}, s[0:1], 104")
    A(f"s_load_dwordx4 {sr(sKB)}, s[0:1], 48")
    A("s_load_dwordx4 s[16:19], s[0:1], 80")
    t = v.t
    A(f"v_lshrrev_b32 v{t}, 6, v0")
    A(f"v_and_b32 v0, 63, v0")
    A(f"v_readfirstlane_b32 s{sWave}, v{t}")
    A(f"v_lshrrev_b32 v{t+1}, 3, v0")
    A(f"v_lshl_add_u32 v{t+2}, v{t}, 3, v{t+1}")
    A(f"v_and_b32 v{t+3}, 7, v0")
    A(f"v_lshlrev_b32 v{t+3}, 3, v{t+3}")
    A(f"v_lshl_add_u32 v{t+3}, v{t+2}, 17, v{t+3}")
    A(f"v_bfe_u32 v{t+4}, v0, 2, 1")
    A(f"v_lshlrev_b32 v{t+4}, 10, v{t+4}")
    A(f"v_lshl_add_u32 v{t+4}, v{t+2}, 5, v{t+4}")
    A(f"v_bfe_u32 v{t+5}, v0, 2, 2")
    A(f"v_lshrrev_b32 v{t+6}, 4, v0")
    A(f"v_and_b32 v{t+7}, 3, v0")
    A(f"v_lshlrev_b32 v{v.koff}, 8, v{t+5}")
    A(f"v_lshl_add_u32 v{v.koff}, v{t+6}, 6, v{v.koff}")
    A(f"v_lshl_add_u32 v{v.koff}, v{t+7}, 4, v{v.koff}")
    A(f"v_lshlrev_b32 v{v.voff}, 4, v0")
    A("s_bfe_u32 s6, s2, 0x10003")
    A("s_and_b32 s7, s2, 7")
    A("s_lshl_b32 s7, s7, 1")
    A("s_add_u32 s7, s7, s6")
    A("s_bfe_u32 s6, s2, 0x30004")
    A(f"s_lshl_b32 s{sTmp}, s7, 6")
    A(f"s_lshl_b32 s{sTmp2}, s6, 10")
    A(f"s_add_u32 s{sTmp}, s{sTmp}, s{sTmp2}")
    A(f"s_lshl_b32 s{sTmp2}, s2, 19")
    A(f"s_lshl_b32 s{sT0}, s{sWave}, 12")
    A(f"s_mov_b32 s{sX+2}, 2048")
    A(f"s_mov_b32 s{sX+3}, 0x20000")
    A(f"s_mov_b32 s{sWQ+2}, 0x400000")
    A(f"s_mov_b32 s{sWQ+3}, 0x20000")
    A(f"s_mov_b32 s{sK+2}, 0x80000")
    A(f"s_mov_b32 s{sK+3}, 0x20000")
    A("s_waitcnt lgkmcnt(0)")
    A(f"s_mov_b32 s{sWQ}, s12")
    A(f"s_mov_b32 s{sWQ+1}, s13")
    A(f"buffer_load_dwordx4 {vr(xr,4)}, v{t+4}, {sr(sX)}, 0 offen")
    A(f"buffer_load_dwordx4 {vr(xr+4,4)}, v{t+4}, {sr(sX)}, 0 offen offset:16")
    for tt in range(16):
        A(f"buffer_load_dwordx2 {vr(wqr+2*tt,2)}, v{t+3}, {sr(sWQ)}, s{sTmp} offen {wqflags}")
        if tt < 15: A(f"s_add_u32 s{sTmp}, s{sTmp}, 8192")
    A(f"s_load_dword s{sE}, {sr(sWS,2)}, 0")
    A(f"s_add_u32 s{sK}, s8, s{sTmp2}")
    A(f"s_addc_u32 s{sK+1}, s9, 0")
    A(f"s_add_u32 s{sV}, s10, s{sTmp2}")
    A(f"s_addc_u32 s{sV+1}, s11, 0")
    A(f"s_add_u32 s{sKB}, s{sKB}, s{sTmp2}")
    A(f"s_addc_u32 s{sKB+1}, s{sKB+1}, 0")
    A(f"s_add_u32 s{sKB+2}, s{sKB+2}, s{sTmp2}")
    A(f"s_addc_u32 s{sKB+3}, s{sKB+3}, 0")
    def issue(i, kind, sl):
        p = i & 3
        if p == 0:
            if i == 0: A(f"s_mov_b32 s{sTile}, s{sT0}")
            else: A(f"s_add_u32 s{sTile}, s{sTile}, 16384")
        off = f" offset:{1024*p}" if p else ""
        r = v.buf + 4 * sl
        if kind == "K": A(f"buffer_load_dwordx4 {vr(r,4)}, v{v.koff}, {sr(sK)}, s{sTile} offen{off} {kvflags}")
        else:           A(f"buffer_load_dwordx4 {vr(r,4)}, v{v.voff}, {sr(sV)}, s{sTile} offen{off} {kvflags}")
    for k in range(P0): issue(k, "K", k)
    i_early = P0
    sel = xr + 8; bq = xr + 12
    A(f"s_mov_b32 s{sV+2}, 0x80000")
    A(f"s_mov_b32 s{sV+3}, 0x20000")
    A(f"s_mov_b32 s{sWS+2}, {WS_SZ}")
    A(f"s_mov_b32 s{sWS+3}, 0x20000")
    A(f"s_mov_b32 s{sWO}, s14")
    A(f"s_mov_b32 s{sWO+1}, s15")
    A(f"s_mov_b32 s{sWO+2}, 0x400000")
    A(f"s_mov_b32 s{sWO+3}, 0x20000")
    A(f"s_mov_b32 s{sGW}, s16")
    A(f"s_mov_b32 s{sGW+1}, s17")
    A(f"s_mov_b32 s{sGW+2}, 1024")
    A(f"s_mov_b32 s{sGW+3}, 0x20000")
    A(f"s_mov_b32 s{sOUT}, s18")
    A(f"s_mov_b32 s{sOUT+1}, s19")
    A(f"s_mov_b32 s{sOUT+2}, 2048")
    A(f"s_mov_b32 s{sOUT+3}, 0x20000")
    A(f"s_mov_b32 s{sL2E}, {LOG2E:#x}")
    A(f"s_mov_b32 s{sPh}, 0")
    for k, s in ((1, sQ1), (2, sQ2), (3, sQ3)):
        A(f"s_mov_b32 s{s}, {0x11111111 << k:#x}")
        A(f"s_mov_b32 s{s+1}, {0x11111111 << k:#x}")
    A(f"v_mov_b32 v{t+8}, 0xffff")
    A(f"v_mov_b32 v{t+9}, 0xffff0000")
    A(f"v_cndmask_b32 v{v.mask1}, 0, v{t+8}, {sr(sQ2,2)}")
    A(f"v_cndmask_b32 v{v.mask1}, v{v.mask1}, v{t+9}, {sr(sQ3,2)}")
    A(f"v_cndmask_b32 v{v.mask0}, v{t+8}, v{t+9}, {sr(sQ1,2)}")
    A(f"v_cmp_gt_u32 vcc, 2, v{t+7}")
    A(f"v_cndmask_b32 v{v.mask0}, 0, v{v.mask0}, vcc")
    A(f"s_mov_b32 s{sTmp}, 0x01000100")
    A(f"s_mov_b32 s{sTmp2}, 0x03020302")
    A(f"v_mov_b32 v{t+8}, 0x0c0c0c0c")
    A(f"v_bfi_b32 v{sel}, v{v.mask0}, s{sTmp}, v{t+8}")
    A(f"v_bfi_b32 v{sel+1}, v{v.mask1}, s{sTmp}, v{t+8}")
    A(f"v_bfi_b32 v{sel+2}, v{v.mask0}, s{sTmp2}, v{t+8}")
    A(f"v_bfi_b32 v{sel+3}, v{v.mask1}, s{sTmp2}, v{t+8}")
    for k in range(18):
        if k % 4 < 2: A(f"v_mov_b32 v{v.W+k}, 0")
    A(f"v_mov_b32 v{v.m}, 0xff800000")
    A(f"v_mov_b32 v{v.c00}, 0xffffff00")
    A(f"v_lshlrev_b32 v{v.ta}, 3, v0")
    A(f"v_lshl_add_u32 v{v.ta}, v{t}, 13, v{v.ta}")
    A(f"v_lshl_add_u32 v{t+8}, v{t}, 10, v{v.voff}")
    i = i_early
    for m in range(8):
        A(f"s_waitcnt vmcnt({14 - 2*m + i})")
        if m >= 8 - P + P0:
            issue(i, "K", i); i += 1
        for k in range(4):
            A(f"v_perm_b32 v{bq+k}, v{xr+m}, v{xr+m}, v{sel+k}")
        c = "0" if m == 0 else vr(v.D, 4)
        A(f"v_mfma_f32_16x16x32_bf16 {vr(v.D,4)}, {vr(wqr+4*m,4)}, {vr(bq,4)}, {c}")
    stamp(1)
    for k in range(XB):
        issue(i, "K", i); i += 1
    A(f"ds_write_b128 v{t+8}, {vr(v.D,4)} offset:{L_P}")
    A(f"v_bfe_u32 v{t+9}, v0, 4, 1")
    A(f"v_lshlrev_b32 v{t+9}, 8, v{t+9}")
    A(f"v_lshrrev_b32 v{t+10}, 5, v0")
    A(f"v_lshl_add_u32 v{t+9}, v{t+10}, 6, v{t+9}")
    A(f"v_lshl_add_u32 v{t+9}, v{t+7}, 4, v{t+9}")
    A(f"v_lshl_add_u32 v{t+9}, v{t+5}, 2, v{t+9}")
    A("s_waitcnt lgkmcnt(0)")
    A("s_barrier")
    A(f"s_add_u32 s{sE}, s{sE}, 1")
    A(f"s_and_b32 s{sTag16}, s{sE}, 0xffff")
    for k in range(4):
        A(f"s_add_u32 s{sTag+k}, s{sE}, {37*k}")
        A(f"s_and_b32 s{sTag+k}, s{sTag+k}, 0xff")
    A(f"s_cmp_lg_u32 s{sWave}, 0")
    A("s_cbranch_scc1 L_nopub")
    qr = wqr
    for w in range(4):
        for r1 in range(2):
            A(f"ds_read_b32 v{qr+2*w+r1}, v{t+9} offset:{L_P + 1024*w + 640*r1}")
    A(f"s_lshr_b32 s{sTmp}, s2, 4")
    A(f"s_lshl_b32 s{sTmp}, s{sTmp}, 12")
    A(f"s_lshl_b32 s{sTmp2}, s7, 7")
    A(f"s_add_u32 s{sTmp}, s{sTmp}, s{sTmp2}")
    A(f"s_add_u32 s{sTmp}, s{sTmp}, {WS_Q}")
    A(f"v_and_b32 v{t+11}, 31, v0")
    A(f"v_lshlrev_b32 v{t+11}, 2, v{t+11}")
    A(f"v_lshl_add_u32 v{t+11}, v{t+10}, 11, v{t+11}")
    A("s_waitcnt lgkmcnt(0)")
    for k in range(4): A(f"v_add_f32 v{qr+k}, v{qr+k}, v{qr+4+k}")
    A(f"v_add_f32 v{qr}, v{qr}, v{qr+2}")
    A(f"v_add_f32 v{qr+1}, v{qr+1}, v{qr+3}")
    A(f"v_add_f32 v{qr}, v{qr}, v{qr+1}")
    A(f"v_cvt_pk_bf16_f32 v{qr}, 0, v{qr}")
    A(f"v_or_b32 v{t+8}, s{sTag16}, v{qr}")
    A(f"buffer_store_dword v{t+8}, v{t+11}, {sr(sWS)}, s{sTmp} offen sc1")
    A("L_nopub:")
    stamp(2)
    A(f"v_lshl_add_u32 v{t+9}, v{t+5}, 2, v{t+6}")
    A(f"v_lshlrev_b32 v{t+9}, 7, v{t+9}")
    A(f"v_lshl_add_u32 v{t+9}, v{t+7}, 5, v{t+9}")
    A(f"s_lshl_b32 s{sTmp}, s6, 1")
    A(f"s_lshr_b32 s{sTmp2}, s2, 7")
    A(f"s_add_u32 s{sTmp}, s{sTmp}, s{sTmp2}")
    A(f"s_lshl_b32 s{sTmp}, s{sTmp}, 11")
    A(f"s_add_u32 s{sTmp}, s{sTmp}, {WS_Q}")
    A(f"s_add_u32 s{sTmp2}, s{sTmp}, 32768")
    A(f"s_mov_b32 s{sSpin}, {spin}")
    qp = v.acc
    assert v.D == v.acc + 8
    def qpoll():
        A(f"buffer_load_dwordx4 {vr(qp,4)}, v{t+9}, {sr(sWS)}, s{sTmp} offen sc1")
        A(f"buffer_load_dwordx4 {vr(qp+4,4)}, v{t+9}, {sr(sWS)}, s{sTmp} offen offset:16 sc1")
        A(f"buffer_load_dwordx4 {vr(qp+8,4)}, v{t+9}, {sr(sWS)}, s{sTmp2} offen sc1")
        A(f"buffer_load_dwordx4 {vr(qp+12,4)}, v{t+9}, {sr(sWS)}, s{sTmp2} offen offset:16 sc1")
    ipoll = NPL - P
    while i < NPL:
        n = waits[i & 7]
        if i > ipoll and i - n - 1 < ipoll: n += 4
        A(f"s_waitcnt vmcnt({n})")
        if i == ipoll: qpoll()
        issue(i, "K", i); i += 1
    A(f"s_waitcnt vmcnt({P})")
    A("L_qchk:")
    A(f"v_xor_b32 v{t+8}, s{sTag16}, v{qp}")
    for k in range(1, 16): A(f"v_bitop3_b32 v{t+8}, v{qp+k}, s{sTag16}, v{t+8} bitop3:0xbe")
    A(f"v_and_b32 v{t+8}, 0xffff, v{t+8}")
    A(f"v_cmp_ne_u32 vcc, 0, v{t+8}")
    A("s_cbranch_vccnz L_qretry")
    A(f"s_mov_b32 s4, 0x07060302")
    assert v.qB == v.q + 4
    for k in range(8): A(f"v_perm_b32 v{v.q+k}, v{qp+2*k+1}, v{qp+2*k}, s4")
    stamp(3)
    def red(u, T):
        D = v.D + 4 * (u & 1)
        A(f"v_add_f32_dpp v{v.y0}, v{D+(u^1)}, v{D+u} quad_perm:[1,0,3,2] {DPPM}")
        A(f"v_add_f32_dpp v{v.y1}, v{D+(u^3)}, v{D+(u^2)} quad_perm:[1,0,3,2] {DPPM}")
        dst = T if u == 0 else v.z
        A(f"v_add_f32_dpp v{dst}, v{v.y1}, v{v.y0} quad_perm:[2,3,0,1] {DPPM}")
        if u: A(f"v_cndmask_b32 v{T}, v{T}, v{v.z}, {sr((sQ1,sQ2,sQ3)[u-1],2)}")
    def finT(par):
        T = v.T + par
        red(3, T)
        A(f"v_cvt_pk_bf16_f32 v{T}, 0, v{T}")
        A(f"v_mul_f32 v{T}, {SCALE:#x}, v{T}")
        A(f"v_cvt_pk_bf16_f32 v{T}, 0, v{T}")
        if par:
            A(f"v_max3_f32 v{v.m}, v{v.T}, v{v.T+1}, v{v.m}")
            A(f"ds_write_b64 v{v.ta}, {vr(v.T,2)}")
            A(f"v_add_u32 v{v.ta}, 512, v{v.ta}")
    def procK(j, sl):
        u = j & 3
        A(f"v_mfma_f32_16x16x32_bf16 {vr(v.D+4*(u&1),4)}, {vr(v.buf+4*sl,4)}, {vr(v.q,4)}, 0")
        if u >= 1: red(u - 1, v.T + ((j >> 2) & 1))
        elif j > 0: finT(((j >> 2) - 1) & 1)
    def ands(u):
        w = v.W + 2 + 4 * u
        A(f"v_and_b32_dpp v{w}, v{v.pd}, v{v.mask0} quad_perm:[{u},{u},{u},{u}] {DPPM}")
        A(f"v_and_b32_dpp v{w+1}, v{v.pd}, v{v.mask1} quad_perm:[{u},{u},{u},{u}] {DPPM}")
    def prep(par, nextread=True):
        if par == 0: A("s_waitcnt lgkmcnt(0)")
        A(f"v_fma_f32 v{v.p}, v{v.TV+par}, s{sL2E}, -v{v.mL}")
        A(f"v_exp_f32 v{v.p}, v{v.p}")
        if par == 1 and nextread:
            A(f"v_add_u32 v{v.ta}, 512, v{v.ta}")
            A(f"ds_read_b64 {vr(v.TV,2)}, v{v.ta}")
        A(f"v_cvt_pk_bf16_f32 v{v.pd}, v{v.p}, v{v.p}")
        A(f"v_add_f32 v{v.l}, v{v.l}, v{v.p}")
        ands(0)
    def procV(j, sl, end=False):
        u = j & 3
        w = v.W + 4 * u
        A(f"v_mfma_f32_16x16x32_bf16 {vr(v.acc,4)}, {vr(v.buf+4*sl,4)}, {vr(w+2,4)}, {vr(v.acc,4)}")
        A(f"v_mfma_f32_16x16x32_bf16 {vr(v.acc+4,4)}, {vr(v.buf+4*sl,4)}, {vr(w,4)}, {vr(v.acc+4,4)}")
        if end and j >= 124: return
        if u < 3: ands(u + 1)
        else:
            prep(((j >> 2) + 1) & 1, nextread=not (end and j == 123))
            if end and j == 123:
                ands(1); ands(2); ands(3)
                lreduce()
    def allred(op, r, tmp):
        A(f"{op}_dpp v{r}, v{r}, v{r} quad_perm:[1,0,3,2] {DPPM}")
        A(f"{op}_dpp v{r}, v{r}, v{r} quad_perm:[2,3,0,1] {DPPM}")
        A(f"v_mov_b32 v{tmp}, v{r}")
        A(f"v_permlane16_swap_b32 v{tmp}, v{r}")
        A(f"{op} v{r}, v{r}, v{tmp}")
        A(f"v_mov_b32 v{tmp}, v{r}")
        A(f"v_permlane32_swap_b32 v{tmp}, v{r}")
        A(f"{op} v{r}, v{r}, v{tmp}")
    def lreduce():
        allred("v_add_f32", v.l, v.y0)
        A(f"s_lshl_b32 s4, s{sPh}, 2")
        A(f"s_add_u32 s4, s4, s{sWave}")
        A(f"s_lshl_b32 s5, s4, 8")
        A(f"v_lshl_add_u32 v{t+9}, v0, 2, s5")
        A(f"ds_write_b32 v{t+9}, v{v.l} offset:{L_L}")
        A(f"s_lshl_b32 s5, s4, 11")
        A(f"v_add_u32 v{t+9}, s5, v{v.voff}")
    def accout():
        A(f"ds_write_b128 v{t+9}, {vr(v.acc,4)} offset:{L_O}")
        A(f"ds_write_b128 v{t+9}, {vr(v.acc+4,4)} offset:{L_O+1024}")
    slotof = {k: k for k in range(NPL)}
    def newslot(i): return (i - NPL) if i < NPL + 16 else (i & 7)
    j = 0
    landed = i - P
    while not (j == i - P and i % 8 == 0 and j >= NPL + 16):
        s = newslot(i)
        own = max(k for k in slotof if slotof[k] == s)
        while j <= own:
            assert j < landed, "catch-up needs data not yet landed"
            procK(j, slotof[j]); j += 1
        A(f"s_waitcnt vmcnt({waits[i&7]})")
        landed = max(landed, i - waits[i & 7])
        slotof[i] = s
        issue(i, "K", s); i += 1
        n = 0
        while n < R and j < i - P:
            assert j < landed
            procK(j, slotof[j]); j += 1; n += 1
    assert i < 128
    A(f"s_mov_b32 s{sCnt}, {(128 - i)//8}")
    stamp(4)
    A(".p2align 6")
    A("L_kloop:")
    for k in range(8):
        A(f"s_waitcnt vmcnt({waits[k]})")
        issue(8 + k, "K", k)
        if k == 7: A(f"s_sub_u32 s{sCnt}, s{sCnt}, 1")
        procK(16 + k - P, (k - P) & 7)
    A(f"s_cmp_lg_u32 s{sCnt}, 0")
    A("s_cbranch_scc1 L_kloop")
    for k in range(P):
        A(f"s_waitcnt vmcnt({waits[k]})")
        issue(k, "V", k)
        procK(128 + k - P, (k - P) & 7)
    for k in range(P, P + XT): issue(k, "V", k)
    finT(1)
    allred("v_max_f32", v.m, v.y0)
    A(f"s_lshl_b32 s5, s{sPh}, 10")
    A(f"s_lshl_b32 s4, s{sWave}, 8")
    A(f"s_add_u32 s4, s4, s5")
    A(f"v_lshl_add_u32 v{t+9}, v0, 2, s4")
    A(f"ds_write_b32 v{t+9}, v{v.m} offset:{L_M}")
    A(f"v_subrev_u32 v{v.ta}, 8192, v{v.ta}")
    A(f"ds_read_b64 {vr(v.TV,2)}, v{v.ta}")
    A(f"v_lshl_add_u32 v{t+9}, v0, 2, s5")
    for k in range(8): A(f"v_mov_b32 v{v.acc+k}, 0")
    A(f"v_mov_b32 v{v.l}, 0")
    A("s_waitcnt lgkmcnt(0)")
    A("s_barrier")
    A(f"ds_read2st64_b32 {vr(v.T,2)}, v{t+9} offset0:{L_M//256} offset1:{L_M//256+1}")
    A(f"ds_read2st64_b32 {vr(v.D,2)}, v{t+9} offset0:{L_M//256+2} offset1:{L_M//256+3}")
    A("s_waitcnt lgkmcnt(0)")
    A(f"v_max3_f32 v{v.m}, v{v.T}, v{v.T+1}, v{v.D}")
    A(f"v_max_f32 v{v.m}, v{v.m}, v{v.D+1}")
    A(f"v_mul_f32 v{v.mL}, s{sL2E}, v{v.m}")
    prep(0)
    issued = P + XT
    for k in range(P, 8):
        if k >= issued:
            A(f"s_waitcnt vmcnt({waits[k]})")
            issue(k, "V", k); issued += 1
            procV(k - P, k - P)
        else:
            A(f"s_waitcnt vmcnt({issued - 1 - (k - P)})")
            procV(k - P, k - P)
    A(f"s_mov_b32 s{sCnt}, 15")
    A(".p2align 6")
    A("L_vloop:")
    for k in range(8):
        A(f"s_waitcnt vmcnt({waits[k]})")
        issue(8 + k, "V", k)
        if k == 7: A(f"s_sub_u32 s{sCnt}, s{sCnt}, 1")
        procV(16 + k - P, (k - P) & 7)
    A(f"s_cmp_lg_u32 s{sCnt}, 0")
    A("s_cbranch_scc1 L_vloop")
    A(f"s_cmp_lg_u32 s{sPh}, 0")
    A("s_cbranch_scc1 L_epi")
    assert P >= 5
    A(f"s_mov_b32 s{sK}, s{sKB}")
    A(f"s_mov_b32 s{sK+1}, s{sKB+1}")
    A(f"s_mov_b32 s{sV}, s{sKB+2}")
    A(f"s_mov_b32 s{sV+1}, s{sKB+3}")
    for k in range(8):
        A(f"s_waitcnt vmcnt({waits[k]})")
        issue(k, "K", k)
        if k < P:
            procV(128 + k - P, (k - P) & 7, end=True)
            if k == P - 2:
                for r in range(4): A(f"v_mov_b32 v{v.q+r}, v{v.qB+r}")
                A(f"v_mov_b32 v{v.mA}, v{v.m}")
                A(f"v_mov_b32 v{v.m}, 0xff800000")
                A(f"v_subrev_u32 v{v.ta}, {512*15}, v{v.ta}")
        else:
            procK(k - P, k - P)
            if k == P: accout()
    A(f"s_mov_b32 s{sPh}, 1")
    A(f"s_mov_b32 s{sCnt}, 15")
    A("s_branch L_kloop")
    A("L_epi:")
    wor = v.buf + 32
    gx = v.buf + 64
    a = v.buf + 76
    assert a + 64 <= NV
    A(f"s_bfe_u32 s{sTmp}, s2, 0x50002")
    A(f"s_lshl_b32 s{sTmp}, s{sTmp}, 2")
    A(f"s_add_u32 s{sTmp}, s{sTmp}, s{sWave}")
    A(f"s_lshl_b32 s{sTmp}, s{sTmp}, 15")
    A(f"s_and_b32 s{sTmp2}, s2, 3")
    A(f"s_lshl_b32 s{sTmp2}, s{sTmp2}, 8")
    A(f"s_add_u32 s{sTmp}, s{sTmp}, s{sTmp2}")
    A(f"v_and_b32 v{t+8}, 0xff, v{v.voff}")
    A(f"v_lshl_add_u32 v{t+8}, v{t+6}, 10, v{t+8}")
    if cut == 1: A(f"s_mov_b32 s{sWO+2}, 0")
    def wold(k):
        A(f"buffer_load_dwordx4 {vr(wor+4*k,4)}, v{t+8}, {sr(sWO)}, s{sTmp} offen {woflags}")
        if k < 7: A(f"s_add_u32 s{sTmp}, s{sTmp}, 4096")
    for k in range(P):
        A(f"s_waitcnt vmcnt({waits[k]})")
        wold(k)
        procV(128 + k - P, (k - P) & 7, end=True)
        if k == P - 2:
            A(f"s_lshr_b32 s4, s{sWave}, 1")
            A(f"s_xor_b32 s4, s4, 1")
            A(f"s_and_b32 s5, s{sWave}, 1")
            A(f"s_lshl_b32 s8, s4, 3")
            A(f"s_add_u32 s8, s8, s5")
            A(f"s_lshl_b32 s8, s8, 10")
            A(f"v_add_u32 v{t+10}, s8, v{v.voff}")
            A(f"s_lshl_b32 s4, s4, 19")
            A(f"s_lshl_b32 s5, s5, 8")
            A(f"s_add_u32 s4, s4, s5")
            A(f"s_lshl_b32 s5, s2, 11")
            A(f"s_add_u32 s4, s4, s5")
            A(f"s_add_u32 s8, s4, {WS_O}")
            A(f"v_lshl_add_u32 v{t+11}, v{t+6}, 2, v{t+7}")
            A(f"v_lshlrev_b32 v{t+11}, 4, v{t+11}")
            A(f"v_lshl_add_u32 v{t+11}, v{t+5}, 9, v{t+11}")
    for k in range(P, 8): wold(k)
    A(f"s_and_b32 s{sTmp2}, s2, 1")
    A(f"s_lshl_b32 s{sTmp2}, s{sTmp2}, 10")
    A(f"buffer_load_dwordx4 {vr(gx,4)}, v{v.voff}, {sr(sX)}, s{sTmp2} offen")
    A(f"buffer_load_dwordx4 {vr(gx+4,4)}, v{v.voff}, {sr(sGW)}, 0 offen")
    accout()
    stamp(5)
    A("s_waitcnt lgkmcnt(0)")
    A("s_barrier")
    if cut in (1, 2): A("s_branch L_fin")
    oo = a
    for w in range(4): A(f"ds_read_b128 {vr(oo+4*w,4)}, v{t+10} offset:{L_O+2048*w}")
    A(f"s_cmp_lg_u32 s{sWave}, 2")
    A("s_cbranch_scc1 L_noml")
    M = a + 16
    A(f"v_lshlrev_b32 v{t+9}, 2, v0")
    A(f"v_lshl_add_u32 v{t+9}, v{t+6}, 10, v{t+9}")
    A(f"ds_read2st64_b32 {vr(M+4,2)}, v{t+9} offset0:{L_L//256} offset1:{L_L//256+1}")
    A(f"ds_read2st64_b32 {vr(M+6,2)}, v{t+9} offset0:{L_L//256+2} offset1:{L_L//256+3}")
    A(f"v_cmp_eq_u32 vcc, 0, v{t+6}")
    A(f"v_mov_b32 v{M+2}, s{sTag+2}")
    A(f"v_mov_b32 v{M+3}, s{sTag+3}")
    A(f"v_cndmask_b32 v{M}, v{v.m}, v{v.mA}, vcc")
    A(f"v_or_b32 v{M}, s{sTag}, v{M}")
    A(f"v_lshlrev_b32 v{t+9}, 9, v{t+5}")
    A(f"v_lshl_add_u32 v{t+9}, v{t+6}, 14, v{t+9}")
    A(f"s_lshl_b32 s4, s6, 11")
    A(f"s_lshr_b32 s5, s2, 7")
    A(f"s_lshl_b32 s5, s5, 8")
    A(f"s_add_u32 s4, s4, s5")
    A(f"s_and_b32 s5, s2, 15")
    A(f"s_lshl_b32 s5, s5, 4")
    A(f"s_add_u32 s4, s4, s5")
    A(f"s_add_u32 s4, s4, {WS_ML}")
    A("s_waitcnt lgkmcnt(0)")
    A(f"v_add_f32 v{M+4}, v{M+4}, v{M+5}")
    A(f"v_add_f32 v{M+6}, v{M+6}, v{M+7}")
    A(f"v_add_f32 v{M+4}, v{M+4}, v{M+6}")
    A(f"v_and_or_b32 v{M+1}, v{M+4}, v{v.c00}, s{sTag+1}")
    A("s_mov_b64 exec, 0x11111111")
    A(f"buffer_store_dwordx4 {vr(M,4)}, v{t+9}, {sr(sWS)}, s4 offen sc1")
    A("s_mov_b64 exec, -1")
    A("L_noml:")
    A("s_waitcnt lgkmcnt(0)")
    for r in range(4): A(f"v_add_f32 v{oo+r}, v{oo+r}, v{oo+4+r}")
    for r in range(4): A(f"v_add_f32 v{oo+8+r}, v{oo+8+r}, v{oo+12+r}")
    for r in range(4): A(f"v_add_f32 v{oo+r}, v{oo+r}, v{oo+8+r}")
    for r in range(4): A(f"v_and_or_b32 v{oo+r}, v{oo+r}, v{v.c00}, s{sTag+r}")
    A(f"buffer_store_dwordx4 {vr(oo,4)}, v{t+11}, {sr(sWS)}, s8 offen sc1")
    stamp(6)
    if cut == 3: A("s_branch L_fin")
    pa = a + 24
    sb = a + 48
    bb = a + 56
    A(f"s_lshr_b32 s{sTmp}, s2, 7")
    A(f"s_lshl_b32 s{sTmp}, s{sTmp}, 19")
    A(f"s_lshl_b32 s{sTmp2}, s6, 15")
    A(f"s_add_u32 s{sTmp}, s{sTmp}, s{sTmp2}")
    A(f"s_bfe_u32 s{sTmp2}, s2, 0x20002")
    A(f"s_lshl_b32 s{sTmp2}, s{sTmp2}, 9")
    A(f"s_add_u32 s{sTmp}, s{sTmp}, s{sTmp2}")
    A(f"s_lshl_b32 s{sTmp2}, s{sWave}, 6")
    A(f"s_add_u32 s{sTmp}, s{sTmp}, s{sTmp2}")
    A(f"s_add_u32 s{sTmp}, s{sTmp}, {WS_O}")
    A(f"v_and_b32 v{t+9}, 7, v0")
    A(f"v_lshlrev_b32 v{t+9}, 12, v{t+9}")
    A(f"v_lshl_add_u32 v{t+9}, v{t+6}, 4, v{t+9}")
    A(f"v_bfe_u32 v{t+10}, v0, 3, 1")
    A(f"v_lshl_add_u32 v{t+9}, v{t+10}, 18, v{t+9}")
    A(f"v_and_b32 v{t+10}, 15, v0")
    A(f"v_lshlrev_b32 v{t+10}, 5, v{t+10}")
    A(f"s_lshr_b32 s{sTmp2}, s2, 2")
    A(f"s_lshl_b32 s{sTmp2}, s{sTmp2}, 9")
    A(f"s_add_u32 s{sTmp2}, s{sTmp2}, {WS_ML}")
    def bpoll():
        A(f"buffer_load_dwordx4 {vr(pa+16,4)}, v{t+10}, {sr(sWS)}, s{sTmp2} offen sc1")
        A(f"buffer_load_dwordx4 {vr(pa+20,4)}, v{t+10}, {sr(sWS)}, s{sTmp2} offen offset:16 sc1")
        A(f"buffer_load_dwordx4 {vr(pa,4)}, v{t+9}, {sr(sWS)}, s{sTmp} offen sc1")
        A(f"buffer_load_dwordx4 {vr(pa+4,4)}, v{t+9}, {sr(sWS)}, s{sTmp} offen offset:256 sc1")
        A(f"buffer_load_dwordx4 {vr(pa+8,4)}, v{t+9}, {sr(sWS)}, s{sTmp} offen offset:2048 sc1")
        A(f"buffer_load_dwordx4 {vr(pa+12,4)}, v{t+9}, {sr(sWS)}, s{sTmp} offen offset:2304 sc1")
    bpoll()
    A(f"v_or_b32 v{t+11}, v{v.mask0}, v{v.mask1}")
    A(f"v_mov_b32 v{bb}, 0x0c0c0c0c")
    A(f"s_mov_b32 s4, 0x01000100")
    A(f"s_mov_b32 s5, 0x03020302")
    A(f"v_bfi_b32 v{bb+1}, v{t+11}, s4, v{bb}")
    A(f"v_bfi_b32 v{bb+2}, v{t+11}, s5, v{bb}")
    A(f"v_bfe_u32 v{t+11}, v0, 1, 2")
    for d in range(4):
        A(f"v_cmp_eq_u32 vcc, {d}, v{t+11}")
        A(f"v_cndmask_b32 v{sb+d}, v{bb}, v{bb+1}, vcc")
        A(f"v_cndmask_b32 v{sb+4+d}, v{bb}, v{bb+2}, vcc")
    gg = gx + 8
    A(f"s_cmp_lg_u32 s{sWave}, 3")
    A("s_cbranch_scc1 L_bchk")
    A("s_cmp_ge_u32 s2, 32")
    A("s_cbranch_scc1 L_bchk")
    A("s_waitcnt vmcnt(7)")
    ga = a + 4
    for k in range(4):
        A(f"v_lshlrev_b32 v{ga+2*k}, 16, v{gx+k}")
        A(f"v_and_b32 v{ga+2*k+1}, 0xffff0000, v{gx+k}")
        A(f"v_lshlrev_b32 v{ga+8+2*k}, 16, v{gx+4+k}")
        A(f"v_and_b32 v{ga+8+2*k+1}, 0xffff0000, v{gx+4+k}")
    for k in range(8): A(f"v_mul_f32 v{ga+k}, v{ga+k}, v{ga+8+k}")
    for k in range(8): A(f"v_cvt_pk_bf16_f32 v{ga+k}, 0, v{ga+k}")
    for k in range(4): A(f"v_add_f32 v{ga+k}, v{ga+k}, v{ga+4+k}")
    A(f"v_add_f32 v{ga}, v{ga}, v{ga+2}")
    A(f"v_add_f32 v{ga+1}, v{ga+1}, v{ga+3}")
    A(f"v_add_f32 v{ga}, v{ga}, v{ga+1}")
    A(f"v_add_f32_dpp v{ga}, v{ga}, v{ga} row_ror:4 {DPPM}")
    A(f"v_add_f32_dpp v{ga}, v{ga}, v{ga} row_ror:8 {DPPM}")
    allred("v_add_f32", ga, ga + 1)
    A(f"v_cvt_pk_bf16_f32 v{ga}, 0, v{ga}")
    A(f"v_mul_f32 v{ga}, {LOG2E | 0x80000000:#x}, v{ga}")
    A(f"v_exp_f32 v{ga}, v{ga}")
    A(f"v_add_f32 v{ga}, 1.0, v{ga}")
    A(f"v_rcp_f32 v{ga}, v{ga}")
    A(f"v_cvt_pk_bf16_f32 v{gg}, 0, v{ga}")
    A(f"v_sub_f32 v{gg+1}, 1.0, v{gg}")
    A(f"v_cvt_pk_bf16_f32 v{gg+1}, 0, v{gg+1}")
    def strip(base, first):
        for r in range(4): A(f"v_xor_b32 v{base+r}, s{sTag+r}, v{base+r}")
        if first: A(f"v_or_b32 v{t+11}, v{base}, v{base+1}")
        else: A(f"v_or3_b32 v{t+11}, v{base}, v{base+1}, v{t+11}")
        A(f"v_or3_b32 v{t+11}, v{base+2}, v{base+3}, v{t+11}")
    A("L_bchk:")
    for k, base in enumerate((pa + 16, pa + 20, pa, pa + 4, pa + 8, pa + 12)):
        A(f"s_waitcnt vmcnt({5-k})")
        strip(base, k == 0)
    A(f"v_and_b32 v{t+11}, 0xff, v{t+11}")
    A(f"v_cmp_ne_u32 vcc, 0, v{t+11}")
    A("s_cbranch_vccnz L_bretry")
    A("s_mov_b64 exec, -1")
    stamp(7)
    m1, l1, m2, l2, mx = pa + 16, pa + 17, pa + 20, pa + 21, pa + 18
    A(f"v_max_f32 v{mx}, v{m1}, v{m2}")
    A(f"v_max_f32_dpp v{mx}, v{mx}, v{mx} quad_perm:[1,0,3,2] {DPPM}")
    A(f"v_max_f32_dpp v{mx}, v{mx}, v{mx} quad_perm:[2,3,0,1] {DPPM}")
    A(f"v_max_f32_dpp v{mx}, v{mx}, v{mx} row_half_mirror {DPPM}")
    A(f"v_mul_f32 v{mx}, s{sL2E}, v{mx}")
    A(f"v_fma_f32 v{m1}, v{m1}, s{sL2E}, -v{mx}")
    A(f"v_fma_f32 v{m2}, v{m2}, s{sL2E}, -v{mx}")
    A(f"v_exp_f32 v{m1}, v{m1}")
    A(f"v_exp_f32 v{m2}, v{m2}")
    A(f"v_mul_f32 v{l1}, v{l1}, v{m1}")
    A(f"v_fmac_f32 v{l1}, v{l2}, v{m2}")
    for k in range(8): A(f"v_mul_f32 v{pa+k}, v{pa+k}, v{m1}")
    for k in range(8): A(f"v_fmac_f32 v{pa+k}, v{pa+8+k}, v{m2}")
    for pm in ("quad_perm:[1,0,3,2]", "quad_perm:[2,3,0,1]", "row_half_mirror"):
        A(f"v_add_f32_dpp v{l1}, v{l1}, v{l1} {pm} {DPPM}")
        if pm == "row_half_mirror": A(f"v_rcp_f32 v{l1}, v{l1}")
        for k in range(8): A(f"v_add_f32_dpp v{pa+k}, v{pa+k}, v{pa+k} {pm} {DPPM}")
    for k in range(8): A(f"v_mul_f32 v{pa+k}, v{pa+k}, v{l1}")
    for r in range(4): A(f"v_cvt_pk_bf16_f32 v{pa+r}, v{pa+r}, v{pa+4+r}")
    for tp in range(8):
        B = bb + 4 * (tp & 1)
        for d in range(4): A(f"v_perm_b32 v{B+d}, v{pa+(tp>>1)}, v{pa+(tp>>1)}, v{sb+4*(tp&1)+d}")
        if tp >= 1:
            c = "0" if tp == 1 else vr(v.D, 4)
            A(f"v_mfma_f32_16x16x32_bf16 {vr(v.D,4)}, {vr(wor+4*(tp-1),4)}, {vr(bb+4*((tp-1)&1),4)}, {c}")
    A(f"s_lshl_b32 s{sTmp2}, s{sWave}, 10")
    A(f"v_add_u32 v{t+10}, s{sTmp2}, v{v.voff}")
    A(f"v_mfma_f32_16x16x32_bf16 {vr(v.D,4)}, {vr(wor+28,4)}, {vr(bb+4,4)}, {vr(v.D,4)}")
    A(f"s_and_b32 s{sTmp}, s2, 3")
    A(f"s_lshl_b32 s{sTmp}, s{sTmp}, 6")
    A(f"s_lshr_b32 s{sTmp2}, s2, 2")
    A(f"s_add_u32 s{sTmp}, s{sTmp}, s{sTmp2}")
    A(f"s_lshl_b32 s{sTmp}, s{sTmp}, 10")
    A(f"s_add_u32 s{sTmp}, s{sTmp}, {WS_P2}")
    A(f"ds_write_b128 v{t+10}, {vr(v.D,4)} offset:{L_P}")
    A("s_waitcnt lgkmcnt(0)")
    A("s_barrier")
    A(f"s_cmp_lg_u32 s{sWave}, 0")
    A("s_cbranch_scc1 L_stageC")
    for w in range(1, 4): A(f"ds_read_b128 {vr(a+4*w,4)}, v{v.voff} offset:{L_P+1024*w}")
    A("s_waitcnt lgkmcnt(0)")
    for r in range(4): A(f"v_add_f32 v{a+4+r}, v{a+4+r}, v{v.D+r}")
    for r in range(4): A(f"v_add_f32 v{a+8+r}, v{a+8+r}, v{a+12+r}")
    for r in range(4): A(f"v_add_f32 v{a+4+r}, v{a+4+r}, v{a+8+r}")
    for r in range(4): A(f"v_and_or_b32 v{a+4+r}, v{a+4+r}, v{v.c00}, s{sTag+r}")
    A(f"buffer_store_dwordx4 {vr(a+4,4)}, v{v.voff}, {sr(sWS)}, s{sTmp} offen sc1")
    A("s_branch L_fin")
    A("L_stageC:")
    A(f"s_cmp_lg_u32 s{sWave}, 3")
    A("s_cbranch_scc1 L_fin")
    A("s_cmp_ge_u32 s2, 32")
    A("s_cbranch_scc1 L_fin")
    pc = a
    A(f"s_lshr_b32 s{sTmp}, s2, 3")
    A(f"s_lshl_b32 s{sTmp}, s{sTmp}, 16")
    A(f"s_and_b32 s{sTmp2}, s2, 7")
    A(f"s_lshl_b32 s{sTmp2}, s{sTmp2}, 7")
    A(f"s_add_u32 s{sTmp}, s{sTmp}, s{sTmp2}")
    A(f"s_add_u32 s8, s{sTmp}, {WS_P2}")
    for k in range(1, 8): A(f"s_add_u32 s{8+k}, s8, {8192*k}")
    A(f"v_and_b32 v{t+9}, 0x70, v{v.voff}")
    A(f"v_lshl_add_u32 v{t+9}, v{t+1}, 10, v{t+9}")
    A(f"s_and_b32 s{sTmp}, s2, 1")
    A(f"s_lshl_b32 s{sTmp}, s{sTmp}, 10")
    A(f"s_lshr_b32 s{sTmp2}, s2, 1")
    A(f"s_lshl_b32 s{sTmp2}, s{sTmp2}, 6")
    A(f"s_add_u32 s{sTmp}, s{sTmp}, s{sTmp2}")
    A(f"v_and_b32 v{t+10}, 7, v0")
    A(f"v_lshl_add_u32 v{t+10}, v{t+6}, 3, v{t+10}")
    A(f"v_lshlrev_b32 v{t+10}, 1, v{t+10}")
    A("L_cpoll:")
    for k in range(8): A(f"buffer_load_dwordx4 {vr(pc+4*k,4)}, v{t+9}, {sr(sWS)}, s{8+k} offen sc1")
    for k in range(8):
        A(f"s_waitcnt vmcnt({7-k})")
        strip(pc + 4 * k, k == 0)
    A(f"v_and_b32 v{t+11}, 0xff, v{t+11}")
    A(f"v_cmp_ne_u32 vcc, 0, v{t+11}")
    A("s_cbranch_vccnz L_cretry")
    A("s_mov_b64 exec, -1")
    stamp(8)
    for h in (0, 16):
        for r in range(8): A(f"v_add_f32 v{pc+h+r}, v{pc+h+r}, v{pc+h+8+r}")
    for h in (0, 16):
        for r in range(4): A(f"v_add_f32 v{pc+h+r}, v{pc+h+r}, v{pc+h+4+r}")
    for h in (0, 16):
        for r in range(2): A(f"v_permlane32_swap_b32 v{pc+h+r}, v{pc+h+2+r}")
    for h in (0, 16):
        for r in range(2): A(f"v_add_f32 v{pc+h+r}, v{pc+h+r}, v{pc+h+2+r}")
    for h in (0, 16): A(f"v_permlane16_swap_b32 v{pc+h}, v{pc+h+1}")
    for h in (0, 16): A(f"v_add_f32 v{pc+h}, v{pc+h}, v{pc+h+1}")
    for h in (0, 16): A(f"v_add_f32_dpp v{pc+h}, v{pc+h}, v{pc+h} row_ror:8 {DPPM}")
    for h in (0, 16): A(f"v_cvt_pk_bf16_f32 v{pc+h}, 0, v{pc+h}")
    A(f"v_mul_f32 v{pc}, v{gg}, v{pc}")
    A(f"v_mul_f32 v{pc+16}, v{gg+1}, v{pc+16}")
    for h in (0, 16): A(f"v_cvt_pk_bf16_f32 v{pc+h}, 0, v{pc+h}")
    A(f"v_add_f32 v{pc}, v{pc}, v{pc+16}")
    A(f"v_cvt_pk_bf16_f32 v{pc}, v{pc}, v{pc}")
    A("s_mov_b32 s4, 0x00ff00ff")
    A("s_mov_b32 s5, 0x00ff00ff")
    A("s_mov_b64 exec, s[4:5]")
    A(f"buffer_store_short v{pc}, v{t+10}, {sr(sOUT)}, s{sTmp} offen")
    A("s_cmp_lg_u32 s2, 0")
    A("s_cbranch_scc1 L_fin")
    A("s_mov_b64 exec, 1")
    A(f"v_mov_b32 v{pc+1}, s{sE}")
    A(f"buffer_store_dword v{pc+1}, v0, {sr(sWS)}, 0 offen")
    A("L_fin:")
    if stamps:
        A("s_mov_b64 exec, 1")
        stamp(9)
        A("s_waitcnt lgkmcnt(0)")
        A(f"s_lshl_b32 s{sTmp}, s2, 2")
        A(f"s_add_u32 s{sTmp}, s{sTmp}, s{sWave}")
        A(f"s_lshl_b32 s{sTmp}, s{sTmp}, 6")
        A(f"s_add_u32 s{sTmp}, s{sTmp}, {WS_ST}")
        A("s_getreg_b32 s4, hwreg(HW_REG_XCC_ID)")
        A("s_getreg_b32 s5, hwreg(HW_REG_HW_ID)")
        b = a + 32
        for k in range(10): A(f"v_mov_b32 v{b+k}, s{sStamp+2*k}")
        A(f"v_mov_b32 v{b+10}, s4")
        A(f"v_mov_b32 v{b+11}, s5")
        A(f"v_mov_b32 v{b+12}, s{sSpin}")
        for k in range(4): A(f"buffer_store_dwordx4 {vr(b+4*k,4)}, v0, {sr(sWS)}, s{sTmp} offen offset:{16*k}")
        if dbg:
            A("s_cmp_lg_u32 s2, 0")
            A("s_cbranch_scc1 L_end")
            A(f"s_cmp_lg_u32 s{sWave}, 3")
            A("s_cbranch_scc1 L_end")
            A("s_load_dwordx2 s[8:9], s[0:1], 96")
            A("s_mov_b32 s10, 256")
            A("s_mov_b32 s11, 0x20000")
            for k in range(1, 10): A(f"v_subrev_u32 v{b+16+k}, s{sStamp}, v{b+k}")
            A(f"v_mov_b32 v{b+16}, s{sSpin}")
            A("s_waitcnt lgkmcnt(0)")
            for k in range(3): A(f"buffer_store_dwordx4 {vr(b+16+4*k,4)}, v0, s[8:11], 0 offen offset:{16*k}")
    A("L_end:")
    A("s_endpgm")
    def spinchk():
        A(f"s_sub_u32 s{sSpin}, s{sSpin}, 1")
        A("s_cbranch_scc1 L_end")
    A("L_qretry:")
    spinchk(); qpoll()
    A("s_waitcnt vmcnt(0)")
    A("s_branch L_qchk")
    A("L_bretry:")
    spinchk()
    A("s_mov_b64 exec, vcc")
    bpoll()
    A("s_branch L_bchk")
    A("L_cretry:")
    spinchk()
    A("s_mov_b64 exec, vcc")
    A("s_branch L_cpoll")
    body = pad(L)
    ref = open(os.path.join(os.path.dirname(os.path.abspath(__file__)), "header.txt")).read().rstrip("\n").split("\n")
    out = ref + [f"; @launch grid=(256,1,1) block=(256,1,1) lds={L_SZ}",
                 '.amdgcn_target "amdgcn-amd-amdhsa--gfx950"', ".text", f".globl {KNAME}", ".p2align 8",
                 f".type {KNAME},@function"] + body
    acc = (NV + 3) // 4 * 4
    out += ['.section .rodata,"a"', ".p2align 6", f".amdhsa_kernel {KNAME}",
            f"  .amdhsa_next_free_vgpr {NV}", "  .amdhsa_next_free_sgpr 102", f"  .amdhsa_accum_offset {acc}",
            "  .amdhsa_group_segment_fixed_size 0", "  .amdhsa_kernarg_size 112", "  .amdhsa_user_sgpr_count 2",
            "  .amdhsa_user_sgpr_kernarg_segment_ptr 1", "  .amdhsa_system_sgpr_workgroup_id_x 1",
            "  .amdhsa_float_denorm_mode_32 3", ".end_amdhsa_kernel"]
    return "\n".join(out) + "\n"

if __name__ == "__main__":
    kw = eval("dict(" + (sys.argv[1] if len(sys.argv) > 1 else "") + ")")
    sys.stdout.write(gen(**kw))
```

```python
import sys, os
sys.path.insert(0, os.path.dirname(os.path.abspath(__file__)))
from hz import pad

KNAME = "gated_mix__gqa_block_cached__gqa_block_cached__decode_kernel"
LOG2E = 0x3fb8aa3b
SCALE = 0x3db504f3

WS_Q  = 0x10000
WS_ML = 0x30000
WS_O  = 0x100000
WS_P2 = 0x200000
WS_ST = 0x300000
WS_SZ = 0x400000

def gen(NP=5, waits=(4,)*8, R=3, XB=2, wqflags="nt", woflags="nt", kvflags="nt", stamps=False, spin=1 << 17, rep=1, dbg=False, probe=0):
    P = max(waits) + 1
    L = []
    def A(s): L.append(s)
    class V: pass
    v = V(); nv = [0]
    def valloc(name, n=1, al=1):
        nv[0] = (nv[0] + al - 1) // al * al
        setattr(v, name, nv[0]); nv[0] += n
    valloc("tid"); valloc("koff"); valloc("voff"); valloc("mask0"); valloc("mask1"); valloc("T");
    valloc("m", 2, 2); v.l = v.m + 1
    valloc("mL"); valloc("y0"); valloc("y1"); valloc("z"); valloc("p"); valloc("pd")
    valloc("q", 4, 2); valloc("acc", 8, 2); valloc("D", 8, 2)
    valloc("W", 18, 2)
    valloc("t", 12, 2)
    valloc("buf", 32 * NP, 4)
    NV = nv[0]
    assert NV <= 256, NV
    def vr(a, n): return f"v[{a}:{a+n-1}]"
    wqr = v.buf + 32 * (NP - 1)
    xr = v.buf + 32 * (NP - 2) + 16
    sK, sV, sWQ, sWO, sWS, sX, sGW, sOUT = 20, 24, 28, 32, 36, 40, 44, 48
    sWave, sTile, sCnt, sE, sL2E, sTmp, sTmp2, sSpin = 3, 52, 53, 54, 55, 56, 57, 58
    sQ1, sQ2, sQ3 = 60, 62, 64
    sRet = 66
    sTag = 68
    sTag16 = 72
    sSave = 74
    sFF = 76
    sStamp = 80
    def sr(a, n=4): return f"s[{a}:{a+n-1}]"
    def stamp(k):
        if stamps: A(f"s_memrealtime s[{sStamp+2*k}:{sStamp+2*k+1}]")

    A(f"{KNAME}:")
    A("s_cmp_ge_u32 s2, 256")
    A("s_cbranch_scc1 L_end")
    stamp(0)
    if probe: A("s_memrealtime s[100:101]")
    A("s_lshr_b32 s4, s2, 7")
    A("s_mul_i32 s4, s4, 40")
    A("s_add_u32 s4, s0, s4")
    A("s_addc_u32 s5, s1, 0")
    A("s_load_dwordx8 s[8:15], s[4:5], 8")
    A(f"s_load_dwordx2 {sr(sX,2)}, s[0:1], 0")
    A(f"s_load_dwordx2 {sr(sWS,2)}, s[0:1], 104")
    A("s_load_dwordx4 s[16:19], s[0:1], 80")
    t = v.t
    A(f"v_lshrrev_b32 v{t}, 6, v0")
    A(f"v_and_b32 v0, 63, v0")
    A(f"v_readfirstlane_b32 s{sWave}, v{t}")
    A(f"v_lshrrev_b32 v{t+1}, 3, v0")
    A(f"v_lshl_add_u32 v{t+2}, v{t}, 3, v{t+1}")
    A(f"v_and_b32 v{t+3}, 7, v0")
    A(f"v_lshlrev_b32 v{t+3}, 3, v{t+3}")
    A(f"v_lshl_add_u32 v{t+3}, v{t+2}, 17, v{t+3}")
    A(f"v_bfe_u32 v{t+4}, v0, 2, 1")
    A(f"v_lshlrev_b32 v{t+4}, 10, v{t+4}")
    A(f"v_lshl_add_u32 v{t+4}, v{t+2}, 5, v{t+4}")
    A(f"v_bfe_u32 v{t+5}, v0, 2, 2")
    A(f"v_lshrrev_b32 v{t+6}, 4, v0")
    A(f"v_and_b32 v{t+7}, 3, v0")
    A(f"v_lshlrev_b32 v{v.koff}, 8, v{t+5}")
    A(f"v_lshl_add_u32 v{v.koff}, v{t+6}, 6, v{v.koff}")
    A(f"v_lshl_add_u32 v{v.koff}, v{t+7}, 4, v{v.koff}")
    A(f"v_lshlrev_b32 v{v.voff}, 4, v0")
    A("s_bfe_u32 s77, s2, 0x30004")
    A("s_bfe_u32 s6, s2, 0x10003")
    A("s_and_b32 s7, s2, 7")
    A(f"s_lshl_b32 s{sTmp}, s7, 1")
    A(f"s_add_u32 s{sTmp}, s{sTmp}, s6")
    A(f"s_lshl_b32 s{sTmp}, s{sTmp}, 6")
    A(f"s_lshl_b32 s{sTmp2}, s77, 10")
    A(f"s_add_u32 s{sTmp}, s{sTmp}, s{sTmp2}")
    A(f"s_lshl_b32 s{sTmp2}, s6, 3")
    A(f"s_add_u32 s{sTmp2}, s{sTmp2}, s77")
    A(f"s_lshl_b32 s{sTmp2}, s{sTmp2}, 3")
    A(f"s_add_u32 s{sTmp2}, s{sTmp2}, s7")
    A(f"s_lshl_b32 s{sTmp2}, s{sTmp2}, 20")
    A(f"s_lshl_b32 s{sTile}, s{sWave}, 12")
    A(f"s_mov_b32 s{sX+2}, 2048")
    A(f"s_mov_b32 s{sX+3}, 0x20000")
    A(f"s_mov_b32 s{sWQ+2}, 0x400000")
    A(f"s_mov_b32 s{sWQ+3}, 0x20000")
    A(f"s_mov_b32 s{sK+2}, 0x100000")
    A(f"s_mov_b32 s{sK+3}, 0x20000")
    A(f"s_mov_b32 s{sV+2}, 0x100000")
    A(f"s_mov_b32 s{sV+3}, 0x20000")
    A("s_waitcnt lgkmcnt(0)")
    A(f"s_mov_b32 s{sWQ}, s12")
    A(f"s_mov_b32 s{sWQ+1}, s13")
    A(f"buffer_load_dwordx4 {vr(xr,4)}, v{t+4}, {sr(sX)}, 0 offen")
    A(f"buffer_load_dwordx4 {vr(xr+4,4)}, v{t+4}, {sr(sX)}, 0 offen offset:16")
    for tt in range(16):
        A(f"buffer_load_dwordx2 {vr(wqr+2*tt,2)}, v{t+3}, {sr(sWQ)}, s{sTmp} offen {wqflags}")
        if tt < 15: A(f"s_add_u32 s{sTmp}, s{sTmp}, 8192")
    A(f"s_load_dword s{sE}, {sr(sWS,2)}, 0")
    A(f"s_add_u32 s{sK}, s8, s{sTmp2}")
    A(f"s_addc_u32 s{sK+1}, s9, 0")
    A(f"s_add_u32 s{sV}, s10, s{sTmp2}")
    A(f"s_addc_u32 s{sV+1}, s11, 0")
    bufof = {}
    def slot(i): return v.buf + 32 * bufof[i >> 3] + 4 * (i & 7)
    def issue(i):
        tl, p = i >> 3, i & 7
        if tl not in bufof: bufof[tl] = tl if tl < NP else (tl - NP) & 1
        if p == 0 and i > 0:
            A(f"s_add_u32 s{sTile}, s{sTile}, 16384")
            if rep > 1: A(f"s_and_b32 s{sTile}, s{sTile}, 0xfffff")
        off = f" offset:{1024*(p&3)}" if p & 3 else ""
        if p < 4: A(f"buffer_load_dwordx4 {vr(slot(i),4)}, v{v.koff}, {sr(sK)}, s{sTile} offen{off} {kvflags}")
        else:     A(f"buffer_load_dwordx4 {vr(slot(i),4)}, v{v.voff}, {sr(sV)}, s{sTile} offen{off} {kvflags}")
    sel = xr + 8; bq = xr + 12
    A(f"s_mov_b32 s{sWS+2}, {WS_SZ}")
    A(f"s_mov_b32 s{sWS+3}, 0x20000")
    A(f"s_mov_b32 s{sWO}, s14")
    A(f"s_mov_b32 s{sWO+1}, s15")
    A(f"s_mov_b32 s{sWO+2}, 0x400000")
    A(f"s_mov_b32 s{sWO+3}, 0x20000")
    A(f"s_mov_b32 s{sGW}, s16")
    A(f"s_mov_b32 s{sGW+1}, s17")
    A(f"s_mov_b32 s{sGW+2}, 1024")
    A(f"s_mov_b32 s{sGW+3}, 0x20000")
    A(f"s_mov_b32 s{sOUT}, s18")
    A(f"s_mov_b32 s{sOUT+1}, s19")
    A(f"s_mov_b32 s{sOUT+2}, 2048")
    A(f"s_mov_b32 s{sOUT+3}, 0x20000")
    A(f"s_mov_b32 s{sL2E}, {LOG2E:#x}")
    A(f"s_mov_b32 s{sFF}, 0xff")
    for k, s in ((1, sQ1), (2, sQ2), (3, sQ3)):
        A(f"s_mov_b32 s{s}, {0x11111111 << k:#x}")
        A(f"s_mov_b32 s{s+1}, {0x11111111 << k:#x}")
    A(f"v_mov_b32 v{t+8}, 0xffff")
    A(f"v_mov_b32 v{t+9}, 0xffff0000")
    A(f"v_cndmask_b32 v{v.mask1}, 0, v{t+8}, {sr(sQ2,2)}")
    A(f"v_cndmask_b32 v{v.mask1}, v{v.mask1}, v{t+9}, {sr(sQ3,2)}")
    A(f"v_cndmask_b32 v{v.mask0}, v{t+8}, v{t+9}, {sr(sQ1,2)}")
    A(f"v_cmp_gt_u32 vcc, 2, v{t+7}")
    A(f"v_cndmask_b32 v{v.mask0}, 0, v{v.mask0}, vcc")
    A(f"s_mov_b32 s{sTmp}, 0x01000100")
    A(f"s_mov_b32 s{sTmp2}, 0x03020302")
    A(f"v_mov_b32 v{t+8}, 0x0c0c0c0c")
    A(f"v_bfi_b32 v{sel}, v{v.mask0}, s{sTmp}, v{t+8}")
    A(f"v_bfi_b32 v{sel+1}, v{v.mask1}, s{sTmp}, v{t+8}")
    A(f"v_bfi_b32 v{sel+2}, v{v.mask0}, s{sTmp2}, v{t+8}")
    A(f"v_bfi_b32 v{sel+3}, v{v.mask1}, s{sTmp2}, v{t+8}")
    for k in range(18):
        if k % 4 < 2: A(f"v_mov_b32 v{v.W+k}, 0")
    for k in range(8): A(f"v_mov_b32 v{v.acc+k}, 0")
    A(f"v_mov_b32 v{v.m}, 0xff800000")
    A(f"v_mov_b32 v{v.mL}, 0xff800000")
    A(f"v_mov_b32 v{v.l}, 0")
    A(f"v_lshl_add_u32 v{t+8}, v{t}, 10, v{v.voff}")
    i = 0
    for m in range(8):
        A(f"s_waitcnt vmcnt({14 - 2*m + i})")
        if m >= 8 - P:
            issue(i); i += 1
        for k in range(4):
            A(f"v_perm_b32 v{bq+k}, v{xr+m}, v{xr+m}, v{sel+k}")
        c = "0" if m == 0 else vr(v.D, 4)
        A(f"v_mfma_f32_16x16x32_bf16 {vr(v.D,4)}, {vr(wqr+4*m,4)}, {vr(bq,4)}, {c}")
    stamp(1)
    for k in range(XB):
        issue(i); i += 1
    A(f"ds_write_b128 v{t+8}, {vr(v.D,4)}")
    A(f"v_bfe_u32 v{t+9}, v0, 4, 1")
    A(f"v_lshlrev_b32 v{t+9}, 8, v{t+9}")
    A(f"v_lshrrev_b32 v{t+10}, 5, v0")
    A(f"v_lshl_add_u32 v{t+9}, v{t+10}, 6, v{t+9}")
    A(f"v_lshl_add_u32 v{t+9}, v{t+7}, 4, v{t+9}")
    A(f"v_lshl_add_u32 v{t+9}, v{t+5}, 2, v{t+9}")
    A("s_waitcnt lgkmcnt(0)")
    A("s_barrier")
    A(f"s_add_u32 s{sE}, s{sE}, 1")
    A(f"s_and_b32 s{sTag16}, s{sE}, 0xffff")
    for k in range(4):
        A(f"s_add_u32 s{sTag+k}, s{sE}, {37*k}")
        A(f"s_and_b32 s{sTag+k}, s{sTag+k}, 0xff")
    A(f"s_cmp_lg_u32 s{sWave}, 0")
    A("s_cbranch_scc1 L_nopub")
    qr = wqr
    for w in range(4):
        for r1 in range(2):
            A(f"ds_read_b32 v{qr+2*w+r1}, v{t+9} offset:{1024*w + 640*r1}")
    A(f"s_lshr_b32 s{sTmp}, s2, 4")
    A(f"s_lshl_b32 s{sTmp}, s{sTmp}, 12")
    A(f"s_lshl_b32 s{sTmp2}, s7, 1")
    A(f"s_add_u32 s{sTmp2}, s{sTmp2}, s6")
    A(f"s_lshl_b32 s{sTmp2}, s{sTmp2}, 7")
    A(f"s_add_u32 s{sTmp}, s{sTmp}, s{sTmp2}")
    A(f"s_add_u32 s{sTmp}, s{sTmp}, {WS_Q}")
    A(f"v_and_b32 v{t+11}, 31, v0")
    A(f"v_lshlrev_b32 v{t+11}, 2, v{t+11}")
    A(f"v_lshl_add_u32 v{t+11}, v{t+10}, 11, v{t+11}")
    A("s_waitcnt lgkmcnt(0)")
    for k in range(4): A(f"v_add_f32 v{qr+k}, v{qr+k}, v{qr+4+k}")
    A(f"v_add_f32 v{qr}, v{qr}, v{qr+2}")
    A(f"v_add_f32 v{qr+1}, v{qr+1}, v{qr+3}")
    A(f"v_add_f32 v{qr}, v{qr}, v{qr+1}")
    A(f"v_cvt_pk_bf16_f32 v{qr}, 0, v{qr}")
    A(f"v_or_b32 v{t+8}, s{sTag16}, v{qr}")
    A(f"buffer_store_dword v{t+8}, v{t+11}, {sr(sWS)}, s{sTmp} offen sc1")
    A("L_nopub:")
    stamp(2)
    A(f"v_lshl_add_u32 v{t+9}, v{t+5}, 2, v{t+6}")
    A(f"v_lshlrev_b32 v{t+9}, 7, v{t+9}")
    A(f"v_lshl_add_u32 v{t+9}, v{t+7}, 5, v{t+9}")
    A(f"s_lshr_b32 s{sTmp}, s2, 3")
    A(f"s_lshl_b32 s{sTmp}, s{sTmp}, 11")
    A(f"s_add_u32 s{sTmp}, s{sTmp}, {WS_Q}")
    A(f"s_mov_b32 s{sSpin}, {spin}")
    qp = v.D
    def qpoll():
        A(f"buffer_load_dwordx4 {vr(qp,4)}, v{t+9}, {sr(sWS)}, s{sTmp} offen sc1")
        A(f"buffer_load_dwordx4 {vr(qp+4,4)}, v{t+9}, {sr(sWS)}, s{sTmp} offen offset:16 sc1")
    while i < 8 * NP:
        A(f"s_waitcnt vmcnt({waits[i&7]})")
        if i == 8 * NP - P: qpoll()
        issue(i); i += 1
    A(f"s_waitcnt vmcnt({P})")
    A("L_qchk:")
    A(f"v_xor_b32 v{t+8}, s{sTag16}, v{qp}")
    for k in range(1, 8): A(f"v_bitop3_b32 v{t+8}, v{qp+k}, s{sTag16}, v{t+8} bitop3:0xbe")
    A(f"v_and_b32 v{t+8}, 0xffff, v{t+8}")
    A(f"v_cmp_ne_u32 vcc, 0, v{t+8}")
    A("s_cbranch_vccnz L_qretry")
    A(f"s_mov_b32 s{sTmp2}, 0x07060302")
    for k in range(4): A(f"v_perm_b32 v{v.q+k}, v{qp+2*k+1}, v{qp+2*k}, s{sTmp2}")
    stamp(3)
    nstub = [0]
    def red(u):
        D = v.D + 4 * (u & 1)
        A(f"v_add_f32_dpp v{v.y0}, v{D+(u^1)}, v{D+u} quad_perm:[1,0,3,2] row_mask:0xf bank_mask:0xf")
        A(f"v_add_f32_dpp v{v.y1}, v{D+(u^3)}, v{D+(u^2)} quad_perm:[1,0,3,2] row_mask:0xf bank_mask:0xf")
        dst = v.T if u == 0 else v.z
        A(f"v_add_f32_dpp v{dst}, v{v.y1}, v{v.y0} quad_perm:[2,3,0,1] row_mask:0xf bank_mask:0xf")
        if u: A(f"v_cndmask_b32 v{v.T}, v{v.T}, v{v.z}, {sr((sQ1,sQ2,sQ3)[u-1],2)}")
    def ands(u):
        w = v.W + 2 + 4 * u
        A(f"v_and_b32_dpp v{w}, v{v.pd}, v{v.mask0} quad_perm:[{u},{u},{u},{u}] row_mask:0xf bank_mask:0xf")
        A(f"v_and_b32_dpp v{w+1}, v{v.pd}, v{v.mask1} quad_perm:[{u},{u},{u},{u}] row_mask:0xf bank_mask:0xf")
    def process(j, last=False):
        p = j & 7
        if p < 4:
            A(f"v_mfma_f32_16x16x32_bf16 {vr(v.D+4*(p&1),4)}, {vr(slot(j),4)}, {vr(v.q,4)}, 0")
            if p >= 1: red(p - 1)
            if p == 3:
                red(3)
                A(f"v_cvt_pk_bf16_f32 v{v.T}, 0, v{v.T}")
                A(f"v_mul_f32 v{v.T}, {SCALE:#x}, v{v.T}")
                A(f"v_cvt_pk_bf16_f32 v{v.T}, 0, v{v.T}")
                A(f"v_cmp_gt_f32 vcc, v{v.T}, v{v.m}")
                k = nstub[0]; nstub[0] += 1
                A(f"s_cbranch_vccnz L_res{k}")
                A(f"L_back{k}:")
                A(f"v_fma_f32 v{v.p}, v{v.T}, s{sL2E}, -v{v.mL}")
                A(f"v_exp_f32 v{v.p}, v{v.p}")
                A(f"v_cvt_pk_bf16_f32 v{v.pd}, v{v.p}, v{v.p}")
                A(f"v_add_f32 v{v.l}, v{v.l}, v{v.p}")
                ands(0)
                if last:
                    ands(1); ands(2); ands(3)
        else:
            u = p - 4
            w = v.W + 4 * u
            A(f"v_mfma_f32_16x16x32_bf16 {vr(v.acc,4)}, {vr(slot(j),4)}, {vr(w+2,4)}, {vr(v.acc,4)}")
            A(f"v_mfma_f32_16x16x32_bf16 {vr(v.acc+4,4)}, {vr(slot(j),4)}, {vr(w,4)}, {vr(v.acc+4,4)}")
            if u < 3 and not last: ands(u + 1)
    j = 0
    landed = i - P
    def owner(i):
        tl = i >> 3; b = (tl - NP) & 1
        prev = max(x for x in bufof if bufof[x] == b and x < tl)
        return prev * 8 + (i & 7)
    while not (j == i - P and i % 16 == 0 and (j >> 3) >= NP):
        while j <= owner(i):
            assert j < landed, "catch-up needs data not yet landed"
            process(j); j += 1
        A(f"s_waitcnt vmcnt({waits[i&7]})")
        landed = max(landed, i - waits[i & 7])
        issue(i); i += 1
        n = 0
        while n < R and j < i - P:
            assert j < landed
            process(j); j += 1; n += 1
    i0 = i
    assert (512 - i0) % 16 == 0 and i0 < 512
    A(f"s_mov_b32 s{sCnt}, {(512*rep - i0)//16}")
    stamp(4)
    A(".p2align 6")
    A("L_loop:")
    for k in range(16):
        A(f"s_waitcnt vmcnt({waits[i&7]})")
        issue(i); i += 1
        if k == 15:
            A(f"s_sub_u32 s{sCnt}, s{sCnt}, 1")
        process(j); j += 1
    A(f"s_cmp_lg_u32 s{sCnt}, 0")
    A("s_cbranch_scc1 L_loop")
    wor = v.buf + 64
    gx = v.buf + 96
    assert NP >= 4
    A(f"s_bfe_u32 s{sTmp}, s2, 0x50002")
    A(f"s_lshl_b32 s{sTmp}, s{sTmp}, 2")
    A(f"s_add_u32 s{sTmp}, s{sTmp}, s{sWave}")
    A(f"s_lshl_b32 s{sTmp}, s{sTmp}, 15")
    A(f"s_and_b32 s{sTmp2}, s2, 3")
    A(f"s_lshl_b32 s{sTmp2}, s{sTmp2}, 8")
    A(f"s_add_u32 s{sTmp}, s{sTmp}, s{sTmp2}")
    A(f"v_and_b32 v{t+8}, 0xff, v{v.voff}")
    A(f"v_lshl_add_u32 v{t+8}, v{t+6}, 10, v{t+8}")
    extra = []
    for k in range(8):
        extra.append([f"buffer_load_dwordx4 {vr(wor+4*k,4)}, v{t+8}, {sr(sWO)}, s{sTmp} offen {woflags}",
                      f"s_add_u32 s{sTmp}, s{sTmp}, 4096"])
    jend = j + P
    lastk3 = jend - 5
    while j < jend:
        A(f"s_waitcnt vmcnt({waits[i&7]})")
        for s in extra.pop(0): A(s)
        i += 1
        process(j, last=(j >= lastk3));
        if j == lastk3:
            A(f"v_add_f32_dpp v{v.l}, v{v.l}, v{v.l} quad_perm:[1,0,3,2] row_mask:0xf bank_mask:0xf")
            A(f"v_add_f32_dpp v{v.l}, v{v.l}, v{v.l} quad_perm:[2,3,0,1] row_mask:0xf bank_mask:0xf")
            A(f"v_mov_b32 v{v.y0}, v{v.l}")
            A(f"v_permlane16_swap_b32 v{v.y0}, v{v.l}")
            A(f"v_add_f32 v{v.l}, v{v.l}, v{v.y0}")
            A(f"v_mov_b32 v{v.y0}, v{v.l}")
            A(f"v_permlane32_swap_b32 v{v.y0}, v{v.l}")
            A(f"v_add_f32 v{v.l}, v{v.l}, v{v.y0}")
            A(f"s_lshl_b32 s{sTmp2}, s{sWave}, 9")
            A(f"v_lshl_add_u32 v{t+9}, v0, 3, s{sTmp2}")
            A(f"ds_write_b64 v{t+9}, {vr(v.m,2)} offset:8192")
            A(f"s_lshl_b32 s{sTmp2}, s{sWave}, 11")
            A(f"v_add_u32 v{t+9}, s{sTmp2}, v{v.voff}")
        j += 1
    assert P >= 5
    for e in extra:
        for s in e: A(s)
    A(f"s_and_b32 s{sTmp2}, s2, 1")
    A(f"s_lshl_b32 s{sTmp2}, s{sTmp2}, 10")
    A(f"buffer_load_dwordx4 {vr(gx,4)}, v{v.voff}, {sr(sX)}, s{sTmp2} offen")
    A(f"buffer_load_dwordx4 {vr(gx+4,4)}, v{v.voff}, {sr(sGW)}, 0 offen")
    A(f"ds_write_b128 v{t+9}, {vr(v.acc,4)}")
    A(f"ds_write_b128 v{t+9}, {vr(v.acc+4,4)} offset:1024")
    stamp(5)
    A(f"v_lshlrev_b32 v{t+9}, 3, v0")
    A(f"s_lshl_b32 s{sTmp2}, s{sWave}, 10")
    A(f"v_add_u32 v{t+10}, s{sTmp2}, v{v.voff}")
    A("s_waitcnt lgkmcnt(0)")
    A("s_barrier")
    a = v.buf
    ml = a
    oo = a + 8
    A(f"s_cmp_eq_u32 s{sWave}, 3")
    A("s_cbranch_scc1 L_gate")
    for w in range(4): A(f"ds_read_b64 {vr(ml+2*w,2)}, v{t+9} offset:{8192+512*w}")
    for w in range(4): A(f"ds_read_b128 {vr(oo+4*w,4)}, v{t+10} offset:{2048*w}")
    A(f"s_lshl_b32 s{sTmp}, s2, 11")
    A(f"s_lshl_b32 s{sTmp2}, s{sWave}, 8")
    A(f"s_add_u32 s{sTmp}, s{sTmp}, s{sTmp2}")
    A(f"s_add_u32 s{sTmp}, s{sTmp}, {WS_O}")
    A(f"v_lshl_add_u32 v{t+11}, v{t+6}, 2, v{t+7}")
    A(f"v_lshlrev_b32 v{t+11}, 4, v{t+11}")
    A(f"v_lshl_add_u32 v{t+11}, v{t+5}, 9, v{t+11}")
    A("s_waitcnt lgkmcnt(4)" if not stamps else "s_waitcnt lgkmcnt(0)")
    M = a + 24;
    A(f"v_max3_f32 v{M}, v{ml}, v{ml+2}, v{ml+4}")
    A(f"v_max_f32 v{M}, v{M}, v{ml+6}")
    A(f"v_mul_f32 v{M+1}, s{sL2E}, v{M}")
    for w in range(4): A(f"v_fma_f32 v{ml+2*w}, v{ml+2*w}, s{sL2E}, -v{M+1}")
    for w in range(4): A(f"v_exp_f32 v{ml+2*w}, v{ml+2*w}")
    A(f"s_cmp_eq_u32 s{sWave}, 2")
    A("s_cbranch_scc1 L_pubml")
    A("s_waitcnt lgkmcnt(0)")
    for r in range(4): A(f"v_mul_f32 v{oo+r}, v{ml}, v{oo+r}")
    for w in range(1, 4):
        for r in range(4): A(f"v_fmac_f32 v{oo+r}, v{ml+2*w}, v{oo+4*w+r}")
    for r in range(4):
        A(f"v_and_b32 v{oo+r}, 0xffffff00, v{oo+r}")
        A(f"v_or_b32 v{oo+r}, s{sTag+r}, v{oo+r}")
    A(f"buffer_store_dwordx4 {vr(oo,4)}, v{t+11}, {sr(sWS)}, s{sTmp} offen sc1")
    A("s_branch L_stageB")
    A("L_pubml:")
    A(f"v_mul_f32 v{M+1}, v{ml}, v{ml+1}")
    for w in range(1, 4): A(f"v_fmac_f32 v{M+1}, v{ml+2*w}, v{ml+2*w+1}")
    A(f"v_or_b32 v{M}, s{sTag}, v{M}")
    A(f"v_and_b32 v{M+1}, 0xffffff00, v{M+1}")
    A(f"v_or_b32 v{M+1}, s{sTag+1}, v{M+1}")
    A(f"v_mov_b32 v{M+2}, s{sTag+2}")
    A(f"v_mov_b32 v{M+3}, s{sTag+3}")
    A(f"s_lshr_b32 s{sTmp}, s2, 4")
    A(f"s_lshl_b32 s{sTmp}, s{sTmp}, 10")
    A(f"s_and_b32 s{sTmp2}, s2, 15")
    A(f"s_lshl_b32 s{sTmp2}, s{sTmp2}, 4")
    A(f"s_add_u32 s{sTmp}, s{sTmp}, s{sTmp2}")
    A(f"s_add_u32 s{sTmp}, s{sTmp}, {WS_ML}")
    A(f"v_lshlrev_b32 v{t+11}, 8, v{t+5}")
    A("s_mov_b64 exec, 0x1111")
    A(f"buffer_store_dwordx4 {vr(M,4)}, v{t+11}, {sr(sWS)}, s{sTmp} offen sc1")
    A("s_mov_b64 exec, -1")
    A("s_branch L_stageB")
    A("L_gate:")
    gg = gx + 8
    A("s_cmp_ge_u32 s2, 32")
    A("s_cbranch_scc1 L_stageB")
    A("s_waitcnt vmcnt(0)")
    for k in range(4):
        A(f"v_lshlrev_b32 v{a+2*k}, 16, v{gx+k}")
        A(f"v_and_b32 v{a+2*k+1}, 0xffff0000, v{gx+k}")
        A(f"v_lshlrev_b32 v{a+8+2*k}, 16, v{gx+4+k}")
        A(f"v_and_b32 v{a+8+2*k+1}, 0xffff0000, v{gx+4+k}")
    for k in range(8): A(f"v_mul_f32 v{a+k}, v{a+k}, v{a+8+k}")
    for k in range(8): A(f"v_cvt_pk_bf16_f32 v{a+k}, 0, v{a+k}")
    for k in range(4): A(f"v_add_f32 v{a+k}, v{a+k}, v{a+4+k}")
    A(f"v_add_f32 v{a}, v{a}, v{a+2}")
    A(f"v_add_f32 v{a+1}, v{a+1}, v{a+3}")
    A(f"v_add_f32 v{a}, v{a}, v{a+1}")
    A(f"v_add_f32_dpp v{a}, v{a}, v{a} quad_perm:[1,0,3,2] row_mask:0xf bank_mask:0xf")
    A(f"v_add_f32_dpp v{a}, v{a}, v{a} quad_perm:[2,3,0,1] row_mask:0xf bank_mask:0xf")
    A(f"v_add_f32_dpp v{a}, v{a}, v{a} row_half_mirror row_mask:0xf bank_mask:0xf")
    A(f"v_add_f32_dpp v{a}, v{a}, v{a} row_mirror row_mask:0xf bank_mask:0xf")
    A(f"v_mov_b32 v{a+1}, v{a}")
    A(f"v_permlane16_swap_b32 v{a+1}, v{a}")
    A(f"v_add_f32 v{a}, v{a}, v{a+1}")
    A(f"v_mov_b32 v{a+1}, v{a}")
    A(f"v_permlane32_swap_b32 v{a+1}, v{a}")
    A(f"v_add_f32 v{a}, v{a}, v{a+1}")
    A(f"v_cvt_pk_bf16_f32 v{a}, 0, v{a}")
    A(f"v_mul_f32 v{a}, {LOG2E | 0x80000000:#x}, v{a}")
    A(f"v_exp_f32 v{a}, v{a}")
    A(f"v_add_f32 v{a}, 1.0, v{a}")
    A(f"v_rcp_f32 v{a}, v{a}")
    A(f"v_cvt_pk_bf16_f32 v{gg}, 0, v{a}")
    A(f"v_sub_f32 v{gg+1}, 1.0, v{gg}")
    A(f"v_cvt_pk_bf16_f32 v{gg+1}, 0, v{gg+1}")
    A("L_stageB:")
    stamp(6)
    pa = a + 32
    sb = a + 44
    bb = a + 52
    A(f"s_and_b32 s{sTmp}, s2, 0xf0")
    A(f"s_lshl_b32 s{sTmp}, s{sTmp}, 11")
    A(f"s_bfe_u32 s{sTmp2}, s2, 0x20002")
    A(f"s_lshl_b32 s{sTmp2}, s{sTmp2}, 9")
    A(f"s_add_u32 s{sTmp}, s{sTmp}, s{sTmp2}")
    A(f"s_lshl_b32 s{sTmp2}, s{sWave}, 6")
    A(f"s_add_u32 s{sTmp}, s{sTmp}, s{sTmp2}")
    A(f"s_add_u32 s{sTmp}, s{sTmp}, {WS_O}")
    A(f"v_and_b32 v{t+9}, 15, v0")
    A(f"v_lshlrev_b32 v{t+10}, 4, v{t+9}")
    A(f"v_lshlrev_b32 v{t+9}, 11, v{t+9}")
    A(f"v_lshl_add_u32 v{t+9}, v{t+6}, 4, v{t+9}")
    A(f"s_lshr_b32 s{sTmp2}, s2, 2")
    A(f"s_lshl_b32 s{sTmp2}, s{sTmp2}, 8")
    A(f"s_add_u32 s{sTmp2}, s{sTmp2}, {WS_ML}")
    def bpoll():
        A(f"buffer_load_dwordx4 {vr(pa+8,4)}, v{t+10}, {sr(sWS)}, s{sTmp2} offen sc1")
        A(f"buffer_load_dwordx4 {vr(pa,4)}, v{t+9}, {sr(sWS)}, s{sTmp} offen sc1")
        A(f"buffer_load_dwordx4 {vr(pa+4,4)}, v{t+9}, {sr(sWS)}, s{sTmp} offen offset:256 sc1")
    bpoll()
    A(f"v_or_b32 v{t+11}, v{v.mask0}, v{v.mask1}")
    A(f"v_mov_b32 v{bb}, 0x0c0c0c0c")
    A(f"s_mov_b32 s4, 0x01000100")
    A(f"s_mov_b32 s5, 0x03020302")
    A(f"v_bfi_b32 v{bb+1}, v{t+11}, s4, v{bb}")
    A(f"v_bfi_b32 v{bb+2}, v{t+11}, s5, v{bb}")
    A(f"v_bfe_u32 v{t+11}, v0, 1, 2")
    for d in range(4):
        A(f"v_cmp_eq_u32 vcc, {d}, v{t+11}")
        A(f"v_cndmask_b32 v{sb+d}, v{bb}, v{bb+1}, vcc")
        A(f"v_cndmask_b32 v{sb+4+d}, v{bb}, v{bb+2}, vcc")
    A("L_bchk:")
    A("s_waitcnt vmcnt(0)")
    A(f"v_xor_b32 v{t+11}, s{sTag}, v{pa}")
    for k in range(1, 12): A(f"v_bitop3_b32 v{t+11}, v{pa+k}, s{sTag+(k&3)}, v{t+11} bitop3:0xbe")
    A(f"v_and_b32 v{t+11}, 0xff, v{t+11}")
    A(f"v_cmp_ne_u32 vcc, 0, v{t+11}")
    A("s_cbranch_vccnz L_bretry")
    A("s_mov_b64 exec, -1")
    stamp(7)
    mm, ll = pa + 8, pa + 9
    A(f"v_and_b32 v{mm}, 0xffff0000, v{mm}")
    A(f"v_max_f32_dpp v{pa+10}, v{mm}, v{mm} quad_perm:[1,0,3,2] row_mask:0xf bank_mask:0xf")
    A(f"v_max_f32_dpp v{pa+10}, v{pa+10}, v{pa+10} quad_perm:[2,3,0,1] row_mask:0xf bank_mask:0xf")
    A(f"v_max_f32_dpp v{pa+10}, v{pa+10}, v{pa+10} row_half_mirror row_mask:0xf bank_mask:0xf")
    A(f"v_sub_f32 v{mm}, v{mm}, v{pa+10}")
    A(f"v_mul_f32 v{mm}, s{sL2E}, v{mm}")
    A(f"v_exp_f32 v{mm}, v{mm}")
    A(f"v_mul_f32 v{ll}, v{ll}, v{mm}")
    for k in range(8): A(f"v_mul_f32 v{pa+k}, v{pa+k}, v{mm}")
    for pm in ("quad_perm:[1,0,3,2]", "quad_perm:[2,3,0,1]", "row_half_mirror"):
        A(f"v_add_f32_dpp v{ll}, v{ll}, v{ll} {pm} row_mask:0xf bank_mask:0xf")
        if pm == "row_half_mirror": A(f"v_rcp_f32 v{ll}, v{ll}")
        for k in range(8): A(f"v_add_f32_dpp v{pa+k}, v{pa+k}, v{pa+k} {pm} row_mask:0xf bank_mask:0xf")
    for k in range(8): A(f"v_mul_f32 v{pa+k}, v{pa+k}, v{ll}")
    for r in range(4): A(f"v_cvt_pk_bf16_f32 v{pa+r}, v{pa+r}, v{pa+4+r}")
    for tp in range(8):
        B = bb + 4 * (tp & 1)
        for d in range(4): A(f"v_perm_b32 v{B+d}, v{pa+(tp>>1)}, v{pa+(tp>>1)}, v{sb+4*(tp&1)+d}")
        if tp >= 1:
            c = "0" if tp == 1 else vr(v.D, 4)
            A(f"v_mfma_f32_16x16x32_bf16 {vr(v.D,4)}, {vr(wor+4*(tp-1),4)}, {vr(bb+4*((tp-1)&1),4)}, {c}")
    A(f"s_lshl_b32 s{sTmp2}, s{sWave}, 10")
    A(f"v_add_u32 v{t+10}, s{sTmp2}, v{v.voff}")
    A(f"v_mfma_f32_16x16x32_bf16 {vr(v.D,4)}, {vr(wor+28,4)}, {vr(bb+4,4)}, {vr(v.D,4)}")
    A(f"ds_write_b128 v{t+10}, {vr(v.D,4)} offset:10240")
    A("s_waitcnt lgkmcnt(0)")
    A("s_barrier")
    A(f"s_cmp_eq_u32 s{sWave}, 3")
    A("s_cbranch_scc1 L_stageC")
    A(f"s_cmp_lg_u32 s{sWave}, 0")
    A("s_cbranch_scc1 L_fin")
    for w in range(1, 4): A(f"ds_read_b128 {vr(a+4*w,4)}, v{v.voff} offset:{10240+1024*w}")
    A(f"s_and_b32 s{sTmp}, s2, 3")
    A(f"s_lshl_b32 s{sTmp}, s{sTmp}, 6")
    A(f"s_lshr_b32 s{sTmp2}, s2, 2")
    A(f"s_add_u32 s{sTmp}, s{sTmp}, s{sTmp2}")
    A(f"s_lshl_b32 s{sTmp}, s{sTmp}, 10")
    A(f"s_add_u32 s{sTmp}, s{sTmp}, {WS_P2}")
    A("s_waitcnt lgkmcnt(0)")
    for r in range(4): A(f"v_add_f32 v{a+4+r}, v{a+4+r}, v{v.D+r}")
    for r in range(4): A(f"v_add_f32 v{a+8+r}, v{a+8+r}, v{a+12+r}")
    for r in range(4): A(f"v_add_f32 v{a+4+r}, v{a+4+r}, v{a+8+r}")
    for r in range(4):
        A(f"v_and_b32 v{a+4+r}, 0xffffff00, v{a+4+r}")
        A(f"v_or_b32 v{a+4+r}, s{sTag+r}, v{a+4+r}")
    A(f"buffer_store_dwordx4 {vr(a+4,4)}, v{v.voff}, {sr(sWS)}, s{sTmp} offen sc1")
    A("s_branch L_fin")
    A("L_stageC:")
    A("s_cmp_ge_u32 s2, 32")
    A("s_cbranch_scc1 L_fin")
    pc = a
    A(f"s_lshr_b32 s{sTmp}, s2, 3")
    A(f"s_lshl_b32 s{sTmp}, s{sTmp}, 16")
    A(f"s_and_b32 s{sTmp2}, s2, 7")
    A(f"s_lshl_b32 s{sTmp2}, s{sTmp2}, 7")
    A(f"s_add_u32 s{sTmp}, s{sTmp}, s{sTmp2}")
    A(f"s_add_u32 s8, s{sTmp}, {WS_P2}")
    for k in range(1, 8): A(f"s_add_u32 s{8+k}, s8, {8192*k}")
    A(f"v_and_b32 v{t+9}, 0x70, v{v.voff}")
    A(f"v_lshl_add_u32 v{t+9}, v{t+1}, 10, v{t+9}")
    A(f"s_and_b32 s{sTmp}, s2, 1")
    A(f"s_lshl_b32 s{sTmp}, s{sTmp}, 10")
    A(f"s_lshr_b32 s{sTmp2}, s2, 1")
    A(f"s_lshl_b32 s{sTmp2}, s{sTmp2}, 6")
    A(f"s_add_u32 s{sTmp}, s{sTmp}, s{sTmp2}")
    A(f"v_and_b32 v{t+10}, 7, v0")
    A(f"v_lshl_add_u32 v{t+10}, v{t+6}, 3, v{t+10}")
    A(f"v_lshlrev_b32 v{t+10}, 1, v{t+10}")
    A("L_cpoll:")
    for k in range(8): A(f"buffer_load_dwordx4 {vr(pc+4*k,4)}, v{t+9}, {sr(sWS)}, s{8+k} offen sc1")
    for k in range(8):
        A(f"s_waitcnt vmcnt({7-k})")
        for r in range(4):
            if k == 0 and r == 0: A(f"v_xor_b32 v{t+11}, s{sTag}, v{pc}")
            else: A(f"v_bitop3_b32 v{t+11}, v{pc+4*k+r}, s{sTag+r}, v{t+11} bitop3:0xbe")
    A(f"v_and_b32 v{t+11}, 0xff, v{t+11}")
    A(f"v_cmp_ne_u32 vcc, 0, v{t+11}")
    A("s_cbranch_vccnz L_cretry")
    A("s_mov_b64 exec, -1")
    stamp(8)
    for h in (0, 16):
        for r in range(8): A(f"v_add_f32 v{pc+h+r}, v{pc+h+r}, v{pc+h+8+r}")
    for h in (0, 16):
        for r in range(4): A(f"v_add_f32 v{pc+h+r}, v{pc+h+r}, v{pc+h+4+r}")
    for h in (0, 16):
        for r in range(2): A(f"v_permlane32_swap_b32 v{pc+h+r}, v{pc+h+2+r}")
    for h in (0, 16):
        for r in range(2): A(f"v_add_f32 v{pc+h+r}, v{pc+h+r}, v{pc+h+2+r}")
    for h in (0, 16): A(f"v_permlane16_swap_b32 v{pc+h}, v{pc+h+1}")
    for h in (0, 16): A(f"v_add_f32 v{pc+h}, v{pc+h}, v{pc+h+1}")
    for h in (0, 16): A(f"v_add_f32_dpp v{pc+h}, v{pc+h}, v{pc+h} row_ror:8 row_mask:0xf bank_mask:0xf")
    for h in (0, 16): A(f"v_cvt_pk_bf16_f32 v{pc+h}, 0, v{pc+h}")
    A(f"v_mul_f32 v{pc}, v{gg}, v{pc}")
    A(f"v_mul_f32 v{pc+16}, v{gg+1}, v{pc+16}")
    for h in (0, 16): A(f"v_cvt_pk_bf16_f32 v{pc+h}, 0, v{pc+h}")
    A(f"v_add_f32 v{pc}, v{pc}, v{pc+16}")
    A(f"v_cvt_pk_bf16_f32 v{pc}, v{pc}, v{pc}")
    A("s_mov_b32 s4, 0x00ff00ff")
    A("s_mov_b32 s5, 0x00ff00ff")
    A("s_mov_b64 exec, s[4:5]")
    A(f"buffer_store_short v{pc}, v{t+10}, {sr(sOUT)}, s{sTmp} offen")
    A("s_cmp_lg_u32 s2, 0")
    A("s_cbranch_scc1 L_fin")
    A("s_mov_b64 exec, 1")
    A(f"v_mov_b32 v{pc+1}, s{sE}")
    A(f"buffer_store_dword v{pc+1}, v0, {sr(sWS)}, 0 offen")
    if probe:
        A("L_probe:")
        A("s_memrealtime s[98:99]")
        A("s_waitcnt lgkmcnt(0)")
        A("s_sub_u32 s98, s98, s100")
        A(f"s_cmp_lt_u32 s98, {probe}")
        A("s_cbranch_scc1 L_probe")
    A("L_fin:")
    if stamps:
        A("s_mov_b64 exec, 1")
        stamp(9)
        A("s_waitcnt lgkmcnt(0)")
        A(f"s_lshl_b32 s{sTmp}, s2, 2")
        A(f"s_add_u32 s{sTmp}, s{sTmp}, s{sWave}")
        A(f"s_lshl_b32 s{sTmp}, s{sTmp}, 6")
        A(f"s_add_u32 s{sTmp}, s{sTmp}, {WS_ST}")
        A("s_getreg_b32 s4, hwreg(HW_REG_XCC_ID)")
        A("s_getreg_b32 s5, hwreg(HW_REG_HW_ID)")
        for k in range(10): A(f"v_mov_b32 v{a+k}, s{sStamp+2*k}")
        A(f"v_mov_b32 v{a+10}, s4")
        A(f"v_mov_b32 v{a+11}, s5")
        A(f"v_mov_b32 v{a+12}, s{sSpin}")
        for k in range(4): A(f"buffer_store_dwordx4 {vr(a+4*k,4)}, v0, {sr(sWS)}, s{sTmp} offen offset:{16*k}")
        if dbg:
            A("s_cmp_lg_u32 s2, 0")
            A("s_cbranch_scc1 L_end")
            A(f"s_cmp_lg_u32 s{sWave}, 3")
            A("s_cbranch_scc1 L_end")
            A("s_load_dwordx2 s[8:9], s[0:1], 96")
            A("s_mov_b32 s10, 256")
            A("s_mov_b32 s11, 0x20000")
            for k in range(1, 10): A(f"v_subrev_u32 v{a+16+k}, s{sStamp}, v{a+k}")
            A(f"v_mov_b32 v{a+16}, s{sSpin}")
            A("s_waitcnt lgkmcnt(0)")
            for k in range(3): A(f"buffer_store_dwordx4 {vr(a+16+4*k,4)}, v0, s[8:11], 0 offen offset:{16*k}")
    A("L_end:")
    A("s_endpgm")
    def spinchk():
        A(f"s_sub_u32 s{sSpin}, s{sSpin}, 1")
        A("s_cbranch_scc1 L_end")
    A("L_qretry:")
    spinchk(); qpoll()
    A("s_waitcnt vmcnt(0)")
    A("s_branch L_qchk")
    A("L_bretry:")
    spinchk()
    A("s_mov_b64 exec, vcc")
    bpoll()
    A("s_branch L_bchk")
    A("L_cretry:")
    spinchk()
    A("s_mov_b64 exec, vcc")
    A("s_branch L_cpoll")
    for k in range(nstub[0]):
        A(f"L_res{k}:")
        A(f"s_call_b64 {sr(sRet,2)}, L_rescale")
        A(f"s_branch L_back{k}")
    A("L_rescale:")
    A("s_nop 7")
    x, y = v.y0, v.y1
    A(f"v_max_f32_dpp v{x}, v{v.T}, v{v.T} quad_perm:[1,0,3,2] row_mask:0xf bank_mask:0xf")
    A(f"v_max_f32_dpp v{x}, v{x}, v{x} quad_perm:[2,3,0,1] row_mask:0xf bank_mask:0xf")
    A(f"v_mov_b32 v{y}, v{x}")
    A(f"v_permlane16_swap_b32 v{y}, v{x}")
    A(f"v_max_f32 v{x}, v{x}, v{y}")
    A(f"v_mov_b32 v{y}, v{x}")
    A(f"v_permlane32_swap_b32 v{y}, v{x}")
    A(f"v_max3_f32 v{v.m}, v{x}, v{y}, v{v.m}")
    A(f"v_mul_f32 v{x}, s{sL2E}, v{v.m}")
    A(f"v_sub_f32 v{y}, v{v.mL}, v{x}")
    A(f"v_exp_f32 v{y}, v{y}")
    A(f"v_mov_b32 v{v.mL}, v{x}")
    A(f"v_mul_f32 v{v.l}, v{v.l}, v{y}")
    for k in range(8): A(f"v_mul_f32 v{v.acc+k}, v{v.acc+k}, v{y}")
    A(f"s_setpc_b64 {sr(sRet,2)}")
    body = pad(L)
    ref = open(os.path.join(os.path.dirname(os.path.abspath(__file__)), "header.txt")).read().rstrip("\n").split("\n")
    out = ref + ["; @launch grid=(256,1,1) block=(256,1,1) lds=16384",
                 '.amdgcn_target "amdgcn-amd-amdhsa--gfx950"', ".text", f".globl {KNAME}", ".p2align 8",
                 f".type {KNAME},@function"] + body
    acc = (NV + 3) // 4 * 4
    out += ['.section .rodata,"a"', ".p2align 6", f".amdhsa_kernel {KNAME}",
            f"  .amdhsa_next_free_vgpr {NV}", "  .amdhsa_next_free_sgpr 102", f"  .amdhsa_accum_offset {acc}",
            "  .amdhsa_group_segment_fixed_size 0", "  .amdhsa_kernarg_size 112", "  .amdhsa_user_sgpr_count 2",
            "  .amdhsa_user_sgpr_kernarg_segment_ptr 1", "  .amdhsa_system_sgpr_workgroup_id_x 1",
            "  .amdhsa_float_denorm_mode_32 3", ".end_amdhsa_kernel"]
    return "\n".join(out) + "\n"

if __name__ == "__main__":
    kw = eval("dict(" + (sys.argv[1] if len(sys.argv) > 1 else "") + ")")
    sys.stdout.write(gen(**kw))
```

```python
import sys, os
sys.path.insert(0, os.path.dirname(os.path.abspath(__file__)))
from hz import pad

KNAME = "gated_mix__gqa_block_cached__gqa_block_cached__decode_kernel"
LOG2E = 0x3fb8aa3b
SCALE = 0x3db504f3

WS_Q  = 0x10000
WS_ML = 0x30000
WS_B  = 0x40000
WS_O  = 0x100000
WS_P2 = 0x200000
WS_ST = 0x300000
WS_SZ = 0x400000
L_T, L_O, L_L, L_M, L_P, L_SZ = 0, 32768, 49152, 51200, 53248, 57344
DPPM = "row_mask:0xf bank_mask:0xf"
PAT1 = "g1 w1 n3 s0 w0 g0 s1 s2 s3 k0 k1 n0 n1 n2 k2"

def gen(NPL=40, waits=(4,)*8, whi=(5,)*8, wepi=None, R=3, XB=2, XT=2, P0=0, thr=(26, 30), pat=PAT1,
        wqflags="nt", woflags="nt", kvflags="nt", tchflags="", fast=1, touch=1, woburst=0,
        stamps=False, tst=False, spin=1 << 17, cut=0, probe=0):
    P = max(max(waits), max(whi)) + 1
    if wepi is None: wepi = (P - 1,) * 8
    assert NPL % 8 == 0 and P + XT <= 8 and P >= 5
    pos = {n: 8 + i for i, n in enumerate(pat.split())}
    assert len(pos) == 15
    def dep(c, val, nb): return sum(((val >> i) & 1) << pos[f"{c}{i}"] for i in range(nb))
    L = []
    def A(s): L.append(s)
    class V: pass
    v = V(); nv = [0]
    def valloc(name, n=1, al=1):
        nv[0] = (nv[0] + al - 1) // al * al
        setattr(v, name, nv[0]); nv[0] += n
    for nm in ("tid", "koff", "voff", "lin", "mask0", "mask1"): valloc(nm)
    valloc("T", 2, 2); valloc("TV", 2, 2)
    for nm in ("ta", "m", "l", "mL", "mA", "y0", "y1", "z", "p", "pd", "bw", "br", "bv", "bl"): valloc(nm)
    valloc("q", 4, 2); valloc("qB", 4, 2); valloc("acc", 8, 2); valloc("D", 8, 2)
    valloc("W", 18, 2)
    valloc("t", 12, 2)
    valloc("buf", 4 * NPL, 4)
    NV = nv[0]
    assert NV <= 256, NV
    def vr(a, n): return f"v[{a}:{a+n-1}]"
    wqr = v.buf + 4 * NPL - 32
    xr = wqr - 16
    wor = v.buf + 32
    gx = v.buf + 64
    sb = v.buf + 72
    (aWO, aLO, aSO, aLL, aSML, aPO, aPML, aLP, aPC, aOUT, c00) = range(v.buf + 80, v.buf + 91)
    a = v.buf + 92
    assert a + 64 <= NV
    sK, sV, sWQ, sWO, sWS, sX, sGW, sOUT = 20, 24, 28, 32, 36, 40, 44, 48
    sWave, sOff, sCnt, sE, sL2E, sTmp, sTmp2, sSpin, sPh = 3, 52, 53, 54, 55, 56, 57, 58, 59
    sQ1, sQ2, sQ3 = 60, 62, 64
    sHi, sFast = 66, 67
    sTag, sTag16, sNo, sN, sThr = 68, 72, 73, 74, 75
    sKB = 76
    sHkv, sJ = 6, 7
    sStamp = 80
    def sr(a, n=4): return f"s[{a}:{a+n-1}]"
    def stamp(k, tail=False):
        if stamps and (k not in (1, 2, 3, 4) or tail == tst): A(f"s_memrealtime s[{sStamp+2*k}:{sStamp+2*k+1}]")
    def sdep(dst, src, c, nb, first, tmp):
        groups = {}
        for i in range(nb): groups.setdefault(pos[f"{c}{i}"] - i, []).append(i)
        for sh, bits in groups.items():
            d = dst if first else tmp
            A(f"s_and_b32 s{d}, s{src}, {sum(1 << i for i in bits)}")
            A(f"s_lshl_b32 s{d}, s{d}, {sh}")
            if not first: A(f"s_add_u32 s{dst}, s{dst}, s{tmp}")
            first = False

    A(f"{KNAME}:")
    A("s_cmp_ge_u32 s2, 256")
    A("s_cbranch_scc1 L_end")
    stamp(0)
    if probe: A("s_memrealtime s[100:101]")
    A("s_lshr_b32 s4, s2, 7")
    A("s_mul_i32 s4, s4, 40")
    A("s_add_u32 s4, s0, s4")
    A("s_addc_u32 s5, s1, 0")
    A("s_load_dwordx4 s[12:15], s[4:5], 24")
    A(f"s_load_dwordx2 {sr(sX,2)}, s[0:1], 0")
    A("s_load_dwordx4 s[8:11], s[0:1], 8           ; K_A, V_A")
    A(f"s_load_dwordx2 {sr(sWS,2)}, s[0:1], 104")
    A(f"s_load_dwordx4 {sr(sKB)}, s[0:1], 48       ; K_B, V_B")
    A("s_load_dwordx4 s[16:19], s[0:1], 80")
    t = v.t
    A(f"v_lshrrev_b32 v{t}, 6, v0")
    A(f"v_and_b32 v0, 63, v0")
    A(f"v_readfirstlane_b32 s{sWave}, v{t}")
    A(f"v_lshrrev_b32 v{t+1}, 3, v0")
    A(f"v_lshl_add_u32 v{t+2}, v{t}, 3, v{t+1}")
    A(f"v_and_b32 v{t+3}, 7, v0")
    A(f"v_lshlrev_b32 v{t+3}, 3, v{t+3}")
    A(f"v_lshl_add_u32 v{t+3}, v{t+2}, 17, v{t+3}")
    A(f"v_bfe_u32 v{t+4}, v0, 2, 1")
    A(f"v_lshlrev_b32 v{t+8}, 10, v{t+4}")
    A(f"v_lshl_add_u32 v{t+8}, v{t+2}, 5, v{t+8}")
    A(f"s_and_b32 s{sHkv}, s2, 7")
    A(f"s_lshr_b32 s{sJ}, s2, 3")
    A(f"s_and_b32 s{sTmp}, s{sJ}, 15")
    A(f"s_lshl_b32 s{sTmp}, s{sTmp}, 6")
    A(f"s_lshl_b32 s{sTmp2}, s{sHkv}, 10")
    A(f"s_add_u32 s{sTmp}, s{sTmp}, s{sTmp2}")
    A(f"s_mov_b32 s{sX+2}, 2048")
    A(f"s_mov_b32 s{sX+3}, 0x20000")
    A(f"s_mov_b32 s{sWQ+2}, 0x400000")
    A(f"s_mov_b32 s{sWQ+3}, 0x20000")
    A("s_waitcnt lgkmcnt(0)")
    A(f"s_mov_b32 s{sWQ}, s12")
    A(f"s_mov_b32 s{sWQ+1}, s13")
    A(f"buffer_load_dwordx4 {vr(xr,4)}, v{t+8}, {sr(sX)}, 0 offen")
    A(f"buffer_load_dwordx4 {vr(xr+4,4)}, v{t+8}, {sr(sX)}, 0 offen offset:16")
    for tt in range(16):
        A(f"buffer_load_dwordx2 {vr(wqr+2*tt,2)}, v{t+3}, {sr(sWQ)}, s{sTmp} offen {wqflags}")
        if tt < 15: A(f"s_add_u32 s{sTmp}, s{sTmp}, 8192")
    A(f"s_load_dword s{sE}, {sr(sWS,2)}, 0")
    A(f"s_lshr_b32 s{sTmp2}, s2, 7")
    A(f"s_lshl_b32 s{sTmp2}, s{sTmp2}, 3")
    A(f"s_add_u32 s{sTmp2}, s{sTmp2}, s{sHkv}")
    A(f"s_lshl_b32 s{sTmp2}, s{sTmp2}, 23")
    A(f"s_add_u32 s{sK}, s8, s{sTmp2}")
    A(f"s_addc_u32 s{sK+1}, s9, 0")
    A(f"s_mov_b32 s{sK+2}, 0x800000")
    A(f"s_mov_b32 s{sK+3}, 0x20000")
    sdep(sTmp, sWave, "w", 2, True, 4)
    sdep(sTmp, sJ, "s", 4, False, 4)
    A(f"v_bfe_u32 v{t+5}, v0, 2, 2")
    A(f"v_lshrrev_b32 v{t+6}, 4, v0")
    A(f"v_and_b32 v{t+7}, 3, v0")
    A(f"v_lshlrev_b32 v{v.lin}, 4, v0")
    A(f"v_lshl_add_u32 v{v.koff}, v{t+6}, 6, s{sTmp}")
    A(f"v_lshl_add_u32 v{v.koff}, v{t+7}, 4, v{v.koff}")
    A(f"v_lshl_add_u32 v{v.koff}, v{t+4}, {pos['g0']}, v{v.koff}")
    A(f"v_bfe_u32 v{t+8}, v0, 3, 1")
    A(f"v_lshl_add_u32 v{v.koff}, v{t+8}, {pos['g1']}, v{v.koff}")
    last = [None]
    def issue(i, kind, sl, loop=False):
        kd = dep("k", i & 7, 3)
        c = kd if loop else kd + dep("n", i >> 3, 4)
        imm, hi = c & 0xfff, c & ~0xfff
        if loop:
            if hi == 0: so = f"s{sNo}"
            else:
                if last[0] != ("l", hi): A(f"s_add_u32 s{sOff}, s{sNo}, {hi:#x}")
                last[0] = ("l", hi); so = f"s{sOff}"
        else:
            if hi == 0: so = "0"
            else:
                if last[0] != ("c", hi): A(f"s_mov_b32 s{sOff}, {hi:#x}")
                last[0] = ("c", hi); so = f"s{sOff}"
        if i & 7 == 7: last[0] = None
        off = f" offset:{imm}" if imm else ""
        r = v.buf + 4 * sl
        if kind == "K": A(f"buffer_load_dwordx4 {vr(r,4)}, v{v.koff}, {sr(sK)}, {so} offen{off} {kvflags}")
        else:           A(f"buffer_load_dwordx4 {vr(r,4)}, v{v.voff}, {sr(sV)}, {so} offen{off} {kvflags}")
    for k in range(P0): issue(k, "K", k)
    A(f"v_and_b32 v{v.voff}, 0xff, v{v.lin}")
    A(f"v_add_u32 v{v.voff}, s{sTmp}, v{v.voff}")
    A(f"v_bfe_u32 v{t+8}, v0, 4, 1")
    A(f"v_lshl_add_u32 v{v.voff}, v{t+8}, {pos['g0']}, v{v.voff}")
    A(f"v_lshrrev_b32 v{t+8}, 5, v0")
    A(f"v_lshl_add_u32 v{v.voff}, v{t+8}, {pos['g1']}, v{v.voff}")
    A(f"s_add_u32 s{sV}, s10, s{sTmp2}")
    A(f"s_addc_u32 s{sV+1}, s11, 0")
    A(f"s_add_u32 s{sKB}, s{sKB}, s{sTmp2}")
    A(f"s_addc_u32 s{sKB+1}, s{sKB+1}, 0")
    A(f"s_add_u32 s{sKB+2}, s{sKB+2}, s{sTmp2}")
    A(f"s_addc_u32 s{sKB+3}, s{sKB+3}, 0")
    sel = xr + 8; bq = xr + 12
    for s_, b0, n_ in ((sV, None, 0x800000), (sWS, None, WS_SZ), (sWO, 14, 0x400000), (sGW, 16, 1024), (sOUT, 18, 2048)):
        if b0 is not None:
            A(f"s_mov_b32 s{s_}, s{b0}")
            A(f"s_mov_b32 s{s_+1}, s{b0+1}")
        A(f"s_mov_b32 s{s_+2}, {n_:#x}")
        A(f"s_mov_b32 s{s_+3}, 0x20000")
    A(f"s_mov_b32 s{sL2E}, {LOG2E:#x}")
    A(f"s_mov_b32 s{sPh}, 0")
    for k, s in ((1, sQ1), (2, sQ2), (3, sQ3)):
        A(f"s_mov_b32 s{s}, {0x11111111 << k:#x}")
        A(f"s_mov_b32 s{s+1}, {0x11111111 << k:#x}")
    A(f"v_mov_b32 v{t+8}, 0xffff")
    A(f"v_mov_b32 v{t+9}, 0xffff0000")
    A(f"v_cndmask_b32 v{v.mask1}, 0, v{t+8}, {sr(sQ2,2)}")
    A(f"v_cndmask_b32 v{v.mask1}, v{v.mask1}, v{t+9}, {sr(sQ3,2)}")
    A(f"v_cndmask_b32 v{v.mask0}, v{t+8}, v{t+9}, {sr(sQ1,2)}")
    A(f"v_cmp_gt_u32 vcc, 2, v{t+7}")
    A(f"v_cndmask_b32 v{v.mask0}, 0, v{v.mask0}, vcc")
    A(f"s_mov_b32 s{sTmp}, 0x01000100")
    A(f"s_mov_b32 s{sTmp2}, 0x03020302")
    A(f"v_mov_b32 v{t+8}, 0x0c0c0c0c")
    A(f"v_bfi_b32 v{sel}, v{v.mask0}, s{sTmp}, v{t+8}")
    A(f"v_bfi_b32 v{sel+1}, v{v.mask1}, s{sTmp}, v{t+8}")
    A(f"v_bfi_b32 v{sel+2}, v{v.mask0}, s{sTmp2}, v{t+8}")
    A(f"v_bfi_b32 v{sel+3}, v{v.mask1}, s{sTmp2}, v{t+8}")
    for k in range(18):
        if k % 4 < 2: A(f"v_mov_b32 v{v.W+k}, 0")
    A(f"v_mov_b32 v{v.m}, 0xff800000")
    A(f"v_lshlrev_b32 v{v.ta}, 3, v0")
    A(f"v_lshl_add_u32 v{v.ta}, v{t}, 13, v{v.ta}")
    A(f"v_lshl_add_u32 v{t+8}, v{t}, 10, v{v.lin}")
    A("s_getreg_b32 s8, hwreg(HW_REG_XCC_ID)")
    A("s_and_b32 s8, s8, 7")
    i = P0
    for m in range(8):
        A(f"s_waitcnt vmcnt({14 - 2*m + i})")
        if m >= 8 - (max(waits) + 1) + P0:
            issue(i, "K", i); i += 1
        for k in range(4):
            A(f"v_perm_b32 v{bq+k}, v{xr+m}, v{xr+m}, v{sel+k}")
        c = "0" if m == 0 else vr(v.D, 4)
        A(f"v_mfma_f32_16x16x32_bf16 {vr(v.D,4)}, {vr(wqr+4*m,4)}, {vr(bq,4)}, {c}")
    stamp(1)
    for k in range(XB):
        issue(i, "K", i); i += 1
    A(f"ds_write_b128 v{t+8}, {vr(v.D,4)} offset:{L_P}")
    A(f"v_bfe_u32 v{t+9}, v0, 4, 1")
    A(f"v_lshlrev_b32 v{t+9}, 8, v{t+9}")
    A(f"v_lshrrev_b32 v{t+10}, 5, v0")
    A(f"v_lshl_add_u32 v{t+9}, v{t+10}, 6, v{t+9}")
    A(f"v_lshl_add_u32 v{t+9}, v{t+7}, 4, v{t+9}")
    A(f"v_lshl_add_u32 v{t+9}, v{t+5}, 2, v{t+9}")
    A("s_waitcnt lgkmcnt(0)")
    A("s_barrier")
    A(f"s_add_u32 s{sE}, s{sE}, 1")
    A(f"s_and_b32 s{sTag16}, s{sE}, 0x1fff")
    A(f"s_lshl_b32 s{sTag16}, s{sTag16}, 3")
    A(f"s_or_b32 s{sTag16}, s{sTag16}, s8")
    A(f"s_cmp_lg_u32 s{sWave}, 0")
    A("s_cbranch_scc1 L_nopub")
    qr = wqr
    for w in range(4):
        for r1 in range(2):
            A(f"ds_read_b32 v{qr+2*w+r1}, v{t+9} offset:{L_P + 1024*w + 640*r1}")
    A(f"s_lshr_b32 s{sTmp}, s2, 7")
    A(f"s_lshl_b32 s{sTmp}, s{sTmp}, 3")
    A(f"s_add_u32 s{sTmp}, s{sTmp}, s{sHkv}")
    A(f"s_lshl_b32 s{sTmp}, s{sTmp}, 12")
    A(f"s_and_b32 s{sTmp2}, s{sJ}, 15")
    A(f"s_lshl_b32 s{sTmp2}, s{sTmp2}, 7")
    A(f"s_add_u32 s{sTmp}, s{sTmp}, s{sTmp2}")
    A(f"s_add_u32 s{sTmp}, s{sTmp}, {WS_Q:#x}")
    A(f"v_and_b32 v{t+11}, 31, v0")
    A(f"v_lshlrev_b32 v{t+11}, 2, v{t+11}")
    A(f"v_lshl_add_u32 v{t+11}, v{t+10}, 11, v{t+11}")
    A("s_waitcnt lgkmcnt(0)")
    for k in range(4): A(f"v_add_f32 v{qr+k}, v{qr+k}, v{qr+4+k}")
    A(f"v_add_f32 v{qr}, v{qr}, v{qr+2}")
    A(f"v_add_f32 v{qr+1}, v{qr+1}, v{qr+3}")
    A(f"v_add_f32 v{qr}, v{qr}, v{qr+1}")
    A(f"v_cvt_pk_bf16_f32 v{qr}, 0, v{qr}")
    A(f"v_or_b32 v{t+8}, s{sTag16}, v{qr}")
    A(f"buffer_store_dword v{t+8}, v{t+11}, {sr(sWS)}, s{sTmp} offen sc1")
    A("L_nopub:")
    stamp(2)
    misc = []
    M_ = misc.append
    for k in range(4):
        M_(f"s_add_u32 s{sTag+k}, s{sE}, {37*k}")
        M_(f"s_and_b32 s{sTag+k}, s{sTag+k}, 0xff")
    M_(f"v_lshl_add_u32 v{t+9}, v{t+5}, 2, v{t+6}")
    M_(f"v_lshlrev_b32 v{t+9}, 7, v{t+9}")
    M_(f"v_lshl_add_u32 v{t+9}, v{t+7}, 5, v{t+9}")
    M_(f"s_lshl_b32 s{sTmp}, s{sHkv}, 1")
    M_(f"s_lshr_b32 s{sTmp2}, s2, 7")
    M_(f"s_add_u32 s{sTmp}, s{sTmp}, s{sTmp2}")
    M_(f"s_lshl_b32 s{sTmp}, s{sTmp}, 11")
    M_(f"s_add_u32 s{sTmp}, s{sTmp}, {WS_Q:#x}")
    M_(f"s_add_u32 s{sTmp2}, s{sTmp}, 32768")
    M_(f"s_mov_b32 s{sSpin}, {spin}")
    M_("s_bitcmp1_b32 s8, 0")
    M_(f"s_cselect_b32 s{sThr}, {thr[1]}, {thr[0]}")
    M_("s_lshl_b32 s4, s8, 12")
    M_(f"s_add_u32 s4, s4, {WS_B:#x}")
    M_(f"v_lshl_add_u32 v{v.br}, v0, 2, s4")
    M_(f"v_mov_b32 v{v.bl}, 0x7ffffff0")
    M_(f"v_cmp_gt_u32 vcc, 32, v0")
    M_(f"s_lshl_b32 s5, s{sWave}, 6")
    M_(f"s_add_u32 s5, s5, s{sJ}")
    M_(f"v_cndmask_b32 v{v.br}, v{v.bl}, v{v.br}, vcc")
    M_(f"v_cmp_eq_u32 vcc, s5, v0")
    M_(f"s_lshl_b32 s{sN}, s{sE}, 12")
    M_(f"s_mov_b32 s{sHi}, 0")
    M_(f"v_cndmask_b32 v{v.bw}, v{v.bl}, v{v.br}, vcc")
    M_(f"v_add_u32 v{v.bl}, s{sN}, v{v.bl}")
    def drain(n):
        for _ in range(n):
            if misc:
                s_ = misc.pop(0); A(s_)
                if s_.startswith("s_bitcmp") or s_.startswith("s_cmp"): A(misc.pop(0))
    qp = v.acc
    assert v.D == v.acc + 8 and v.qB == v.q + 4
    def qpoll():
        A(f"buffer_load_dwordx4 {vr(qp,4)}, v{t+9}, {sr(sWS)}, s{sTmp} offen sc1")
        A(f"buffer_load_dwordx4 {vr(qp+4,4)}, v{t+9}, {sr(sWS)}, s{sTmp} offen offset:16 sc1")
        A(f"buffer_load_dwordx4 {vr(qp+8,4)}, v{t+9}, {sr(sWS)}, s{sTmp2} offen sc1")
        A(f"buffer_load_dwordx4 {vr(qp+12,4)}, v{t+9}, {sr(sWS)}, s{sTmp2} offen offset:16 sc1")
    ipoll = NPL - P
    while i < NPL:
        n = waits[i & 7]
        if i > ipoll and i - n - 1 < ipoll: n += 4
        A(f"s_waitcnt vmcnt({n})")
        if i == ipoll:
            assert not misc
            qpoll()
        issue(i, "K", i); i += 1
        drain(6)
    A(f"s_waitcnt vmcnt({P})")
    A("L_qchk:")
    A(f"v_xor_b32 v{t+8}, s{sTag16}, v{qp}")
    for k in range(1, 16): A(f"v_bitop3_b32 v{t+8}, v{qp+k}, s{sTag16}, v{t+8} bitop3:0xbe")
    A(f"v_and_b32 v{t+10}, 0xfff8, v{t+8}")
    A(f"v_cmp_ne_u32 vcc, 0, v{t+10}")
    A("s_cbranch_vccnz L_qretry")
    A(f"v_and_b32 v{t+10}, 7, v{t+8}")
    A(f"v_cmp_ne_u32 vcc, 0, v{t+10}               ; some workgroup of this set sits on another XCD")
    A(f"s_mov_b32 s4, 0x07060302")
    for k in range(8): A(f"v_perm_b32 v{v.q+k}, v{qp+2*k+1}, v{qp+2*k}, s4")
    A("s_cmp_eq_u64 vcc, 0")
    A(f"s_cselect_b32 s{sFast}, {fast}, 0")
    stamp(3)
    def red(u, T):
        D = v.D + 4 * (u & 1)
        A(f"v_add_f32_dpp v{v.y0}, v{D+(u^1)}, v{D+u} quad_perm:[1,0,3,2] {DPPM}")
        A(f"v_add_f32_dpp v{v.y1}, v{D+(u^3)}, v{D+(u^2)} quad_perm:[1,0,3,2] {DPPM}")
        dst = T if u == 0 else v.z
        A(f"v_add_f32_dpp v{dst}, v{v.y1}, v{v.y0} quad_perm:[2,3,0,1] {DPPM}")
        if u: A(f"v_cndmask_b32 v{T}, v{T}, v{v.z}, {sr((sQ1,sQ2,sQ3)[u-1],2)}")
    def finT(par):
        T = v.T + par
        red(3, T)
        A(f"v_cvt_pk_bf16_f32 v{T}, 0, v{T}")
        A(f"v_mul_f32 v{T}, {SCALE:#x}, v{T}")
        A(f"v_cvt_pk_bf16_f32 v{T}, 0, v{T}")
        if par:
            A(f"v_max3_f32 v{v.m}, v{v.T}, v{v.T+1}, v{v.m}")
            A(f"ds_write_b64 v{v.ta}, {vr(v.T,2)}")
            A(f"v_add_u32 v{v.ta}, 512, v{v.ta}")
    def procK(j, sl):
        u = j & 3
        A(f"v_mfma_f32_16x16x32_bf16 {vr(v.D+4*(u&1),4)}, {vr(v.buf+4*sl,4)}, {vr(v.q,4)}, 0")
        if u >= 1: red(u - 1, v.T + ((j >> 2) & 1))
        elif j > 0: finT(((j >> 2) - 1) & 1)
    def ands(u):
        w = v.W + 2 + 4 * u
        A(f"v_and_b32_dpp v{w}, v{v.pd}, v{v.mask0} quad_perm:[{u},{u},{u},{u}] {DPPM}")
        A(f"v_and_b32_dpp v{w+1}, v{v.pd}, v{v.mask1} quad_perm:[{u},{u},{u},{u}] {DPPM}")
    def prep(par, nextread=True):
        if par == 0: A("s_waitcnt lgkmcnt(0)")
        A(f"v_fma_f32 v{v.p}, v{v.TV+par}, s{sL2E}, -v{v.mL}")
        A(f"v_exp_f32 v{v.p}, v{v.p}")
        if par == 1 and nextread:
            A(f"v_add_u32 v{v.ta}, 512, v{v.ta}")
            A(f"ds_read_b64 {vr(v.TV,2)}, v{v.ta}")
        A(f"v_cvt_pk_bf16_f32 v{v.pd}, v{v.p}, v{v.p}")
        A(f"v_add_f32 v{v.l}, v{v.l}, v{v.p}")
        ands(0)
    def procV(j, sl, end=False):
        u = j & 3
        w = v.W + 4 * u
        A(f"v_mfma_f32_16x16x32_bf16 {vr(v.acc,4)}, {vr(v.buf+4*sl,4)}, {vr(w+2,4)}, {vr(v.acc,4)}")
        A(f"v_mfma_f32_16x16x32_bf16 {vr(v.acc+4,4)}, {vr(v.buf+4*sl,4)}, {vr(w,4)}, {vr(v.acc+4,4)}")
        if end and j >= 124: return
        if u < 3: ands(u + 1)
        else:
            prep(((j >> 2) + 1) & 1, nextread=not (end and j == 123))
            if end and j == 123:
                ands(1); ands(2); ands(3)
                lreduce()
    def allred(op, r, tmp):
        A(f"{op}_dpp v{r}, v{r}, v{r} quad_perm:[1,0,3,2] {DPPM}")
        A(f"{op}_dpp v{r}, v{r}, v{r} quad_perm:[2,3,0,1] {DPPM}")
        A(f"v_mov_b32 v{tmp}, v{r}")
        A(f"v_permlane16_swap_b32 v{tmp}, v{r}")
        A(f"{op} v{r}, v{r}, v{tmp}")
        A(f"v_mov_b32 v{tmp}, v{r}")
        A(f"v_permlane32_swap_b32 v{tmp}, v{r}")
        A(f"{op} v{r}, v{r}, v{tmp}")
    def lreduce():
        allred("v_add_f32", v.l, v.y0)
        A(f"s_lshl_b32 s4, s{sPh}, 2")
        A(f"s_add_u32 s4, s4, s{sWave}")
        A(f"s_lshl_b32 s5, s4, 8")
        A(f"v_lshl_add_u32 v{t+9}, v0, 2, s5")
        A(f"ds_write_b32 v{t+9}, v{v.l} offset:{L_L}")
        A(f"s_lshl_b32 s5, s4, 11")
        A(f"v_add_u32 v{t+9}, s5, v{v.lin}")
    def accout():
        A(f"ds_write_b128 v{t+9}, {vr(v.acc,4)} offset:{L_O}")
        A(f"ds_write_b128 v{t+9}, {vr(v.acc+4,4)} offset:{L_O+1024}")
    slotof = {k: k for k in range(NPL)}
    def newslot(i): return (i - NPL) if i < NPL + 16 else (i & 7)
    j = 0
    landed = i - P
    while not (j == i - P and i % 8 == 0 and j >= NPL + 16):
        s = newslot(i)
        own = max(k for k in slotof if slotof[k] == s)
        while j <= own:
            assert j < landed, "catch-up needs data not yet landed"
            procK(j, slotof[j]); j += 1
        A(f"s_waitcnt vmcnt({waits[i&7]})")
        landed = max(landed, i - waits[i & 7])
        slotof[i] = s
        issue(i, "K", s); i += 1
        n = 0
        while n < R and j < i - P:
            assert j < landed
            procK(j, slotof[j]); j += 1; n += 1
    assert i < 128
    def enter(n):
        A(f"s_mov_b32 s{sCnt}, {n}")
        A(f"s_mov_b32 s{sNo}, {dep('n', n, 4):#x}")
    enter(i // 8)
    stamp(4)
    def loop(name, kind, proc):
        A(".p2align 6")
        A(f"L_{name}loop:")
        A(f"v_subrev_u32 v{v.bv}, s{sN}, v{v.bl}")
        A(f"s_add_u32 s{sN}, s{sN}, 1")
        A(f"v_cmp_gt_u32 vcc, 64, v{v.bv}")
        A(f"v_mov_b32 v{v.bv}, s{sN}")
        A(f"s_bcnt1_i32_b64 s4, vcc")
        A(f"buffer_store_dword v{v.bv}, v{v.bw}, {sr(sWS)}, 0 offen")
        A(f"buffer_load_dword v{v.bl}, v{v.br}, {sr(sWS)}, 0 offen nt")
        A(f"s_cmp_ge_u32 s4, s{sThr}")
        A(f"s_cbranch_scc1 L_{name}hi")
        for ver, ww in (("lo", waits), ("hi", whi)):
            if ver == "hi":
                A(f"L_{name}hi:")
                if stamps: A(f"s_add_u32 s{sHi}, s{sHi}, 1")
            for k in range(8):
                n = ww[k] + (2 if k <= ww[k] else 0)
                mark = len(L)
                issue(k, kind, k, loop=True)
                L.insert(len(L) - 1, f"s_waitcnt vmcnt({n})")
                if k == 7:
                    A(f"s_add_u32 s{sCnt}, s{sCnt}, 1")
                    sdep(sNo, sCnt, "n", 4, True, 4)
                proc(16 + k - P, (k - P) & 7)
            A(f"s_cmp_lg_u32 s{sCnt}, 16")
            A(f"s_cbranch_scc1 L_{name}loop")
            if ver == "lo": A(f"s_branch L_{name}done")
        A(f"L_{name}done:")
    loop("k", "K", procK)
    for k in range(P):
        A(f"s_waitcnt vmcnt({waits[k]})")
        issue(k, "V", k)
        procK(128 + k - P, (k - P) & 7)
    for k in range(P, P + XT): issue(k, "V", k)
    finT(1)
    allred("v_max_f32", v.m, v.y0)
    A(f"s_lshl_b32 s5, s{sPh}, 10")
    A(f"s_lshl_b32 s4, s{sWave}, 8")
    A(f"s_add_u32 s4, s4, s5")
    A(f"v_lshl_add_u32 v{t+9}, v0, 2, s4")
    A(f"ds_write_b32 v{t+9}, v{v.m} offset:{L_M}")
    A(f"v_subrev_u32 v{v.ta}, 8192, v{v.ta}")
    A(f"ds_read_b64 {vr(v.TV,2)}, v{v.ta}")
    A(f"v_lshl_add_u32 v{t+9}, v0, 2, s5")
    for k in range(8): A(f"v_mov_b32 v{v.acc+k}, 0")
    A(f"v_mov_b32 v{v.l}, 0")
    A("s_waitcnt lgkmcnt(0)")
    A("s_barrier")
    A(f"ds_read2st64_b32 {vr(v.T,2)}, v{t+9} offset0:{L_M//256} offset1:{L_M//256+1}")
    A(f"ds_read2st64_b32 {vr(v.D,2)}, v{t+9} offset0:{L_M//256+2} offset1:{L_M//256+3}")
    A("s_waitcnt lgkmcnt(0)")
    A(f"v_max3_f32 v{v.m}, v{v.T}, v{v.T+1}, v{v.D}")
    A(f"v_max_f32 v{v.m}, v{v.m}, v{v.D+1}")
    A(f"v_mul_f32 v{v.mL}, s{sL2E}, v{v.m}")
    prep(0)
    issued = P + XT
    for k in range(P, 8):
        if k >= issued:
            A(f"s_waitcnt vmcnt({waits[k]})")
            issue(k, "V", k); issued += 1
        else:
            A(f"s_waitcnt vmcnt({issued - 1 - (k - P)})")
        procV(k - P, k - P)
    enter(1)
    loop("v", "V", procV)
    A(f"s_cmp_lg_u32 s{sPh}, 0")
    A("s_cbranch_scc1 L_epi")
    A(f"s_mov_b32 s{sK}, s{sKB}")
    A(f"s_mov_b32 s{sK+1}, s{sKB+1}")
    A(f"s_mov_b32 s{sV}, s{sKB+2}")
    A(f"s_mov_b32 s{sV+1}, s{sKB+3}")
    A("s_and_b32 s17, s2, 1")
    A("s_lshl_b32 s17, s17, 10")
    A(f"buffer_load_dwordx4 {vr(gx,4)}, v{v.lin}, {sr(sX)}, s17 offen")
    A(f"buffer_load_dwordx4 {vr(gx+4,4)}, v{v.lin}, {sr(sGW)}, 0 offen")
    M_(f"s_bfe_u32 s8, s{sJ}, 0x20002")
    M_(f"s_and_b32 s9, s{sJ}, 3")
    M_(f"s_lshr_b32 s10, s{sJ}, 4")
    M_(f"s_lshl_b32 s11, s{sHkv}, 2")
    M_("s_add_u32 s11, s11, s8")
    M_("s_lshl_b32 s12, s11, 2")
    M_(f"s_add_u32 s12, s12, s{sWave}")
    M_("s_lshl_b32 s12, s12, 15")
    M_("s_lshl_b32 s13, s9, 8")
    M_("s_add_u32 s12, s12, s13")
    M_(f"v_and_b32 v{aWO}, 0xff, v{v.lin}")
    M_(f"v_lshl_add_u32 v{aWO}, v{t+6}, 10, v{aWO}")
    M_(f"v_add_u32 v{aWO}, s12, v{aWO}")
    M_(f"s_lshr_b32 s12, s{sWave}, 1")
    M_("s_xor_b32 s12, s12, 1")
    M_(f"s_and_b32 s13, s{sWave}, 1")
    M_("s_lshl_b32 s14, s12, 3")
    M_("s_add_u32 s15, s14, s13")
    M_("s_lshl_b32 s15, s15, 10")
    M_(f"v_add_u32 v{aLO}, s15, v{v.lin}")
    M_(f"s_add_u32 s14, s14, s{sHkv}")
    M_("s_lshl_b32 s14, s14, 5")
    M_(f"s_add_u32 s14, s14, s{sJ}")
    M_("s_lshl_b32 s14, s14, 11")
    M_("s_lshl_b32 s13, s13, 8")
    M_("s_add_u32 s14, s14, s13")
    M_(f"s_add_u32 s14, s14, {WS_O:#x}")
    M_(f"v_lshl_add_u32 v{aSO}, v{t+6}, 2, v{t+7}")
    M_(f"v_lshl_add_u32 v{aSO}, v{aSO}, 4, s14")
    M_(f"v_lshl_add_u32 v{aSO}, v{t+5}, 9, v{aSO}")
    M_(f"v_lshlrev_b32 v{aLL}, 2, v0")
    M_(f"v_lshl_add_u32 v{aLL}, v{t+6}, 10, v{aLL}")
    M_(f"s_lshl_b32 s12, s{sHkv}, 11")
    M_(f"s_lshl_b32 s13, s{sJ}, 4")
    M_("s_add_u32 s12, s12, s13")
    M_(f"s_add_u32 s12, s12, {WS_ML:#x}")
    M_(f"v_lshl_add_u32 v{aSML}, v{t+5}, 9, s12")
    M_(f"v_lshl_add_u32 v{aSML}, v{t+6}, 14, v{aSML}")
    M_(f"v_and_b32 v{aOUT}, 0x23, v0")
    M_(f"v_lshl_add_u32 v{aSML}, v{aOUT}, 24, v{aSML}")
    M_("s_lshl_b32 s12, s10, 3")
    M_(f"s_add_u32 s12, s12, s{sHkv}")
    M_("s_lshl_b32 s13, s12, 16")
    M_("s_lshl_b32 s14, s8, 9")
    M_("s_add_u32 s13, s13, s14")
    M_(f"s_lshl_b32 s15, s{sWave}, 6")
    M_("s_add_u32 s13, s13, s15")
    M_(f"s_add_u32 s13, s13, {WS_O:#x}")
    M_(f"v_and_b32 v{aPML}, 15, v0")
    M_(f"v_lshl_add_u32 v{aPO}, v{aPML}, 12, s13")
    M_(f"v_lshl_add_u32 v{aPO}, v{t+6}, 4, v{aPO}")
    M_("s_lshl_b32 s13, s12, 11")
    M_("s_add_u32 s13, s13, s14")
    M_(f"s_add_u32 s13, s13, {WS_ML:#x}")
    M_(f"v_lshl_add_u32 v{aPML}, v{aPML}, 5, s13")
    M_(f"s_lshl_b32 s13, s{sWave}, 10")
    M_(f"v_add_u32 v{aLP}, s13, v{v.lin}")
    M_("s_lshl_b32 s13, s9, 1")
    M_("s_add_u32 s13, s13, s10")
    M_("s_lshl_b32 s13, s13, 5")
    M_("s_add_u32 s13, s13, s11")
    M_("s_lshl_b32 s13, s13, 10")
    M_(f"s_add_u32 s16, s13, {WS_P2:#x}")
    M_(f"s_lshl_b32 s13, s{sJ}, 16")
    M_(f"s_lshl_b32 s14, s{sHkv}, 7")
    M_("s_add_u32 s13, s13, s14")
    M_(f"s_add_u32 s13, s13, {WS_P2:#x}")
    M_(f"v_and_b32 v{aPC}, 0x70, v{v.lin}")
    M_(f"v_lshl_add_u32 v{aPC}, v{t+1}, 10, v{aPC}")
    M_(f"v_add_u32 v{aPC}, s13, v{aPC}")
    M_("s_lshr_b32 s14, s2, 1")
    M_("s_lshl_b32 s14, s14, 6")
    M_("s_add_u32 s14, s14, s17")
    M_(f"v_and_b32 v{aOUT}, 7, v0")
    M_(f"v_lshl_add_u32 v{aOUT}, v{t+6}, 3, v{aOUT}")
    M_(f"v_lshl_add_u32 v{aOUT}, v{aOUT}, 1, s14")
    M_(f"v_mov_b32 v{c00}, 0xffffff00")
    M_(f"v_or_b32 v{a}, v{v.mask0}, v{v.mask1}")
    M_(f"v_mov_b32 v{a+1}, 0x0c0c0c0c")
    M_("s_mov_b32 s12, 0x01000100")
    M_("s_mov_b32 s13, 0x03020302")
    M_(f"v_bfi_b32 v{a+2}, v{a}, s12, v{a+1}")
    M_(f"v_bfi_b32 v{a+3}, v{a}, s13, v{a+1}")
    M_(f"v_bfe_u32 v{a}, v0, 1, 2")
    for d in range(4):
        M_(f"v_cmp_eq_u32 vcc, {d}, v{a}")
        M_(f"v_cndmask_b32 v{sb+d}, v{a+1}, v{a+2}, vcc")
        M_(f"v_cndmask_b32 v{sb+4+d}, v{a+1}, v{a+3}, vcc")
    for k in range(1, 8): M_(f"s_mov_b32 s{8+k}, {8192*k:#x}")
    per = -(-len(misc) // 7)
    for k in range(8):
        A(f"s_waitcnt vmcnt({whi[k] + (2 if k <= whi[k] else 0)})")
        issue(k, "K", k)
        if k < P:
            procV(128 + k - P, (k - P) & 7, end=True)
            if k == P - 2:
                for r in range(4): A(f"v_mov_b32 v{v.q+r}, v{v.qB+r}")
                A(f"v_mov_b32 v{v.mA}, v{v.m}")
                A(f"v_mov_b32 v{v.m}, 0xff800000")
                A(f"v_subrev_u32 v{v.ta}, {512*15}, v{v.ta}")
        else:
            procK(k - P, k - P)
            if k == P: accout()
        if k != P - 5: drain(per)
    assert not misc
    A(f"s_mov_b32 s{sPh}, 1")
    enter(1)
    A("s_branch L_kloop")
    A("L_epi:")
    if cut == 1: A(f"s_mov_b32 s{sWO+2}, 0")
    nx = 0
    if touch:
        A(f"buffer_load_dword v{a}, v{aSO}, {sr(sWS)}, 0 offen {tchflags}")
        A(f"buffer_load_dword v{a+1}, v{aSML}, {sr(sWS)}, 0 offen {tchflags}")
        nx = 2
        if touch > 1:
            A(f"buffer_load_dword v{a+2}, v{v.lin}, {sr(sWS)}, s16 offen {tchflags}")
            nx = 3
    def wold(k):
        so = "0" if k < 2 else f"s{8 + k//2}"
        if k & 1: A(f"buffer_load_dwordx4 {vr(wor+4*k,4)}, v{a+3}, {sr(sWO)}, {so} offen {woflags}")
        else: A(f"buffer_load_dwordx4 {vr(wor+4*k,4)}, v{aWO}, {sr(sWO)}, {so} offen {woflags}")
    A(f"v_add_u32 v{a+3}, 4096, v{aWO}")
    nwo = 0
    for k in range(woburst): wold(nwo); nwo += 1
    nx += woburst
    for k in range(P):
        younger = (P - 1 - k) + nx + (nwo - woburst)
        n = min(younger, wepi[k] + (nx if k <= wepi[k] else 0)) if nwo < 8 else younger
        A(f"s_waitcnt vmcnt({n})")
        if nwo < 8: wold(nwo); nwo += 1
        procV(128 + k - P, (k - P) & 7, end=True)
    while nwo < 8: wold(nwo); nwo += 1
    accout()
    stamp(5)
    A("s_waitcnt lgkmcnt(0)")
    A("s_barrier")
    if cut in (1, 2): A("s_branch L_fin")
    stamp(1, True)
    oo = a + 4
    for w in range(4): A(f"ds_read_b128 {vr(oo+4*w,4)}, v{aLO} offset:{L_O+2048*w}")
    A(f"s_cmp_lg_u32 s{sWave}, 2")
    A("s_cbranch_scc1 L_noml")
    M = a + 20
    A(f"ds_read2st64_b32 {vr(M+4,2)}, v{aLL} offset0:{L_L//256} offset1:{L_L//256+1}")
    A(f"ds_read2st64_b32 {vr(M+6,2)}, v{aLL} offset0:{L_L//256+2} offset1:{L_L//256+3}")
    A(f"v_cmp_eq_u32 vcc, 0, v{t+6}")
    A(f"v_mov_b32 v{M+2}, s{sTag+2}")
    A(f"v_mov_b32 v{M+3}, s{sTag+3}")
    A(f"v_cndmask_b32 v{M}, v{v.m}, v{v.mA}, vcc")
    A(f"v_or_b32 v{M}, s{sTag}, v{M}")
    A(f"s_cmp_lg_u32 s{sFast}, 0")
    A("s_waitcnt lgkmcnt(0)")
    A(f"v_add_f32 v{M+4}, v{M+4}, v{M+5}")
    A(f"v_add_f32 v{M+6}, v{M+6}, v{M+7}")
    A(f"v_add_f32 v{M+4}, v{M+4}, v{M+6}")
    A(f"v_and_or_b32 v{M+1}, v{M+4}, v{c00}, s{sTag+1}")
    A("s_cbranch_scc0 L_mlslow")
    A(f"buffer_store_dwordx4 {vr(M,4)}, v{aSML}, {sr(sWS)}, 0 offen")
    A("L_noml:")
    A(f"s_cmp_lg_u32 s{sFast}, 0")
    A("s_waitcnt lgkmcnt(0)")
    for r in range(4): A(f"v_add_f32 v{oo+r}, v{oo+r}, v{oo+4+r}")
    for r in range(4): A(f"v_add_f32 v{oo+8+r}, v{oo+8+r}, v{oo+12+r}")
    for r in range(4): A(f"v_add_f32 v{oo+r}, v{oo+r}, v{oo+8+r}")
    for r in range(4): A(f"v_and_or_b32 v{oo+r}, v{oo+r}, v{c00}, s{sTag+r}")
    A("s_cbranch_scc0 L_oslow")
    A(f"buffer_store_dwordx4 {vr(oo,4)}, v{aSO}, {sr(sWS)}, 0 offen")
    stamp(6)
    if cut == 3: A("s_branch L_fin")
    pa = a + 28
    bb = a + 52
    def bpoll(fl):
        A(f"buffer_load_dwordx4 {vr(pa+16,4)}, v{aPML}, {sr(sWS)}, 0 offen {fl}")
        A(f"buffer_load_dwordx4 {vr(pa+20,4)}, v{aPML}, {sr(sWS)}, 0 offen offset:16 {fl}")
        A(f"buffer_load_dwordx4 {vr(pa,4)}, v{aPO}, {sr(sWS)}, 0 offen {fl}")
        A(f"buffer_load_dwordx4 {vr(pa+4,4)}, v{aPO}, {sr(sWS)}, 0 offen offset:256 {fl}")
        A(f"buffer_load_dwordx4 {vr(pa+8,4)}, v{aPO}, {sr(sWS)}, 0 offen offset:2048 {fl}")
        A(f"buffer_load_dwordx4 {vr(pa+12,4)}, v{aPO}, {sr(sWS)}, 0 offen offset:2304 {fl}")
    A("L_bfast:")
    bpoll("nt")
    def strip(base, first):
        for r in range(4): A(f"v_xor_b32 v{base+r}, s{sTag+r}, v{base+r}")
        if first: A(f"v_or_b32 v{t+11}, v{base}, v{base+1}")
        else: A(f"v_or3_b32 v{t+11}, v{base}, v{base+1}, v{t+11}")
        A(f"v_or3_b32 v{t+11}, v{base+2}, v{base+3}, v{t+11}")
    A("L_bchk:")
    for k, base in enumerate((pa + 16, pa + 20, pa, pa + 4, pa + 8, pa + 12)):
        A(f"s_waitcnt vmcnt({5-k})")
        strip(base, k == 0)
    A(f"v_and_b32 v{t+11}, 0xff, v{t+11}")
    A(f"v_cmp_ne_u32 vcc, 0, v{t+11}")
    A("s_cbranch_vccnz L_bretry")
    A("s_mov_b64 exec, -1")
    stamp(7)
    m1, l1, m2, l2, mx = pa + 16, pa + 17, pa + 20, pa + 21, pa + 18
    A(f"v_max_f32 v{mx}, v{m1}, v{m2}")
    A(f"v_max_f32_dpp v{mx}, v{mx}, v{mx} quad_perm:[1,0,3,2] {DPPM}")
    A(f"v_max_f32_dpp v{mx}, v{mx}, v{mx} quad_perm:[2,3,0,1] {DPPM}")
    A(f"v_max_f32_dpp v{mx}, v{mx}, v{mx} row_half_mirror {DPPM}")
    A(f"v_mul_f32 v{mx}, s{sL2E}, v{mx}")
    A(f"v_fma_f32 v{m1}, v{m1}, s{sL2E}, -v{mx}")
    A(f"v_fma_f32 v{m2}, v{m2}, s{sL2E}, -v{mx}")
    A(f"v_exp_f32 v{m1}, v{m1}")
    A(f"v_exp_f32 v{m2}, v{m2}")
    A(f"v_mul_f32 v{l1}, v{l1}, v{m1}")
    A(f"v_fmac_f32 v{l1}, v{l2}, v{m2}")
    for k in range(8): A(f"v_mul_f32 v{pa+k}, v{pa+k}, v{m1}")
    for k in range(8): A(f"v_fmac_f32 v{pa+k}, v{pa+8+k}, v{m2}")
    for pm in ("quad_perm:[1,0,3,2]", "quad_perm:[2,3,0,1]", "row_half_mirror"):
        A(f"v_add_f32_dpp v{l1}, v{l1}, v{l1} {pm} {DPPM}")
        if pm == "row_half_mirror": A(f"v_rcp_f32 v{l1}, v{l1}")
        for k in range(8): A(f"v_add_f32_dpp v{pa+k}, v{pa+k}, v{pa+k} {pm} {DPPM}")
    for k in range(8): A(f"v_mul_f32 v{pa+k}, v{pa+k}, v{l1}")
    for r in range(4): A(f"v_cvt_pk_bf16_f32 v{pa+r}, v{pa+r}, v{pa+4+r}")
    for tp in range(8):
        B = bb + 4 * (tp & 1)
        for d in range(4): A(f"v_perm_b32 v{B+d}, v{pa+(tp>>1)}, v{pa+(tp>>1)}, v{sb+4*(tp&1)+d}")
        if tp >= 1:
            c = "0" if tp == 1 else vr(v.D, 4)
            A(f"v_mfma_f32_16x16x32_bf16 {vr(v.D,4)}, {vr(wor+4*(tp-1),4)}, {vr(bb+4*((tp-1)&1),4)}, {c}")
    A(f"v_mfma_f32_16x16x32_bf16 {vr(v.D,4)}, {vr(wor+28,4)}, {vr(bb+4,4)}, {vr(v.D,4)}")
    A(f"s_cmp_lg_u32 s{sWave}, 0")
    A(f"ds_write_b128 v{aLP}, {vr(v.D,4)} offset:{L_P}")
    stamp(4, True)
    A("s_waitcnt lgkmcnt(0)")
    A("s_barrier")
    A("s_cbranch_scc1 L_fin")
    for w in range(1, 4): A(f"ds_read_b128 {vr(a+4*w,4)}, v{v.lin} offset:{L_P+1024*w}")
    A("s_cmp_ge_u32 s2, 32")
    A("s_waitcnt lgkmcnt(0)")
    for r in range(4): A(f"v_add_f32 v{a+4+r}, v{a+4+r}, v{v.D+r}")
    for r in range(4): A(f"v_add_f32 v{a+8+r}, v{a+8+r}, v{a+12+r}")
    for r in range(4): A(f"v_add_f32 v{a+4+r}, v{a+4+r}, v{a+8+r}")
    for r in range(4): A(f"v_and_or_b32 v{a+4+r}, v{a+4+r}, v{c00}, s{sTag+r}")
    A(f"buffer_store_dwordx4 {vr(a+4,4)}, v{v.lin}, {sr(sWS)}, s16 offen sc1")
    stamp(2, True)
    A("s_cbranch_scc1 L_fin")
    ga = a + 8
    gg = gx
    for k in range(4):
        A(f"v_lshlrev_b32 v{ga+2*k}, 16, v{gx+k}")
        A(f"v_and_b32 v{ga+2*k+1}, 0xffff0000, v{gx+k}")
        A(f"v_lshlrev_b32 v{ga+8+2*k}, 16, v{gx+4+k}")
        A(f"v_and_b32 v{ga+8+2*k+1}, 0xffff0000, v{gx+4+k}")
    for k in range(8): A(f"v_mul_f32 v{ga+k}, v{ga+k}, v{ga+8+k}")
    for k in range(8): A(f"v_cvt_pk_bf16_f32 v{ga+k}, 0, v{ga+k}")
    for k in range(4): A(f"v_add_f32 v{ga+k}, v{ga+k}, v{ga+4+k}")
    A(f"v_add_f32 v{ga}, v{ga}, v{ga+2}")
    A(f"v_add_f32 v{ga+1}, v{ga+1}, v{ga+3}")
    A(f"v_add_f32 v{ga}, v{ga}, v{ga+1}")
    A(f"v_add_f32_dpp v{ga}, v{ga}, v{ga} row_ror:4 {DPPM}")
    A(f"v_add_f32_dpp v{ga}, v{ga}, v{ga} row_ror:8 {DPPM}")
    allred("v_add_f32", ga, ga + 1)
    A(f"v_cvt_pk_bf16_f32 v{ga}, 0, v{ga}")
    A(f"v_mul_f32 v{ga}, {LOG2E | 0x80000000:#x}, v{ga}")
    A(f"v_exp_f32 v{ga}, v{ga}")
    A(f"v_add_f32 v{ga}, 1.0, v{ga}")
    A(f"v_rcp_f32 v{ga}, v{ga}")
    A(f"v_cvt_pk_bf16_f32 v{gg}, 0, v{ga}")
    A(f"v_sub_f32 v{gg+1}, 1.0, v{gg}")
    A(f"v_cvt_pk_bf16_f32 v{gg+1}, 0, v{gg+1}")
    pc = a + 8
    A("s_waitcnt vmcnt(0)")
    stamp(3, True)
    A("L_cpoll:")
    for k in range(8): A(f"buffer_load_dwordx4 {vr(pc+4*k,4)}, v{aPC}, {sr(sWS)}, {'s%d' % (8+k) if k else 0} offen sc1")
    for k in range(8):
        A(f"s_waitcnt vmcnt({7-k})")
        strip(pc + 4 * k, k == 0)
    A(f"v_and_b32 v{t+11}, 0xff, v{t+11}")
    A(f"v_cmp_ne_u32 vcc, 0, v{t+11}")
    A("s_cbranch_vccnz L_cretry")
    A("s_mov_b64 exec, -1")
    stamp(8)
    for h in (0, 16):
        for r in range(8): A(f"v_add_f32 v{pc+h+r}, v{pc+h+r}, v{pc+h+8+r}")
    for h in (0, 16):
        for r in range(4): A(f"v_add_f32 v{pc+h+r}, v{pc+h+r}, v{pc+h+4+r}")
    for h in (0, 16):
        for r in range(2): A(f"v_permlane32_swap_b32 v{pc+h+r}, v{pc+h+2+r}")
    for h in (0, 16):
        for r in range(2): A(f"v_add_f32 v{pc+h+r}, v{pc+h+r}, v{pc+h+2+r}")
    for h in (0, 16): A(f"v_permlane16_swap_b32 v{pc+h}, v{pc+h+1}")
    for h in (0, 16): A(f"v_add_f32 v{pc+h}, v{pc+h}, v{pc+h+1}")
    A("s_mov_b32 s4, 0x00ff00ff")
    A("s_mov_b32 s5, 0x00ff00ff")
    for h in (0, 16): A(f"v_add_f32_dpp v{pc+h}, v{pc+h}, v{pc+h} row_ror:8 {DPPM}")
    for h in (0, 16): A(f"v_cvt_pk_bf16_f32 v{pc+h}, 0, v{pc+h}")
    A(f"v_mul_f32 v{pc}, v{gg}, v{pc}")
    A(f"v_mul_f32 v{pc+16}, v{gg+1}, v{pc+16}")
    for h in (0, 16): A(f"v_cvt_pk_bf16_f32 v{pc+h}, 0, v{pc+h}")
    A(f"v_add_f32 v{pc}, v{pc}, v{pc+16}")
    A(f"v_cvt_pk_bf16_f32 v{pc}, v{pc}, v{pc}")
    A("s_mov_b64 exec, s[4:5]")
    A(f"buffer_store_short v{pc}, v{aOUT}, {sr(sOUT)}, 0 offen")
    A("s_cmp_lg_u32 s2, 0")
    A("s_cbranch_scc1 L_fin")
    A("s_mov_b64 exec, 1")
    A(f"v_mov_b32 v{pc+1}, s{sE}")
    A(f"buffer_store_dword v{pc+1}, v0, {sr(sWS)}, 0 offen")
    if probe:
        A("L_probe:")
        A("s_memrealtime s[98:99]")
        A("s_waitcnt lgkmcnt(0)")
        A("s_sub_u32 s98, s98, s100")
        A(f"s_cmp_lt_u32 s98, {probe}")
        A("s_cbranch_scc1 L_probe")
    A("L_fin:")
    if stamps:
        A("s_mov_b64 exec, 1")
        stamp(9)
        A("s_waitcnt lgkmcnt(0)")
        A(f"s_lshl_b32 s{sTmp}, s2, 2")
        A(f"s_add_u32 s{sTmp}, s{sTmp}, s{sWave}")
        A(f"s_lshl_b32 s{sTmp}, s{sTmp}, 6")
        A(f"s_add_u32 s{sTmp}, s{sTmp}, {WS_ST}")
        A("s_getreg_b32 s4, hwreg(HW_REG_XCC_ID)")
        A("s_getreg_b32 s5, hwreg(HW_REG_HW_ID)")
        b = v.buf
        for k in range(10): A(f"v_mov_b32 v{b+k}, s{sStamp+2*k}")
        A(f"v_mov_b32 v{b+10}, s4")
        A(f"v_mov_b32 v{b+11}, s5")
        A(f"v_mov_b32 v{b+12}, s{sSpin}")
        A(f"v_mov_b32 v{b+13}, s{sHi}")
        A(f"v_mov_b32 v{b+14}, s{sFast}")
        for k in range(4): A(f"buffer_store_dwordx4 {vr(b+4*k,4)}, v0, {sr(sWS)}, s{sTmp} offen offset:{16*k}")
    A("L_end:")
    A("s_endpgm")
    def spinchk():
        A(f"s_sub_u32 s{sSpin}, s{sSpin}, 1")
        A("s_cbranch_scc1 L_end")
    A("L_bretry:")
    spinchk()
    A("s_mov_b64 exec, vcc")
    A(f"s_cmp_lg_u32 s{sFast}, 0")
    A("s_cbranch_scc1 L_bfast")
    A("L_bslow:")
    bpoll("sc1")
    A("s_branch L_bchk")
    A("L_cretry:")
    spinchk()
    A("s_mov_b64 exec, vcc")
    A("s_branch L_cpoll")
    A("L_mlslow:")
    A(f"buffer_store_dwordx4 {vr(M,4)}, v{aSML}, {sr(sWS)}, 0 offen sc1")
    A("s_branch L_noml")
    A("L_oslow:")
    A(f"buffer_store_dwordx4 {vr(oo,4)}, v{aSO}, {sr(sWS)}, 0 offen sc1")
    stamp(6)
    A("s_waitcnt vmcnt(0)")
    A("s_branch L_bslow")
    A("L_qretry:")
    spinchk(); qpoll()
    A("s_waitcnt vmcnt(0)")
    A("s_branch L_qchk")
    body = pad(L)
    ref = open(os.path.join(os.path.dirname(os.path.abspath(__file__)), "header.txt")).read().rstrip("\n").split("\n")
    out = ref + [f"; @launch grid=(256,1,1) block=(256,1,1) lds={L_SZ}",
                 '.amdgcn_target "amdgcn-amd-amdhsa--gfx950"', ".text", f".globl {KNAME}", ".p2align 8",
                 f".type {KNAME},@function"] + body
    acc = (NV + 3) // 4 * 4
    out += ['.section .rodata,"a"', ".p2align 6", f".amdhsa_kernel {KNAME}",
            f"  .amdhsa_next_free_vgpr {NV}", "  .amdhsa_next_free_sgpr 102", f"  .amdhsa_accum_offset {acc}",
            "  .amdhsa_group_segment_fixed_size 0", "  .amdhsa_kernarg_size 112", "  .amdhsa_user_sgpr_count 2",
            "  .amdhsa_user_sgpr_kernarg_segment_ptr 1", "  .amdhsa_system_sgpr_workgroup_id_x 1",
            "  .amdhsa_float_denorm_mode_32 3", ".end_amdhsa_kernel"]
    return "\n".join(out) + "\n"

if __name__ == "__main__":
    kw = eval("dict(" + (sys.argv[1] if len(sys.argv) > 1 else "") + ")")
    sys.stdout.write(gen(**kw))
```

```python
import sys, os
sys.path.insert(0, os.path.dirname(os.path.abspath(__file__)))
from hz import pad

KNAME = "gated_mix__gqa_block_cached__gqa_block_cached__decode_kernel"
LOG2E = 0x3fb8aa3b
SCALE = 0x3db504f3

WS_Q  = 0x10000
WS_ML = 0x30000
WS_B  = 0x40000
WS_O  = 0x100000
WS_P2 = 0x200000
WS_ST = 0x300000
WS_SZ = 0x400000
L_T, L_O, L_M, L_P, L_SZ = 0, 32768, 49152, 53248, 57344
DPPM = "row_mask:0xf bank_mask:0xf"
PAT1 = "k0 s0 k1 s1 w0 g0 s3 s2 g1 n3 w1 n1 n2 n0 k2"

def gen(NPL=40, waits=(4,)*8, whi=(5,)*8, wepi=None, R=3, XB=2, XT=2, P0=8, pollak=3, thr=(23, 30), wpro=None, wkv=None, pat=PAT1,
        wqflags="nt", woflags="nt", kvflags="nt", tchflags="nt", fast=1, touch=0, woburst=0, itml=14, wqfirst=0, wodelay=0, wvk=None,
        stamps=False, tst=False, spin=1 << 17, cut=0, probe=0):
    P = max(max(waits), max(whi)) + 1
    if wepi is None: wepi = (P - 1,) * 8
    assert NPL % 8 == 0 and P + XT <= 8 and 5 <= P <= 6
    pos = {n: 8 + i for i, n in enumerate(pat.split())}
    assert len(pos) == 15
    def dep(c, val, nb): return sum(((val >> i) & 1) << pos[f"{c}{i}"] for i in range(nb))
    L = []
    def A(s): L.append(s)
    class V: pass
    v = V(); nv = [0]
    def valloc(name, n=1, al=1):
        nv[0] = (nv[0] + al - 1) // al * al
        setattr(v, name, nv[0]); nv[0] += n
    for nm in ("tid", "koff", "voff", "lin", "mask0", "mask1"): valloc(nm)
    valloc("T", 2, 2); valloc("TV", 2, 2)
    valloc("m", 2, 2); v.l = v.m + 1
    for nm in ("ta", "mL", "e0", "e1", "e2", "y0", "y1", "z", "p", "pd", "bw", "br", "bv", "bl", "aML", "c00"): valloc(nm)
    valloc("q", 4, 2); valloc("qB", 4, 2); valloc("acc", 8, 2); valloc("D", 8, 2)
    valloc("W", 18, 2)
    valloc("t", 12, 2)
    valloc("buf", 4 * NPL, 4)
    NV = nv[0]
    assert NV <= 256, NV
    def vr(a, n): return f"v[{a}:{a+n-1}]"
    wqr = v.buf + 4 * NPL - 32
    xr = wqr - 16
    wor = v.buf + 32
    gx = v.buf + 64
    sb = v.buf + 72
    mlr = v.buf + 80
    (aWO, aLO, aSO, aPO, aPC, aOUT, gA, gB, F) = range(v.buf + 84, v.buf + 93)
    aLP = aLO
    c00 = v.c00
    bA = v.buf + 96
    oA = v.buf + 112
    a = v.buf + 116
    assert a + 44 <= NV
    sK, sV, sWQ, sWO, sWS, sX, sGW, sOUT = 20, 24, 28, 32, 36, 40, 44, 48
    sWave, sOff, sCnt, sE, sL2E, sTmp, sTmp2, sSpin, sPh = 3, 52, 53, 54, 55, 56, 57, 58, 59
    sQ1, sQ2, sQ3 = 60, 62, 64
    sHi, sFast = 66, 67
    sTag, sTag16, sNo, sN, sThr = 68, 72, 73, 74, 75
    sKB = 76
    sHkv, sJ = 6, 7
    sStamp = 80
    def sr(a, n=4): return f"s[{a}:{a+n-1}]"
    def stamp3(k):
        if stamps and tst == 3: A(f"s_memrealtime s[{sStamp+2*k}:{sStamp+2*k+1}]")
    def stamp4(ka, kb):
        if stamps and tst == 4:
            n_ = len(L)
            A(f"s_cmp_lg_u32 s{sPh}, 0")
            A(f"s_cbranch_scc1 L_st{n_}")
            A(f"s_memrealtime s[{sStamp+2*ka}:{sStamp+2*ka+1}]")
            A(f"L_st{n_}:")
            A(f"s_memrealtime s[{sStamp+2*kb}:{sStamp+2*kb+1}]")
    def stamp(k, tail=False):
        if tst in (3, 4) and k in (6, 7, 8): return
        if stamps and (k not in (1, 2, 3, 4) or tail == tst or (tst == 2 and tail is True and k in (1, 4))): A(f"s_memrealtime s[{sStamp+2*k}:{sStamp+2*k+1}]")
    def sdep(dst, src, c, nb, first, tmp):
        groups = {}
        for i in range(nb): groups.setdefault(pos[f"{c}{i}"] - i, []).append(i)
        for sh, bits in groups.items():
            d = dst if first else tmp
            A(f"s_and_b32 s{d}, s{src}, {sum(1 << i for i in bits)}")
            A(f"s_lshl_b32 s{d}, s{d}, {sh}")
            if not first: A(f"s_add_u32 s{dst}, s{dst}, s{tmp}")
            first = False

    A(f"{KNAME}:")
    A("s_cmp_ge_u32 s2, 256")
    A("s_cbranch_scc1 L_end")
    stamp(0)
    if probe: A("s_memrealtime s[100:101]")
    A("s_lshr_b32 s4, s2, 7")
    A("s_mul_i32 s4, s4, 40")
    A("s_add_u32 s4, s0, s4")
    A("s_addc_u32 s5, s1, 0")
    A("s_load_dwordx2 s[12:13], s[4:5], 24")
    A(f"s_load_dwordx2 {sr(sX,2)}, s[0:1], 0")
    A("s_load_dwordx4 s[8:11], s[0:1], 8           ; K_A, V_A")
    A(f"s_load_dwordx2 {sr(sWS,2)}, s[0:1], 104")
    A(f"s_load_dwordx4 {sr(sKB)}, s[0:1], 48       ; K_B, V_B")
    A("s_load_dwordx4 s[16:19], s[0:1], 80")
    A(f"s_load_dwordx2 {sr(sWO,2)}, s[0:1], 32     ; wo_A")
    A("s_load_dwordx2 s[14:15], s[0:1], 72         ; wo_B")
    t = v.t
    A(f"v_lshrrev_b32 v{t}, 6, v0")
    A(f"v_and_b32 v0, 63, v0")
    A(f"v_readfirstlane_b32 s{sWave}, v{t}")
    A(f"v_lshrrev_b32 v{t+1}, 3, v0")
    A(f"v_lshl_add_u32 v{t+2}, v{t}, 3, v{t+1}")
    A(f"v_and_b32 v{t+3}, 7, v0")
    A(f"v_lshlrev_b32 v{t+3}, 3, v{t+3}")
    A(f"v_lshl_add_u32 v{t+3}, v{t+2}, 17, v{t+3}")
    A(f"v_bfe_u32 v{t+4}, v0, 2, 1")
    A(f"v_lshlrev_b32 v{t+8}, 10, v{t+4}")
    A(f"v_lshl_add_u32 v{t+8}, v{t+2}, 5, v{t+8}")
    A(f"s_and_b32 s{sHkv}, s2, 7")
    A(f"s_lshr_b32 s{sJ}, s2, 3")
    A(f"s_and_b32 s{sTmp}, s{sJ}, 15")
    A(f"s_lshl_b32 s{sTmp}, s{sTmp}, 6")
    A(f"s_lshl_b32 s{sTmp2}, s{sHkv}, 10")
    A(f"s_add_u32 s{sTmp}, s{sTmp}, s{sTmp2}")
    A(f"s_mov_b32 s{sX+2}, 2048")
    A(f"s_mov_b32 s{sX+3}, 0x20000")
    A(f"s_mov_b32 s{sWQ+2}, 0x400000")
    A(f"s_mov_b32 s{sWQ+3}, 0x20000")
    A("s_waitcnt lgkmcnt(0)")
    stamp3(1)
    A(f"s_mov_b32 s{sWQ}, s12")
    A(f"s_mov_b32 s{sWQ+1}, s13")
    for tt in range(16):
        if tt == wqfirst:
            A(f"buffer_load_dwordx4 {vr(xr,4)}, v{t+8}, {sr(sX)}, 0 offen")
            A(f"buffer_load_dwordx4 {vr(xr+4,4)}, v{t+8}, {sr(sX)}, 0 offen offset:16")
        A(f"buffer_load_dwordx2 {vr(wqr+2*tt,2)}, v{t+3}, {sr(sWQ)}, s{sTmp} offen {wqflags}")
        if tt < 15: A(f"s_add_u32 s{sTmp}, s{sTmp}, 8192")
    assert wqfirst <= 2
    A(f"s_mov_b32 s{sWQ}, s14                      ; this descriptor now serves wo_B")
    A(f"s_mov_b32 s{sWQ+1}, s15")
    A(f"s_load_dword s{sE}, {sr(sWS,2)}, 0")
    A(f"s_lshr_b32 s{sTmp2}, s2, 7")
    A(f"s_lshl_b32 s{sTmp2}, s{sTmp2}, 3")
    A(f"s_add_u32 s{sTmp2}, s{sTmp2}, s{sHkv}")
    A(f"s_lshl_b32 s{sTmp2}, s{sTmp2}, 23")
    A(f"s_add_u32 s{sK}, s8, s{sTmp2}")
    A(f"s_addc_u32 s{sK+1}, s9, 0")
    A(f"s_mov_b32 s{sK+2}, 0x800000")
    A(f"s_mov_b32 s{sK+3}, 0x20000")
    sdep(sTmp, sWave, "w", 2, True, 4)
    sdep(sTmp, sJ, "s", 4, False, 4)
    A(f"v_bfe_u32 v{t+5}, v0, 2, 2")
    A(f"v_lshrrev_b32 v{t+6}, 4, v0")
    A(f"v_and_b32 v{t+7}, 3, v0")
    A(f"v_lshlrev_b32 v{v.lin}, 4, v0")
    A(f"v_lshl_add_u32 v{v.koff}, v{t+6}, 6, s{sTmp}")
    A(f"v_lshl_add_u32 v{v.koff}, v{t+7}, 4, v{v.koff}")
    A(f"v_lshl_add_u32 v{v.koff}, v{t+4}, {pos['g0']}, v{v.koff}")
    A(f"v_bfe_u32 v{t+8}, v0, 3, 1")
    A(f"v_lshl_add_u32 v{v.koff}, v{t+8}, {pos['g1']}, v{v.koff}")
    last = [None]
    def issue(i, kind, sl, loop=False):
        kd = dep("k", i & 7, 3)
        c = kd if loop else kd + dep("n", i >> 3, 4)
        imm, hi = c & 0xfff, c & ~0xfff
        if loop:
            if hi == 0: so = f"s{sNo}"
            else:
                if last[0] != ("l", hi): A(f"s_add_u32 s{sOff}, s{sNo}, {hi:#x}")
                last[0] = ("l", hi); so = f"s{sOff}"
        else:
            if hi == 0: so = "0"
            else:
                if last[0] != ("c", hi): A(f"s_mov_b32 s{sOff}, {hi:#x}")
                last[0] = ("c", hi); so = f"s{sOff}"
        if i & 7 == 7: last[0] = None
        off = f" offset:{imm}" if imm else ""
        r = v.buf + 4 * sl
        if kind == "K": A(f"buffer_load_dwordx4 {vr(r,4)}, v{v.koff}, {sr(sK)}, {so} offen{off} {kvflags}")
        else:           A(f"buffer_load_dwordx4 {vr(r,4)}, v{v.voff}, {sr(sV)}, {so} offen{off} {kvflags}")
    for k in range(P0): issue(k, "K", k)
    A(f"v_and_b32 v{v.voff}, 0xff, v{v.lin}")
    A(f"v_add_u32 v{v.voff}, s{sTmp}, v{v.voff}")
    A(f"v_bfe_u32 v{t+8}, v0, 4, 1")
    A(f"v_lshl_add_u32 v{v.voff}, v{t+8}, {pos['g0']}, v{v.voff}")
    A(f"v_lshrrev_b32 v{t+8}, 5, v0")
    A(f"v_lshl_add_u32 v{v.voff}, v{t+8}, {pos['g1']}, v{v.voff}")
    A(f"s_add_u32 s{sV}, s10, s{sTmp2}")
    A(f"s_addc_u32 s{sV+1}, s11, 0")
    A(f"s_add_u32 s{sKB}, s{sKB}, s{sTmp2}")
    A(f"s_addc_u32 s{sKB+1}, s{sKB+1}, 0")
    A(f"s_add_u32 s{sKB+2}, s{sKB+2}, s{sTmp2}")
    A(f"s_addc_u32 s{sKB+3}, s{sKB+3}, 0")
    sel = xr + 8; bq = xr + 12
    for s_, b0, n_ in ((sV, None, 0x800000), (sWS, None, WS_SZ), (sWO, None, 0x400000), (sGW, 16, 1024), (sOUT, 18, 2048)):
        if b0 is not None:
            A(f"s_mov_b32 s{s_}, s{b0}")
            A(f"s_mov_b32 s{s_+1}, s{b0+1}")
        A(f"s_mov_b32 s{s_+2}, {n_:#x}")
        A(f"s_mov_b32 s{s_+3}, 0x20000")
    A(f"s_mov_b32 s{sL2E}, {LOG2E:#x}")
    A(f"s_mov_b32 s{sPh}, 0")
    for k, s in ((1, sQ1), (2, sQ2), (3, sQ3)):
        A(f"s_mov_b32 s{s}, {0x11111111 << k:#x}")
        A(f"s_mov_b32 s{s+1}, {0x11111111 << k:#x}")
    A(f"v_mov_b32 v{t+8}, 0xffff")
    A(f"v_mov_b32 v{t+9}, 0xffff0000")
    A(f"v_cndmask_b32 v{v.mask1}, 0, v{t+8}, {sr(sQ2,2)}")
    A(f"v_cndmask_b32 v{v.mask1}, v{v.mask1}, v{t+9}, {sr(sQ3,2)}")
    A(f"v_cndmask_b32 v{v.mask0}, v{t+8}, v{t+9}, {sr(sQ1,2)}")
    A(f"v_cmp_gt_u32 vcc, 2, v{t+7}")
    A(f"v_cndmask_b32 v{v.mask0}, 0, v{v.mask0}, vcc")
    A(f"s_mov_b32 s{sTmp}, 0x01000100")
    A(f"s_mov_b32 s{sTmp2}, 0x03020302")
    A(f"v_mov_b32 v{t+8}, 0x0c0c0c0c")
    A(f"v_bfi_b32 v{sel}, v{v.mask0}, s{sTmp}, v{t+8}")
    A(f"v_bfi_b32 v{sel+1}, v{v.mask1}, s{sTmp}, v{t+8}")
    A(f"v_bfi_b32 v{sel+2}, v{v.mask0}, s{sTmp2}, v{t+8}")
    A(f"v_bfi_b32 v{sel+3}, v{v.mask1}, s{sTmp2}, v{t+8}")
    for k in range(18):
        if k % 4 < 2: A(f"v_mov_b32 v{v.W+k}, 0")
    A(f"v_mov_b32 v{v.m}, 0xff800000")
    A(f"v_mov_b32 v{v.l}, 0")
    A(f"v_lshlrev_b32 v{v.ta}, 3, v0")
    A(f"v_lshl_add_u32 v{v.ta}, v{t}, 13, v{v.ta}")
    A(f"v_lshl_add_u32 v{t+8}, v{t}, 10, v{v.lin}")
    A("s_getreg_b32 s8, hwreg(HW_REG_XCC_ID)")
    A("s_and_b32 s8, s8, 7")
    i = P0
    for m in range(8):
        A(f"s_waitcnt vmcnt({14 - 2*m + i})")
        if m == 0: stamp3(2)
        if m == 7: stamp3(3)
        if m >= 8 - (max(waits) + 1) + P0:
            issue(i, "K", i); i += 1
        for k in range(4):
            A(f"v_perm_b32 v{bq+k}, v{xr+m}, v{xr+m}, v{sel+k}")
        c = "0" if m == 0 else vr(v.D, 4)
        A(f"v_mfma_f32_16x16x32_bf16 {vr(v.D,4)}, {vr(wqr+4*m,4)}, {vr(bq,4)}, {c}")
    stamp(1)
    for k in range(XB):
        issue(i, "K", i); i += 1
    A(f"ds_write_b128 v{t+8}, {vr(v.D,4)} offset:{L_P}")
    A(f"v_bfe_u32 v{t+9}, v0, 4, 1")
    A(f"v_lshlrev_b32 v{t+9}, 8, v{t+9}")
    A(f"v_lshrrev_b32 v{t+10}, 5, v0")
    A(f"v_lshl_add_u32 v{t+9}, v{t+10}, 6, v{t+9}")
    A(f"v_lshl_add_u32 v{t+9}, v{t+7}, 4, v{t+9}")
    A(f"v_lshl_add_u32 v{t+9}, v{t+5}, 2, v{t+9}")
    A("s_waitcnt lgkmcnt(0)")
    A("s_barrier")
    A(f"s_add_u32 s{sE}, s{sE}, 1")
    A(f"s_and_b32 s{sTag16}, s{sE}, 0x1fff")
    A(f"s_lshl_b32 s{sTag16}, s{sTag16}, 3")
    A(f"s_or_b32 s{sTag16}, s{sTag16}, s8")
    A(f"s_cmp_lg_u32 s{sWave}, 0")
    A("s_cbranch_scc1 L_nopub")
    qr = wqr
    for w in range(4):
        for r1 in range(2):
            A(f"ds_read_b32 v{qr+2*w+r1}, v{t+9} offset:{L_P + 1024*w + 640*r1}")
    A(f"s_lshr_b32 s{sTmp}, s2, 7")
    A(f"s_lshl_b32 s{sTmp}, s{sTmp}, 3")
    A(f"s_add_u32 s{sTmp}, s{sTmp}, s{sHkv}")
    A(f"s_lshl_b32 s{sTmp}, s{sTmp}, 12")
    A(f"s_and_b32 s{sTmp2}, s{sJ}, 15")
    A(f"s_lshl_b32 s{sTmp2}, s{sTmp2}, 7")
    A(f"s_add_u32 s{sTmp}, s{sTmp}, s{sTmp2}")
    A(f"s_add_u32 s{sTmp}, s{sTmp}, {WS_Q:#x}")
    A(f"v_and_b32 v{t+11}, 31, v0")
    A(f"v_lshlrev_b32 v{t+11}, 2, v{t+11}")
    A(f"v_lshl_add_u32 v{t+11}, v{t+10}, 11, v{t+11}")
    A("s_waitcnt lgkmcnt(0)")
    for k in range(4): A(f"v_add_f32 v{qr+k}, v{qr+k}, v{qr+4+k}")
    A(f"v_add_f32 v{qr}, v{qr}, v{qr+2}")
    A(f"v_add_f32 v{qr+1}, v{qr+1}, v{qr+3}")
    A(f"v_add_f32 v{qr}, v{qr}, v{qr+1}")
    A(f"v_cvt_pk_bf16_f32 v{qr}, 0, v{qr}")
    A(f"v_or_b32 v{t+8}, s{sTag16}, v{qr}")
    A(f"buffer_store_dword v{t+8}, v{t+11}, {sr(sWS)}, s{sTmp} offen sc1")
    A("L_nopub:")
    stamp(2)
    misc = []
    M_ = misc.append
    for k in range(4):
        M_(f"s_add_u32 s{sTag+k}, s{sE}, {37*k}")
        M_(f"s_and_b32 s{sTag+k}, s{sTag+k}, 0xff")
    M_(f"v_lshl_add_u32 v{t+9}, v{t+5}, 2, v{t+6}")
    M_(f"v_lshlrev_b32 v{t+9}, 7, v{t+9}")
    M_(f"v_lshl_add_u32 v{t+9}, v{t+7}, 5, v{t+9}")
    M_(f"s_lshl_b32 s{sTmp}, s{sHkv}, 1")
    M_(f"s_lshr_b32 s{sTmp2}, s2, 7")
    M_(f"s_add_u32 s{sTmp}, s{sTmp}, s{sTmp2}")
    M_(f"s_lshl_b32 s{sTmp}, s{sTmp}, 11")
    M_(f"s_add_u32 s{sTmp}, s{sTmp}, {WS_Q:#x}")
    M_(f"s_add_u32 s{sTmp2}, s{sTmp}, 32768")
    M_(f"s_mov_b32 s{sSpin}, {spin}")
    M_("s_bitcmp1_b32 s8, 0")
    M_(f"s_cselect_b32 s{sThr}, {thr[1]}, {thr[0]}")
    M_("s_lshl_b32 s4, s8, 12")
    M_(f"s_add_u32 s4, s4, {WS_B:#x}")
    M_(f"v_lshl_add_u32 v{v.br}, v0, 2, s4")
    M_(f"v_mov_b32 v{v.bl}, 0x7ffffff0")
    M_(f"v_cmp_gt_u32 vcc, 32, v0")
    M_(f"s_lshl_b32 s5, s{sWave}, 6")
    M_(f"s_add_u32 s5, s5, s{sJ}")
    M_(f"v_cndmask_b32 v{v.br}, v{v.bl}, v{v.br}, vcc")
    M_(f"v_cmp_eq_u32 vcc, s5, v0")
    M_(f"s_lshl_b32 s{sN}, s{sE}, 12")
    M_(f"s_mov_b32 s{sHi}, 0")
    M_(f"v_cndmask_b32 v{v.bw}, v{v.bl}, v{v.br}, vcc")
    M_(f"v_add_u32 v{v.bl}, s{sN}, v{v.bl}")
    M_(f"s_lshl_b32 s4, s{sHkv}, 11")
    M_(f"s_lshr_b32 s5, s2, 7")
    M_("s_lshl_b32 s5, s5, 10")
    M_("s_add_u32 s4, s4, s5")
    M_(f"s_add_u32 s4, s4, {WS_ML:#x}")
    M_(f"v_add_u32 v{v.aML}, s4, v{v.lin}")
    M_(f"v_mov_b32 v{c00}, 0xffffff00")
    def drain(n):
        for _ in range(n):
            if misc:
                s_ = misc.pop(0); A(s_)
                if s_.startswith("s_bitcmp") or s_.startswith("s_cmp"): A(misc.pop(0))
    qp = v.acc
    assert v.D == v.acc + 8 and v.qB == v.q + 4
    def qpoll():
        A(f"buffer_load_dwordx4 {vr(qp,4)}, v{t+9}, {sr(sWS)}, s{sTmp} offen sc1")
        A(f"buffer_load_dwordx4 {vr(qp+4,4)}, v{t+9}, {sr(sWS)}, s{sTmp} offen offset:16 sc1")
        A(f"buffer_load_dwordx4 {vr(qp+8,4)}, v{t+9}, {sr(sWS)}, s{sTmp2} offen sc1")
        A(f"buffer_load_dwordx4 {vr(qp+12,4)}, v{t+9}, {sr(sWS)}, s{sTmp2} offen offset:16 sc1")
    ipoll = NPL - P
    while i < NPL:
        n = (wpro or waits)[i & 7]
        if i > ipoll and i - n - 1 < ipoll: n += 4
        A(f"s_waitcnt vmcnt({n})")
        if i == ipoll:
            assert not misc
            qpoll()
        if i in (16, 24, 32): stamp3({16: 4, 24: 6, 32: 7}[i])
        issue(i, "K", i); i += 1
        drain(6)
    A(f"s_waitcnt vmcnt({P})")
    A("L_qchk:")
    A(f"v_xor_b32 v{t+8}, s{sTag16}, v{qp}")
    for k in range(1, 16): A(f"v_bitop3_b32 v{t+8}, v{qp+k}, s{sTag16}, v{t+8} bitop3:0xbe")
    A(f"v_and_b32 v{t+10}, 0xfff8, v{t+8}")
    A(f"v_cmp_ne_u32 vcc, 0, v{t+10}")
    A("s_cbranch_vccnz L_qretry")
    A(f"v_and_b32 v{t+10}, 7, v{t+8}")
    A(f"v_cmp_ne_u32 vcc, 0, v{t+10}               ; some workgroup of this set sits on another XCD")
    A(f"s_mov_b32 s4, 0x07060302")
    for k in range(8): A(f"v_perm_b32 v{v.q+k}, v{qp+2*k+1}, v{qp+2*k}, s4")
    A("s_cmp_eq_u64 vcc, 0")
    A(f"s_cselect_b32 s{sFast}, {fast}, 0")
    stamp(3)
    def red(u, T):
        D = v.D + 4 * (u & 1)
        A(f"v_add_f32_dpp v{v.y0}, v{D+(u^1)}, v{D+u} quad_perm:[1,0,3,2] {DPPM}")
        A(f"v_add_f32_dpp v{v.y1}, v{D+(u^3)}, v{D+(u^2)} quad_perm:[1,0,3,2] {DPPM}")
        dst = T if u == 0 else v.z
        A(f"v_add_f32_dpp v{dst}, v{v.y1}, v{v.y0} quad_perm:[2,3,0,1] {DPPM}")
        if u: A(f"v_cndmask_b32 v{T}, v{T}, v{v.z}, {sr((sQ1,sQ2,sQ3)[u-1],2)}")
    def finT(par):
        T = v.T + par
        red(3, T)
        A(f"v_cvt_pk_bf16_f32 v{T}, 0, v{T}")
        A(f"v_mul_f32 v{T}, {SCALE:#x}, v{T}")
        A(f"v_cvt_pk_bf16_f32 v{T}, 0, v{T}")
        if par:
            A(f"v_mul_f32 v{v.e2}, s{sL2E}, v{v.m}")
            A(f"v_max3_f32 v{v.m}, v{v.T}, v{v.T+1}, v{v.m}")
            A(f"ds_write_b64 v{v.ta}, {vr(v.T,2)}")
            A(f"v_mul_f32 v{v.p}, s{sL2E}, v{v.m}")
            A(f"v_add_u32 v{v.ta}, 512, v{v.ta}")
            A(f"v_fma_f32 v{v.e0}, v{v.T}, s{sL2E}, -v{v.p}")
            A(f"v_fma_f32 v{v.e1}, v{v.T+1}, s{sL2E}, -v{v.p}")
            A(f"v_sub_f32 v{v.e2}, v{v.e2}, v{v.p}")
    def lacc():
        A(f"v_exp_f32 v{v.e0}, v{v.e0}")
        A(f"v_exp_f32 v{v.e2}, v{v.e2}")
        A(f"v_exp_f32 v{v.e1}, v{v.e1}")
        A(f"v_fma_f32 v{v.l}, v{v.l}, v{v.e2}, v{v.e0}")
        A(f"v_add_f32 v{v.l}, v{v.l}, v{v.e1}")
    def procK(j, sl):
        u = j & 3
        A(f"v_mfma_f32_16x16x32_bf16 {vr(v.D+4*(u&1),4)}, {vr(v.buf+4*sl,4)}, {vr(v.q,4)}, 0")
        if u >= 1: red(u - 1, v.T + ((j >> 2) & 1))
        elif j > 0: finT(((j >> 2) - 1) & 1)
        if j & 7 == 1 and j > 1: lacc()
    def ands(u):
        w = v.W + 2 + 4 * u
        A(f"v_and_b32_dpp v{w}, v{v.pd}, v{v.mask0} quad_perm:[{u},{u},{u},{u}] {DPPM}")
        A(f"v_and_b32_dpp v{w+1}, v{v.pd}, v{v.mask1} quad_perm:[{u},{u},{u},{u}] {DPPM}")
    def prep(par, nextread=True):
        if par == 0: A("s_waitcnt lgkmcnt(0)")
        A(f"v_fma_f32 v{v.p}, v{v.TV+par}, s{sL2E}, -v{v.mL}")
        A(f"v_exp_f32 v{v.p}, v{v.p}")
        if par == 1 and nextread:
            A(f"v_add_u32 v{v.ta}, 512, v{v.ta}")
            A(f"ds_read_b64 {vr(v.TV,2)}, v{v.ta}")
        A(f"v_cvt_pk_bf16_f32 v{v.pd}, v{v.p}, v{v.p}")
        ands(0)
    def procV(j, sl, end=False):
        u = j & 3
        w = v.W + 4 * u
        A(f"v_mfma_f32_16x16x32_bf16 {vr(v.acc,4)}, {vr(v.buf+4*sl,4)}, {vr(w+2,4)}, {vr(v.acc,4)}")
        A(f"v_mfma_f32_16x16x32_bf16 {vr(v.acc+4,4)}, {vr(v.buf+4*sl,4)}, {vr(w,4)}, {vr(v.acc+4,4)}")
        if end and j >= 124: return
        if u < 3: ands(u + 1)
        else:
            prep(((j >> 2) + 1) & 1, nextread=not (end and j == 123))
            if end and j == 123:
                ands(1); ands(2); ands(3)
    def allred(op, r, tmp):
        A(f"{op}_dpp v{r}, v{r}, v{r} quad_perm:[1,0,3,2] {DPPM}")
        A(f"{op}_dpp v{r}, v{r}, v{r} quad_perm:[2,3,0,1] {DPPM}")
        A(f"v_mov_b32 v{tmp}, v{r}")
        A(f"v_permlane16_swap_b32 v{tmp}, v{r}")
        A(f"{op} v{r}, v{r}, v{tmp}")
        A(f"v_mov_b32 v{tmp}, v{r}")
        A(f"v_permlane32_swap_b32 v{tmp}, v{r}")
        A(f"{op} v{r}, v{r}, v{tmp}")
    def accaddr():
        A(f"s_lshl_b32 s4, s{sPh}, 2")
        A(f"s_add_u32 s4, s4, s{sWave}")
        A(f"s_lshl_b32 s5, s4, 11")
        A(f"v_add_u32 v{t+9}, s5, v{v.lin}")
    def accout():
        A(f"ds_write_b128 v{t+9}, {vr(v.acc,4)} offset:{L_O}")
        A(f"ds_write_b128 v{t+9}, {vr(v.acc+4,4)} offset:{L_O+1024}")
    def strip(base, first, emit=None):
        E = emit or A
        for r in range(4): E(f"v_xor_b32 v{base+r}, s{sTag+r}, v{base+r}")
        if first: E(f"v_or_b32 v{t+11}, v{base}, v{base+1}")
        else: E(f"v_or3_b32 v{t+11}, v{base}, v{base+1}, v{t+11}")
        E(f"v_or3_b32 v{t+11}, v{base+2}, v{base+3}, v{t+11}")
    def check(label):
        A(f"v_and_b32 v{t+11}, 0xff, v{t+11}")
        A(f"v_cmp_ne_u32 vcc, 0, v{t+11}")
        A(f"s_cbranch_vccnz {label}")
    slotof = {k: k for k in range(NPL)}
    def newslot(i): return (i - NPL) if i < NPL + 16 else (i & 7)
    j = 0
    landed = i - P
    while not (j == i - P and i % 8 == 0 and j >= NPL + 16):
        s = newslot(i)
        own = max(k for k in slotof if slotof[k] == s)
        while j <= own:
            assert j < landed, "catch-up needs data not yet landed"
            procK(j, slotof[j]); j += 1
        A(f"s_waitcnt vmcnt({(wpro or waits)[i&7]})")
        landed = max(landed, i - (wpro or waits)[i & 7])
        slotof[i] = s
        issue(i, "K", s); i += 1
        n = 0
        while n < R and j < i - P:
            assert j < landed
            procK(j, slotof[j]); j += 1; n += 1
    assert i < 128
    def enter(n):
        A(f"s_mov_b32 s{sCnt}, {n}")
        A(f"s_mov_b32 s{sNo}, {dep('n', n, 4):#x}")
    enter(i // 8)
    stamp(4); stamp3(8)
    def body(kind, proc, ww, extra):
        for k in range(8):
            n = ww[k] + (extra if k <= ww[k] else 0)
            issue(k, kind, k, loop=True)
            L.insert(len(L) - 1, f"s_waitcnt vmcnt({n})")
            if k == 7:
                A(f"s_add_u32 s{sCnt}, s{sCnt}, 1")
                sdep(sNo, sCnt, "n", 4, True, 4)
            proc(16 + k - P, (k - P) & 7)
    def loop(name, kind, proc):
        A(".p2align 6")
        A(f"L_{name}loop:")
        A(f"v_subrev_u32 v{v.bv}, s{sN}, v{v.bl}")
        A(f"s_add_u32 s{sN}, s{sN}, 1")
        A(f"v_cmp_gt_u32 vcc, 64, v{v.bv}")
        A(f"v_mov_b32 v{v.bv}, s{sN}")
        A(f"s_bcnt1_i32_b64 s4, vcc")
        A(f"buffer_store_dword v{v.bv}, v{v.bw}, {sr(sWS)}, 0 offen")
        A(f"buffer_load_dword v{v.bl}, v{v.br}, {sr(sWS)}, 0 offen nt")
        if kind == "V":
            A(f"s_cmp_eq_u32 s{sCnt}, {itml}")
            A("s_cbranch_scc1 L_side")
        A(f"s_cmp_ge_u32 s4, s{sThr}")
        A(f"s_cbranch_scc1 L_{name}hi")
        for ver, ww in (("lo", waits), ("hi", whi)):
            if ver == "hi":
                A(f"L_{name}hi:")
                if stamps: A(f"s_add_u32 s{sHi}, s{sHi}, 1")
            body(kind, proc, ww, 2)
            A(f"s_cmp_lg_u32 s{sCnt}, 16")
            A(f"s_cbranch_scc1 L_{name}loop")
            if ver == "lo": A(f"s_branch L_{name}done")
        A(f"L_{name}done:")
    loop("k", "K", procK)
    stamp4(1, 6)
    wk = wkv or waits
    for k in range(P):
        A(f"s_waitcnt vmcnt({wk[k]})")
        issue(k, "V", k)
        procK(128 + k - P, (k - P) & 7)
        if k == 0:
            A(f"v_subrev_u32 v{t+10}, {512*15}, v{v.ta}")
            A(f"ds_read_b64 {vr(v.TV,2)}, v{t+10}")
        if k == 1:
            for r in range(8): A(f"v_mov_b32 v{v.acc+r}, 0")
    for k in range(P, P + XT): issue(k, "V", k)
    finT(1)
    A(f"v_mov_b32 v{v.z}, v{v.p}")
    A(f"v_mov_b32 v{v.ta}, v{t+10}")
    allred("v_max_f32", v.m, v.y0)
    A(f"v_mul_f32 v{v.mL}, s{sL2E}, v{v.m}")
    prep(0)
    sv = L[:]; del L[:]
    lacc()
    A(f"v_sub_f32 v{v.z}, v{v.z}, v{v.mL}")
    A(f"v_exp_f32 v{v.z}, v{v.z}")
    A(f"s_lshl_b32 s5, s{sPh}, 11")
    A(f"s_lshl_b32 s4, s{sWave}, 9")
    A(f"v_mul_f32 v{v.l}, v{v.l}, v{v.z}")
    A(f"s_add_u32 s4, s4, s5")
    A(f"v_lshl_add_u32 v{t+9}, v0, 3, s4")
    allred("v_add_f32", v.l, v.y0)
    A(f"ds_write_b64 v{t+9}, {vr(v.m,2)} offset:{L_M}")
    A(f"v_lshl_add_u32 v{t+10}, v0, 3, s5")
    misc.extend(L); del L[:]; L.extend(sv)
    issued = P + XT
    for k in range(P, 8):
        if k == 7: drain(99)
        if k >= issued:
            A(f"s_waitcnt vmcnt({wk[k]})")
            issue(k, "V", k); issued += 1
        else:
            A(f"s_waitcnt vmcnt({issued - 1 - (k - P)})")
        procV(k - P, k - P)
    A("s_waitcnt lgkmcnt(0)")
    A("s_barrier")
    A(f"s_cmp_eq_u32 s{sWave}, 3")
    A("s_cbranch_scc1 L_pubml")
    A(f"s_lshl_b32 s4, s{sPh}, 1")
    A(f"s_cmp_lt_u32 s{sWave}, s4")
    A("s_cbranch_scc1 L_puba")
    A("L_vent:")
    enter(1)
    stamp4(2, 7)
    loop("v", "V", procV)
    stamp4(3, 8)
    A("L_mlchk:")
    strip(mlr, True)
    check("L_mlretry")
    def mlread():
        A(f"ds_read2st64_b64 {vr(v.D,4)}, v{t+10} offset0:{L_M//512} offset1:{L_M//512+1}")
        A(f"ds_read2st64_b64 {vr(v.D+4,4)}, v{t+10} offset0:{L_M//512+2} offset1:{L_M//512+3}")
    mlread()
    def fact(E):
        sv = L[:]; del L[:]
        A(f"v_mov_b32 v{mlr+2}, v{mlr}")
        allred("v_max_f32", mlr + 2, mlr + 3)
        A(f"v_mul_f32 v{mlr+2}, s{sL2E}, v{mlr+2}")
        A(f"v_fma_f32 v{mlr}, v{mlr}, s{sL2E}, -v{mlr+2}")
        A("s_waitcnt lgkmcnt(0)")
        for w in range(4): A(f"v_fma_f32 v{F+w}, v{v.D+2*w}, s{sL2E}, -v{mlr+2}")
        A(f"v_exp_f32 v{mlr}, v{mlr}")
        for w in range(4): A(f"v_exp_f32 v{F+w}, v{F+w}")
        A(f"v_mul_f32 v{mlr+1}, v{mlr+1}, v{mlr}")
        allred("v_add_f32", mlr + 1, mlr + 3)
        A(f"v_rcp_f32 v{mlr+1}, v{mlr+1}")
        code = L[:]; del L[:]; L.extend(sv)
        for c_ in code: E(c_)
    def gatef(E, g):
        E(f"v_mul_f32 v{mlr+1}, v{mlr+1}, v{g}")
        for w in range(4): E(f"v_mul_f32 v{F+w}, v{F+w}, v{mlr+1}")
    A(f"s_cmp_lg_u32 s{sPh}, 0")
    A("s_cbranch_scc1 L_epi")
    A(f"s_mov_b32 s{sK}, s{sKB}")
    A(f"s_mov_b32 s{sK+1}, s{sKB+1}")
    A(f"s_mov_b32 s{sV}, s{sKB+2}")
    A(f"s_mov_b32 s{sV+1}, s{sKB+3}")
    accaddr()
    fact(M_)
    ga = a
    for k in range(4):
        M_(f"v_lshlrev_b32 v{ga+2*k}, 16, v{gx+k}")
        M_(f"v_and_b32 v{ga+2*k+1}, 0xffff0000, v{gx+k}")
        M_(f"v_lshlrev_b32 v{ga+8+2*k}, 16, v{gx+4+k}")
        M_(f"v_and_b32 v{ga+8+2*k+1}, 0xffff0000, v{gx+4+k}")
    for k in range(8): M_(f"v_mul_f32 v{ga+k}, v{ga+k}, v{ga+8+k}")
    for k in range(8): M_(f"v_cvt_pk_bf16_f32 v{ga+k}, 0, v{ga+k}")
    for k in range(4): M_(f"v_add_f32 v{ga+k}, v{ga+k}, v{ga+4+k}")
    M_(f"v_add_f32 v{ga}, v{ga}, v{ga+2}")
    M_(f"v_add_f32 v{ga+1}, v{ga+1}, v{ga+3}")
    M_(f"v_add_f32 v{ga}, v{ga}, v{ga+1}")
    M_(f"v_add_f32_dpp v{ga}, v{ga}, v{ga} row_ror:4 {DPPM}")
    M_(f"v_add_f32_dpp v{ga}, v{ga}, v{ga} row_ror:8 {DPPM}")
    sv = L[:]; del L[:]; allred("v_add_f32", ga, ga + 1); code = L[:]; del L[:]; L.extend(sv)
    for c_ in code: M_(c_)
    M_(f"v_cvt_pk_bf16_f32 v{ga}, 0, v{ga}")
    M_(f"v_mul_f32 v{ga}, {LOG2E | 0x80000000:#x}, v{ga}")
    M_(f"v_exp_f32 v{ga}, v{ga}")
    M_(f"v_add_f32 v{ga}, 1.0, v{ga}")
    M_(f"v_rcp_f32 v{ga}, v{ga}")
    M_(f"v_cvt_pk_bf16_f32 v{gA}, 0, v{ga}")
    M_(f"v_sub_f32 v{gB}, 1.0, v{gA}")
    M_(f"v_cvt_pk_bf16_f32 v{gB}, 0, v{gB}")
    gatef(M_, gA)
    M_(f"s_lshr_b32 s8, s{sJ}, 3")
    M_(f"s_bfe_u32 s9, s{sJ}, 0x10002")
    M_(f"s_and_b32 s10, s{sJ}, 3")
    M_(f"s_lshl_b32 s12, s{sHkv}, 2")
    M_("s_add_u32 s12, s12, s8")
    M_("s_lshl_b32 s12, s12, 2")
    M_(f"s_add_u32 s12, s12, s{sWave}")
    M_("s_lshl_b32 s12, s12, 3")
    M_("s_add_u32 s12, s12, s9")
    M_("s_lshl_b32 s12, s12, 4")
    M_("s_add_u32 s12, s12, s10")
    M_("s_lshl_b32 s12, s12, 8")
    M_(f"v_and_b32 v{aWO}, 0xff, v{v.lin}")
    M_(f"v_lshl_add_u32 v{aWO}, v{t+6}, 10, v{aWO}")
    M_(f"v_add_u32 v{aWO}, s12, v{aWO}")
    M_(f"s_lshl_b32 s13, s{sWave}, 10")
    M_(f"v_add_u32 v{aLO}, s13, v{v.lin}")
    M_(f"s_lshl_b32 s12, s{sHkv}, 16")
    M_(f"s_add_u32 s12, s12, {WS_O:#x}")
    M_(f"s_lshl_b32 s13, s{sWave}, 13")
    M_("s_add_u32 s13, s13, s12")
    M_(f"s_lshr_b32 s14, s{sWave}, 1")
    M_("s_lshl_b32 s14, s14, 28")
    M_("s_add_u32 s13, s13, s14")
    M_(f"s_and_b32 s14, s{sJ}, 1")
    M_("s_lshl_b32 s14, s14, 10")
    M_("s_add_u32 s13, s13, s14")
    M_(f"s_lshr_b32 s14, s{sJ}, 1")
    M_("s_lshl_b32 s14, s14, 4")
    M_("s_add_u32 s13, s13, s14")
    M_(f"v_lshl_add_u32 v{aSO}, v{t+5}, 14, s13")
    M_(f"v_lshl_add_u32 v{aSO}, v{t+6}, 11, v{aSO}")
    M_(f"v_lshl_add_u32 v{aSO}, v{t+7}, 8, v{aSO}")
    M_(f"s_lshr_b32 s11, s{sJ}, 2")
    M_("s_lshl_b32 s13, s11, 2")
    M_(f"s_add_u32 s13, s13, s{sWave}")
    M_("s_lshl_b32 s13, s13, 11")
    M_("s_add_u32 s13, s13, s12")
    M_(f"v_add_u32 v{aPO}, s13, v{v.lin}")
    M_(f"v_add_u32 v{v.aML}, 0x4000, v{v.aML}")
    M_("s_lshl_b32 s13, s10, 3")
    M_(f"s_add_u32 s13, s13, s{sHkv}")
    M_("s_lshl_b32 s13, s13, 3")
    M_("s_add_u32 s13, s13, s11")
    M_("s_lshl_b32 s13, s13, 10")
    M_(f"s_add_u32 s16, s13, {WS_P2:#x}")
    M_("s_mov_b32 s17, 0x80000")
    M_(f"s_lshl_b32 s13, s{sJ}, 16")
    M_(f"s_lshl_b32 s14, s{sHkv}, 7")
    M_("s_add_u32 s13, s13, s14")
    M_(f"s_add_u32 s13, s13, {WS_P2:#x}")
    M_(f"v_and_b32 v{aPC}, 0x70, v{v.lin}")
    M_(f"v_lshl_add_u32 v{aPC}, v{t+1}, 10, v{aPC}")
    M_(f"v_add_u32 v{aPC}, s13, v{aPC}")
    M_("s_and_b32 s13, s2, 1")
    M_("s_lshl_b32 s13, s13, 10")
    M_("s_lshr_b32 s14, s2, 1")
    M_("s_lshl_b32 s14, s14, 6")
    M_("s_add_u32 s14, s14, s13")
    M_(f"v_and_b32 v{aOUT}, 7, v0")
    M_(f"v_lshl_add_u32 v{aOUT}, v{t+6}, 3, v{aOUT}")
    M_(f"v_lshl_add_u32 v{aOUT}, v{aOUT}, 1, s14")
    M_(f"v_or_b32 v{a}, v{v.mask0}, v{v.mask1}")
    M_(f"v_mov_b32 v{a+1}, 0x0c0c0c0c")
    M_("s_mov_b32 s12, 0x01000100")
    M_("s_mov_b32 s13, 0x03020302")
    M_(f"v_bfi_b32 v{a+2}, v{a}, s12, v{a+1}")
    M_(f"v_bfi_b32 v{a+3}, v{a}, s13, v{a+1}")
    M_(f"v_bfe_u32 v{a}, v0, 1, 2")
    for d in range(4):
        M_(f"v_cmp_eq_u32 vcc, {d}, v{a}")
        M_(f"v_cndmask_b32 v{sb+d}, v{a+1}, v{a+2}, vcc")
        M_(f"v_cndmask_b32 v{sb+4+d}, v{a+1}, v{a+3}, vcc")
    for k in range(1, 8): M_(f"s_mov_b32 s{8+k}, {8192*k:#x}")
    per = -(-len(misc) // 8)
    for k in range(8):
        A(f"s_waitcnt vmcnt({(wvk or whi)[k]})")
        issue(k, "K", k)
        if k < P:
            procV(128 + k - P, (k - P) & 7, end=True)
            if k == P - 2:
                for r in range(4): A(f"v_mov_b32 v{v.q+r}, v{v.qB+r}")
                A(f"v_mov_b32 v{v.m}, 0xff800000")
                A(f"v_mov_b32 v{v.l}, 0")
                A(f"v_subrev_u32 v{v.ta}, {512*15}, v{v.ta}")
        else:
            procK(k - P, k - P)
            if k == P: accout()
        drain(per)
    assert not misc
    if stamps and tst == 4: A(f"s_memrealtime s[{sStamp+8}:{sStamp+9}]")
    A(f"s_mov_b32 s{sPh}, 1")
    enter(1)
    A("s_branch L_kloop")
    A("L_epi:")
    if cut in (1, 4):
        A(f"s_mov_b32 s{sWO+2}, 0")
        A(f"s_mov_b32 s{sWQ+2}, 0")
    A(f"s_cmp_lg_u32 s{sFast}, 0")
    A("s_cbranch_scc0 L_sta_slow")
    A(f"buffer_store_dwordx4 {vr(oA,4)}, v{aSO}, {sr(sWS)}, 0 offen")
    A("L_sta_back:")
    def oald(fl):
        A(f"buffer_load_dwordx4 {vr(gx,4)}, v{aPO}, {sr(sWS)}, 0 offen {fl}")
        A(f"buffer_load_dwordx4 {vr(gx+4,4)}, v{aPO}, {sr(sWS)}, 0 offen offset:1024 {fl}")
    def oprep(base, frag, E):
        for r in range(4): E(f"v_add_f32 v{base+r}, v{base+r}, v{base+4+r}")
        for pm in ("quad_perm:[1,0,3,2]", "quad_perm:[2,3,0,1]", "row_half_mirror"):
            for r in range(4): E(f"v_add_f32_dpp v{base+r}, v{base+r}, v{base+r} {pm} {DPPM}")
        E(f"v_cvt_pk_bf16_f32 v{base}, v{base}, v{base+1}")
        E(f"v_cvt_pk_bf16_f32 v{base+1}, v{base+2}, v{base+3}")
        for r in range(4):
            for d in range(4): E(f"v_perm_b32 v{frag+4*r+d}, v{base+(r>>1)}, v{base+(r>>1)}, v{sb+4*(r&1)+d}")
    accaddr()
    fact(M_)
    gatef(M_, gB)
    def wold(k):
        so = "0" if k & 3 == 0 else f"s{8 + (k & 3)}"
        A(f"buffer_load_dwordx4 {vr(wor+4*k,4)}, v{aWO}, {sr(sWO if k < 4 else sWQ)}, {so} offen {woflags}")
    nwo = 0
    for k in range(woburst): wold(nwo); nwo += 1
    per = -(-len(misc) // (P - 2))
    nx = 1
    for k in range(P):
        A(f"s_waitcnt vmcnt({(P - 1 - k) + nwo + nx})")
        if nwo < 8 and k >= wodelay: wold(nwo); nwo += 1
        if k == pollak:
            afterA = 8 - nwo
            A(f"s_cmp_lg_u32 s{sFast}, 0")
            A("s_cbranch_scc0 L_lda_slow")
            oald("nt")
            A("L_lda_back:")
            nx += 2
        procV(128 + k - P, (k - P) & 7, end=True)
        drain(per)
    assert not misc
    while nwo < 8: wold(nwo); nwo += 1
    accout()
    stamp(5)
    A(f"s_cmp_ge_u32 s{sWave}, 2")
    A("s_waitcnt lgkmcnt(0)")
    A("s_barrier")
    if cut in (1, 2): A("s_branch L_fin")
    stamp(1, True)
    A("s_cbranch_scc1 L_bsel")
    oo = a
    def stageA(br, dst):
        for w in range(4): A(f"ds_read_b128 {vr(oo+4*w,4)}, v{aLO} offset:{L_O+8192*br+2048*w}")
        A(f"s_cmp_lg_u32 s{sFast}, 0")
        for w in range(4):
            A(f"s_waitcnt lgkmcnt({0 if stamps else 3-w})")
            for r in range(4):
                if w == 0: A(f"v_mul_f32 v{oo+r}, v{oo+r}, v{F}")
                else: A(f"v_fmac_f32 v{oo+r}, v{oo+4*w+r}, v{F+w}")
        for r in range(4): A(f"v_and_or_b32 v{dst+r}, v{oo+r}, v{c00}, s{sTag+r}")
    stageA(1, oo)
    A("s_cbranch_scc0 L_oslow")
    A(f"buffer_store_dwordx4 {vr(oo,4)}, v{aSO}, {sr(sWS)}, s17 offen")
    pa = a + 16
    bb = a + 24
    def bpoll(fl):
        A(f"buffer_load_dwordx4 {vr(pa,4)}, v{aPO}, {sr(sWS)}, s17 offen {fl}")
        A(f"buffer_load_dwordx4 {vr(pa+4,4)}, v{aPO}, {sr(sWS)}, s17 offen offset:1024 {fl}")
    A("L_bfirst:")
    stamp(6)
    bpoll("nt")
    A("L_bmfa:")
    A(f"s_waitcnt vmcnt({min(afterA, 4) + 2})")
    A("L_oachk:")
    strip(gx, True)
    strip(gx + 4, False)
    check("L_oaretry")
    oprep(gx, bA, A)
    for r in range(4):
        c = "0" if r == 0 else vr(v.D, 4)
        A(f"v_mfma_f32_16x16x32_bf16 {vr(v.D,4)}, {vr(wor+4*r,4)}, {vr(bA+4*r,4)}, {c}")
    if tst == 2:
        A("s_waitcnt vmcnt(2)")
        stamp(2, 2)
        A("s_waitcnt vmcnt(0)")
        stamp(3, 2)
    A("L_bchk:")
    A("s_waitcnt vmcnt(1)")
    strip(pa, True)
    A("s_waitcnt vmcnt(0)")
    strip(pa + 4, False)
    check("L_bretry")
    A("s_mov_b64 exec, -1")
    stamp(7)
    code = []
    oprep(pa, bb, code.append)
    for c_ in code[:-12]: A(c_)
    for r in range(4):
        for c_ in code[len(code) - 12 + 4 * r: len(code) - 8 + 4 * r]: A(c_)
        A(f"v_mfma_f32_16x16x32_bf16 {vr(v.D,4)}, {vr(wor+16+4*r,4)}, {vr(bb+4*r,4)}, {vr(v.D,4)}")
    A(f"s_cmp_lg_u32 s{sWave}, 0")
    A(f"ds_write_b128 v{aLP}, {vr(v.D,4)} offset:{L_P}")
    stamp(4, True)
    A("s_waitcnt lgkmcnt(0)")
    A("s_barrier")
    A("s_cbranch_scc1 L_fin")
    for w in range(1, 4): A(f"ds_read_b128 {vr(a+4*w,4)}, v{v.lin} offset:{L_P+1024*w}")
    A("s_cmp_ge_u32 s2, 32")
    A("s_waitcnt lgkmcnt(0)")
    for r in range(4): A(f"v_add_f32 v{a+4+r}, v{a+4+r}, v{v.D+r}")
    for r in range(4): A(f"v_add_f32 v{a+8+r}, v{a+8+r}, v{a+12+r}")
    for r in range(4): A(f"v_add_f32 v{a+4+r}, v{a+4+r}, v{a+8+r}")
    for r in range(4): A(f"v_and_or_b32 v{a+4+r}, v{a+4+r}, v{c00}, s{sTag+r}")
    A(f"buffer_store_dwordx4 {vr(a+4,4)}, v{v.lin}, {sr(sWS)}, s16 offen sc1")
    stamp(2, True)
    A("s_cbranch_scc1 L_fin")
    pc = a + 8
    A("s_mov_b32 s4, 0x00ff00ff")
    A("s_mov_b32 s5, 0x00ff00ff")
    A("s_waitcnt vmcnt(0)")
    stamp(3, True)
    A("L_cpoll:")
    for k in range(8): A(f"buffer_load_dwordx4 {vr(pc+4*k,4)}, v{aPC}, {sr(sWS)}, {'s%d' % (8+k) if k else 0} offen sc1")
    for k in range(8):
        A(f"s_waitcnt vmcnt({7-k})")
        strip(pc + 4 * k, k == 0)
    check("L_cretry")
    A("s_mov_b64 exec, -1")
    stamp(8)
    for n_ in (16, 8, 4):
        for r in range(n_): A(f"v_add_f32 v{pc+r}, v{pc+r}, v{pc+n_+r}")
    for r in range(2): A(f"v_permlane32_swap_b32 v{pc+r}, v{pc+2+r}")
    for r in range(2): A(f"v_add_f32 v{pc+r}, v{pc+r}, v{pc+2+r}")
    A(f"v_permlane16_swap_b32 v{pc}, v{pc+1}")
    A(f"v_add_f32 v{pc}, v{pc}, v{pc+1}")
    A(f"v_add_f32_dpp v{pc}, v{pc}, v{pc} row_ror:8 {DPPM}")
    A(f"v_cvt_pk_bf16_f32 v{pc}, v{pc}, v{pc}")
    A("s_mov_b64 exec, s[4:5]")
    A(f"buffer_store_short v{pc}, v{aOUT}, {sr(sOUT)}, 0 offen")
    A("s_cmp_lg_u32 s2, 0")
    A("s_cbranch_scc1 L_fin")
    A("s_mov_b64 exec, 1")
    A(f"v_mov_b32 v{pc+1}, s{sE}")
    A(f"buffer_store_dword v{pc+1}, v0, {sr(sWS)}, 0 offen")
    if probe:
        A("L_probe:")
        A("s_memrealtime s[98:99]")
        A("s_waitcnt lgkmcnt(0)")
        A("s_sub_u32 s98, s98, s100")
        A(f"s_cmp_lt_u32 s98, {probe}")
        A("s_cbranch_scc1 L_probe")
    A("L_fin:")
    if stamps:
        A("s_mov_b64 exec, 1")
        stamp(9)
        A("s_waitcnt lgkmcnt(0)")
        A(f"s_lshl_b32 s{sTmp}, s2, 2")
        A(f"s_add_u32 s{sTmp}, s{sTmp}, s{sWave}")
        A(f"s_lshl_b32 s{sTmp}, s{sTmp}, 6")
        A(f"s_add_u32 s{sTmp}, s{sTmp}, {WS_ST}")
        A("s_getreg_b32 s4, hwreg(HW_REG_XCC_ID)")
        A("s_getreg_b32 s5, hwreg(HW_REG_HW_ID)")
        b = v.buf
        for k in range(10): A(f"v_mov_b32 v{b+k}, s{sStamp+2*k}")
        A(f"v_mov_b32 v{b+10}, s4")
        A(f"v_mov_b32 v{b+11}, s5")
        A(f"v_mov_b32 v{b+12}, s{sSpin}")
        A(f"v_mov_b32 v{b+13}, s{sHi}")
        A(f"v_mov_b32 v{b+14}, s{sFast}")
        for k in range(4): A(f"buffer_store_dwordx4 {vr(b+4*k,4)}, v0, {sr(sWS)}, s{sTmp} offen offset:{16*k}")
    A("L_end:")
    A("s_endpgm")
    def spinchk():
        A(f"s_sub_u32 s{sSpin}, s{sSpin}, 1")
        A("s_cbranch_scc1 L_end")
    A("L_bretry:")
    spinchk()
    A("s_mov_b64 exec, vcc")
    A(f"s_cmp_lg_u32 s{sFast}, 0")
    A("s_cbranch_scc0 L_bretry_slow")
    bpoll("nt")
    A("s_branch L_bchk")
    A("L_cretry:")
    spinchk()
    A("s_mov_b64 exec, vcc")
    A("s_branch L_cpoll")
    A("L_bsel:")
    A(f"s_cmp_lg_u32 s{sFast}, 0")
    A("s_cbranch_scc1 L_bfirst")
    A("s_branch L_bslow")
    A("L_oslow:")
    A(f"buffer_store_dwordx4 {vr(oo,4)}, v{aSO}, {sr(sWS)}, s17 offen sc1")
    A("L_bslow:")
    stamp(6)
    bpoll("sc1")
    A("s_branch L_bmfa")
    A("L_bretry_slow:")
    bpoll("sc1")
    A("s_branch L_bchk")
    def mlld(fl): A(f"buffer_load_dwordx4 {vr(mlr,4)}, v{v.aML}, {sr(sWS)}, 0 offen {fl}")
    A("L_side:")
    A("s_lshr_b32 s5, s2, 7")
    A("s_lshl_b32 s5, s5, 10")
    A(f"buffer_load_dwordx4 {vr(gx,4)}, v{v.lin}, {sr(sX)}, s5 offen")
    A(f"buffer_load_dwordx4 {vr(gx+4,4)}, v{v.lin}, {sr(sGW)}, 0 offen")
    A(f"s_cmp_lg_u32 s{sFast}, 0")
    A("s_cbranch_scc1 L_side1")
    mlld("sc1")
    A("s_branch L_sidebody")
    A("L_side1:")
    mlld("nt")
    A("L_sidebody:")
    assert itml < 15
    body("V", procV, waits, 5)
    A("s_branch L_vloop")
    for nm, ld, back in (("ml", mlld, "L_mlchk"), ("oa", oald, "L_oachk")):
        A(f"L_{nm}retry:")
        spinchk()
        A(f"s_cmp_lg_u32 s{sFast}, 0")
        A(f"s_cbranch_scc0 L_{nm}retry_slow")
        ld("nt")
        A("s_waitcnt vmcnt(0)")
        A(f"s_branch {back}")
        A(f"L_{nm}retry_slow:")
        ld("sc1")
        A("s_waitcnt vmcnt(0)")
        A(f"s_branch {back}")
    A("L_pubml:")
    mlread()
    A(f"v_lshl_add_u32 v{v.y0}, v{t+6}, 2, v{t+7}")
    A(f"s_and_b32 s4, s{sJ}, 15")
    A(f"v_cmp_eq_u32 vcc, s4, v{v.y0}")
    A("s_waitcnt lgkmcnt(0)")
    A(f"v_max3_f32 v{v.y0}, v{v.D}, v{v.D+2}, v{v.D+4}")
    A(f"v_max_f32 v{v.y0}, v{v.y0}, v{v.D+6}")
    A(f"v_mul_f32 v{v.y1}, s{sL2E}, v{v.y0}")
    for w in range(4): A(f"v_fma_f32 v{v.D+2*w}, v{v.D+2*w}, s{sL2E}, -v{v.y1}")
    for w in range(4): A(f"v_exp_f32 v{v.D+2*w}, v{v.D+2*w}")
    A(f"v_mul_f32 v{v.D+1}, v{v.D}, v{v.D+1}")
    for w in range(1, 4): A(f"v_fmac_f32 v{v.D+1}, v{v.D+2*w}, v{v.D+2*w+1}")
    A(f"v_or_b32 v{v.D}, s{sTag}, v{v.y0}")
    A(f"v_and_or_b32 v{v.D+1}, v{v.D+1}, v{c00}, s{sTag+1}")
    A(f"v_mov_b32 v{v.D+2}, s{sTag+2}")
    A(f"v_mov_b32 v{v.D+3}, s{sTag+3}")
    A("s_mov_b64 exec, vcc")
    A(f"s_cmp_lg_u32 s{sFast}, 0")
    A("s_cbranch_scc0 L_pubml_slow")
    A(f"buffer_store_dwordx4 {vr(v.D,4)}, v{v.aML}, {sr(sWS)}, 0 offen")
    A("s_mov_b64 exec, -1")
    A("s_branch L_vent")
    A("L_pubml_slow:")
    A(f"buffer_store_dwordx4 {vr(v.D,4)}, v{v.aML}, {sr(sWS)}, 0 offen sc1")
    A("s_mov_b64 exec, -1")
    A("s_branch L_vent")
    A("L_puba:")
    stageA(0, oA)
    A("s_branch L_vent")
    A("L_sta_slow:")
    A(f"buffer_store_dwordx4 {vr(oA,4)}, v{aSO}, {sr(sWS)}, 0 offen sc1")
    A("s_branch L_sta_back")
    A("L_lda_slow:")
    oald("sc1")
    A("s_branch L_lda_back")
    A("L_qretry:")
    spinchk(); qpoll()
    A("s_waitcnt vmcnt(0)")
    A("s_branch L_qchk")
    code_ = pad(L)
    ref = open(os.path.join(os.path.dirname(os.path.abspath(__file__)), "header.txt")).read().rstrip("\n").split("\n")
    out = ref + [f"; @launch grid=(256,1,1) block=(256,1,1) lds={L_SZ}",
                 '.amdgcn_target "amdgcn-amd-amdhsa--gfx950"', ".text", f".globl {KNAME}", ".p2align 8",
                 f".type {KNAME},@function"] + code_
    acc = (NV + 3) // 4 * 4
    out += ['.section .rodata,"a"', ".p2align 6", f".amdhsa_kernel {KNAME}",
            f"  .amdhsa_next_free_vgpr {NV}", "  .amdhsa_next_free_sgpr 102", f"  .amdhsa_accum_offset {acc}",
            "  .amdhsa_group_segment_fixed_size 0", "  .amdhsa_kernarg_size 112", "  .amdhsa_user_sgpr_count 2",
            "  .amdhsa_user_sgpr_kernarg_segment_ptr 1", "  .amdhsa_system_sgpr_workgroup_id_x 1",
            "  .amdhsa_float_denorm_mode_32 3", ".end_amdhsa_kernel"]
    return "\n".join(out) + "\n"

if __name__ == "__main__":
    kw = eval("dict(" + (sys.argv[1] if len(sys.argv) > 1 else "") + ")")
    sys.stdout.write(gen(**kw))
```

```python
import sys, os
sys.path.insert(0, os.path.dirname(os.path.abspath(__file__)))
from hz import pad

KNAME = "gated_mix__gqa_block_cached__gqa_block_cached__decode_kernel"
LOG2E = 0x3fb8aa3b
SCALE = 0x3db504f3

WS_Q  = 0x10000
WS_ML = 0x30000
WS_B  = 0x40000
WS_O  = 0x100000
WS_P2 = 0x80000
WS_ST = 0x300000
WS_SZ = 0x400000
L_T, L_O, L_M, L_P, L_SZ = 0, 32768, 49152, 53248, 57344
DPPM = "row_mask:0xf bank_mask:0xf"
PAT1 = "k0 s0 k1 s1 w0 g0 s3 s2 g1 n3 w1 n1 n2 n0 k2"

def gen(NPL=40, waits=(4,)*8, whi=(5,)*8, wepi=None, R=3, XB=2, XT=2, P0=5, pollak=-1, tlb=3, cpf=1, wosw=1, XQ=0, wcat=(5,)*8, warm=96, hbar=3, qloc=1, bafter=1, aside=1, run64=2, aearly=0, thr=(24, 30), wpro=None, wkv=None, pat=PAT1,
        wqflags="nt", woflags="nt", kvflags="nt", tchflags="nt", fast=1, touch=0, woburst=0, itml=14, wqfirst=0, wodelay=0, wvk=None,
        stamps=False, tst=False, spin=1 << 17, cut=0, probe=0, amp=None, ampat=5):
    P = max(max(waits), max(whi)) + 1
    if wepi is None: wepi = (P - 1,) * 8
    assert run64 == 2 and NPL % 8 == 0 and P + XT <= 8 and 5 <= P <= 6
    pos = {n: 8 + i for i, n in enumerate(pat.split())}
    assert len(pos) == 15
    def dep(c, val, nb): return sum(((val >> i) & 1) << pos[f"{c}{i}"] for i in range(nb))
    L = []
    def A(s): L.append(s)
    class V: pass
    v = V(); nv = [0]
    def valloc(name, n=1, al=1):
        nv[0] = (nv[0] + al - 1) // al * al
        setattr(v, name, nv[0]); nv[0] += n
    for nm in ("tid", "koff", "voff", "lin", "mask0", "mask1"): valloc(nm)
    valloc("T", 2, 2); valloc("TV", 2, 2)
    valloc("m", 2, 2); v.l = v.m + 1
    for nm in ("ta", "mL", "e0", "e1", "e2", "y0", "y1", "z", "p", "pd", "bw", "br", "bv", "bl", "aML", "c00"): valloc(nm)
    valloc("q", 4, 2); valloc("qB", 4, 2); valloc("acc", 8, 2); valloc("D", 8, 2)
    valloc("W", 18, 2)
    valloc("t", 12, 2)
    valloc("buf", 4 * NPL, 4)
    NV = nv[0]
    assert NV <= 256, NV
    def vr(a, n): return f"v[{a}:{a+n-1}]"
    wqr = v.buf + 4 * NPL - 32
    xr = wqr - 16
    wor = v.buf + 32
    gx = v.buf + 64
    sb = v.buf + 72
    mlr = v.buf + 80
    (aWO, aLO, aSO, aPO, aPC, aOUT, gA, gB, F) = range(v.buf + 84, v.buf + 93)
    aLP = aLO
    c00 = v.c00
    bA = v.buf + 96
    oA = v.buf + 112
    aBP = v.buf + 116
    a = v.buf + 118
    assert a + 42 <= NV
    sK, sV, sWQ, sWO, sWS, sX, sGW, sOUT = 20, 24, 28, 32, 36, 40, 44, 48
    sWave, sOff, sCnt, sE, sL2E, sTmp, sTmp2, sSpin, sPh = 3, 52, 53, 54, 55, 56, 57, 58, 59
    sQ1, sQ2, sQ3 = 60, 62, 64
    sHi, sFast = 66, 67
    sTag, sTag16, sNo, sN, sThr = 68, 72, 73, 74, 75
    sKB = 76
    sHkv, sJ = 6, 7
    sQT = 96
    sStamp = 80
    def sr(a, n=4): return f"s[{a}:{a+n-1}]"
    def stamp3(k):
        if stamps and tst == 3: A(f"s_memrealtime s[{sStamp+2*k}:{sStamp+2*k+1}]")
    def stamp4(ka, kb):
        if stamps and tst == 4:
            n_ = len(L)
            A(f"s_cmp_lg_u32 s{sPh}, 0")
            A(f"s_cbranch_scc1 L_st{n_}")
            A(f"s_memrealtime s[{sStamp+2*ka}:{sStamp+2*ka+1}]")
            A(f"L_st{n_}:")
            A(f"s_memrealtime s[{sStamp+2*kb}:{sStamp+2*kb+1}]")
    def stamp(k, tail=False):
        if amp and k == ampat and not tail: A("s_memrealtime s[82:83]")
        if tst in (3, 4) and k in (6, 7, 8): return
        if stamps and (k not in (1, 2, 3, 4) or tail == tst or (tst == 2 and tail is True and k in (1, 4))): A(f"s_memrealtime s[{sStamp+2*k}:{sStamp+2*k+1}]")
    def sdep(dst, src, c, nb, first, tmp):
        groups = {}
        for i in range(nb): groups.setdefault(pos[f"{c}{i}"] - i, []).append(i)
        for sh, bits in groups.items():
            d = dst if first else tmp
            A(f"s_and_b32 s{d}, s{src}, {sum(1 << i for i in bits)}")
            A(f"s_lshl_b32 s{d}, s{d}, {sh}")
            if not first: A(f"s_add_u32 s{dst}, s{dst}, s{tmp}")
            first = False

    A(f"{KNAME}:")
    A("s_cmp_ge_u32 s2, 256")
    A("s_cbranch_scc1 L_end")
    stamp(0)
    if probe: A("s_memrealtime s[100:101]")
    if amp: A("s_memrealtime s[80:81]")
    A("s_lshr_b32 s4, s2, 7")
    A("s_mul_i32 s4, s4, 40")
    A("s_add_u32 s4, s0, s4")
    A("s_addc_u32 s5, s1, 0")
    A("s_load_dwordx2 s[12:13], s[4:5], 24")
    A(f"s_load_dwordx2 {sr(sX,2)}, s[0:1], 0")
    A("s_load_dwordx4 s[8:11], s[0:1], 8           ; K_A, V_A")
    A(f"s_load_dwordx2 {sr(sWS,2)}, s[0:1], 104")
    A(f"s_load_dwordx4 {sr(sKB)}, s[0:1], 48       ; K_B, V_B")
    A("s_load_dwordx4 s[16:19], s[0:1], 80")
    A(f"s_load_dwordx2 {sr(sWO,2)}, s[0:1], 32     ; wo_A")
    A("s_load_dwordx2 s[14:15], s[0:1], 72         ; wo_B")
    t = v.t
    A(f"v_lshrrev_b32 v{t}, 6, v0")
    A(f"v_and_b32 v0, 63, v0")
    A(f"v_readfirstlane_b32 s{sWave}, v{t}")
    if warm:
        A(f"v_cmp_gt_u32 vcc, 4, v{t}")
        A("s_mov_b64 exec, vcc                         ; wave 4 only warms the instruction cache: EXEC = 0, hops pad to pad")
        A("@PAD")
    A(f"v_lshrrev_b32 v{t+1}, 3, v0")
    A(f"v_lshl_add_u32 v{t+2}, v{t}, 3, v{t+1}")
    A(f"v_and_b32 v{t+3}, 7, v0")
    A(f"v_lshlrev_b32 v{t+3}, 3, v{t+3}")
    A(f"v_lshl_add_u32 v{t+3}, v{t+2}, 17, v{t+3}")
    A(f"v_bfe_u32 v{t+4}, v0, 2, 1")
    A(f"v_lshlrev_b32 v{t+8}, 10, v{t+4}")
    A(f"v_lshl_add_u32 v{t+8}, v{t+2}, 5, v{t+8}")
    A(f"s_and_b32 s{sHkv}, s2, 7")
    A(f"s_lshr_b32 s{sJ}, s2, 3")
    A(f"s_and_b32 s{sTmp}, s{sJ}, 15")
    A(f"s_lshl_b32 s{sTmp}, s{sTmp}, 6")
    A(f"s_lshl_b32 s{sTmp2}, s{sHkv}, 10")
    A(f"s_add_u32 s{sTmp}, s{sTmp}, s{sTmp2}")
    A(f"s_mov_b32 s{sX+2}, 2048")
    A(f"s_mov_b32 s{sX+3}, 0x20000")
    A(f"s_mov_b32 s{sWQ+2}, 0x400000")
    A(f"s_mov_b32 s{sWQ+3}, 0x20000")
    A("s_waitcnt lgkmcnt(0)")
    stamp3(1)
    A(f"s_mov_b32 s{sWQ}, s12")
    A(f"s_mov_b32 s{sWQ+1}, s13")
    for tt in range(16):
        if tt == wqfirst:
            A(f"buffer_load_dwordx4 {vr(xr,4)}, v{t+8}, {sr(sX)}, 0 offen")
            A(f"buffer_load_dwordx4 {vr(xr+4,4)}, v{t+8}, {sr(sX)}, 0 offen offset:16")
        A(f"buffer_load_dwordx2 {vr(wqr+2*tt,2)}, v{t+3}, {sr(sWQ)}, s{sTmp} offen {wqflags}")
        if tt < 15: A(f"s_add_u32 s{sTmp}, s{sTmp}, 8192")
    assert wqfirst <= 2
    A(f"s_mov_b32 s{sWQ}, s14                      ; this descriptor now serves wo_B")
    A(f"s_mov_b32 s{sWQ+1}, s15")
    A(f"s_load_dword s{sE}, {sr(sWS,2)}, 0")
    A(f"s_lshr_b32 s{sTmp2}, s2, 7")
    A(f"s_lshl_b32 s{sTmp2}, s{sTmp2}, 3")
    A(f"s_add_u32 s{sTmp2}, s{sTmp2}, s{sHkv}")
    A(f"s_lshl_b32 s{sTmp2}, s{sTmp2}, 23")
    A(f"s_add_u32 s{sK}, s8, s{sTmp2}")
    A(f"s_addc_u32 s{sK+1}, s9, 0")
    A(f"s_mov_b32 s{sK+2}, 0x800000")
    A(f"s_mov_b32 s{sK+3}, 0x20000")
    sdep(sTmp, sWave, "w", 2, True, 4)
    sdep(sTmp, sJ, "s", 4, False, 4)
    A(f"v_bfe_u32 v{t+5}, v0, 2, 2")
    A(f"v_lshrrev_b32 v{t+6}, 4, v0")
    A(f"v_and_b32 v{t+7}, 3, v0")
    A(f"v_lshlrev_b32 v{v.lin}, 4, v0")
    A(f"v_lshl_add_u32 v{v.koff}, v{t+6}, 6, s{sTmp}")
    A(f"v_lshl_add_u32 v{v.koff}, v{t+7}, 4, v{v.koff}")
    A(f"v_lshl_add_u32 v{v.koff}, v{t+4}, {pos['g0']}, v{v.koff}")
    A(f"v_bfe_u32 v{t+8}, v0, 3, 1")
    A(f"v_lshl_add_u32 v{v.koff}, v{t+8}, {pos['g1']}, v{v.koff}")
    last = [None]
    def issue(i, kind, sl, loop=False):
        kd = dep("k", i & 7, 3)
        c = kd if loop else kd + dep("n", i >> 3, 4)
        imm, hi = c & 0xfff, c & ~0xfff
        if loop:
            if hi == 0: so = f"s{sNo}"
            else:
                if last[0] != ("l", hi): A(f"s_add_u32 s{sOff}, s{sNo}, {hi:#x}")
                last[0] = ("l", hi); so = f"s{sOff}"
        else:
            if hi == 0: so = "0"
            else:
                if last[0] != ("c", hi): A(f"s_mov_b32 s{sOff}, {hi:#x}")
                last[0] = ("c", hi); so = f"s{sOff}"
        if i & 7 == 7: last[0] = None
        off = f" offset:{imm}" if imm else ""
        r = v.buf + 4 * sl
        if kind == "K": A(f"buffer_load_dwordx4 {vr(r,4)}, v{v.koff}, {sr(sK)}, {so} offen{off} {kvflags}")
        else:           A(f"buffer_load_dwordx4 {vr(r,4)}, v{v.voff}, {sr(sV)}, {so} offen{off} {kvflags}")
    for k in range(P0): issue(k, "K", k)
    A(f"v_and_b32 v{v.voff}, 0xff, v{v.lin}")
    A(f"v_add_u32 v{v.voff}, s{sTmp}, v{v.voff}")
    A(f"v_bfe_u32 v{t+8}, v0, 4, 1")
    A(f"v_lshl_add_u32 v{v.voff}, v{t+8}, {pos['g0']}, v{v.voff}")
    A(f"v_lshrrev_b32 v{t+8}, 5, v0")
    A(f"v_lshl_add_u32 v{v.voff}, v{t+8}, {pos['g1']}, v{v.voff}")
    A(f"s_add_u32 s{sV}, s10, s{sTmp2}")
    A(f"s_addc_u32 s{sV+1}, s11, 0")
    A(f"s_add_u32 s{sKB}, s{sKB}, s{sTmp2}")
    A(f"s_addc_u32 s{sKB+1}, s{sKB+1}, 0")
    A(f"s_add_u32 s{sKB+2}, s{sKB+2}, s{sTmp2}")
    A(f"s_addc_u32 s{sKB+3}, s{sKB+3}, 0")
    sel = xr + 8; bq = xr + 12
    for s_, b0, n_ in ((sV, None, 0x800000), (sWS, None, WS_SZ), (sWO, None, 0x400000), (sGW, 16, 1024), (sOUT, 18, 2048)):
        if b0 is not None:
            A(f"s_mov_b32 s{s_}, s{b0}")
            A(f"s_mov_b32 s{s_+1}, s{b0+1}")
        A(f"s_mov_b32 s{s_+2}, {n_:#x}")
        A(f"s_mov_b32 s{s_+3}, 0x20000")
    A(f"s_mov_b32 s{sL2E}, {LOG2E:#x}")
    A(f"s_mov_b32 s{sPh}, 0")
    for k, s in ((1, sQ1), (2, sQ2), (3, sQ3)):
        A(f"s_mov_b32 s{s}, {0x11111111 << k:#x}")
        A(f"s_mov_b32 s{s+1}, {0x11111111 << k:#x}")
    A(f"v_mov_b32 v{t+8}, 0xffff")
    A(f"v_mov_b32 v{t+9}, 0xffff0000")
    A(f"v_cndmask_b32 v{v.mask1}, 0, v{t+8}, {sr(sQ2,2)}")
    A(f"v_cndmask_b32 v{v.mask1}, v{v.mask1}, v{t+9}, {sr(sQ3,2)}")
    A(f"v_cndmask_b32 v{v.mask0}, v{t+8}, v{t+9}, {sr(sQ1,2)}")
    A(f"v_cmp_gt_u32 vcc, 2, v{t+7}")
    A(f"v_cndmask_b32 v{v.mask0}, 0, v{v.mask0}, vcc")
    A(f"s_mov_b32 s{sTmp}, 0x01000100")
    A(f"s_mov_b32 s{sTmp2}, 0x03020302")
    A(f"v_mov_b32 v{t+8}, 0x0c0c0c0c")
    A(f"v_bfi_b32 v{sel}, v{v.mask0}, s{sTmp}, v{t+8}")
    A(f"v_bfi_b32 v{sel+1}, v{v.mask1}, s{sTmp}, v{t+8}")
    A(f"v_bfi_b32 v{sel+2}, v{v.mask0}, s{sTmp2}, v{t+8}")
    A(f"v_bfi_b32 v{sel+3}, v{v.mask1}, s{sTmp2}, v{t+8}")
    for k in range(18):
        if k % 4 < 2: A(f"v_mov_b32 v{v.W+k}, 0")
    A(f"v_mov_b32 v{v.m}, 0xff800000")
    A(f"v_mov_b32 v{v.l}, 0")
    A(f"v_mov_b32 v{v.e1}, 0x7ffffff0")
    A(f"v_lshlrev_b32 v{v.ta}, 3, v0")
    A(f"v_lshl_add_u32 v{v.ta}, v{t}, 13, v{v.ta}")
    A(f"v_lshl_add_u32 v{t+8}, v{t}, 10, v{v.lin}")
    A("s_getreg_b32 s8, hwreg(HW_REG_XCC_ID)")
    A("s_and_b32 s8, s8, 7")
    i = P0
    for m in range(8):
        A(f"s_waitcnt vmcnt({14 - 2*m + i})")
        if m == 0: stamp3(2)
        if m == 7: stamp3(3)
        if m >= 8 - (max(waits) + 1) + P0:
            issue(i, "K", i); i += 1
        for k in range(4):
            A(f"v_perm_b32 v{bq+k}, v{xr+m}, v{xr+m}, v{sel+k}")
        c = "0" if m == 0 else vr(v.D, 4)
        A(f"v_mfma_f32_16x16x32_bf16 {vr(v.D,4)}, {vr(wqr+4*m,4)}, {vr(bq,4)}, {c}")
    stamp(1)
    for k in range(XB):
        issue(i, "K", i); i += 1
    A(f"ds_write_b128 v{t+8}, {vr(v.D,4)} offset:{L_P}")
    A(f"v_bfe_u32 v{t+9}, v0, 4, 1")
    A(f"v_lshlrev_b32 v{t+9}, 8, v{t+9}")
    A(f"v_lshrrev_b32 v{t+10}, 5, v0")
    A(f"v_lshl_add_u32 v{t+9}, v{t+10}, 6, v{t+9}")
    A(f"v_lshl_add_u32 v{t+9}, v{t+7}, 4, v{t+9}")
    A(f"v_lshl_add_u32 v{t+9}, v{t+5}, 2, v{t+9}")
    A("s_waitcnt lgkmcnt(0)")
    A("s_barrier")
    A(f"s_add_u32 s{sE}, s{sE}, 1")
    A(f"s_cmp_lg_u32 s{sWave}, 0")
    A("s_cbranch_scc1 L_nopub")
    qr = wqr
    for w in range(4):
        for r1 in range(2):
            A(f"ds_read_b32 v{qr+2*w+r1}, v{t+9} offset:{L_P + 1024*w + 640*r1}")
    A(f"s_lshr_b32 s{sTmp}, s2, 7")
    A(f"s_lshl_b32 s{sTmp}, s{sTmp}, 3")
    A(f"s_add_u32 s{sTmp}, s{sTmp}, s{sHkv}")
    A(f"s_lshl_b32 s{sTmp}, s{sTmp}, 12")
    A(f"s_and_b32 s{sTmp2}, s{sJ}, 15")
    A(f"s_lshl_b32 s{sTmp2}, s{sTmp2}, 7")
    A(f"s_add_u32 s{sTmp}, s{sTmp}, s{sTmp2}")
    A(f"s_add_u32 s{sTmp}, s{sTmp}, {WS_Q:#x}")
    A(f"v_and_b32 v{t+11}, 31, v0")
    A(f"v_lshlrev_b32 v{t+11}, 2, v{t+11}")
    A(f"v_lshl_add_u32 v{t+11}, v{t+10}, 11, v{t+11}")
    A(f"v_mad_u32_u24 v{t+10}, v{t+7}, 37, s{sE}")
    A(f"v_and_b32 v{t+10}, 0x1fff, v{t+10}")
    A(f"v_lshl_or_b32 v{t+10}, s8, 13, v{t+10}")
    A("s_waitcnt lgkmcnt(0)")
    for k in range(4): A(f"v_add_f32 v{qr+k}, v{qr+k}, v{qr+4+k}")
    A(f"v_add_f32 v{qr}, v{qr}, v{qr+2}")
    A(f"v_add_f32 v{qr+1}, v{qr+1}, v{qr+3}")
    A(f"v_add_f32 v{qr}, v{qr}, v{qr+1}")
    A(f"v_cvt_pk_bf16_f32 v{qr}, 0, v{qr}")
    A(f"v_or_b32 v{v.e0}, v{t+10}, v{qr}")
    A(f"v_add_u32 v{v.e1}, s{sTmp}, v{t+11}")
    A(f"buffer_store_dword v{v.e0}, v{v.e1}, {sr(sWS)}, 0 offen{'' if qloc else ' sc1'}")
    A("L_nopub:")
    stamp(2)
    misc = []
    M_ = misc.append
    for k in range(4):
        M_(f"s_add_u32 s{sTag+k}, s{sE}, {37*k}")
        M_(f"s_and_b32 s{sQT+k}, s{sTag+k}, 0x1fff")
        M_(f"s_and_b32 s{sTag+k}, s{sTag+k}, 0xff")
        M_(f"s_lshl_b32 s4, s8, 13")
        M_(f"s_or_b32 s{sQT+k}, s{sQT+k}, s4")
    M_(f"v_lshl_add_u32 v{t+9}, v{t+5}, 2, v{t+6}")
    M_(f"v_lshlrev_b32 v{t+9}, 7, v{t+9}")
    M_(f"v_lshl_add_u32 v{t+9}, v{t+7}, 5, v{t+9}")
    M_(f"s_lshl_b32 s{sTmp}, s{sHkv}, 1")
    M_(f"s_lshr_b32 s{sTmp2}, s2, 7")
    M_(f"s_add_u32 s{sTmp}, s{sTmp}, s{sTmp2}")
    M_(f"s_lshl_b32 s{sTmp}, s{sTmp}, 11")
    M_(f"s_add_u32 s{sTmp}, s{sTmp}, {WS_Q:#x}")
    M_(f"s_add_u32 s{sTmp2}, s{sTmp}, 32768")
    M_(f"s_mov_b32 s{sSpin}, {spin}")
    if tlb:
        M_(f"s_lshl_b32 s9, s{sWave}, 21")
        M_(f"s_load_dword s10, {sr(sV,2)}, s9")
        M_(f"s_load_dword s11, {sr(sKB,2)}, s9")
        M_(f"s_load_dword s12, {sr(sKB+2,2)}, s9")
        M_(f"s_lshl_b32 s13, s{sHkv}, 19")
        M_(f"s_load_dword s14, {sr(sWO,2)}, s13")
        M_(f"s_load_dword s15, {sr(sWQ,2)}, s13")
        if tlb > 1: M_(f"s_load_dword s16, {sr(sK,2)}, s9")
        if tlb > 2:
            M_(f"s_lshl_b32 s100, s{sJ}, 5")
            M_(f"s_load_dword s100, {sr(sGW,2)}, s100")
        if tlb > 3: M_(f"s_load_dword s101, {sr(sOUT,2)}, 0")
    if cpf:
        M_("s_getpc_b64 s[18:19]")
        M_("L_pc:")
        M_(f"s_sub_u32 s18, s18, L_pc-{KNAME}")
        M_("s_subb_u32 s19, s19, 0")
        M_(f"s_lshl_b32 s17, s{sJ}, 2")
        M_(f"s_add_u32 s17, s17, s{sWave}")
        M_("s_lshl_b32 s17, s17, 7")
        M_(f"s_min_u32 s17, s17, L_last-{KNAME}")
        M_("s_load_dword s17, s[18:19], s17")
    t8 = tuple(thr) * (8 // len(thr))
    M_("s_lshl_b32 s4, s8, 2")
    M_(f"s_lshr_b32 s4, {sum((x - 18) << (4*k) for k, x in enumerate(t8)):#x}, s4")
    M_("s_and_b32 s4, s4, 15")
    M_(f"s_add_u32 s{sThr}, s4, 18")
    M_("s_lshl_b32 s4, s8, 12")
    M_(f"s_add_u32 s4, s4, {WS_B:#x}")
    M_(f"v_lshl_add_u32 v{v.br}, v0, 2, s4")
    M_(f"v_mov_b32 v{v.bl}, 0x7ffffff0")
    M_(f"v_cmp_gt_u32 vcc, 32, v0")
    M_(f"s_lshl_b32 s5, s{sWave}, 6")
    M_(f"s_add_u32 s5, s5, s{sJ}")
    M_(f"v_cndmask_b32 v{v.br}, v{v.bl}, v{v.br}, vcc")
    M_(f"v_cmp_eq_u32 vcc, s5, v0")
    M_(f"s_lshl_b32 s{sN}, s{sE}, 12")
    M_(f"s_mov_b32 s{sHi}, 0")
    M_(f"v_cndmask_b32 v{v.bw}, v{v.bl}, v{v.br}, vcc")
    M_(f"v_add_u32 v{v.bl}, s{sN}, v{v.bl}")
    M_(f"s_lshl_b32 s4, s{sHkv}, 11")
    M_(f"s_lshr_b32 s5, s2, 7")
    M_("s_lshl_b32 s5, s5, 10")
    M_("s_add_u32 s4, s4, s5")
    M_(f"s_add_u32 s4, s4, {WS_ML:#x}")
    M_(f"v_add_u32 v{v.aML}, s4, v{v.lin}")
    M_(f"v_mov_b32 v{c00}, 0xffffff00")
    def drain(n):
        for _ in range(n):
            if misc:
                s_ = misc.pop(0); A(s_)
                if s_.startswith(("s_bitcmp", "s_cmp", "s_getpc", "s_sub_u32 s18")): A(misc.pop(0))
    qp = v.acc
    assert v.D == v.acc + 8 and v.qB == v.q + 4
    def qpoll(fl="sc1"):
        A(f"buffer_load_dwordx4 {vr(qp,4)}, v{t+9}, {sr(sWS)}, s{sTmp} offen {fl}")
        A(f"buffer_load_dwordx4 {vr(qp+4,4)}, v{t+9}, {sr(sWS)}, s{sTmp} offen offset:16 {fl}")
        A(f"buffer_load_dwordx4 {vr(qp+8,4)}, v{t+9}, {sr(sWS)}, s{sTmp2} offen {fl}")
        A(f"buffer_load_dwordx4 {vr(qp+12,4)}, v{t+9}, {sr(sWS)}, s{sTmp2} offen offset:16 {fl}")
    ipoll = NPL - P - XQ
    while i < NPL - XQ:
        n = (wpro or waits)[i & 7]
        if i > ipoll and i - n - 1 < ipoll: n += 4
        A(f"s_waitcnt vmcnt({n})")
        if i == ipoll:
            assert not misc
            qpoll("nt" if qloc else "sc1")
        if i in (16, 24, 32): stamp3({16: 4, 24: 6, 32: 7}[i])
        issue(i, "K", i); i += 1
        drain(6)
    A(f"s_waitcnt vmcnt({P})")
    def qacc():
        A(f"v_xor_b32 v{t+8}, s{sQT}, v{qp}")
        for k in range(1, 16): A(f"v_bitop3_b32 v{t+8}, v{qp+k}, s{sQT+(k&3)}, v{t+8} bitop3:0xbe")
    qacc()
    A(f"v_and_b32 v{t+10}, 0xffff, v{t+8}")
    A(f"v_cmp_ne_u32 vcc, 0, v{t+10}")
    A("s_cbranch_vccnz L_qslow")
    A("L_qok:")
    A(f"s_mov_b32 s4, 0x07060302")
    for k in range(8): A(f"v_perm_b32 v{v.q+k}, v{qp+2*k+1}, v{qp+2*k}, s4")
    A("s_cmp_eq_u64 vcc, 0")
    A(f"s_cselect_b32 s{sFast}, {fast}, 0")
    while i < NPL:
        A(f"s_waitcnt vmcnt({(wcat or waits)[i & 7]})")
        issue(i, "K", i); i += 1
    stamp(3)
    def red(u, T):
        D = v.D + 4 * (u & 1)
        A(f"v_add_f32_dpp v{v.y0}, v{D+(u^1)}, v{D+u} quad_perm:[1,0,3,2] {DPPM}")
        A(f"v_add_f32_dpp v{v.y1}, v{D+(u^3)}, v{D+(u^2)} quad_perm:[1,0,3,2] {DPPM}")
        dst = T if u == 0 else v.z
        A(f"v_add_f32_dpp v{dst}, v{v.y1}, v{v.y0} quad_perm:[2,3,0,1] {DPPM}")
        if u: A(f"v_cndmask_b32 v{T}, v{T}, v{v.z}, {sr((sQ1,sQ2,sQ3)[u-1],2)}")
    def finT(par):
        T = v.T + par
        red(3, T)
        A(f"v_cvt_pk_bf16_f32 v{T}, 0, v{T}")
        A(f"v_mul_f32 v{T}, {SCALE:#x}, v{T}")
        A(f"v_cvt_pk_bf16_f32 v{T}, 0, v{T}")
        if par:
            A(f"v_mul_f32 v{v.e2}, s{sL2E}, v{v.m}")
            A(f"v_max3_f32 v{v.m}, v{v.T}, v{v.T+1}, v{v.m}")
            A(f"ds_write_b64 v{v.ta}, {vr(v.T,2)}")
            A(f"v_mul_f32 v{v.p}, s{sL2E}, v{v.m}")
            A(f"v_add_u32 v{v.ta}, 512, v{v.ta}")
            A(f"v_fma_f32 v{v.e0}, v{v.T}, s{sL2E}, -v{v.p}")
            A(f"v_fma_f32 v{v.e1}, v{v.T+1}, s{sL2E}, -v{v.p}")
            A(f"v_sub_f32 v{v.e2}, v{v.e2}, v{v.p}")
    def lacc():
        A(f"v_exp_f32 v{v.e0}, v{v.e0}")
        A(f"v_exp_f32 v{v.e2}, v{v.e2}")
        A(f"v_exp_f32 v{v.e1}, v{v.e1}")
        A(f"v_fma_f32 v{v.l}, v{v.l}, v{v.e2}, v{v.e0}")
        A(f"v_add_f32 v{v.l}, v{v.l}, v{v.e1}")
    def procK(j, sl):
        u = j & 3
        A(f"v_mfma_f32_16x16x32_bf16 {vr(v.D+4*(u&1),4)}, {vr(v.buf+4*sl,4)}, {vr(v.q,4)}, 0")
        if u >= 1: red(u - 1, v.T + ((j >> 2) & 1))
        elif j > 0: finT(((j >> 2) - 1) & 1)
        if j & 7 == 1 and j > 1: lacc()
    def ands(u):
        w = v.W + 2 + 4 * u
        A(f"v_and_b32_dpp v{w}, v{v.pd}, v{v.mask0} quad_perm:[{u},{u},{u},{u}] {DPPM}")
        A(f"v_and_b32_dpp v{w+1}, v{v.pd}, v{v.mask1} quad_perm:[{u},{u},{u},{u}] {DPPM}")
    def prep(par, nextread=True):
        if par == 0: A("s_waitcnt lgkmcnt(0)")
        A(f"v_fma_f32 v{v.p}, v{v.TV+par}, s{sL2E}, -v{v.mL}")
        A(f"v_exp_f32 v{v.p}, v{v.p}")
        if par == 1 and nextread:
            A(f"v_add_u32 v{v.ta}, 512, v{v.ta}")
            A(f"ds_read_b64 {vr(v.TV,2)}, v{v.ta}")
        A(f"v_cvt_pk_bf16_f32 v{v.pd}, v{v.p}, v{v.p}")
        ands(0)
    def procV(j, sl, end=False):
        u = j & 3
        w = v.W + 4 * u
        A(f"v_mfma_f32_16x16x32_bf16 {vr(v.acc,4)}, {vr(v.buf+4*sl,4)}, {vr(w+2,4)}, {vr(v.acc,4)}")
        A(f"v_mfma_f32_16x16x32_bf16 {vr(v.acc+4,4)}, {vr(v.buf+4*sl,4)}, {vr(w,4)}, {vr(v.acc+4,4)}")
        if end and j >= 124: return
        if u < 3: ands(u + 1)
        else:
            prep(((j >> 2) + 1) & 1, nextread=not (end and j == 123))
            if end and j == 123:
                ands(1); ands(2); ands(3)
    def allred(op, r, tmp):
        A(f"{op}_dpp v{r}, v{r}, v{r} quad_perm:[1,0,3,2] {DPPM}")
        A(f"{op}_dpp v{r}, v{r}, v{r} quad_perm:[2,3,0,1] {DPPM}")
        A(f"v_mov_b32 v{tmp}, v{r}")
        A(f"v_permlane16_swap_b32 v{tmp}, v{r}")
        A(f"{op} v{r}, v{r}, v{tmp}")
        A(f"v_mov_b32 v{tmp}, v{r}")
        A(f"v_permlane32_swap_b32 v{tmp}, v{r}")
        A(f"{op} v{r}, v{r}, v{tmp}")
    def accaddr():
        A(f"s_lshl_b32 s4, s{sPh}, 2")
        A(f"s_add_u32 s4, s4, s{sWave}")
        A(f"s_lshl_b32 s5, s4, 11")
        A(f"v_add_u32 v{t+9}, s5, v{v.lin}")
    def accout():
        A(f"ds_write_b128 v{t+9}, {vr(v.acc,4)} offset:{L_O}")
        A(f"ds_write_b128 v{t+9}, {vr(v.acc+4,4)} offset:{L_O+1024}")
    def strip(base, first, emit=None):
        E = emit or A
        for r in range(4): E(f"v_xor_b32 v{base+r}, s{sTag+r}, v{base+r}")
        if first: E(f"v_or_b32 v{t+11}, v{base}, v{base+1}")
        else: E(f"v_or3_b32 v{t+11}, v{base}, v{base+1}, v{t+11}")
        E(f"v_or3_b32 v{t+11}, v{base+2}, v{base+3}, v{t+11}")
    def check(label):
        A(f"v_and_b32 v{t+11}, 0xff, v{t+11}")
        A(f"v_cmp_ne_u32 vcc, 0, v{t+11}")
        A(f"s_cbranch_vccnz {label}")
    slotof = {k: k for k in range(NPL)}
    def newslot(i): return (i - NPL) if i < NPL + 16 else (i & 7)
    j = 0
    landed = i - P
    while not (j == i - P and i % 8 == 0 and j >= NPL + 16):
        s = newslot(i)
        own = max(k for k in slotof if slotof[k] == s)
        while j <= own:
            assert j < landed, "catch-up needs data not yet landed"
            procK(j, slotof[j]); j += 1
        A(f"s_waitcnt vmcnt({(wcat or waits)[i&7]})")
        landed = max(landed, i - (wcat or waits)[i & 7])
        slotof[i] = s
        issue(i, "K", s); i += 1
        n = 0
        while n < R and j < i - P:
            assert j < landed
            procK(j, slotof[j]); j += 1; n += 1
    assert i < 128
    def enter(n):
        A(f"s_mov_b32 s{sCnt}, {n}")
        A(f"s_mov_b32 s{sNo}, {dep('n', n, 4):#x}")
    enter(i // 8)
    stamp(4); stamp3(8)
    def body(kind, proc, ww, extra):
        for k in range(8):
            n = ww[k] + (extra if k <= ww[k] else 0)
            issue(k, kind, k, loop=True)
            L.insert(len(L) - 1, f"s_waitcnt vmcnt({n})")
            if k == 7:
                A(f"s_add_u32 s{sCnt}, s{sCnt}, 1")
                sdep(sNo, sCnt, "n", 4, True, 4)
            proc(16 + k - P, (k - P) & 7)
    def loop(name, kind, proc):
        A(".p2align 6")
        A(f"L_{name}loop:")
        A(f"v_subrev_u32 v{v.bv}, s{sN}, v{v.bl}")
        A(f"s_add_u32 s{sN}, s{sN}, 1")
        A(f"v_cmp_gt_u32 vcc, 64, v{v.bv}")
        A(f"v_mov_b32 v{v.bv}, s{sN}")
        A(f"s_bcnt1_i32_b64 s4, vcc")
        A(f"buffer_store_dword v{v.bv}, v{v.bw}, {sr(sWS)}, 0 offen")
        A(f"buffer_load_dword v{v.bl}, v{v.br}, {sr(sWS)}, 0 offen nt")
        if kind == "V":
            A(f"s_cmp_eq_u32 s{sCnt}, {itml}")
            A("s_cbranch_scc1 L_side")
        A(f"s_cmp_ge_u32 s4, s{sThr}")
        A(f"s_cbranch_scc1 L_{name}hi")
        for ver, ww in (("lo", waits), ("hi", whi)):
            if ver == "hi":
                A(f"L_{name}hi:")
                if stamps: A(f"s_add_u32 s{sHi}, s{sHi}, 1")
            body(kind, proc, ww, 2)
            A(f"s_cmp_lg_u32 s{sCnt}, 16")
            A(f"s_cbranch_scc1 L_{name}loop")
            if ver == "lo": A(f"s_branch L_{name}done")
        A(f"L_{name}done:")
    loop("k", "K", procK)
    stamp4(1, 6)
    wk = wkv or waits
    for k in range(P):
        A(f"s_waitcnt vmcnt({wk[k]})")
        issue(k, "V", k)
        procK(128 + k - P, (k - P) & 7)
        if k == 0:
            A(f"v_subrev_u32 v{t+10}, {512*15}, v{v.ta}")
            A(f"ds_read_b64 {vr(v.TV,2)}, v{t+10}")
        if k == 1:
            for r in range(8): A(f"v_mov_b32 v{v.acc+r}, 0")
    for k in range(P, P + XT): issue(k, "V", k)
    finT(1)
    A(f"v_mov_b32 v{v.z}, v{v.p}")
    A(f"v_mov_b32 v{v.ta}, v{t+10}")
    allred("v_max_f32", v.m, v.y0)
    A(f"v_mul_f32 v{v.mL}, s{sL2E}, v{v.m}")
    prep(0)
    sv = L[:]; del L[:]
    lacc()
    A(f"v_sub_f32 v{v.z}, v{v.z}, v{v.mL}")
    A(f"v_exp_f32 v{v.z}, v{v.z}")
    A(f"s_lshl_b32 s5, s{sPh}, 11")
    A(f"s_lshl_b32 s4, s{sWave}, 9")
    A(f"v_mul_f32 v{v.l}, v{v.l}, v{v.z}")
    A(f"s_add_u32 s4, s4, s5")
    A(f"v_lshl_add_u32 v{t+9}, v0, 3, s4")
    allred("v_add_f32", v.l, v.y0)
    A(f"ds_write_b64 v{t+9}, {vr(v.m,2)} offset:{L_M}")
    A(f"v_lshl_add_u32 v{t+10}, v0, 3, s5")
    misc.extend(L); del L[:]; L.extend(sv)
    issued = P + XT
    for k in range(P, 8):
        if k == 7: drain(99)
        if k >= issued:
            A(f"s_waitcnt vmcnt({wk[k]})")
            issue(k, "V", k); issued += 1
        else:
            A(f"s_waitcnt vmcnt({issued - 1 - (k - P)})")
        procV(k - P, k - P)
    A("s_waitcnt lgkmcnt(0)")
    A("s_barrier")
    A(f"s_cmp_eq_u32 s{sWave}, 3")
    A("s_cbranch_scc1 L_pubml")
    A(f"s_lshl_b32 s4, s{sPh}, 1")
    A(f"s_cmp_lt_u32 s{sWave}, s4")
    A("s_cbranch_scc1 L_puba")
    A("L_vent:")
    enter(1)
    stamp4(2, 7)
    loop("v", "V", procV)
    stamp4(3, 8)
    A("L_mlchk:")
    strip(mlr, True)
    check("L_mlretry")
    def mlread():
        A(f"ds_read2st64_b64 {vr(v.D,4)}, v{t+10} offset0:{L_M//512} offset1:{L_M//512+1}")
        A(f"ds_read2st64_b64 {vr(v.D+4,4)}, v{t+10} offset0:{L_M//512+2} offset1:{L_M//512+3}")
    mlread()
    def fact(E):
        sv = L[:]; del L[:]
        A(f"v_mov_b32 v{mlr+2}, v{mlr}")
        allred("v_max_f32", mlr + 2, mlr + 3)
        A(f"v_mul_f32 v{mlr+2}, s{sL2E}, v{mlr+2}")
        A(f"v_fma_f32 v{mlr}, v{mlr}, s{sL2E}, -v{mlr+2}")
        A("s_waitcnt lgkmcnt(0)")
        for w in range(4): A(f"v_fma_f32 v{F+w}, v{v.D+2*w}, s{sL2E}, -v{mlr+2}")
        A(f"v_exp_f32 v{mlr}, v{mlr}")
        for w in range(4): A(f"v_exp_f32 v{F+w}, v{F+w}")
        A(f"v_mul_f32 v{mlr+1}, v{mlr+1}, v{mlr}")
        allred("v_add_f32", mlr + 1, mlr + 3)
        A(f"v_rcp_f32 v{mlr+1}, v{mlr+1}")
        code = L[:]; del L[:]; L.extend(sv)
        for c_ in code: E(c_)
    def gatef(E, g):
        E(f"v_mul_f32 v{mlr+1}, v{mlr+1}, v{g}")
        for w in range(4): E(f"v_mul_f32 v{F+w}, v{F+w}, v{mlr+1}")
    A(f"s_cmp_lg_u32 s{sPh}, 0")
    A("s_cbranch_scc1 L_epi")
    A(f"s_mov_b32 s{sK}, s{sKB}")
    A(f"s_mov_b32 s{sK+1}, s{sKB+1}")
    A(f"s_mov_b32 s{sV}, s{sKB+2}")
    A(f"s_mov_b32 s{sV+1}, s{sKB+3}")
    accaddr()
    fact(M_)
    ga = a
    for k in range(4):
        M_(f"v_lshlrev_b32 v{ga+2*k}, 16, v{gx+k}")
        M_(f"v_and_b32 v{ga+2*k+1}, 0xffff0000, v{gx+k}")
        M_(f"v_lshlrev_b32 v{ga+8+2*k}, 16, v{gx+4+k}")
        M_(f"v_and_b32 v{ga+8+2*k+1}, 0xffff0000, v{gx+4+k}")
    for k in range(8): M_(f"v_mul_f32 v{ga+k}, v{ga+k}, v{ga+8+k}")
    for k in range(8): M_(f"v_cvt_pk_bf16_f32 v{ga+k}, 0, v{ga+k}")
    for k in range(4): M_(f"v_add_f32 v{ga+k}, v{ga+k}, v{ga+4+k}")
    M_(f"v_add_f32 v{ga}, v{ga}, v{ga+2}")
    M_(f"v_add_f32 v{ga+1}, v{ga+1}, v{ga+3}")
    M_(f"v_add_f32 v{ga}, v{ga}, v{ga+1}")
    M_(f"v_add_f32_dpp v{ga}, v{ga}, v{ga} row_ror:4 {DPPM}")
    M_(f"v_add_f32_dpp v{ga}, v{ga}, v{ga} row_ror:8 {DPPM}")
    sv = L[:]; del L[:]; allred("v_add_f32", ga, ga + 1); code = L[:]; del L[:]; L.extend(sv)
    for c_ in code: M_(c_)
    M_(f"v_cvt_pk_bf16_f32 v{ga}, 0, v{ga}")
    M_(f"v_mul_f32 v{ga}, {LOG2E | 0x80000000:#x}, v{ga}")
    M_(f"v_exp_f32 v{ga}, v{ga}")
    M_(f"v_add_f32 v{ga}, 1.0, v{ga}")
    M_(f"v_rcp_f32 v{ga}, v{ga}")
    M_(f"v_cvt_pk_bf16_f32 v{gA}, 0, v{ga}")
    M_(f"v_sub_f32 v{gB}, 1.0, v{gA}")
    M_(f"v_cvt_pk_bf16_f32 v{gB}, 0, v{gB}")
    gatef(M_, gA)
    M_(f"s_lshr_b32 s8, s{sJ}, 3")
    M_(f"s_bfe_u32 s9, s{sJ}, 0x10002")
    M_(f"s_and_b32 s10, s{sJ}, 3")
    M_(f"s_lshl_b32 s12, s{sHkv}, 2")
    M_("s_add_u32 s12, s12, s8")
    M_("s_lshl_b32 s12, s12, 2")
    M_(f"s_add_u32 s12, s12, s{sWave}")
    M_("s_lshl_b32 s12, s12, 3")
    M_("s_add_u32 s12, s12, s9")
    M_("s_lshl_b32 s12, s12, 4")
    M_("s_add_u32 s12, s12, s10")
    M_("s_lshl_b32 s12, s12, 8")
    M_(f"v_and_b32 v{aWO}, 0xff, v{v.lin}")
    M_(f"v_lshl_add_u32 v{aWO}, v{t+6}, 10, v{aWO}")
    M_(f"v_add_u32 v{aWO}, s12, v{aWO}")
    M_(f"s_lshl_b32 s13, s{sWave}, 10")
    M_(f"v_add_u32 v{aLO}, s13, v{v.lin}")
    M_(f"s_lshl_b32 s12, s{sHkv}, 16")
    M_(f"s_add_u32 s12, s12, {WS_O:#x}")
    M_(f"s_lshl_b32 s13, s{sWave}, 13")
    M_("s_add_u32 s13, s13, s12")
    M_(f"s_lshr_b32 s14, s{sWave}, 1")
    M_("s_lshl_b32 s14, s14, 28")
    M_("s_add_u32 s13, s13, s14")
    M_(f"s_and_b32 s14, s{sJ}, 1")
    M_("s_lshl_b32 s14, s14, 10")
    M_("s_add_u32 s13, s13, s14")
    M_(f"s_lshr_b32 s14, s{sJ}, 1")
    M_(f"s_lshl_b32 s14, s14, {6 if run64 else 4}")
    M_("s_add_u32 s13, s13, s14")
    M_(f"v_lshl_add_u32 v{aSO}, v{t+5}, 14, s13")
    M_(f"v_lshl_add_u32 v{aSO}, v{t+6}, 11, v{aSO}")
    M_(f"v_lshl_add_u32 v{aSO}, v{t+7}, {4 if run64 else 8}, v{aSO}")
    M_(f"s_lshr_b32 s11, s{sJ}, 2")
    M_("s_lshl_b32 s13, s11, 2")
    M_(f"s_add_u32 s13, s13, s{sWave}")
    M_("s_lshl_b32 s13, s13, 11")
    M_("s_add_u32 s13, s13, s12")
    if run64 == 2:
        M_(f"v_bfe_u32 v{aBP}, v0, 3, 1")
        M_(f"v_lshl_add_u32 v{aBP}, v{aBP}, 5, v{t+6}")
        M_(f"v_lshlrev_b32 v{aBP}, 2, v{aBP}")
        if wosw:
            M_(f"s_and_b32 s14, s{sWave}, 2")
            M_("s_lshl_b32 s14, s14, 5")
            M_(f"v_xor_b32 v{aBP}, s14, v{aBP}")
        M_(f"v_xor_b32 v{aBP+1}, 64, v{aBP}")
    if run64 == 1:
        M_(f"v_and_b32 v{aPO}, 15, v0")
        M_(f"v_lshl_add_u32 v{aPO}, v{aPO}, 6, s13")
        M_(f"v_lshl_add_u32 v{aPO}, v{t+6}, 4, v{aPO}")
    else:
        M_(f"v_add_u32 v{aPO}, s13, v{v.lin}")
    M_(f"v_add_u32 v{v.aML}, 0x4000, v{v.aML}")
    M_("s_lshl_b32 s13, s10, 3")
    M_(f"s_add_u32 s13, s13, s{sHkv}")
    M_("s_lshl_b32 s13, s13, 3")
    M_("s_add_u32 s13, s13, s11")
    M_("s_lshl_b32 s13, s13, 10")
    M_(f"s_add_u32 s16, s13, {WS_P2:#x}")
    M_("s_mov_b32 s17, 0x80000")
    M_(f"s_lshl_b32 s13, s{sJ}, 16")
    M_(f"s_lshl_b32 s14, s{sHkv}, 7")
    M_("s_add_u32 s13, s13, s14")
    M_(f"s_add_u32 s13, s13, {WS_P2:#x}")
    M_(f"v_and_b32 v{aPC}, 0x70, v{v.lin}")
    M_(f"v_lshl_add_u32 v{aPC}, v{t+1}, 10, v{aPC}")
    M_(f"v_add_u32 v{aPC}, s13, v{aPC}")
    M_("s_and_b32 s13, s2, 1")
    M_("s_lshl_b32 s13, s13, 10")
    M_("s_lshr_b32 s14, s2, 1")
    M_("s_lshl_b32 s14, s14, 6")
    M_("s_add_u32 s14, s14, s13")
    M_(f"v_and_b32 v{aOUT}, 7, v0")
    M_(f"v_lshl_add_u32 v{aOUT}, v{t+6}, 3, v{aOUT}")
    M_(f"v_lshl_add_u32 v{aOUT}, v{aOUT}, 1, s14")
    M_(f"v_or_b32 v{a}, v{v.mask0}, v{v.mask1}")
    M_(f"v_mov_b32 v{a+1}, 0x0c0c0c0c")
    if wosw:
        M_(f"s_bitcmp1_b32 s{sWave}, 0")
        M_("s_cselect_b32 s12, 0x02020202, 0")
        M_("s_xor_b32 s13, s12, 0x03020302")
        M_("s_xor_b32 s12, s12, 0x01000100")
        for k in range(4):
            M_(f"s_xor_b32 s{sKB+k}, s{sWave}, {k}")
            M_(f"s_lshl_b32 s{sKB+k}, s{sKB+k}, 13")
    else:
        M_("s_mov_b32 s12, 0x01000100")
        M_("s_mov_b32 s13, 0x03020302")
        for k in range(4): M_(f"s_mov_b32 s{sKB+k}, {k << 13}")
    M_(f"v_bfi_b32 v{a+2}, v{a}, s12, v{a+1}")
    M_(f"v_bfi_b32 v{a+3}, v{a}, s13, v{a+1}")
    M_(f"v_bfe_u32 v{a}, v0, 1, 2")
    for d in range(4):
        M_(f"v_cmp_eq_u32 vcc, {d}, v{a}")
        M_(f"v_cndmask_b32 v{sb+d}, v{a+1}, v{a+2}, vcc")
        M_(f"v_cndmask_b32 v{sb+4+d}, v{a+1}, v{a+3}, vcc")
    for k in range(1, 8): M_(f"s_mov_b32 s{8+k}, {8192*k:#x}")
    per = -(-len(misc) // 8)
    for k in range(8):
        A(f"s_waitcnt vmcnt({(wvk or whi)[k]})")
        issue(k, "K", k)
        if k < P:
            procV(128 + k - P, (k - P) & 7, end=True)
            if k == P - 2:
                for r in range(4): A(f"v_mov_b32 v{v.q+r}, v{v.qB+r}")
                A(f"v_mov_b32 v{v.m}, 0xff800000")
                A(f"v_mov_b32 v{v.l}, 0")
                A(f"v_subrev_u32 v{v.ta}, {512*15}, v{v.ta}")
        else:
            procK(k - P, k - P)
            if k == P: accout()
        drain(per)
    assert not misc
    if stamps and tst == 4: A(f"s_memrealtime s[{sStamp+8}:{sStamp+9}]")
    A(f"s_mov_b32 s{sPh}, 1")
    enter(1)
    A("s_branch L_kloop")
    A("L_epi:")
    if cut in (1, 4):
        A(f"s_mov_b32 s{sWO+2}, 0")
        A(f"s_mov_b32 s{sWQ+2}, 0")
    def sta():
        A(f"s_cmp_lg_u32 s{sFast}, 0")
        A("s_cbranch_scc0 L_sta_slow")
        A(f"buffer_store_dwordx4 {vr(oA,4)}, v{aSO}, {sr(sWS)}, 0 offen")
        A("L_sta_back:")
    if not aside and not aearly: sta()
    def oald(fl):
        A(f"buffer_load_dwordx4 {vr(gx,4)}, v{aPO}, {sr(sWS)}, 0 offen {fl}")
        A(f"buffer_load_dwordx4 {vr(gx+4,4)}, v{aPO}, {sr(sWS)}, 0 offen offset:1024 {fl}")
    def oprep(base, frag, E):
        for r in range(4): E(f"v_add_f32 v{base+r}, v{base+r}, v{base+4+r}")
        if run64 == 2:
            for r in range(2): E(f"v_permlane16_swap_b32 v{base+r}, v{base+2+r}")
            for r in range(2): E(f"v_add_f32 v{base+r}, v{base+r}, v{base+2+r}")
            for pm in ("row_ror:4", "row_ror:8"):
                for r in range(2): E(f"v_add_f32_dpp v{base+r}, v{base+r}, v{base+r} {pm} {DPPM}")
            E(f"v_cvt_pk_bf16_f32 v{base+2}, v{base}, v{base+1}")
            E(f"ds_bpermute_b32 v{base}, v{aBP}, v{base+2}")
            E(f"ds_bpermute_b32 v{base+1}, v{aBP+1}, v{base+2}")
            E("s_waitcnt lgkmcnt(0)")
        else:
            for pm in ("quad_perm:[1,0,3,2]", "quad_perm:[2,3,0,1]", "row_half_mirror"):
                for r in range(4): E(f"v_add_f32_dpp v{base+r}, v{base+r}, v{base+r} {pm} {DPPM}")
            E(f"v_cvt_pk_bf16_f32 v{base}, v{base}, v{base+1}")
            E(f"v_cvt_pk_bf16_f32 v{base+1}, v{base+2}, v{base+3}")
        for r in range(4):
            for d in range(4): E(f"v_perm_b32 v{frag+4*r+d}, v{base+(r>>1)}, v{base+(r>>1)}, v{sb+4*(r&1)+d}")
    if aearly:
        A("L_oachk:")
        strip(gx, True)
        strip(gx + 4, False)
        check("L_oaretry")
    accaddr()
    fact(M_)
    gatef(M_, gB)
    if aearly: oprep(gx, bA, M_)
    def wold(k):
        so = f"s{sKB + (k & 3)}"
        A(f"buffer_load_dwordx4 {vr(wor+4*k,4)}, v{aWO}, {sr(sWO if k < 4 else sWQ)}, {so} offen {woflags}")
    nwo = 0
    for k in range(woburst): wold(nwo); nwo += 1
    per = -(-len(misc) // (P - 2))
    nx = 0 if (aside or aearly) else 1
    for k in range(-1, P):
        if k >= 0:
            A(f"s_waitcnt vmcnt({(P - 1 - k) + nwo + nx})")
            if nwo < 8 and k >= wodelay: wold(nwo); nwo += 1
        if k == pollak and not aearly:
            afterA = 8 - nwo
            A(f"s_cmp_lg_u32 s{sFast}, 0")
            A("s_cbranch_scc0 L_lda_slow")
            oald("nt")
            A("L_lda_back:")
            nx += 2
        if k < 0: continue
        procV(128 + k - P, (k - P) & 7, end=True)
        drain(per)
    assert not misc
    while nwo < 8: wold(nwo); nwo += 1
    accout()
    stamp(5)
    A(f"s_cmp_ge_u32 s{sWave}, 2")
    A("s_waitcnt lgkmcnt(0)")
    A("s_barrier")
    if cut in (1, 2): A("s_branch L_fin")
    stamp(1, True)
    A("s_cbranch_scc1 L_bfirst" if bafter else "s_cbranch_scc1 L_bsel")
    oo = a
    def stageA(br, dst):
        for w in range(4): A(f"ds_read_b128 {vr(oo+4*w,4)}, v{aLO} offset:{L_O+8192*br+2048*w}")
        A(f"s_cmp_lg_u32 s{sFast}, 0")
        for w in range(4):
            A(f"s_waitcnt lgkmcnt({0 if stamps else 3-w})")
            for r in range(4):
                if w == 0: A(f"v_mul_f32 v{oo+r}, v{oo+r}, v{F}")
                else: A(f"v_fmac_f32 v{oo+r}, v{oo+4*w+r}, v{F+w}")
        for r in range(4): A(f"v_and_or_b32 v{dst+r}, v{oo+r}, v{c00}, s{sTag+r}")
    stageA(1, oo)
    A("s_cbranch_scc0 L_oslow")
    A(f"buffer_store_dwordx4 {vr(oo,4)}, v{aSO}, {sr(sWS)}, s17 offen")
    pa = a + 16
    bb = a + 24
    def bpoll(fl):
        A(f"buffer_load_dwordx4 {vr(pa,4)}, v{aPO}, {sr(sWS)}, s17 offen {fl}")
        A(f"buffer_load_dwordx4 {vr(pa+4,4)}, v{aPO}, {sr(sWS)}, s17 offen offset:1024 {fl}")
    A("L_bfirst:")
    stamp(6)
    if not bafter: bpoll("nt")
    A("L_bmfa:")
    nb = 0 if bafter else 2
    if not aearly:
        A(f"s_waitcnt vmcnt({afterA + nb})")
        A("L_oachk:")
        strip(gx, True)
        strip(gx + 4, False)
        check("L_oaretry")
        oprep(gx, bA, A)
    if bafter:
        A(f"s_cmp_lg_u32 s{sFast}, 0")
        A("s_cbranch_scc0 L_bp_slow")
        bpoll("nt")
        A("L_bp_back:")
    A("s_waitcnt vmcnt(6)")
    for r in range(4):
        c = "0" if r == 0 else vr(v.D, 4)
        A(f"v_mfma_f32_16x16x32_bf16 {vr(v.D,4)}, {vr(wor+4*r,4)}, {vr(bA+4*r,4)}, {c}")
    if tst == 2:
        A("s_waitcnt vmcnt(2)")
        stamp(2, 2)
        A("s_waitcnt vmcnt(0)")
        stamp(3, 2)
    A("L_bchk:")
    A("s_waitcnt vmcnt(1)")
    strip(pa, True)
    A("s_waitcnt vmcnt(0)")
    strip(pa + 4, False)
    check("L_bretry")
    A("s_mov_b64 exec, -1")
    stamp(7)
    code = []
    oprep(pa, bb, code.append)
    for c_ in code[:-12]: A(c_)
    for r in range(4):
        for c_ in code[len(code) - 12 + 4 * r: len(code) - 8 + 4 * r]: A(c_)
        A(f"v_mfma_f32_16x16x32_bf16 {vr(v.D,4)}, {vr(wor+16+4*r,4)}, {vr(bb+4*r,4)}, {vr(v.D,4)}")
    A(f"s_cmp_lg_u32 s{sWave}, 0")
    A(f"ds_write_b128 v{aLP}, {vr(v.D,4)} offset:{L_P}")
    stamp(4, True)
    A("s_waitcnt lgkmcnt(0)")
    A("s_barrier")
    A("s_cbranch_scc1 L_fin")
    for w in range(1, 4): A(f"ds_read_b128 {vr(a+4*w,4)}, v{v.lin} offset:{L_P+1024*w}")
    A("s_cmp_ge_u32 s2, 32")
    A("s_waitcnt lgkmcnt(0)")
    for r in range(4): A(f"v_add_f32 v{a+4+r}, v{a+4+r}, v{v.D+r}")
    for r in range(4): A(f"v_add_f32 v{a+8+r}, v{a+8+r}, v{a+12+r}")
    for r in range(4): A(f"v_add_f32 v{a+4+r}, v{a+4+r}, v{a+8+r}")
    for r in range(4): A(f"v_and_or_b32 v{a+4+r}, v{a+4+r}, v{c00}, s{sTag+r}")
    A(f"buffer_store_dwordx4 {vr(a+4,4)}, v{v.lin}, {sr(sWS)}, s16 offen sc1")
    stamp(2, True)
    A("s_cbranch_scc1 L_fin")
    if amp:
        A("s_cmp_ge_u32 s2, 8")
        A("s_cbranch_scc1 L_noamp")
        A("s_getreg_b32 s84, hwreg(HW_REG_XCC_ID)")
        A("s_and_b32 s84, s84, 7")
        A("s_lshl_b32 s84, s84, 7")
        A("s_add_u32 s84, s84, 0x60000")
        A(f"v_mov_b32 v{v.W}, s80")
        A(f"v_mov_b32 v{v.W+1}, s82")
        A("s_mov_b64 exec, 1")
        A(f"buffer_store_dwordx2 {vr(v.W,2)}, v0, {sr(sWS)}, s84 offen sc1")
        A("s_mov_b64 exec, -1")
        A("L_noamp:")
    pc = a + 8
    A("s_mov_b32 s4, 0x00ff00ff")
    A("s_mov_b32 s5, 0x00ff00ff")
    A("s_waitcnt vmcnt(0)")
    stamp(3, True)
    A("L_cpoll:")
    for k in range(8): A(f"buffer_load_dwordx4 {vr(pc+4*k,4)}, v{aPC}, {sr(sWS)}, {'s%d' % (8+k) if k else 0} offen sc1")
    for k in range(8):
        A(f"s_waitcnt vmcnt({7-k})")
        strip(pc + 4 * k, k == 0)
    check("L_cretry")
    A("s_mov_b64 exec, -1")
    stamp(8)
    for n_ in (16, 8, 4):
        for r in range(n_): A(f"v_add_f32 v{pc+r}, v{pc+r}, v{pc+n_+r}")
    for r in range(2): A(f"v_permlane32_swap_b32 v{pc+r}, v{pc+2+r}")
    for r in range(2): A(f"v_add_f32 v{pc+r}, v{pc+r}, v{pc+2+r}")
    A(f"v_permlane16_swap_b32 v{pc}, v{pc+1}")
    A(f"v_add_f32 v{pc}, v{pc}, v{pc+1}")
    A(f"v_add_f32_dpp v{pc}, v{pc}, v{pc} row_ror:8 {DPPM}")
    A(f"v_cvt_pk_bf16_f32 v{pc}, v{pc}, v{pc}")
    A("s_mov_b64 exec, s[4:5]")
    A(f"buffer_store_short v{pc}, v{aOUT}, {sr(sOUT)}, 0 offen")
    A("s_cmp_lg_u32 s2, 0")
    A("s_cbranch_scc1 L_fin")
    A("s_mov_b64 exec, 1")
    A(f"v_mov_b32 v{pc+1}, s{sE}")
    A(f"buffer_store_dword v{pc+1}, v0, {sr(sWS)}, 0 offen")
    if amp:
        A("s_memrealtime s[90:91]")
        A("L_amp1:")
        A("s_memrealtime s[98:99]")
        A("s_waitcnt lgkmcnt(0)")
        A("s_sub_u32 s98, s98, s80")
        A("s_cmp_lt_u32 s98, 9000")
        A("s_cbranch_scc1 L_amp1")
        A("s_mov_b64 exec, -1")
        A(f"v_lshlrev_b32 v{v.W}, 7, v0")
        A("s_mov_b32 s84, 0x60000")
        A(f"buffer_load_dwordx2 {vr(v.W+2,2)}, v{v.W}, {sr(sWS)}, s84 offen sc1")
        A("s_waitcnt vmcnt(0)")
        ka, xa, kb, xb, off = amp
        if ka == 2: A("s_mov_b32 s86, s90")
        else: A(f"v_readlane_b32 s86, v{v.W+2+ka}, {xa}")
        A(f"v_readlane_b32 s87, v{v.W+2+kb}, {xb}")
        A("s_nop 4")
        A("s_sub_u32 s86, s86, s87")
        A(f"s_sub_u32 s86, s86, {off}")
        A("s_mul_i32 s86, s86, 10")
        A("s_add_u32 s86, s86, 13000")
        A("s_max_i32 s86, s86, 9000")
        A("s_min_i32 s86, s86, 30000")
        A("L_amp2:")
        A("s_memrealtime s[98:99]")
        A("s_waitcnt lgkmcnt(0)")
        A("s_sub_u32 s98, s98, s80")
        A("s_cmp_lt_u32 s98, s86")
        A("s_cbranch_scc1 L_amp2")
    if probe:
        A("L_probe:")
        A("s_memrealtime s[98:99]")
        A("s_waitcnt lgkmcnt(0)")
        A("s_sub_u32 s98, s98, s100")
        A(f"s_cmp_lt_u32 s98, {probe}")
        A("s_cbranch_scc1 L_probe")
    A("L_fin:")
    if stamps:
        A("s_mov_b64 exec, 1")
        stamp(9)
        A("s_waitcnt lgkmcnt(0)")
        A(f"s_lshl_b32 s{sTmp}, s2, 2")
        A(f"s_add_u32 s{sTmp}, s{sTmp}, s{sWave}")
        A(f"s_lshl_b32 s{sTmp}, s{sTmp}, 6")
        A(f"s_add_u32 s{sTmp}, s{sTmp}, {WS_ST}")
        A("s_getreg_b32 s4, hwreg(HW_REG_XCC_ID)")
        A("s_getreg_b32 s5, hwreg(HW_REG_HW_ID)")
        b = v.buf
        for k in range(10): A(f"v_mov_b32 v{b+k}, s{sStamp+2*k}")
        A(f"v_mov_b32 v{b+10}, s4")
        A(f"v_mov_b32 v{b+11}, s5")
        A(f"v_mov_b32 v{b+12}, s{sSpin}")
        A(f"v_mov_b32 v{b+13}, s{sHi}")
        A(f"v_mov_b32 v{b+14}, s{sFast}")
        for k in range(4): A(f"buffer_store_dwordx4 {vr(b+4*k,4)}, v0, {sr(sWS)}, s{sTmp} offen offset:{16*k}")
    A("L_end:")
    A("s_endpgm")
    def spinchk():
        A(f"s_sub_u32 s{sSpin}, s{sSpin}, 1")
        A("s_cbranch_scc1 L_end")
    A("L_bretry:")
    spinchk()
    A("s_mov_b64 exec, vcc")
    A(f"s_cmp_lg_u32 s{sFast}, 0")
    A("s_cbranch_scc0 L_bretry_slow")
    bpoll("nt")
    A("s_branch L_bchk")
    A("L_cretry:")
    spinchk()
    A("s_mov_b64 exec, vcc")
    A("s_branch L_cpoll")
    A("L_bsel:")
    A(f"s_cmp_lg_u32 s{sFast}, 0")
    A("s_cbranch_scc1 L_bfirst")
    A("s_branch L_bslow")
    A("L_oslow:")
    A(f"buffer_store_dwordx4 {vr(oo,4)}, v{aSO}, {sr(sWS)}, s17 offen sc1")
    A("L_bslow:")
    stamp(6)
    if not bafter: bpoll("sc1")
    A("s_branch L_bmfa")
    if bafter:
        A("L_bp_slow:")
        bpoll("sc1")
        A("s_branch L_bp_back")
    A("L_bretry_slow:")
    bpoll("sc1")
    A("s_branch L_bchk")
    def mlld(fl): A(f"buffer_load_dwordx4 {vr(mlr,4)}, v{v.aML}, {sr(sWS)}, 0 offen {fl}")
    A("L_side:")
    if aearly:
        A(f"s_cmp_lg_u32 s{sPh}, 0")
        A("s_cbranch_scc0 L_side5")
        A(f"s_cmp_lg_u32 s{sFast}, 0")
        A("s_cbranch_scc0 L_lda_slow")
        oald("nt")
        A("L_lda_back:")
        A("s_branch L_side4")
        A("L_side5:")
    A("s_lshr_b32 s5, s2, 7")
    A("s_lshl_b32 s5, s5, 10")
    A(f"buffer_load_dwordx4 {vr(gx,4)}, v{v.lin}, {sr(sX)}, s5 offen")
    if aside and not aearly:
        A(f"s_cmp_lg_u32 s{sPh}, 0")
        A("s_cbranch_scc0 L_side0")
        sta()
        A("s_branch L_side4")
        A("L_side0:")
    A(f"buffer_load_dwordx4 {vr(gx+4,4)}, v{v.lin}, {sr(sGW)}, 0 offen")
    A("L_side4:")
    A(f"s_cmp_lg_u32 s{sFast}, 0")
    A("s_cbranch_scc1 L_side1")
    mlld("sc1")
    A("s_branch L_sidebody")
    A("L_side1:")
    mlld("nt")
    A("L_sidebody:")
    assert itml < 15
    body("V", procV, waits, 5)
    A("s_branch L_vloop")
    for nm, ld, back in (("ml", mlld, "L_mlchk"), ("oa", oald, "L_oachk")):
        A(f"L_{nm}retry:")
        spinchk()
        A(f"s_cmp_lg_u32 s{sFast}, 0")
        A(f"s_cbranch_scc0 L_{nm}retry_slow")
        ld("nt")
        A("s_waitcnt vmcnt(0)")
        A(f"s_branch {back}")
        A(f"L_{nm}retry_slow:")
        ld("sc1")
        A("s_waitcnt vmcnt(0)")
        A(f"s_branch {back}")
    A("L_pubml:")
    mlread()
    A(f"v_lshl_add_u32 v{v.y0}, v{t+6}, 2, v{t+7}")
    A(f"s_and_b32 s4, s{sJ}, 15")
    A(f"v_cmp_eq_u32 vcc, s4, v{v.y0}")
    A("s_waitcnt lgkmcnt(0)")
    A(f"v_max3_f32 v{v.y0}, v{v.D}, v{v.D+2}, v{v.D+4}")
    A(f"v_max_f32 v{v.y0}, v{v.y0}, v{v.D+6}")
    A(f"v_mul_f32 v{v.y1}, s{sL2E}, v{v.y0}")
    for w in range(4): A(f"v_fma_f32 v{v.D+2*w}, v{v.D+2*w}, s{sL2E}, -v{v.y1}")
    for w in range(4): A(f"v_exp_f32 v{v.D+2*w}, v{v.D+2*w}")
    A(f"v_mul_f32 v{v.D+1}, v{v.D}, v{v.D+1}")
    for w in range(1, 4): A(f"v_fmac_f32 v{v.D+1}, v{v.D+2*w}, v{v.D+2*w+1}")
    A(f"v_or_b32 v{v.D}, s{sTag}, v{v.y0}")
    A(f"v_and_or_b32 v{v.D+1}, v{v.D+1}, v{c00}, s{sTag+1}")
    A(f"v_mov_b32 v{v.D+2}, s{sTag+2}")
    A(f"v_mov_b32 v{v.D+3}, s{sTag+3}")
    A("s_mov_b64 exec, vcc")
    A(f"s_cmp_lg_u32 s{sFast}, 0")
    A("s_cbranch_scc0 L_pubml_slow")
    A(f"buffer_store_dwordx4 {vr(v.D,4)}, v{v.aML}, {sr(sWS)}, 0 offen")
    A("s_mov_b64 exec, -1")
    A("s_branch L_vent")
    A("L_pubml_slow:")
    A(f"buffer_store_dwordx4 {vr(v.D,4)}, v{v.aML}, {sr(sWS)}, 0 offen sc1")
    A("s_mov_b64 exec, -1")
    A("s_branch L_vent")
    A("L_puba:")
    stageA(0, oA)
    if aearly: sta()
    A("s_branch L_vent")
    A("L_sta_slow:")
    A(f"buffer_store_dwordx4 {vr(oA,4)}, v{aSO}, {sr(sWS)}, 0 offen sc1")
    A("s_branch L_sta_back")
    A("L_lda_slow:")
    oald("sc1")
    A("s_branch L_lda_back")
    A("L_qslow:")
    A(f"s_cmp_lg_u32 s{sWave}, 0")
    A("s_cbranch_scc1 L_qretry")
    A(f"buffer_store_dword v{v.e0}, v{v.e1}, {sr(sWS)}, 0 offen sc1")
    A("L_qretry:")
    spinchk(); qpoll()
    A("s_waitcnt vmcnt(0)")
    qacc()
    A(f"v_and_b32 v{t+10}, 0x1fff, v{t+8}")
    A(f"v_cmp_ne_u32 vcc, 0, v{t+10}")
    A("s_cbranch_vccnz L_qretry")
    A(f"v_and_b32 v{t+10}, 0xe000, v{t+8}")
    A("L_last:")
    A(f"v_cmp_ne_u32 vcc, 0, v{t+10}")
    A("s_branch L_qok")
    code_ = []
    cnt = 0; npad = 0; on = False
    for ln in pad([x for x in L if x != "@PAD"]):
        isins = ln.startswith("    ")
        if warm and (("only warms" in (code_[-1] if code_ else "")) or (on and isins and cnt >= warm)):
            on = True; cnt = 0
            code_.append(f"L_pad{npad}:")
            code_.append(f"    s_cbranch_execz @T{npad}")
            npad += 1
        code_.append(ln)
        cnt += isins
    if warm:
        for k in range(npad):
            tgt = "L_end" if k == npad - 1 else ("L_hbar" if k == hbar else f"L_pad{k+1}")
            code_ = [x.replace(f"@T{k}", tgt) if x.endswith(f"@T{k}") else x for x in code_]
        code_ += ["L_hbar:", "    s_barrier", f"    s_branch L_pad{hbar+1}"]
    ref = open(os.path.join(os.path.dirname(os.path.abspath(__file__)), "header.txt")).read().rstrip("\n").split("\n")
    out = ref + [f"; @launch grid=(256,1,1) block=({320 if warm else 256},1,1) lds={L_SZ}",
                 '.amdgcn_target "amdgcn-amd-amdhsa--gfx950"', ".text", f".globl {KNAME}", ".p2align 8",
                 f".type {KNAME},@function"] + code_
    acc = (NV + 3) // 4 * 4
    out += ['.section .rodata,"a"', ".p2align 6", f".amdhsa_kernel {KNAME}",
            f"  .amdhsa_next_free_vgpr {NV}", "  .amdhsa_next_free_sgpr 102", f"  .amdhsa_accum_offset {acc}",
            "  .amdhsa_group_segment_fixed_size 0", "  .amdhsa_kernarg_size 112", "  .amdhsa_user_sgpr_count 2",
            "  .amdhsa_user_sgpr_kernarg_segment_ptr 1", "  .amdhsa_system_sgpr_workgroup_id_x 1",
            "  .amdhsa_float_denorm_mode_32 3", ".end_amdhsa_kernel"]
    return "\n".join(out) + "\n"

if __name__ == "__main__":
    kw = eval("dict(" + (sys.argv[1] if len(sys.argv) > 1 else "") + ")")
    sys.stdout.write(gen(**kw))
```

```python
import sys, os
sys.path.insert(0, os.path.dirname(os.path.abspath(__file__)))
from hz import pad

KNAME = "gated_mix__gqa_block_cached__gqa_block_cached__decode_kernel"
LOG2E = 0x3fb8aa3b
SCALE = 0x3db504f3

WS_Q  = 0x10000
WS_ML = 0x30000
WS_B  = 0x40000
WS_O  = 0x100000
WS_P2 = 0x80000
WS_ST = 0x300000
WS_SZ = 0x400000
L_T, L_O, L_M, L_P, L_SZ = 0, 32768, 49152, 53248, 57344
DPPM = "row_mask:0xf bank_mask:0xf"
PAT1 = "k0 s0 k1 s1 w0 g0 s3 s2 g1 n3 w1 n1 n2 n0 k2"

def gen(NPL=40, waits=(4,)*8, whi=(5,)*8, wepi=None, R=3, XB=2, XT=2, P0=5, pollak=-1, tlb=3, cpf=1, wosw=1, XQ=0, wcat=(5,)*8, warm=96, hbar=3, helper=1, cpfe=0, c4=1, cwait=1, p2t=1, obt=0, sti=(16, 24, 32), qloc=1, lasthi=0, CU=16, bafter=1, aside=1, run64=2, aearly=0, thr=(24, 30), wpro=None, wkv=None, pat=PAT1,
        wqflags="nt", woflags="nt", kvflags="nt", tchflags="nt", fast=1, touch=0, woburst=0, itml=12, wqfirst=0, wodelay=0, wvk=None,
        stamps=False, tst=False, spin=1 << 17, cut=0, probe=0, amp=None, ampat=5):
    P = max(max(waits), max(whi)) + 1
    if wepi is None: wepi = (P - 1,) * 8
    assert run64 == 2 and NPL % 8 == 0 and P + XT <= 8 and 5 <= P <= 6
    pos = {n: 8 + i for i, n in enumerate(pat.split())}
    assert len(pos) == 15
    def dep(c, val, nb): return sum(((val >> i) & 1) << pos[f"{c}{i}"] for i in range(nb))
    L = []
    def A(s): L.append(s)
    class V: pass
    v = V(); nv = [0]
    def valloc(name, n=1, al=1):
        nv[0] = (nv[0] + al - 1) // al * al
        setattr(v, name, nv[0]); nv[0] += n
    for nm in ("tid", "koff", "voff", "lin", "mask0", "mask1"): valloc(nm)
    valloc("T", 2, 2); valloc("TV", 2, 2)
    valloc("m", 2, 2); v.l = v.m + 1
    for nm in ("ta", "mL", "e0", "e1", "e2", "y0", "y1", "z", "p", "pd", "bw", "br", "bv", "bl", "aML", "c00"): valloc(nm)
    valloc("q", 4, 2); valloc("qB", 4, 2); valloc("acc", 8, 2); valloc("D", 8, 2)
    valloc("W", 18, 2)
    valloc("t", 12, 2)
    valloc("buf", max(4 * NPL, 160), 4)
    NV = nv[0]
    assert NV <= 256, NV
    def vr(a, n): return f"v[{a}:{a+n-1}]"
    wqr = v.buf + max(4 * NPL, 160) - 32
    xr = wqr - 16
    wor = v.buf + 32
    gx = v.buf + 64
    sb = v.buf + 72
    mlr = v.buf + 80
    (aWO, aLO, aSO, aPO, aPC, aOUT, gA, gB, F) = range(v.buf + 84, v.buf + 93)
    aLP = aLO
    c00 = v.c00
    bA = v.buf + 96
    oA = v.buf + 112
    aBP = v.buf + 116
    a = v.buf + 118
    assert a + 42 <= NV
    sK, sV, sWQ, sWO, sWS, sX, sGW, sOUT = 20, 24, 28, 32, 36, 40, 44, 48
    sWave, sOff, sCnt, sE, sL2E, sTmp, sTmp2, sSpin, sPh = 3, 52, 53, 54, 55, 56, 57, 58, 59
    sQ1, sQ2, sQ3 = 60, 62, 64
    sHi, sFast = 66, 67
    sTag, sTag16, sNo, sN, sThr = 68, 72, 73, 74, 75
    sKB = 76
    sHkv, sJ = 6, 7
    sQT = 96
    sStamp = 80
    def sr(a, n=4): return f"s[{a}:{a+n-1}]"
    def stamp3(k):
        if stamps and tst == 3: A(f"s_memrealtime s[{sStamp+2*k}:{sStamp+2*k+1}]")
    def stamp4(ka, kb):
        if stamps and tst == 4:
            n_ = len(L)
            A(f"s_cmp_lg_u32 s{sPh}, 0")
            A(f"s_cbranch_scc1 L_st{n_}")
            A(f"s_memrealtime s[{sStamp+2*ka}:{sStamp+2*ka+1}]")
            A(f"L_st{n_}:")
            A(f"s_memrealtime s[{sStamp+2*kb}:{sStamp+2*kb+1}]")
    def stamp(k, tail=False):
        if amp and k == ampat and not tail: A("s_memrealtime s[82:83]")
        if tst in (3, 4) and k in (6, 7, 8): return
        if stamps and (k not in (1, 2, 3, 4) or tail == tst or (tst == 2 and tail is True and k in (1, 4))): A(f"s_memrealtime s[{sStamp+2*k}:{sStamp+2*k+1}]")
    def sdep(dst, src, c, nb, first, tmp):
        groups = {}
        for i in range(nb): groups.setdefault(pos[f"{c}{i}"] - i, []).append(i)
        for sh, bits in groups.items():
            d = dst if first else tmp
            A(f"s_and_b32 s{d}, s{src}, {sum(1 << i for i in bits)}")
            A(f"s_lshl_b32 s{d}, s{d}, {sh}")
            if not first: A(f"s_add_u32 s{dst}, s{dst}, s{tmp}")
            first = False

    A(f"{KNAME}:")
    A("s_cmp_ge_u32 s2, 256")
    A("s_cbranch_scc1 L_end")
    stamp(0)
    if probe: A("s_memrealtime s[100:101]")
    if amp: A("s_memrealtime s[80:81]")
    A("s_lshr_b32 s4, s2, 7")
    A("s_mul_i32 s4, s4, 40")
    A("s_add_u32 s4, s0, s4")
    A("s_addc_u32 s5, s1, 0")
    A("s_load_dwordx2 s[12:13], s[4:5], 24")
    A(f"s_load_dwordx2 {sr(sX,2)}, s[0:1], 0")
    A("s_load_dwordx4 s[8:11], s[0:1], 8           ; K_A, V_A")
    A(f"s_load_dwordx2 {sr(sWS,2)}, s[0:1], 104")
    A(f"s_load_dwordx4 {sr(sKB)}, s[0:1], 48       ; K_B, V_B")
    A("s_load_dwordx4 s[16:19], s[0:1], 80")
    A(f"s_load_dwordx2 {sr(sWO,2)}, s[0:1], 32     ; wo_A")
    A("s_load_dwordx2 s[14:15], s[0:1], 72         ; wo_B")
    t = v.t
    A(f"v_lshrrev_b32 v{t}, 6, v0")
    A(f"v_and_b32 v0, 63, v0")
    A(f"v_readfirstlane_b32 s{sWave}, v{t}")
    if cpfe:
        A("s_getpc_b64 s[84:85]")
        A("L_pc:")
        A(f"s_sub_u32 s84, s84, L_pc-{KNAME}")
        A("s_subb_u32 s85, s85, 0")
        A("s_lshr_b32 s86, s2, 3")
        A("s_lshl_b32 s86, s86, 2")
        A(f"s_add_u32 s86, s86, s{sWave}")
        A("s_lshl_b32 s86, s86, 7")
        A(f"s_min_u32 s86, s86, L_last-{KNAME}")
        if cpfe == 1: A("s_load_dword s87, s[84:85], s86")
    if warm and helper:
        A(f"v_cmp_gt_u32 vcc, 4, v{t}")
        A("s_mov_b64 exec, vcc                         ; wave 4 only warms the instruction cache: EXEC = 0, hops pad to pad")
        A("@PAD")
    A(f"v_lshrrev_b32 v{t+1}, 3, v0")
    A(f"v_lshl_add_u32 v{t+2}, v{t}, 3, v{t+1}")
    A(f"v_and_b32 v{t+3}, 7, v0")
    A(f"v_lshlrev_b32 v{t+3}, 3, v{t+3}")
    A(f"v_lshl_add_u32 v{t+3}, v{t+2}, 17, v{t+3}")
    A(f"v_bfe_u32 v{t+4}, v0, 2, 1")
    A(f"v_lshlrev_b32 v{t+8}, 10, v{t+4}")
    A(f"v_lshl_add_u32 v{t+8}, v{t+2}, 5, v{t+8}")
    A(f"s_and_b32 s{sHkv}, s2, 7")
    A(f"s_lshr_b32 s{sJ}, s2, 3")
    A(f"s_and_b32 s{sTmp}, s{sJ}, 15")
    A(f"s_lshl_b32 s{sTmp}, s{sTmp}, 6")
    A(f"s_lshl_b32 s{sTmp2}, s{sHkv}, 10")
    A(f"s_add_u32 s{sTmp}, s{sTmp}, s{sTmp2}")
    A(f"s_mov_b32 s{sX+2}, 2048")
    A(f"s_mov_b32 s{sX+3}, 0x20000")
    A(f"s_mov_b32 s{sWQ+2}, 0x400000")
    A(f"s_mov_b32 s{sWQ+3}, 0x20000")
    A("s_waitcnt lgkmcnt(0)")
    stamp3(1)
    if cpfe == 2: A("s_load_dword s87, s[84:85], s86")
    A(f"s_mov_b32 s{sWQ}, s12")
    A(f"s_mov_b32 s{sWQ+1}, s13")
    for tt in range(16):
        if tt == wqfirst:
            A(f"buffer_load_dwordx4 {vr(xr,4)}, v{t+8}, {sr(sX)}, 0 offen")
            A(f"buffer_load_dwordx4 {vr(xr+4,4)}, v{t+8}, {sr(sX)}, 0 offen offset:16")
        A(f"buffer_load_dwordx2 {vr(wqr+2*tt,2)}, v{t+3}, {sr(sWQ)}, s{sTmp} offen {wqflags}")
        if tt < 15: A(f"s_add_u32 s{sTmp}, s{sTmp}, 8192")
    assert wqfirst <= 2
    A(f"s_mov_b32 s{sWQ}, s14                      ; this descriptor now serves wo_B")
    A(f"s_mov_b32 s{sWQ+1}, s15")
    A(f"s_load_dword s{sE}, {sr(sWS,2)}, 0")
    A(f"s_lshr_b32 s{sTmp2}, s2, 7")
    A(f"s_lshl_b32 s{sTmp2}, s{sTmp2}, 3")
    A(f"s_add_u32 s{sTmp2}, s{sTmp2}, s{sHkv}")
    A(f"s_lshl_b32 s{sTmp2}, s{sTmp2}, 23")
    A(f"s_add_u32 s{sK}, s8, s{sTmp2}")
    A(f"s_addc_u32 s{sK+1}, s9, 0")
    A(f"s_mov_b32 s{sK+2}, 0x800000")
    A(f"s_mov_b32 s{sK+3}, 0x20000")
    sdep(sTmp, sWave, "w", 2, True, 4)
    sdep(sTmp, sJ, "s", 4, False, 4)
    A(f"v_bfe_u32 v{t+5}, v0, 2, 2")
    A(f"v_lshrrev_b32 v{t+6}, 4, v0")
    A(f"v_and_b32 v{t+7}, 3, v0")
    A(f"v_lshlrev_b32 v{v.lin}, 4, v0")
    A(f"v_lshl_add_u32 v{v.koff}, v{t+6}, 6, s{sTmp}")
    A(f"v_lshl_add_u32 v{v.koff}, v{t+7}, 4, v{v.koff}")
    A(f"v_lshl_add_u32 v{v.koff}, v{t+4}, {pos['g0']}, v{v.koff}")
    A(f"v_bfe_u32 v{t+8}, v0, 3, 1")
    A(f"v_lshl_add_u32 v{v.koff}, v{t+8}, {pos['g1']}, v{v.koff}")
    last = [None]
    def issue(i, kind, sl, loop=False):
        kd = dep("k", i & 7, 3)
        c = kd if loop else kd + dep("n", i >> 3, 4)
        imm, hi = c & 0xfff, c & ~0xfff
        if loop:
            if hi == 0: so = f"s{sNo}"
            else:
                if last[0] != ("l", hi): A(f"s_add_u32 s{sOff}, s{sNo}, {hi:#x}")
                last[0] = ("l", hi); so = f"s{sOff}"
        else:
            if hi == 0: so = "0"
            else:
                if last[0] != ("c", hi): A(f"s_mov_b32 s{sOff}, {hi:#x}")
                last[0] = ("c", hi); so = f"s{sOff}"
        if i & 7 == 7: last[0] = None
        off = f" offset:{imm}" if imm else ""
        r = v.buf + 4 * sl
        if kind == "K": A(f"buffer_load_dwordx4 {vr(r,4)}, v{v.koff}, {sr(sK)}, {so} offen{off} {kvflags}")
        else:           A(f"buffer_load_dwordx4 {vr(r,4)}, v{v.voff}, {sr(sV)}, {so} offen{off} {kvflags}")
    for k in range(P0): issue(k, "K", k)
    A(f"v_and_b32 v{v.voff}, 0xff, v{v.lin}")
    A(f"v_add_u32 v{v.voff}, s{sTmp}, v{v.voff}")
    A(f"v_bfe_u32 v{t+8}, v0, 4, 1")
    A(f"v_lshl_add_u32 v{v.voff}, v{t+8}, {pos['g0']}, v{v.voff}")
    A(f"v_lshrrev_b32 v{t+8}, 5, v0")
    A(f"v_lshl_add_u32 v{v.voff}, v{t+8}, {pos['g1']}, v{v.voff}")
    A(f"s_add_u32 s{sV}, s10, s{sTmp2}")
    A(f"s_addc_u32 s{sV+1}, s11, 0")
    A(f"s_add_u32 s{sKB}, s{sKB}, s{sTmp2}")
    A(f"s_addc_u32 s{sKB+1}, s{sKB+1}, 0")
    A(f"s_add_u32 s{sKB+2}, s{sKB+2}, s{sTmp2}")
    A(f"s_addc_u32 s{sKB+3}, s{sKB+3}, 0")
    sel = xr + 8; bq = xr + 12
    for s_, b0, n_ in ((sV, None, 0x800000), (sWS, None, WS_SZ), (sWO, None, 0x400000), (sGW, 16, 1024), (sOUT, 18, 2048)):
        if b0 is not None:
            A(f"s_mov_b32 s{s_}, s{b0}")
            A(f"s_mov_b32 s{s_+1}, s{b0+1}")
        A(f"s_mov_b32 s{s_+2}, {n_:#x}")
        A(f"s_mov_b32 s{s_+3}, 0x20000")
    A(f"s_mov_b32 s{sL2E}, {LOG2E:#x}")
    A(f"s_mov_b32 s{sPh}, 0")
    for k, s in ((1, sQ1), (2, sQ2), (3, sQ3)):
        A(f"s_mov_b32 s{s}, {0x11111111 << k:#x}")
        A(f"s_mov_b32 s{s+1}, {0x11111111 << k:#x}")
    A(f"v_mov_b32 v{t+8}, 0xffff")
    A(f"v_mov_b32 v{t+9}, 0xffff0000")
    A(f"v_cndmask_b32 v{v.mask1}, 0, v{t+8}, {sr(sQ2,2)}")
    A(f"v_cndmask_b32 v{v.mask1}, v{v.mask1}, v{t+9}, {sr(sQ3,2)}")
    A(f"v_cndmask_b32 v{v.mask0}, v{t+8}, v{t+9}, {sr(sQ1,2)}")
    A(f"v_cmp_gt_u32 vcc, 2, v{t+7}")
    A(f"v_cndmask_b32 v{v.mask0}, 0, v{v.mask0}, vcc")
    A(f"s_mov_b32 s{sTmp}, 0x01000100")
    A(f"s_mov_b32 s{sTmp2}, 0x03020302")
    A(f"v_mov_b32 v{t+8}, 0x0c0c0c0c")
    A(f"v_bfi_b32 v{sel}, v{v.mask0}, s{sTmp}, v{t+8}")
    A(f"v_bfi_b32 v{sel+1}, v{v.mask1}, s{sTmp}, v{t+8}")
    A(f"v_bfi_b32 v{sel+2}, v{v.mask0}, s{sTmp2}, v{t+8}")
    A(f"v_bfi_b32 v{sel+3}, v{v.mask1}, s{sTmp2}, v{t+8}")
    for k in range(18):
        if k % 4 < 2: A(f"v_mov_b32 v{v.W+k}, 0")
    A(f"v_mov_b32 v{v.m}, 0xff800000")
    A(f"v_mov_b32 v{v.l}, 0")
    A(f"v_mov_b32 v{v.e1}, 0x7ffffff0")
    A(f"v_lshlrev_b32 v{v.ta}, 3, v0")
    A(f"v_lshl_add_u32 v{v.ta}, v{t}, 13, v{v.ta}")
    A(f"v_lshl_add_u32 v{t+8}, v{t}, 10, v{v.lin}")
    A("s_getreg_b32 s8, hwreg(HW_REG_XCC_ID)")
    A("s_and_b32 s8, s8, 7")
    if warm and not helper:
        A("s_mov_b64 exec, 0")
        for w in range(1, 4):
            A(f"s_cmp_eq_u32 s{sWave}, {w}")
            A(f"s_cbranch_scc1 L_seg{w}")
        A("s_branch L_seg0")
        A("L_wret:")
        A("s_mov_b64 exec, -1                          ; only warms")
    i = P0
    for m in range(8):
        A(f"s_waitcnt vmcnt({14 - 2*m + i})")
        if m == 0: stamp3(2)
        if m == 7: stamp3(3)
        if m >= 8 - (max(waits) + 1) + P0:
            issue(i, "K", i); i += 1
        for k in range(4):
            A(f"v_perm_b32 v{bq+k}, v{xr+m}, v{xr+m}, v{sel+k}")
        c = "0" if m == 0 else vr(v.D, 4)
        A(f"v_mfma_f32_16x16x32_bf16 {vr(v.D,4)}, {vr(wqr+4*m,4)}, {vr(bq,4)}, {c}")
    stamp(1)
    for k in range(XB):
        issue(i, "K", i); i += 1
    A(f"ds_write_b128 v{t+8}, {vr(v.D,4)} offset:{L_P}")
    A(f"v_bfe_u32 v{t+9}, v0, 4, 1")
    A(f"v_lshlrev_b32 v{t+9}, 8, v{t+9}")
    A(f"v_lshrrev_b32 v{t+10}, 5, v0")
    A(f"v_lshl_add_u32 v{t+9}, v{t+10}, 6, v{t+9}")
    A(f"v_lshl_add_u32 v{t+9}, v{t+7}, 4, v{t+9}")
    A(f"v_lshl_add_u32 v{t+9}, v{t+5}, 2, v{t+9}")
    A("s_waitcnt lgkmcnt(0)")
    A("s_barrier")
    A(f"s_add_u32 s{sE}, s{sE}, 1")
    A(f"s_cmp_lg_u32 s{sWave}, 0")
    A("s_cbranch_scc1 L_nopub")
    qr = wqr
    for w in range(4):
        for r1 in range(2):
            A(f"ds_read_b32 v{qr+2*w+r1}, v{t+9} offset:{L_P + 1024*w + 640*r1}")
    A(f"s_lshr_b32 s{sTmp}, s2, 7")
    A(f"s_lshl_b32 s{sTmp}, s{sTmp}, 3")
    A(f"s_add_u32 s{sTmp}, s{sTmp}, s{sHkv}")
    A(f"s_lshl_b32 s{sTmp}, s{sTmp}, 12")
    A(f"s_and_b32 s{sTmp2}, s{sJ}, 15")
    A(f"s_lshl_b32 s{sTmp2}, s{sTmp2}, 7")
    A(f"s_add_u32 s{sTmp}, s{sTmp}, s{sTmp2}")
    A(f"s_add_u32 s{sTmp}, s{sTmp}, {WS_Q:#x}")
    A(f"v_and_b32 v{t+11}, 31, v0")
    A(f"v_lshlrev_b32 v{t+11}, 2, v{t+11}")
    A(f"v_lshl_add_u32 v{t+11}, v{t+10}, 11, v{t+11}")
    A(f"v_mad_u32_u24 v{t+10}, v{t+7}, 37, s{sE}")
    A(f"v_and_b32 v{t+10}, 0x1fff, v{t+10}")
    A(f"v_lshl_or_b32 v{t+10}, s8, 13, v{t+10}")
    A("s_waitcnt lgkmcnt(0)")
    for k in range(4): A(f"v_add_f32 v{qr+k}, v{qr+k}, v{qr+4+k}")
    A(f"v_add_f32 v{qr}, v{qr}, v{qr+2}")
    A(f"v_add_f32 v{qr+1}, v{qr+1}, v{qr+3}")
    A(f"v_add_f32 v{qr}, v{qr}, v{qr+1}")
    A(f"v_cvt_pk_bf16_f32 v{qr}, 0, v{qr}")
    A(f"v_or_b32 v{v.e0}, v{t+10}, v{qr}")
    A(f"v_add_u32 v{v.e1}, s{sTmp}, v{t+11}")
    A(f"buffer_store_dword v{v.e0}, v{v.e1}, {sr(sWS)}, 0 offen{'' if qloc else ' sc1'}")
    A("L_nopub:")
    stamp(2)
    misc = []
    M_ = misc.append
    for k in range(4):
        M_(f"s_add_u32 s{sTag+k}, s{sE}, {37*k}")
        M_(f"s_and_b32 s{sQT+k}, s{sTag+k}, 0x1fff")
        M_(f"s_and_b32 s{sTag+k}, s{sTag+k}, 0xff")
        M_(f"s_lshl_b32 s4, s8, 13")
        M_(f"s_or_b32 s{sQT+k}, s{sQT+k}, s4")
    M_(f"v_lshl_add_u32 v{t+9}, v{t+5}, 2, v{t+6}")
    M_(f"v_lshlrev_b32 v{t+9}, 7, v{t+9}")
    M_(f"v_lshl_add_u32 v{t+9}, v{t+7}, 5, v{t+9}")
    M_(f"s_lshl_b32 s{sTmp}, s{sHkv}, 1")
    M_(f"s_lshr_b32 s{sTmp2}, s2, 7")
    M_(f"s_add_u32 s{sTmp}, s{sTmp}, s{sTmp2}")
    M_(f"s_lshl_b32 s{sTmp}, s{sTmp}, 11")
    M_(f"s_add_u32 s{sTmp}, s{sTmp}, {WS_Q:#x}")
    M_(f"s_add_u32 s{sTmp2}, s{sTmp}, 32768")
    M_(f"s_mov_b32 s{sSpin}, {spin}")
    if tlb:
        M_(f"s_lshl_b32 s9, s{sWave}, 21")
        M_(f"s_load_dword s10, {sr(sV,2)}, s9")
        M_(f"s_load_dword s11, {sr(sKB,2)}, s9")
        M_(f"s_load_dword s12, {sr(sKB+2,2)}, s9")
        M_(f"s_lshl_b32 s13, s{sHkv}, 19")
        M_(f"s_load_dword s14, {sr(sWO,2)}, s13")
        M_(f"s_load_dword s15, {sr(sWQ,2)}, s13")
        if tlb > 1: M_(f"s_load_dword s16, {sr(sK,2)}, s9")
        if tlb > 2:
            M_(f"s_lshl_b32 s100, s{sJ}, 5")
            M_(f"s_load_dword s100, {sr(sGW,2)}, s100")
        if tlb > 3: M_(f"s_load_dword s101, {sr(sOUT,2)}, 0")
    if cpf and not cpfe:
        M_("s_getpc_b64 s[18:19]")
        M_("L_pc:")
        M_(f"s_sub_u32 s18, s18, L_pc-{KNAME}")
        M_("s_subb_u32 s19, s19, 0")
        M_(f"s_lshl_b32 s17, s{sJ}, 2")
        M_(f"s_add_u32 s17, s17, s{sWave}")
        M_("s_lshl_b32 s17, s17, 7")
        M_(f"s_min_u32 s17, s17, L_last-{KNAME}")
        M_("s_load_dword s17, s[18:19], s17")
    t8 = tuple(thr) * (8 // len(thr))
    M_("s_lshl_b32 s4, s8, 2")
    M_(f"s_lshr_b32 s4, {sum((x - 18) << (4*k) for k, x in enumerate(t8)):#x}, s4")
    M_("s_and_b32 s4, s4, 15")
    M_(f"s_add_u32 s{sThr}, s4, 18")
    M_("s_lshl_b32 s4, s8, 12")
    M_(f"s_add_u32 s4, s4, {WS_B:#x}")
    M_(f"v_lshl_add_u32 v{v.br}, v0, 2, s4")
    M_(f"v_mov_b32 v{v.bl}, 0x7ffffff0")
    M_(f"v_cmp_gt_u32 vcc, 32, v0")
    M_(f"s_lshl_b32 s5, s{sWave}, 6")
    M_(f"s_add_u32 s5, s5, s{sJ}")
    M_(f"v_cndmask_b32 v{v.br}, v{v.bl}, v{v.br}, vcc")
    M_(f"v_cmp_eq_u32 vcc, s5, v0")
    M_(f"s_lshl_b32 s{sN}, s{sE}, 12")
    M_(f"s_mov_b32 s{sHi}, 0")
    M_(f"v_cndmask_b32 v{v.bw}, v{v.bl}, v{v.br}, vcc")
    M_(f"v_add_u32 v{v.bl}, s{sN}, v{v.bl}")
    M_(f"s_lshl_b32 s4, s{sHkv}, 11")
    M_(f"s_lshr_b32 s5, s2, 7")
    M_("s_lshl_b32 s5, s5, 10")
    M_("s_add_u32 s4, s4, s5")
    M_(f"s_add_u32 s4, s4, {WS_ML:#x}")
    M_(f"v_add_u32 v{v.aML}, s4, v{v.lin}")
    M_(f"v_mov_b32 v{c00}, 0xffffff00")
    def drain(n):
        for _ in range(n):
            if misc:
                s_ = misc.pop(0); A(s_)
                if s_.startswith(("s_bitcmp", "s_cmp", "s_getpc", "s_sub_u32 s18")): A(misc.pop(0))
    qp = v.acc
    assert v.D == v.acc + 8 and v.qB == v.q + 4
    def qpoll(fl="sc1"):
        A(f"buffer_load_dwordx4 {vr(qp,4)}, v{t+9}, {sr(sWS)}, s{sTmp} offen {fl}")
        A(f"buffer_load_dwordx4 {vr(qp+4,4)}, v{t+9}, {sr(sWS)}, s{sTmp} offen offset:16 {fl}")
        A(f"buffer_load_dwordx4 {vr(qp+8,4)}, v{t+9}, {sr(sWS)}, s{sTmp2} offen {fl}")
        A(f"buffer_load_dwordx4 {vr(qp+12,4)}, v{t+9}, {sr(sWS)}, s{sTmp2} offen offset:16 {fl}")
    ipoll = NPL - P - XQ
    while i < NPL - XQ:
        n = (wpro or waits)[i & 7]
        if i > ipoll and i - n - 1 < ipoll: n += 4
        A(f"s_waitcnt vmcnt({n})")
        if i == ipoll:
            assert not misc
            qpoll("nt" if qloc else "sc1")
        if i in sti: stamp3((4, 6, 7)[sti.index(i)])
        issue(i, "K", i); i += 1
        drain(6 if NPL > 24 else 9)
    A(f"s_waitcnt vmcnt({P})")
    def qacc():
        A(f"v_xor_b32 v{t+8}, s{sQT}, v{qp}")
        for k in range(1, 16): A(f"v_bitop3_b32 v{t+8}, v{qp+k}, s{sQT+(k&3)}, v{t+8} bitop3:0xbe")
    qacc()
    A(f"v_and_b32 v{t+10}, 0xffff, v{t+8}")
    A(f"v_cmp_ne_u32 vcc, 0, v{t+10}")
    A("s_cbranch_vccnz L_qslow")
    A("L_qok:")
    A(f"s_mov_b32 s4, 0x07060302")
    for k in range(8): A(f"v_perm_b32 v{v.q+k}, v{qp+2*k+1}, v{qp+2*k}, s4")
    A("s_cmp_eq_u64 vcc, 0")
    A(f"s_cselect_b32 s{sFast}, {fast}, 0")
    while i < NPL:
        A(f"s_waitcnt vmcnt({(wcat or waits)[i & 7]})")
        issue(i, "K", i); i += 1
    stamp(3)
    def red(u, T):
        D = v.D + 4 * (u & 1)
        A(f"v_add_f32_dpp v{v.y0}, v{D+(u^1)}, v{D+u} quad_perm:[1,0,3,2] {DPPM}")
        A(f"v_add_f32_dpp v{v.y1}, v{D+(u^3)}, v{D+(u^2)} quad_perm:[1,0,3,2] {DPPM}")
        dst = T if u == 0 else v.z
        A(f"v_add_f32_dpp v{dst}, v{v.y1}, v{v.y0} quad_perm:[2,3,0,1] {DPPM}")
        if u: A(f"v_cndmask_b32 v{T}, v{T}, v{v.z}, {sr((sQ1,sQ2,sQ3)[u-1],2)}")
    def finT(par):
        T = v.T + par
        red(3, T)
        A(f"v_cvt_pk_bf16_f32 v{T}, 0, v{T}")
        A(f"v_mul_f32 v{T}, {SCALE:#x}, v{T}")
        A(f"v_cvt_pk_bf16_f32 v{T}, 0, v{T}")
        if par:
            A(f"v_mul_f32 v{v.e2}, s{sL2E}, v{v.m}")
            A(f"v_max3_f32 v{v.m}, v{v.T}, v{v.T+1}, v{v.m}")
            A(f"ds_write_b64 v{v.ta}, {vr(v.T,2)}")
            A(f"v_mul_f32 v{v.p}, s{sL2E}, v{v.m}")
            A(f"v_add_u32 v{v.ta}, 512, v{v.ta}")
            A(f"v_fma_f32 v{v.e0}, v{v.T}, s{sL2E}, -v{v.p}")
            A(f"v_fma_f32 v{v.e1}, v{v.T+1}, s{sL2E}, -v{v.p}")
            A(f"v_sub_f32 v{v.e2}, v{v.e2}, v{v.p}")
    def lacc():
        A(f"v_exp_f32 v{v.e0}, v{v.e0}")
        A(f"v_exp_f32 v{v.e2}, v{v.e2}")
        A(f"v_exp_f32 v{v.e1}, v{v.e1}")
        A(f"v_fma_f32 v{v.l}, v{v.l}, v{v.e2}, v{v.e0}")
        A(f"v_add_f32 v{v.l}, v{v.l}, v{v.e1}")
    def procK(j, sl):
        u = j & 3
        A(f"v_mfma_f32_16x16x32_bf16 {vr(v.D+4*(u&1),4)}, {vr(v.buf+4*sl,4)}, {vr(v.q,4)}, 0")
        if u >= 1: red(u - 1, v.T + ((j >> 2) & 1))
        elif j > 0: finT(((j >> 2) - 1) & 1)
        if j & 7 == 1 and j > 1: lacc()
    def ands(u):
        w = v.W + 2 + 4 * u
        A(f"v_and_b32_dpp v{w}, v{v.pd}, v{v.mask0} quad_perm:[{u},{u},{u},{u}] {DPPM}")
        A(f"v_and_b32_dpp v{w+1}, v{v.pd}, v{v.mask1} quad_perm:[{u},{u},{u},{u}] {DPPM}")
    def prep(par, nextread=True):
        if par == 0: A("s_waitcnt lgkmcnt(0)")
        A(f"v_fma_f32 v{v.p}, v{v.TV+par}, s{sL2E}, -v{v.mL}")
        A(f"v_exp_f32 v{v.p}, v{v.p}")
        if par == 1 and nextread:
            A(f"v_add_u32 v{v.ta}, 512, v{v.ta}")
            A(f"ds_read_b64 {vr(v.TV,2)}, v{v.ta}")
        A(f"v_cvt_pk_bf16_f32 v{v.pd}, v{v.p}, v{v.p}")
        ands(0)
    def procV(j, sl, end=False):
        u = j & 3
        w = v.W + 4 * u
        A(f"v_mfma_f32_16x16x32_bf16 {vr(v.acc,4)}, {vr(v.buf+4*sl,4)}, {vr(w+2,4)}, {vr(v.acc,4)}")
        A(f"v_mfma_f32_16x16x32_bf16 {vr(v.acc+4,4)}, {vr(v.buf+4*sl,4)}, {vr(w,4)}, {vr(v.acc+4,4)}")
        if end and j >= 124: return
        if u < 3: ands(u + 1)
        else:
            prep(((j >> 2) + 1) & 1, nextread=not (end and j == 123))
            if end and j == 123:
                ands(1); ands(2); ands(3)
    def allred(op, r, tmp):
        A(f"{op}_dpp v{r}, v{r}, v{r} quad_perm:[1,0,3,2] {DPPM}")
        A(f"{op}_dpp v{r}, v{r}, v{r} quad_perm:[2,3,0,1] {DPPM}")
        A(f"v_mov_b32 v{tmp}, v{r}")
        A(f"v_permlane16_swap_b32 v{tmp}, v{r}")
        A(f"{op} v{r}, v{r}, v{tmp}")
        A(f"v_mov_b32 v{tmp}, v{r}")
        A(f"v_permlane32_swap_b32 v{tmp}, v{r}")
        A(f"{op} v{r}, v{r}, v{tmp}")
    def accaddr():
        A(f"s_lshl_b32 s4, s{sPh}, 2")
        A(f"s_add_u32 s4, s4, s{sWave}")
        A(f"s_lshl_b32 s5, s4, 11")
        A(f"v_add_u32 v{t+9}, s5, v{v.lin}")
    def accout():
        A(f"ds_write_b128 v{t+9}, {vr(v.acc,4)} offset:{L_O}")
        A(f"ds_write_b128 v{t+9}, {vr(v.acc+4,4)} offset:{L_O+1024}")
    def strip(base, first, emit=None):
        E = emit or A
        for r in range(4): E(f"v_xor_b32 v{base+r}, s{sTag+r}, v{base+r}")
        if first: E(f"v_or_b32 v{t+11}, v{base}, v{base+1}")
        else: E(f"v_or3_b32 v{t+11}, v{base}, v{base+1}, v{t+11}")
        E(f"v_or3_b32 v{t+11}, v{base+2}, v{base+3}, v{t+11}")
    def check(label):
        A(f"v_and_b32 v{t+11}, 0xff, v{t+11}")
        A(f"v_cmp_ne_u32 vcc, 0, v{t+11}")
        A(f"s_cbranch_vccnz {label}")
    slotof = {k: k for k in range(NPL)}
    def newslot(i): return (i - NPL) if i < NPL + CU else (i & 7)
    j = 0
    landed = i - P
    while not (j == i - P and i % 8 == 0 and j >= NPL + (CU if CU > 8 else 0)):
        s = newslot(i)
        own = max(k for k in slotof if slotof[k] == s)
        while j <= own:
            assert j < landed, "catch-up needs data not yet landed"
            procK(j, slotof[j]); j += 1
        A(f"s_waitcnt vmcnt({(wcat or waits)[i&7]})")
        landed = max(landed, i - (wcat or waits)[i & 7])
        slotof[i] = s
        issue(i, "K", s); i += 1
        n = 0
        while n < R and j < i - P:
            assert j < landed
            procK(j, slotof[j]); j += 1; n += 1
    assert i < 128
    def enter(n):
        A(f"s_mov_b32 s{sCnt}, {n}")
        A(f"s_mov_b32 s{sNo}, {dep('n', n, 4):#x}")
    enter(i // 8)
    stamp(4); stamp3(8)
    def body(kind, proc, ww, extra):
        for k in range(8):
            n = ww[k] + (extra if k <= ww[k] else 0)
            issue(k, kind, k, loop=True)
            L.insert(len(L) - 1, f"s_waitcnt vmcnt({n})")
            if k == 7:
                A(f"s_add_u32 s{sCnt}, s{sCnt}, 1")
                sdep(sNo, sCnt, "n", 4, True, 4)
            proc(16 + k - P, (k - P) & 7)
    def loop(name, kind, proc):
        A(".p2align 6")
        A(f"L_{name}loop:")
        A(f"v_subrev_u32 v{v.bv}, s{sN}, v{v.bl}")
        A(f"s_add_u32 s{sN}, s{sN}, 1")
        A(f"v_cmp_gt_u32 vcc, 64, v{v.bv}")
        A(f"v_mov_b32 v{v.bv}, s{sN}")
        A(f"s_bcnt1_i32_b64 s4, vcc")
        A(f"buffer_store_dword v{v.bv}, v{v.bw}, {sr(sWS)}, 0 offen")
        A(f"buffer_load_dword v{v.bl}, v{v.br}, {sr(sWS)}, 0 offen nt")
        if kind == "V":
            A(f"s_cmp_eq_u32 s{sCnt}, {itml}")
            A("s_cbranch_scc1 L_side")
        if lasthi:
            A(f"s_cmp_ge_u32 s{sCnt}, {16 - lasthi}")
            A(f"s_cbranch_scc1 L_{name}hi")
        A(f"s_cmp_ge_u32 s4, s{sThr}")
        A(f"s_cbranch_scc1 L_{name}hi")
        for ver, ww in (("lo", waits), ("hi", whi)):
            if ver == "hi":
                A(f"L_{name}hi:")
                if stamps: A(f"s_add_u32 s{sHi}, s{sHi}, 1")
            body(kind, proc, ww, 2)
            A(f"s_cmp_lg_u32 s{sCnt}, 16")
            A(f"s_cbranch_scc1 L_{name}loop")
            if ver == "lo": A(f"s_branch L_{name}done")
        A(f"L_{name}done:")
    loop("k", "K", procK)
    stamp4(1, 6)
    wk = wkv or waits
    for k in range(P):
        A(f"s_waitcnt vmcnt({wk[k]})")
        issue(k, "V", k)
        procK(128 + k - P, (k - P) & 7)
        if k == 0:
            A(f"v_subrev_u32 v{t+10}, {512*15}, v{v.ta}")
            A(f"ds_read_b64 {vr(v.TV,2)}, v{t+10}")
        if k == 1:
            for r in range(8): A(f"v_mov_b32 v{v.acc+r}, 0")
    for k in range(P, P + XT): issue(k, "V", k)
    finT(1)
    A(f"v_mov_b32 v{v.z}, v{v.p}")
    A(f"v_mov_b32 v{v.ta}, v{t+10}")
    allred("v_max_f32", v.m, v.y0)
    A(f"v_mul_f32 v{v.mL}, s{sL2E}, v{v.m}")
    prep(0)
    sv = L[:]; del L[:]
    lacc()
    A(f"v_sub_f32 v{v.z}, v{v.z}, v{v.mL}")
    A(f"v_exp_f32 v{v.z}, v{v.z}")
    A(f"s_lshl_b32 s5, s{sPh}, 11")
    A(f"s_lshl_b32 s4, s{sWave}, 9")
    A(f"v_mul_f32 v{v.l}, v{v.l}, v{v.z}")
    A(f"s_add_u32 s4, s4, s5")
    A(f"v_lshl_add_u32 v{t+9}, v0, 3, s4")
    allred("v_add_f32", v.l, v.y0)
    A(f"ds_write_b64 v{t+9}, {vr(v.m,2)} offset:{L_M}")
    A(f"v_lshl_add_u32 v{t+10}, v0, 3, s5")
    misc.extend(L); del L[:]; L.extend(sv)
    issued = P + XT
    for k in range(P, 8):
        if k == 7: drain(99)
        if k >= issued:
            A(f"s_waitcnt vmcnt({wk[k]})")
            issue(k, "V", k); issued += 1
        else:
            A(f"s_waitcnt vmcnt({issued - 1 - (k - P)})")
        procV(k - P, k - P)
    A("s_waitcnt lgkmcnt(0)")
    A("s_barrier")
    A(f"s_cmp_eq_u32 s{sWave}, 3")
    A("s_cbranch_scc1 L_pubml")
    A(f"s_lshl_b32 s4, s{sPh}, 1")
    A(f"s_cmp_lt_u32 s{sWave}, s4")
    A("s_cbranch_scc1 L_puba")
    A("L_vent:")
    enter(1)
    stamp4(2, 7)
    loop("v", "V", procV)
    stamp4(3, 8)
    A("L_mlchk:")
    strip(mlr, True)
    check("L_mlretry")
    def mlread():
        A(f"ds_read2st64_b64 {vr(v.D,4)}, v{t+10} offset0:{L_M//512} offset1:{L_M//512+1}")
        A(f"ds_read2st64_b64 {vr(v.D+4,4)}, v{t+10} offset0:{L_M//512+2} offset1:{L_M//512+3}")
    mlread()
    def fact(E):
        sv = L[:]; del L[:]
        A(f"v_mov_b32 v{mlr+2}, v{mlr}")
        allred("v_max_f32", mlr + 2, mlr + 3)
        A(f"v_mul_f32 v{mlr+2}, s{sL2E}, v{mlr+2}")
        A(f"v_fma_f32 v{mlr}, v{mlr}, s{sL2E}, -v{mlr+2}")
        A("s_waitcnt lgkmcnt(0)")
        for w in range(4): A(f"v_fma_f32 v{F+w}, v{v.D+2*w}, s{sL2E}, -v{mlr+2}")
        A(f"v_exp_f32 v{mlr}, v{mlr}")
        for w in range(4): A(f"v_exp_f32 v{F+w}, v{F+w}")
        A(f"v_mul_f32 v{mlr+1}, v{mlr+1}, v{mlr}")
        allred("v_add_f32", mlr + 1, mlr + 3)
        A(f"v_rcp_f32 v{mlr+1}, v{mlr+1}")
        code = L[:]; del L[:]; L.extend(sv)
        for c_ in code: E(c_)
    def gatef(E, g):
        E(f"v_mul_f32 v{mlr+1}, v{mlr+1}, v{g}")
        for w in range(4): E(f"v_mul_f32 v{F+w}, v{F+w}, v{mlr+1}")
    A(f"s_cmp_lg_u32 s{sPh}, 0")
    A("s_cbranch_scc1 L_epi")
    A(f"s_mov_b32 s{sK}, s{sKB}")
    A(f"s_mov_b32 s{sK+1}, s{sKB+1}")
    A(f"s_mov_b32 s{sV}, s{sKB+2}")
    A(f"s_mov_b32 s{sV+1}, s{sKB+3}")
    accaddr()
    fact(M_)
    ga = a
    for k in range(4):
        M_(f"v_lshlrev_b32 v{ga+2*k}, 16, v{gx+k}")
        M_(f"v_and_b32 v{ga+2*k+1}, 0xffff0000, v{gx+k}")
        M_(f"v_lshlrev_b32 v{ga+8+2*k}, 16, v{gx+4+k}")
        M_(f"v_and_b32 v{ga+8+2*k+1}, 0xffff0000, v{gx+4+k}")
    for k in range(8): M_(f"v_mul_f32 v{ga+k}, v{ga+k}, v{ga+8+k}")
    for k in range(8): M_(f"v_cvt_pk_bf16_f32 v{ga+k}, 0, v{ga+k}")
    for k in range(4): M_(f"v_add_f32 v{ga+k}, v{ga+k}, v{ga+4+k}")
    M_(f"v_add_f32 v{ga}, v{ga}, v{ga+2}")
    M_(f"v_add_f32 v{ga+1}, v{ga+1}, v{ga+3}")
    M_(f"v_add_f32 v{ga}, v{ga}, v{ga+1}")
    M_(f"v_add_f32_dpp v{ga}, v{ga}, v{ga} row_ror:4 {DPPM}")
    M_(f"v_add_f32_dpp v{ga}, v{ga}, v{ga} row_ror:8 {DPPM}")
    sv = L[:]; del L[:]; allred("v_add_f32", ga, ga + 1); code = L[:]; del L[:]; L.extend(sv)
    for c_ in code: M_(c_)
    M_(f"v_cvt_pk_bf16_f32 v{ga}, 0, v{ga}")
    M_(f"v_mul_f32 v{ga}, {LOG2E | 0x80000000:#x}, v{ga}")
    M_(f"v_exp_f32 v{ga}, v{ga}")
    M_(f"v_add_f32 v{ga}, 1.0, v{ga}")
    M_(f"v_rcp_f32 v{ga}, v{ga}")
    M_(f"v_cvt_pk_bf16_f32 v{gA}, 0, v{ga}")
    M_(f"v_sub_f32 v{gB}, 1.0, v{gA}")
    M_(f"v_cvt_pk_bf16_f32 v{gB}, 0, v{gB}")
    gatef(M_, gA)
    M_(f"s_lshr_b32 s8, s{sJ}, 3")
    M_(f"s_bfe_u32 s9, s{sJ}, 0x10002")
    M_(f"s_and_b32 s10, s{sJ}, 3")
    M_(f"s_lshl_b32 s12, s{sHkv}, 2")
    M_("s_add_u32 s12, s12, s8")
    M_("s_lshl_b32 s12, s12, 2")
    M_(f"s_add_u32 s12, s12, s{sWave}")
    M_("s_lshl_b32 s12, s12, 3")
    M_("s_add_u32 s12, s12, s9")
    M_("s_lshl_b32 s12, s12, 4")
    M_("s_add_u32 s12, s12, s10")
    M_("s_lshl_b32 s12, s12, 8")
    M_(f"v_and_b32 v{aWO}, 0xff, v{v.lin}")
    M_(f"v_lshl_add_u32 v{aWO}, v{t+6}, 10, v{aWO}")
    M_(f"v_add_u32 v{aWO}, s12, v{aWO}")
    M_(f"s_lshl_b32 s13, s{sWave}, 10")
    M_(f"v_add_u32 v{aLO}, s13, v{v.lin}")
    M_(f"s_lshl_b32 s12, s{sHkv}, 16")
    M_(f"s_add_u32 s12, s12, {WS_O:#x}")
    M_(f"s_lshl_b32 s13, s{sWave}, 13")
    M_("s_add_u32 s13, s13, s12")
    M_(f"s_lshr_b32 s14, s{sWave}, 1")
    M_("s_lshl_b32 s14, s14, 28")
    M_("s_add_u32 s13, s13, s14")
    M_(f"s_and_b32 s14, s{sJ}, 1")
    M_("s_lshl_b32 s14, s14, 10")
    M_("s_add_u32 s13, s13, s14")
    M_(f"s_lshr_b32 s14, s{sJ}, 1")
    M_(f"s_lshl_b32 s14, s14, {6 if run64 else 4}")
    M_("s_add_u32 s13, s13, s14")
    M_(f"v_lshl_add_u32 v{aSO}, v{t+5}, 14, s13")
    M_(f"v_lshl_add_u32 v{aSO}, v{t+6}, 11, v{aSO}")
    M_(f"v_lshl_add_u32 v{aSO}, v{t+7}, {4 if run64 else 8}, v{aSO}")
    M_(f"s_lshr_b32 s11, s{sJ}, 2")
    M_("s_lshl_b32 s13, s11, 2")
    M_(f"s_add_u32 s13, s13, s{sWave}")
    M_("s_lshl_b32 s13, s13, 11")
    M_("s_add_u32 s13, s13, s12")
    if run64 == 2:
        M_(f"v_bfe_u32 v{aBP}, v0, 3, 1")
        M_(f"v_lshl_add_u32 v{aBP}, v{aBP}, 5, v{t+6}")
        M_(f"v_lshlrev_b32 v{aBP}, 2, v{aBP}")
        if wosw:
            M_(f"s_and_b32 s14, s{sWave}, 2")
            M_("s_lshl_b32 s14, s14, 5")
            M_(f"v_xor_b32 v{aBP}, s14, v{aBP}")
        M_(f"v_xor_b32 v{aBP+1}, 64, v{aBP}")
    if run64 == 1:
        M_(f"v_and_b32 v{aPO}, 15, v0")
        M_(f"v_lshl_add_u32 v{aPO}, v{aPO}, 6, s13")
        M_(f"v_lshl_add_u32 v{aPO}, v{t+6}, 4, v{aPO}")
    else:
        M_(f"v_add_u32 v{aPO}, s13, v{v.lin}")
    M_(f"v_add_u32 v{v.aML}, 0x4000, v{v.aML}")
    M_("s_lshl_b32 s13, s10, 3")
    M_(f"s_add_u32 s13, s13, s{sHkv}")
    M_("s_lshl_b32 s13, s13, 3")
    M_("s_add_u32 s13, s13, s11")
    M_("s_lshl_b32 s13, s13, 10")
    M_(f"s_add_u32 s16, s13, {WS_P2:#x}")
    M_("s_mov_b32 s17, 0x80000")
    M_(f"s_lshl_b32 s13, s{sJ}, 16")
    M_(f"s_lshl_b32 s14, s{sHkv}, 7")
    M_("s_add_u32 s13, s13, s14")
    M_(f"s_add_u32 s13, s13, {WS_P2:#x}")
    if c4:
        M_(f"s_lshl_b32 s14, s{sWave}, 5")
        M_("s_add_u32 s13, s13, s14")
        M_(f"v_and_b32 v{aPC}, 0x10, v{v.lin}")
        M_(f"v_lshrrev_b32 v{aOUT}, 1, v0")
        M_(f"v_lshl_add_u32 v{aPC}, v{aOUT}, 10, v{aPC}")
    else:
        M_(f"v_and_b32 v{aPC}, 0x70, v{v.lin}")
        M_(f"v_lshl_add_u32 v{aPC}, v{t+1}, 10, v{aPC}")
    M_(f"v_add_u32 v{aPC}, s13, v{aPC}")
    M_("s_and_b32 s13, s2, 1")
    M_("s_lshl_b32 s13, s13, 10")
    M_("s_lshr_b32 s14, s2, 1")
    M_("s_lshl_b32 s14, s14, 6")
    M_("s_add_u32 s14, s14, s13")
    if c4:
        M_(f"s_lshl_b32 s13, s{sWave}, 2")
        M_("s_add_u32 s14, s14, s13")
    M_(f"v_and_b32 v{aOUT}, 7, v0")
    M_(f"v_lshl_add_u32 v{aOUT}, v{t+6}, 3, v{aOUT}")
    M_(f"v_lshl_add_u32 v{aOUT}, v{aOUT}, 1, s14")
    M_(f"v_or_b32 v{a}, v{v.mask0}, v{v.mask1}")
    M_(f"v_mov_b32 v{a+1}, 0x0c0c0c0c")
    if wosw:
        M_(f"s_bitcmp1_b32 s{sWave}, 0")
        M_("s_cselect_b32 s12, 0x02020202, 0")
        M_("s_xor_b32 s13, s12, 0x03020302")
        M_("s_xor_b32 s12, s12, 0x01000100")
        for k in range(4):
            M_(f"s_xor_b32 s{sKB+k}, s{sWave}, {k}")
            M_(f"s_lshl_b32 s{sKB+k}, s{sKB+k}, 13")
    else:
        M_("s_mov_b32 s12, 0x01000100")
        M_("s_mov_b32 s13, 0x03020302")
        for k in range(4): M_(f"s_mov_b32 s{sKB+k}, {k << 13}")
    M_(f"v_bfi_b32 v{a+2}, v{a}, s12, v{a+1}")
    M_(f"v_bfi_b32 v{a+3}, v{a}, s13, v{a+1}")
    M_(f"v_bfe_u32 v{a}, v0, 1, 2")
    for d in range(4):
        M_(f"v_cmp_eq_u32 vcc, {d}, v{a}")
        M_(f"v_cndmask_b32 v{sb+d}, v{a+1}, v{a+2}, vcc")
        M_(f"v_cndmask_b32 v{sb+4+d}, v{a+1}, v{a+3}, vcc")
    for k in range(1, 8): M_(f"s_mov_b32 s{8+k}, {8192*k:#x}")
    per = -(-len(misc) // 8)
    for k in range(8):
        A(f"s_waitcnt vmcnt({(wvk or whi)[k]})")
        issue(k, "K", k)
        if k < P:
            procV(128 + k - P, (k - P) & 7, end=True)
            if k == P - 2:
                for r in range(4): A(f"v_mov_b32 v{v.q+r}, v{v.qB+r}")
                A(f"v_mov_b32 v{v.m}, 0xff800000")
                A(f"v_mov_b32 v{v.l}, 0")
                A(f"v_subrev_u32 v{v.ta}, {512*15}, v{v.ta}")
        else:
            procK(k - P, k - P)
            if k == P: accout()
        drain(per)
    assert not misc
    if stamps and tst == 4: A(f"s_memrealtime s[{sStamp+8}:{sStamp+9}]")
    A(f"s_mov_b32 s{sPh}, 1")
    enter(1)
    A("s_branch L_kloop")
    A("L_epi:")
    if cut in (1, 4):
        A(f"s_mov_b32 s{sWO+2}, 0")
        A(f"s_mov_b32 s{sWQ+2}, 0")
    def sta():
        A(f"s_cmp_lg_u32 s{sFast}, 0")
        A("s_cbranch_scc0 L_sta_slow")
        A(f"buffer_store_dwordx4 {vr(oA,4)}, v{aSO}, {sr(sWS)}, 0 offen")
        A("L_sta_back:")
    if not aside and not aearly: sta()
    def oald(fl):
        A(f"buffer_load_dwordx4 {vr(gx,4)}, v{aPO}, {sr(sWS)}, 0 offen {fl}")
        A(f"buffer_load_dwordx4 {vr(gx+4,4)}, v{aPO}, {sr(sWS)}, 0 offen offset:1024 {fl}")
    def oprep(base, frag, E):
        for r in range(4): E(f"v_add_f32 v{base+r}, v{base+r}, v{base+4+r}")
        if run64 == 2:
            for r in range(2): E(f"v_permlane16_swap_b32 v{base+r}, v{base+2+r}")
            for r in range(2): E(f"v_add_f32 v{base+r}, v{base+r}, v{base+2+r}")
            for pm in ("row_ror:4", "row_ror:8"):
                for r in range(2): E(f"v_add_f32_dpp v{base+r}, v{base+r}, v{base+r} {pm} {DPPM}")
            E(f"v_cvt_pk_bf16_f32 v{base+2}, v{base}, v{base+1}")
            E(f"ds_bpermute_b32 v{base}, v{aBP}, v{base+2}")
            E(f"ds_bpermute_b32 v{base+1}, v{aBP+1}, v{base+2}")
            E("s_waitcnt lgkmcnt(0)")
        else:
            for pm in ("quad_perm:[1,0,3,2]", "quad_perm:[2,3,0,1]", "row_half_mirror"):
                for r in range(4): E(f"v_add_f32_dpp v{base+r}, v{base+r}, v{base+r} {pm} {DPPM}")
            E(f"v_cvt_pk_bf16_f32 v{base}, v{base}, v{base+1}")
            E(f"v_cvt_pk_bf16_f32 v{base+1}, v{base+2}, v{base+3}")
        for r in range(4):
            for d in range(4): E(f"v_perm_b32 v{frag+4*r+d}, v{base+(r>>1)}, v{base+(r>>1)}, v{sb+4*(r&1)+d}")
    if aearly:
        A("L_oachk:")
        strip(gx, True)
        strip(gx + 4, False)
        check("L_oaretry")
    accaddr()
    fact(M_)
    gatef(M_, gB)
    if aearly: oprep(gx, bA, M_)
    def wold(k):
        so = f"s{sKB + (k & 3)}"
        A(f"buffer_load_dwordx4 {vr(wor+4*k,4)}, v{aWO}, {sr(sWO if k < 4 else sWQ)}, {so} offen {woflags}")
    nwo = 0
    for k in range(woburst): wold(nwo); nwo += 1
    per = -(-len(misc) // (P - 2))
    nx = 0 if (aside or aearly) else 1
    for k in range(-1, P):
        if k >= 0:
            A(f"s_waitcnt vmcnt({(P - 1 - k) + nwo + nx})")
            if nwo < 8 and k >= wodelay: wold(nwo); nwo += 1
        if k == pollak and not aearly:
            afterA = 8 - nwo
            A(f"s_cmp_lg_u32 s{sFast}, 0")
            A("s_cbranch_scc0 L_lda_slow")
            oald("nt")
            A("L_lda_back:")
            nx += 2
        if k < 0: continue
        procV(128 + k - P, (k - P) & 7, end=True)
        drain(per)
    assert not misc
    while nwo < 8: wold(nwo); nwo += 1
    accout()
    stamp(5)
    A(f"s_cmp_ge_u32 s{sWave}, 2")
    A("s_waitcnt lgkmcnt(0)")
    A("s_barrier")
    if cut in (1, 2): A("s_branch L_fin")
    stamp(1, True)
    A("s_cbranch_scc1 L_bfirst" if bafter else "s_cbranch_scc1 L_bsel")
    oo = a
    def stageA(br, dst):
        for w in range(4): A(f"ds_read_b128 {vr(oo+4*w,4)}, v{aLO} offset:{L_O+8192*br+2048*w}")
        A(f"s_cmp_lg_u32 s{sFast}, 0")
        for w in range(4):
            A(f"s_waitcnt lgkmcnt({0 if stamps else 3-w})")
            for r in range(4):
                if w == 0: A(f"v_mul_f32 v{oo+r}, v{oo+r}, v{F}")
                else: A(f"v_fmac_f32 v{oo+r}, v{oo+4*w+r}, v{F+w}")
        for r in range(4): A(f"v_and_or_b32 v{dst+r}, v{oo+r}, v{c00}, s{sTag+r}")
    stageA(1, oo)
    A("s_cbranch_scc0 L_oslow")
    A(f"buffer_store_dwordx4 {vr(oo,4)}, v{aSO}, {sr(sWS)}, s17 offen")
    pa = a + 16
    bb = a + 24
    def bpoll(fl):
        A(f"buffer_load_dwordx4 {vr(pa,4)}, v{aPO}, {sr(sWS)}, s17 offen {fl}")
        A(f"buffer_load_dwordx4 {vr(pa+4,4)}, v{aPO}, {sr(sWS)}, s17 offen offset:1024 {fl}")
    A("L_bfirst:")
    stamp(6)
    if not bafter: bpoll("nt")
    A("L_bmfa:")
    nb = 0 if bafter else 2
    if not aearly:
        A(f"s_waitcnt vmcnt({afterA + nb})")
        A("L_oachk:")
        strip(gx, True)
        strip(gx + 4, False)
        check("L_oaretry")
        oprep(gx, bA, A)
    if bafter:
        A(f"s_cmp_lg_u32 s{sFast}, 0")
        A("s_cbranch_scc0 L_bp_slow")
        bpoll("nt")
        A("L_bp_back:")
    A("s_waitcnt vmcnt(6)")
    for r in range(4):
        c = "0" if r == 0 else vr(v.D, 4)
        A(f"v_mfma_f32_16x16x32_bf16 {vr(v.D,4)}, {vr(wor+4*r,4)}, {vr(bA+4*r,4)}, {c}")
    if tst == 2:
        A("s_waitcnt vmcnt(2)")
        stamp(2, 2)
        A("s_waitcnt vmcnt(0)")
        stamp(3, 2)
    A("L_bchk:")
    A("s_waitcnt vmcnt(1)")
    strip(pa, True)
    A("s_waitcnt vmcnt(0)")
    strip(pa + 4, False)
    check("L_bretry")
    A("s_mov_b64 exec, -1")
    stamp(7)
    code = []
    oprep(pa, bb, code.append)
    for c_ in code[:-12]: A(c_)
    for r in range(4):
        for c_ in code[len(code) - 12 + 4 * r: len(code) - 8 + 4 * r]: A(c_)
        A(f"v_mfma_f32_16x16x32_bf16 {vr(v.D,4)}, {vr(wor+16+4*r,4)}, {vr(bb+4*r,4)}, {vr(v.D,4)}")
    A(f"s_cmp_lg_u32 s{sWave}, 0")
    A(f"ds_write_b128 v{aLP}, {vr(v.D,4)} offset:{L_P}")
    stamp(4, True)
    A("s_waitcnt lgkmcnt(0)")
    A("s_barrier")
    A("s_cbranch_scc1 L_cother" if c4 else "s_cbranch_scc1 L_fin")
    for w in range(1, 4): A(f"ds_read_b128 {vr(a+4*w,4)}, v{v.lin} offset:{L_P+1024*w}")
    A("s_cmp_ge_u32 s2, 32")
    A("s_waitcnt lgkmcnt(0)")
    for r in range(4): A(f"v_add_f32 v{a+4+r}, v{a+4+r}, v{v.D+r}")
    for r in range(4): A(f"v_add_f32 v{a+8+r}, v{a+8+r}, v{a+12+r}")
    for r in range(4): A(f"v_add_f32 v{a+4+r}, v{a+4+r}, v{a+8+r}")
    for r in range(4): A(f"v_and_or_b32 v{a+4+r}, v{a+4+r}, v{c00}, s{sTag+r}")
    A(f"buffer_store_dwordx4 {vr(a+4,4)}, v{v.lin}, {sr(sWS)}, s16 offen sc1")
    stamp(2, True)
    A("s_cbranch_scc1 L_fin")
    if amp:
        A("s_cmp_ge_u32 s2, 8")
        A("s_cbranch_scc1 L_noamp")
        A("s_getreg_b32 s84, hwreg(HW_REG_XCC_ID)")
        A("s_and_b32 s84, s84, 7")
        A("s_lshl_b32 s84, s84, 7")
        A("s_add_u32 s84, s84, 0x60000")
        A(f"v_mov_b32 v{v.W}, s80")
        A(f"v_mov_b32 v{v.W+1}, s82")
        A("s_mov_b64 exec, 1")
        A(f"buffer_store_dwordx2 {vr(v.W,2)}, v0, {sr(sWS)}, s84 offen sc1")
        A("s_mov_b64 exec, -1")
        A("L_noamp:")
    pc = a + 8
    if cwait: A("s_waitcnt vmcnt(0)")
    A("L_cbar:")
    mk = 0x00030003 if c4 else 0x00ff00ff
    A(f"s_mov_b32 s4, {mk:#x}")
    A(f"s_mov_b32 s5, {mk:#x}")
    if c4 and cwait == 1: A("s_barrier")
    stamp(3, True)
    A("L_cpoll:")
    nl = 2 if c4 else 8
    for k in range(nl): A(f"buffer_load_dwordx4 {vr(pc+4*k,4)}, v{aPC}, {sr(sWS)}, {'s%d' % (8+(4*k if c4 else k)) if k else 0} offen sc1")
    for k in range(nl):
        A(f"s_waitcnt vmcnt({nl-1-k})")
        strip(pc + 4 * k, k == 0)
    check("L_cretry")
    A("s_mov_b64 exec, -1")
    stamp(8)
    for n_ in ((4,) if c4 else (16, 8, 4)):
        for r in range(n_): A(f"v_add_f32 v{pc+r}, v{pc+r}, v{pc+n_+r}")
    for r in range(2): A(f"v_permlane32_swap_b32 v{pc+r}, v{pc+2+r}")
    for r in range(2): A(f"v_add_f32 v{pc+r}, v{pc+r}, v{pc+2+r}")
    A(f"v_permlane16_swap_b32 v{pc}, v{pc+1}")
    A(f"v_add_f32 v{pc}, v{pc}, v{pc+1}")
    A(f"v_add_f32_dpp v{pc}, v{pc}, v{pc} row_ror:8 {DPPM}")
    if c4:
        A(f"v_add_f32_dpp v{pc}, v{pc}, v{pc} row_ror:4 {DPPM}")
        A(f"v_add_f32_dpp v{pc}, v{pc}, v{pc} quad_perm:[2,3,0,1] {DPPM}")
    A(f"v_cvt_pk_bf16_f32 v{pc}, v{pc}, v{pc}")
    A("s_mov_b64 exec, s[4:5]")
    A(f"buffer_store_short v{pc}, v{aOUT}, {sr(sOUT)}, 0 offen")
    A(f"s_or_b32 s4, s2, s{sWave}")
    A("s_cbranch_scc1 L_fin")
    A("s_mov_b64 exec, 1")
    A(f"v_mov_b32 v{pc+1}, s{sE}")
    A(f"buffer_store_dword v{pc+1}, v0, {sr(sWS)}, 0 offen")
    if amp:
        A("s_memrealtime s[90:91]")
        A("L_amp1:")
        A("s_memrealtime s[98:99]")
        A("s_waitcnt lgkmcnt(0)")
        A("s_sub_u32 s98, s98, s80")
        A("s_cmp_lt_u32 s98, 9000")
        A("s_cbranch_scc1 L_amp1")
        A("s_mov_b64 exec, -1")
        A(f"v_lshlrev_b32 v{v.W}, 7, v0")
        A("s_mov_b32 s84, 0x60000")
        A(f"buffer_load_dwordx2 {vr(v.W+2,2)}, v{v.W}, {sr(sWS)}, s84 offen sc1")
        A("s_waitcnt vmcnt(0)")
        ka, xa, kb, xb, off = amp
        if ka == 2: A("s_mov_b32 s86, s90")
        else: A(f"v_readlane_b32 s86, v{v.W+2+ka}, {xa}")
        A(f"v_readlane_b32 s87, v{v.W+2+kb}, {xb}")
        A("s_nop 4")
        A("s_sub_u32 s86, s86, s87")
        A(f"s_sub_u32 s86, s86, {off}")
        A("s_mul_i32 s86, s86, 10")
        A("s_add_u32 s86, s86, 13000")
        A("s_max_i32 s86, s86, 9000")
        A("s_min_i32 s86, s86, 30000")
        A("L_amp2:")
        A("s_memrealtime s[98:99]")
        A("s_waitcnt lgkmcnt(0)")
        A("s_sub_u32 s98, s98, s80")
        A("s_cmp_lt_u32 s98, s86")
        A("s_cbranch_scc1 L_amp2")
    if probe:
        A("L_probe:")
        A("s_memrealtime s[98:99]")
        A("s_waitcnt lgkmcnt(0)")
        A("s_sub_u32 s98, s98, s100")
        A(f"s_cmp_lt_u32 s98, {probe}")
        A("s_cbranch_scc1 L_probe")
    A("L_fin:")
    if stamps:
        A("s_mov_b64 exec, 1")
        stamp(9)
        A("s_waitcnt lgkmcnt(0)")
        A(f"s_lshl_b32 s{sTmp}, s2, 2")
        A(f"s_add_u32 s{sTmp}, s{sTmp}, s{sWave}")
        A(f"s_lshl_b32 s{sTmp}, s{sTmp}, 6")
        A(f"s_add_u32 s{sTmp}, s{sTmp}, {WS_ST}")
        A("s_getreg_b32 s4, hwreg(HW_REG_XCC_ID)")
        A("s_getreg_b32 s5, hwreg(HW_REG_HW_ID)")
        b = v.buf
        for k in range(10): A(f"v_mov_b32 v{b+k}, s{sStamp+2*k}")
        A(f"v_mov_b32 v{b+10}, s4")
        A(f"v_mov_b32 v{b+11}, s5")
        A(f"v_mov_b32 v{b+12}, s{sSpin}")
        A(f"v_mov_b32 v{b+13}, s{sHi}")
        A(f"v_mov_b32 v{b+14}, s{sFast}")
        for k in range(4): A(f"buffer_store_dwordx4 {vr(b+4*k,4)}, v0, {sr(sWS)}, s{sTmp} offen offset:{16*k}")
    A("L_end:")
    A("s_endpgm")
    def spinchk():
        A(f"s_sub_u32 s{sSpin}, s{sSpin}, 1")
        A("s_cbranch_scc1 L_end")
    A("L_bretry:")
    spinchk()
    A("s_mov_b64 exec, vcc")
    A(f"s_cmp_lg_u32 s{sFast}, 0")
    A("s_cbranch_scc0 L_bretry_slow")
    bpoll("nt")
    A("s_branch L_bchk")
    if c4:
        A("L_cother:")
        A("s_cmp_ge_u32 s2, 32")
        A("s_cbranch_scc1 L_fin")
        A("s_branch L_cbar")
    A("L_cretry:")
    spinchk()
    A("s_mov_b64 exec, vcc")
    A("s_branch L_cpoll")
    A("L_bsel:")
    A(f"s_cmp_lg_u32 s{sFast}, 0")
    A("s_cbranch_scc1 L_bfirst")
    A("s_branch L_bslow")
    A("L_oslow:")
    A(f"buffer_store_dwordx4 {vr(oo,4)}, v{aSO}, {sr(sWS)}, s17 offen sc1")
    A("L_bslow:")
    stamp(6)
    if not bafter: bpoll("sc1")
    A("s_branch L_bmfa")
    if bafter:
        A("L_bp_slow:")
        bpoll("sc1")
        A("s_branch L_bp_back")
    A("L_bretry_slow:")
    bpoll("sc1")
    A("s_branch L_bchk")
    def mlld(fl): A(f"buffer_load_dwordx4 {vr(mlr,4)}, v{v.aML}, {sr(sWS)}, 0 offen {fl}")
    A("L_side:")
    if aearly:
        A(f"s_cmp_lg_u32 s{sPh}, 0")
        A("s_cbranch_scc0 L_side5")
        A(f"s_cmp_lg_u32 s{sFast}, 0")
        A("s_cbranch_scc0 L_lda_slow")
        oald("nt")
        A("L_lda_back:")
        A("s_branch L_side4")
        A("L_side5:")
    A("s_lshr_b32 s5, s2, 7")
    A("s_lshl_b32 s5, s5, 10")
    if aside and not aearly:
        A(f"s_cmp_lg_u32 s{sPh}, 0")
        A("s_cbranch_scc0 L_side0")
        if p2t:
            A(f"v_lshrrev_b32 v{gx}, 2, v{aLO}")
            A(f"buffer_load_dword v{gx}, v{gx}, {sr(sWS)}, s16 offen")
        elif obt:
            A(f"buffer_load_dword v{gx}, v{aSO}, {sr(sWS)}, s17 offen {tchflags}")
        else:
            A(f"buffer_load_dwordx4 {vr(gx,4)}, v{v.lin}, {sr(sX)}, s5 offen")
        sta()
        A("s_branch L_side4")
        A("L_side0:")
    A(f"buffer_load_dwordx4 {vr(gx,4)}, v{v.lin}, {sr(sX)}, s5 offen")
    A(f"buffer_load_dwordx4 {vr(gx+4,4)}, v{v.lin}, {sr(sGW)}, 0 offen")
    A("L_side4:")
    A(f"s_cmp_lg_u32 s{sFast}, 0")
    A("s_cbranch_scc1 L_side1")
    mlld("sc1")
    A("s_branch L_sidebody")
    A("L_side1:")
    mlld("nt")
    A("L_sidebody:")
    assert itml < 15
    body("V", procV, waits, 5)
    A("s_branch L_vloop")
    for nm, ld, back in (("ml", mlld, "L_mlchk"), ("oa", oald, "L_oachk")):
        A(f"L_{nm}retry:")
        spinchk()
        A(f"s_cmp_lg_u32 s{sFast}, 0")
        A(f"s_cbranch_scc0 L_{nm}retry_slow")
        ld("nt")
        A("s_waitcnt vmcnt(0)")
        A(f"s_branch {back}")
        A(f"L_{nm}retry_slow:")
        ld("sc1")
        A("s_waitcnt vmcnt(0)")
        A(f"s_branch {back}")
    A("L_pubml:")
    mlread()
    A(f"v_lshl_add_u32 v{v.y0}, v{t+6}, 2, v{t+7}")
    A(f"s_and_b32 s4, s{sJ}, 15")
    A(f"v_cmp_eq_u32 vcc, s4, v{v.y0}")
    A("s_waitcnt lgkmcnt(0)")
    A(f"v_max3_f32 v{v.y0}, v{v.D}, v{v.D+2}, v{v.D+4}")
    A(f"v_max_f32 v{v.y0}, v{v.y0}, v{v.D+6}")
    A(f"v_mul_f32 v{v.y1}, s{sL2E}, v{v.y0}")
    for w in range(4): A(f"v_fma_f32 v{v.D+2*w}, v{v.D+2*w}, s{sL2E}, -v{v.y1}")
    for w in range(4): A(f"v_exp_f32 v{v.D+2*w}, v{v.D+2*w}")
    A(f"v_mul_f32 v{v.D+1}, v{v.D}, v{v.D+1}")
    for w in range(1, 4): A(f"v_fmac_f32 v{v.D+1}, v{v.D+2*w}, v{v.D+2*w+1}")
    A(f"v_or_b32 v{v.D}, s{sTag}, v{v.y0}")
    A(f"v_and_or_b32 v{v.D+1}, v{v.D+1}, v{c00}, s{sTag+1}")
    A(f"v_mov_b32 v{v.D+2}, s{sTag+2}")
    A(f"v_mov_b32 v{v.D+3}, s{sTag+3}")
    A("s_mov_b64 exec, vcc")
    A(f"s_cmp_lg_u32 s{sFast}, 0")
    A("s_cbranch_scc0 L_pubml_slow")
    A(f"buffer_store_dwordx4 {vr(v.D,4)}, v{v.aML}, {sr(sWS)}, 0 offen")
    A("s_mov_b64 exec, -1")
    A("s_branch L_vent")
    A("L_pubml_slow:")
    A(f"buffer_store_dwordx4 {vr(v.D,4)}, v{v.aML}, {sr(sWS)}, 0 offen sc1")
    A("s_mov_b64 exec, -1")
    A("s_branch L_vent")
    A("L_puba:")
    stageA(0, oA)
    if aearly: sta()
    A("s_branch L_vent")
    A("L_sta_slow:")
    A(f"buffer_store_dwordx4 {vr(oA,4)}, v{aSO}, {sr(sWS)}, 0 offen sc1")
    A("s_branch L_sta_back")
    A("L_lda_slow:")
    oald("sc1")
    A("s_branch L_lda_back")
    A("L_qslow:")
    A(f"s_cmp_lg_u32 s{sWave}, 0")
    A("s_cbranch_scc1 L_qretry")
    A(f"buffer_store_dword v{v.e0}, v{v.e1}, {sr(sWS)}, 0 offen sc1")
    A("L_qretry:")
    spinchk(); qpoll()
    A("s_waitcnt vmcnt(0)")
    qacc()
    A(f"v_and_b32 v{t+10}, 0x1fff, v{t+8}")
    A(f"v_cmp_ne_u32 vcc, 0, v{t+10}")
    A("s_cbranch_vccnz L_qretry")
    A(f"v_and_b32 v{t+10}, 0xe000, v{t+8}")
    A("L_last:")
    A(f"v_cmp_ne_u32 vcc, 0, v{t+10}")
    A("s_branch L_qok")
    code_ = []
    cnt = 0; npad = 0; on = False
    for ln in pad([x for x in L if x != "@PAD"]):
        isins = ln.startswith("    ")
        if warm and (("only warms" in (code_[-1] if code_ else "")) or (on and isins and cnt >= warm)):
            on = True; cnt = 0
            code_.append(f"L_pad{npad}:")
            code_.append(f"    s_cbranch_execz @T{npad}")
            npad += 1
        code_.append(ln)
        cnt += isins
    if warm and helper:
        for k in range(npad):
            tgt = "L_end" if k == npad - 1 else ("L_hbar" if k == hbar else f"L_pad{k+1}")
            code_ = [x.replace(f"@T{k}", tgt) if x.endswith(f"@T{k}") else x for x in code_]
        code_ += ["L_hbar:", "    s_barrier", f"    s_branch L_pad{hbar+1}"]
    elif warm:
        i0 = code_.index("L_pad0:"); del code_[i0:i0+2]
        for k in range(1, npad):
            tgt = f"L_pad{k+4}" if k + 4 < npad else "L_wret"
            code_ = [x.replace(f"@T{k}", tgt) if x.endswith(f"@T{k}") else x for x in code_]
        for w in range(4): code_ = [x.replace(f"L_seg{w}", f"L_pad{w+1}") for x in code_]
    ref = open(os.path.join(os.path.dirname(os.path.abspath(__file__)), "header.txt")).read().rstrip("\n").split("\n")
    out = ref + [f"; @launch grid=(256,1,1) block=({320 if (warm and helper) else 256},1,1) lds={L_SZ}",
                 '.amdgcn_target "amdgcn-amd-amdhsa--gfx950"', ".text", f".globl {KNAME}", ".p2align 8",
                 f".type {KNAME},@function"] + code_
    acc = (NV + 3) // 4 * 4
    out += ['.section .rodata,"a"', ".p2align 6", f".amdhsa_kernel {KNAME}",
            f"  .amdhsa_next_free_vgpr {NV}", "  .amdhsa_next_free_sgpr 102", f"  .amdhsa_accum_offset {acc}",
            "  .amdhsa_group_segment_fixed_size 0", "  .amdhsa_kernarg_size 112", "  .amdhsa_user_sgpr_count 2",
            "  .amdhsa_user_sgpr_kernarg_segment_ptr 1", "  .amdhsa_system_sgpr_workgroup_id_x 1",
            "  .amdhsa_float_denorm_mode_32 3", ".end_amdhsa_kernel"]
    return "\n".join(out) + "\n"

if __name__ == "__main__":
    kw = eval("dict(" + (sys.argv[1] if len(sys.argv) > 1 else "") + ")")
    sys.stdout.write(gen(**kw))
```

```python
import sys, os
sys.path.insert(0, os.path.dirname(os.path.abspath(__file__)))
from hz import pad

KNAME = "gated_mix__gqa_block_cached__gqa_block_cached__decode_kernel"
LOG2E = 0x3fb8aa3b
SCALE = 0x3db504f3

WS_Q  = 0x10000
WS_ML = 0x30000
WS_B  = 0x40000
WS_O  = 0x100000
WS_P2 = 0x80000
WS_ST = 0x300000
WS_SZ = 0x400000
L_T, L_O, L_M, L_P, L_SZ = 0, 32768, 49152, 53248, 57344
DPPM = "row_mask:0xf bank_mask:0xf"
PAT1 = "k0 s0 k1 s1 w0 g0 s3 s2 g1 n3 w1 n1 n2 n0 k2"


DOC = """
; ---------------------------------------------------------------------------------------------------------
; out = g*Attn_A(x) + (1-g)*Attn_B(x), one fused launch, 256 workgroups (one per CU) x 4 streaming waves.
; workgroup w: kv head hkv = w&7, j = w>>3 = (batch b, split s of 16); the 32 workgroups with equal hkv form a "set".
;
; 1. q projection: each workgroup computes 32 columns of x@wq (both batches), rounds to bf16 and hands them to
;    its set. K loads already stream into a register backlog meanwhile.
; 2. four streaming phases K_A, V_A, K_B, V_B (one array at a time chip-wide, keys visited in a DRAM friendly
;    permutation, about five 1-KiB loads in flight per wave, data goes straight from HBM into MFMA operands):
;      K phase: scores = bf16(bf16(q.k)*Dh^-0.5) -> LDS, running max / sum of exp per lane
;      V phase: p = exp(score - max of this wave's keys) (exact max), O += p*V
;    (max, sum) of every workgroup are exchanged inside the set during the V phase.
; 3. tail: partial O * g * exp(m-M)/L -> set; every workgroup adds 16 splits, rounds o to bf16 and multiplies
;    with a 64x128 tile of wo_A and of wo_B; 32 workgroups add the 64 partial rows and store bf16.
;
; Hand-offs through d_ws are self-validating: the low bits of every dword carry a tag derived from an epoch word
; (d_ws[0], read on entry, incremented once at the end), so words left by the harness or an earlier launch are
; never taken for this launch's data. Tags are removed before use: results do not depend on d_ws contents.
; Hand-offs inside a set use the XCD's L2 (plain stores, L1-bypassing loads) only if all 32 workgroups reported
; the same XCC id together with their q columns; under any other placement device-scope (sc1) stores and loads are used.
; The last hand-off is always device scope.
; Progress board: a per-XCD line with the loop counters of the workgroups on that XCD. It is a speed hint only: a
; wave that finds most of its neighbours ahead keeps six loads in flight instead of five for one iteration.
; Wave 4 touches no data: it walks the code once with EXEC = 0 (pad to pad) to fill the instruction cache and exits.
; ---------------------------------------------------------------------------------------------------------
""".strip().split("\n")

def gen(NPL=40, waits=(4,)*8, whi=(5,)*8, wepi=None, R=3, XB=2, XT=2, P0=3, pollak=-1, tlb=3, cpf=1, wosw=1, XQ=0, wcat=(5,)*8, warm=96, hbar=3, helper=1, cpfe=0, c4=1, cwait=1, p2t=0, obt=0, sti=(16, 24, 32), KF=0, KM=0, qt=0, qloc=1, lasthi=0, CU=16, bafter=1, aside=1, run64=2, aearly=0, thr=(23, 30), wpro=None, wkv=None, pat=PAT1,
        wqflags="nt", woflags="nt", kvflags="nt", tchflags="nt", fast=1, touch=0, woburst=0, itml=12, wqfirst=0, wodelay=0, wvk=None,
        stamps=False, tst=False, spin=1 << 22, cut=0, probe=0, amp=None, ampat=5):
    P = max(max(waits), max(whi)) + 1
    if wepi is None: wepi = (P - 1,) * 8
    assert run64 == 2 and NPL % 8 == 0 and P + XT <= 8 and 5 <= P <= 6
    pos = {n: 8 + i for i, n in enumerate(pat.split())}
    assert len(pos) == 15
    def dep(c, val, nb): return sum(((val >> i) & 1) << pos[f"{c}{i}"] for i in range(nb))
    L = []
    def A(s): L.append(s)
    class V: pass
    v = V(); nv = [0]
    def valloc(name, n=1, al=1):
        nv[0] = (nv[0] + al - 1) // al * al
        setattr(v, name, nv[0]); nv[0] += n
    for nm in ("tid", "koff", "voff", "lin", "mask0", "mask1"): valloc(nm)
    valloc("T", 2, 2); valloc("TV", 2, 2)
    valloc("m", 2, 2); v.l = v.m + 1
    for nm in ("ta", "mL", "e0", "e1", "e2", "y0", "y1", "z", "p", "pd", "bw", "br", "bv", "bl", "aML", "c00"): valloc(nm)
    valloc("q", 4, 2); valloc("qB", 4, 2); valloc("acc", 8, 2); valloc("D", 8, 2)
    valloc("W", 18, 2)
    valloc("t", 12, 2)
    valloc("buf", max(4 * NPL, 160), 4)
    NV = nv[0]
    assert NV <= 256, NV
    def vr(a, n): return f"v[{a}:{a+n-1}]"
    wqr = v.buf + max(4 * NPL, 160) - 32
    xr = wqr - 16
    wor = v.buf + 32
    gx = v.buf + 64
    sb = v.buf + 72
    mlr = v.buf + 80
    (aWO, aLO, aSO, aPO, aPC, aOUT, gA, gB, F) = range(v.buf + 84, v.buf + 93)
    aLP = aLO
    c00 = v.c00
    bA = v.buf + 96
    oA = v.buf + 112
    aBP = v.buf + 116
    a = v.buf + 118
    assert a + 42 <= NV
    sK, sV, sWQ, sWO, sWS, sX, sGW, sOUT = 20, 24, 28, 32, 36, 40, 44, 48
    sWave, sOff, sCnt, sE, sL2E, sTmp, sTmp2, sSpin, sPh = 3, 52, 53, 54, 55, 56, 57, 58, 59
    sQ1, sQ2, sQ3 = 60, 62, 64
    sHi, sFast = 66, 67
    sTag, sTag16, sNo, sN, sThr = 68, 72, 73, 74, 75
    sKB = 76
    sHkv, sJ = 6, 7
    sQT = 96
    sStamp = 80
    def sr(a, n=4): return f"s[{a}:{a+n-1}]"
    def stamp3(k):
        if stamps and tst == 3: A(f"s_memrealtime s[{sStamp+2*k}:{sStamp+2*k+1}]")
    def stamp4(ka, kb):
        if stamps and tst == 4:
            n_ = len(L)
            A(f"s_cmp_lg_u32 s{sPh}, 0")
            A(f"s_cbranch_scc1 L_st{n_}")
            A(f"s_memrealtime s[{sStamp+2*ka}:{sStamp+2*ka+1}]")
            A(f"L_st{n_}:")
            A(f"s_memrealtime s[{sStamp+2*kb}:{sStamp+2*kb+1}]")
    def stamp(k, tail=False):
        if amp and k == ampat and not tail: A("s_memrealtime s[82:83]")
        if tst in (3, 4) and k in (6, 7, 8): return
        if stamps and (k not in (1, 2, 3, 4) or tail == tst or (tst == 2 and tail is True and k in (1, 4))): A(f"s_memrealtime s[{sStamp+2*k}:{sStamp+2*k+1}]")
    def sdep(dst, src, c, nb, first, tmp):
        groups = {}
        for i in range(nb): groups.setdefault(pos[f"{c}{i}"] - i, []).append(i)
        for sh, bits in groups.items():
            d = dst if first else tmp
            A(f"s_and_b32 s{d}, s{src}, {sum(1 << i for i in bits)}")
            A(f"s_lshl_b32 s{d}, s{d}, {sh}")
            if not first: A(f"s_add_u32 s{dst}, s{dst}, s{tmp}")
            first = False

    A(f"{KNAME}:")
    A("s_cmp_ge_u32 s2, 256")
    A("s_cbranch_scc1 L_end")
    stamp(0)
    if probe: A("s_memrealtime s[100:101]")
    if amp: A("s_memrealtime s[80:81]")
    A("s_lshr_b32 s4, s2, 7")
    A("s_mul_i32 s4, s4, 40")
    A("s_add_u32 s4, s0, s4")
    A("s_addc_u32 s5, s1, 0")
    A("s_load_dwordx2 s[12:13], s[4:5], 24")
    A(f"s_load_dwordx2 {sr(sX,2)}, s[0:1], 0")
    A("s_load_dwordx4 s[8:11], s[0:1], 8           ; K_A, V_A")
    A(f"s_load_dwordx2 {sr(sWS,2)}, s[0:1], 104")
    A(f"s_load_dwordx4 {sr(sKB)}, s[0:1], 48       ; K_B, V_B")
    A("s_load_dwordx4 s[16:19], s[0:1], 80")
    A(f"s_load_dwordx2 {sr(sWO,2)}, s[0:1], 32     ; wo_A")
    A("s_load_dwordx2 s[14:15], s[0:1], 72         ; wo_B")
    t = v.t
    A(f"v_lshrrev_b32 v{t}, 6, v0")
    A(f"v_and_b32 v0, 63, v0")
    A(f"v_readfirstlane_b32 s{sWave}, v{t}")
    if cpfe:
        A("s_getpc_b64 s[84:85]")
        A("L_pc:")
        A(f"s_sub_u32 s84, s84, L_pc-{KNAME}")
        A("s_subb_u32 s85, s85, 0")
        A("s_lshr_b32 s86, s2, 3")
        A("s_lshl_b32 s86, s86, 2")
        A(f"s_add_u32 s86, s86, s{sWave}")
        A("s_lshl_b32 s86, s86, 7")
        A(f"s_min_u32 s86, s86, L_last-{KNAME}")
        if cpfe == 1: A("s_load_dword s87, s[84:85], s86")
    if warm and helper:
        A(f"v_cmp_gt_u32 vcc, 4, v{t}")
        A("s_mov_b64 exec, vcc                         ; wave 4 only warms the instruction cache: EXEC = 0, hops pad to pad")
        A("@PAD")
    A(f"v_lshrrev_b32 v{t+1}, 3, v0")
    A(f"v_lshl_add_u32 v{t+2}, v{t}, 3, v{t+1}")
    A(f"v_and_b32 v{t+3}, 7, v0")
    A(f"v_lshlrev_b32 v{t+3}, 3, v{t+3}")
    A(f"v_lshl_add_u32 v{t+3}, v{t+2}, 17, v{t+3}")
    A(f"v_bfe_u32 v{t+4}, v0, 2, 1")
    A(f"v_lshlrev_b32 v{t+8}, 10, v{t+4}")
    A(f"v_lshl_add_u32 v{t+8}, v{t+2}, 5, v{t+8}")
    A(f"s_and_b32 s{sHkv}, s2, 7")
    A(f"s_lshr_b32 s{sJ}, s2, 3")
    A(f"s_and_b32 s{sTmp}, s{sJ}, 15")
    A(f"s_lshl_b32 s{sTmp}, s{sTmp}, 6")
    A(f"s_lshl_b32 s{sTmp2}, s{sHkv}, 10")
    A(f"s_add_u32 s{sTmp}, s{sTmp}, s{sTmp2}")
    A(f"s_mov_b32 s{sX+2}, 2048")
    A(f"s_mov_b32 s{sX+3}, 0x20000")
    A(f"s_mov_b32 s{sWQ+2}, 0x400000")
    A(f"s_mov_b32 s{sWQ+3}, 0x20000")
    A(f"s_lshr_b32 s{sTmp2}, s2, 7")
    A(f"s_lshl_b32 s{sTmp2}, s{sTmp2}, 3")
    A(f"s_add_u32 s{sTmp2}, s{sTmp2}, s{sHkv}")
    A(f"s_lshl_b32 s{sTmp2}, s{sTmp2}, 23")
    A(f"s_mov_b32 s{sK+2}, 0x800000")
    A(f"s_mov_b32 s{sK+3}, 0x20000")
    sdep(sNo, sWave, "w", 2, True, sCnt)
    sdep(sNo, sJ, "s", 4, False, sCnt)
    A(f"v_bfe_u32 v{t+5}, v0, 2, 2")
    A(f"v_lshrrev_b32 v{t+6}, 4, v0")
    A(f"v_and_b32 v{t+7}, 3, v0")
    A(f"v_lshlrev_b32 v{v.lin}, 4, v0")
    A(f"v_lshl_add_u32 v{v.koff}, v{t+6}, 6, s{sNo}")
    A(f"v_lshl_add_u32 v{v.koff}, v{t+7}, 4, v{v.koff}")
    A(f"v_lshl_add_u32 v{v.koff}, v{t+4}, {pos['g0']}, v{v.koff}")
    A(f"v_bfe_u32 v{t+9}, v0, 3, 1")
    A(f"v_lshl_add_u32 v{v.koff}, v{t+9}, {pos['g1']}, v{v.koff}")
    last = [None]
    def issue(i, kind, sl, loop=False):
        kd = dep("k", i & 7, 3)
        c = kd if loop else kd + dep("n", i >> 3, 4)
        imm, hi = c & 0xfff, c & ~0xfff
        if loop:
            if hi == 0: so = f"s{sNo}"
            else:
                if last[0] != ("l", hi): A(f"s_add_u32 s{sOff}, s{sNo}, {hi:#x}")
                last[0] = ("l", hi); so = f"s{sOff}"
        else:
            if hi == 0: so = "0"
            else:
                if last[0] != ("c", hi): A(f"s_mov_b32 s{sOff}, {hi:#x}")
                last[0] = ("c", hi); so = f"s{sOff}"
        if i & 7 == 7: last[0] = None
        off = f" offset:{imm}" if imm else ""
        r = v.buf + 4 * sl
        if kind == "K": A(f"buffer_load_dwordx4 {vr(r,4)}, v{v.koff}, {sr(sK)}, {so} offen{off} {kvflags}")
        else:           A(f"buffer_load_dwordx4 {vr(r,4)}, v{v.voff}, {sr(sV)}, {so} offen{off} {kvflags}")
    A("s_waitcnt lgkmcnt(0)")
    A(f"s_add_u32 s{sK}, s8, s{sTmp2}")
    A(f"s_addc_u32 s{sK+1}, s9, 0")
    for k in range(KF): issue(k, "K", k)
    stamp3(1)
    if cpfe == 2: A("s_load_dword s87, s[84:85], s86")
    A(f"s_mov_b32 s{sWQ}, s12")
    A(f"s_mov_b32 s{sWQ+1}, s13")
    for tt in range(16):
        if tt == wqfirst:
            A(f"buffer_load_dwordx4 {vr(xr,4)}, v{t+8}, {sr(sX)}, 0 offen")
            A(f"buffer_load_dwordx4 {vr(xr+4,4)}, v{t+8}, {sr(sX)}, 0 offen offset:16")
        A(f"buffer_load_dwordx2 {vr(wqr+2*tt,2)}, v{t+3}, {sr(sWQ)}, s{sTmp} offen {wqflags}")
        if tt < 15: A(f"s_add_u32 s{sTmp}, s{sTmp}, 8192")
        if tt == 7:
            for k in range(KF, KF + KM): issue(k, "K", k)
    assert wqfirst <= 2
    A(f"s_mov_b32 s{sWQ}, s14                      ; this descriptor now serves wo_B")
    A(f"s_mov_b32 s{sWQ+1}, s15")
    A(f"s_load_dword s{sE}, {sr(sWS,2)}, 0")
    if qt:
        A(f"s_lshr_b32 s{sTmp}, s2, 7")
        A(f"s_lshl_b32 s{sTmp}, s{sTmp}, 3")
        A(f"s_add_u32 s{sTmp}, s{sTmp}, s{sHkv}")
        A(f"s_lshl_b32 s{sTmp}, s{sTmp}, 1")
        A(f"s_and_b32 s4, s{sWave}, 1")
        A(f"s_add_u32 s{sTmp}, s{sTmp}, s4")
        A(f"s_lshl_b32 s{sTmp}, s{sTmp}, 4")
        A(f"s_and_b32 s4, s{sJ}, 15")
        A(f"s_add_u32 s{sTmp}, s{sTmp}, s4")
        A(f"s_lshl_b32 s{sTmp}, s{sTmp}, 7")
        A(f"s_add_u32 s{sTmp}, s{sTmp}, {WS_Q:#x}")
        A(f"s_load_dword s101, {sr(sWS,2)}, s{sTmp}")
    for k in range(KF + KM, KF + KM + P0): issue(k, "K", k)
    A(f"v_and_b32 v{v.voff}, 0xff, v{v.lin}")
    A(f"v_add_u32 v{v.voff}, s{sNo}, v{v.voff}")
    A(f"v_bfe_u32 v{t+8}, v0, 4, 1")
    A(f"v_lshl_add_u32 v{v.voff}, v{t+8}, {pos['g0']}, v{v.voff}")
    A(f"v_lshrrev_b32 v{t+8}, 5, v0")
    A(f"v_lshl_add_u32 v{v.voff}, v{t+8}, {pos['g1']}, v{v.voff}")
    A(f"s_add_u32 s{sV}, s10, s{sTmp2}")
    A(f"s_addc_u32 s{sV+1}, s11, 0")
    A(f"s_add_u32 s{sKB}, s{sKB}, s{sTmp2}")
    A(f"s_addc_u32 s{sKB+1}, s{sKB+1}, 0")
    A(f"s_add_u32 s{sKB+2}, s{sKB+2}, s{sTmp2}")
    A(f"s_addc_u32 s{sKB+3}, s{sKB+3}, 0")
    sel = xr + 8; bq = xr + 12
    for s_, b0, n_ in ((sV, None, 0x800000), (sWS, None, WS_SZ), (sWO, None, 0x400000), (sGW, 16, 1024), (sOUT, 18, 2048)):
        if b0 is not None:
            A(f"s_mov_b32 s{s_}, s{b0}")
            A(f"s_mov_b32 s{s_+1}, s{b0+1}")
        A(f"s_mov_b32 s{s_+2}, {n_:#x}")
        A(f"s_mov_b32 s{s_+3}, 0x20000")
    A(f"s_mov_b32 s{sL2E}, {LOG2E:#x}")
    A(f"s_mov_b32 s{sPh}, 0")
    for k, s in ((1, sQ1), (2, sQ2), (3, sQ3)):
        A(f"s_mov_b32 s{s}, {0x11111111 << k:#x}")
        A(f"s_mov_b32 s{s+1}, {0x11111111 << k:#x}")
    A(f"v_mov_b32 v{t+8}, 0xffff")
    A(f"v_mov_b32 v{t+9}, 0xffff0000")
    A(f"v_cndmask_b32 v{v.mask1}, 0, v{t+8}, {sr(sQ2,2)}")
    A(f"v_cndmask_b32 v{v.mask1}, v{v.mask1}, v{t+9}, {sr(sQ3,2)}")
    A(f"v_cndmask_b32 v{v.mask0}, v{t+8}, v{t+9}, {sr(sQ1,2)}")
    A(f"v_cmp_gt_u32 vcc, 2, v{t+7}")
    A(f"v_cndmask_b32 v{v.mask0}, 0, v{v.mask0}, vcc")
    A(f"s_mov_b32 s{sTmp}, 0x01000100")
    A(f"s_mov_b32 s{sTmp2}, 0x03020302")
    A(f"v_mov_b32 v{t+8}, 0x0c0c0c0c")
    A(f"v_bfi_b32 v{sel}, v{v.mask0}, s{sTmp}, v{t+8}")
    A(f"v_bfi_b32 v{sel+1}, v{v.mask1}, s{sTmp}, v{t+8}")
    A(f"v_bfi_b32 v{sel+2}, v{v.mask0}, s{sTmp2}, v{t+8}")
    A(f"v_bfi_b32 v{sel+3}, v{v.mask1}, s{sTmp2}, v{t+8}")
    for k in range(18):
        if k % 4 < 2: A(f"v_mov_b32 v{v.W+k}, 0")
    A(f"v_mov_b32 v{v.m}, 0xff800000")
    A(f"v_mov_b32 v{v.l}, 0")
    A(f"v_mov_b32 v{v.e1}, 0x7ffffff0")
    A(f"v_lshlrev_b32 v{v.ta}, 3, v0")
    A(f"v_lshl_add_u32 v{v.ta}, v{t}, 13, v{v.ta}")
    A(f"v_lshl_add_u32 v{t+8}, v{t}, 10, v{v.lin}")
    A("s_getreg_b32 s8, hwreg(HW_REG_XCC_ID)")
    A("s_and_b32 s8, s8, 7")
    if warm and not helper:
        A("s_mov_b64 exec, 0")
        for w in range(1, 4):
            A(f"s_cmp_eq_u32 s{sWave}, {w}")
            A(f"s_cbranch_scc1 L_seg{w}")
        A("s_branch L_seg0")
        A("L_wret:")
        A("s_mov_b64 exec, -1                          ; only warms")
    i = KF + KM + P0
    for m in range(8):
        A(f"s_waitcnt vmcnt({14 - 2*m + i - KF - (KM if m >= 4 else 0)})")
        if m == 0: stamp3(2)
        if m == 7: stamp3(3)
        if m >= 8 - (max(waits) + 1) + P0:
            issue(i, "K", i); i += 1
        for k in range(4):
            A(f"v_perm_b32 v{bq+k}, v{xr+m}, v{xr+m}, v{sel+k}")
        c = "0" if m == 0 else vr(v.D, 4)
        A(f"v_mfma_f32_16x16x32_bf16 {vr(v.D,4)}, {vr(wqr+4*m,4)}, {vr(bq,4)}, {c}")
    stamp(1)
    for k in range(XB):
        issue(i, "K", i); i += 1
    A(f"ds_write_b128 v{t+8}, {vr(v.D,4)} offset:{L_P}")
    A(f"v_bfe_u32 v{t+9}, v0, 4, 1")
    A(f"v_lshlrev_b32 v{t+9}, 8, v{t+9}")
    A(f"v_lshrrev_b32 v{t+10}, 5, v0")
    A(f"v_lshl_add_u32 v{t+9}, v{t+10}, 6, v{t+9}")
    A(f"v_lshl_add_u32 v{t+9}, v{t+7}, 4, v{t+9}")
    A(f"v_lshl_add_u32 v{t+9}, v{t+5}, 2, v{t+9}")
    A("s_waitcnt lgkmcnt(0)")
    A("s_barrier")
    A(f"s_add_u32 s{sE}, s{sE}, 1")
    A(f"s_cmp_lg_u32 s{sWave}, 0")
    A("s_cbranch_scc1 L_nopub")
    qr = wqr
    for w in range(4):
        for r1 in range(2):
            A(f"ds_read_b32 v{qr+2*w+r1}, v{t+9} offset:{L_P + 1024*w + 640*r1}")
    A(f"s_lshr_b32 s{sTmp}, s2, 7")
    A(f"s_lshl_b32 s{sTmp}, s{sTmp}, 3")
    A(f"s_add_u32 s{sTmp}, s{sTmp}, s{sHkv}")
    A(f"s_lshl_b32 s{sTmp}, s{sTmp}, 12")
    A(f"s_and_b32 s{sTmp2}, s{sJ}, 15")
    A(f"s_lshl_b32 s{sTmp2}, s{sTmp2}, 7")
    A(f"s_add_u32 s{sTmp}, s{sTmp}, s{sTmp2}")
    A(f"s_add_u32 s{sTmp}, s{sTmp}, {WS_Q:#x}")
    A(f"v_and_b32 v{t+11}, 31, v0")
    A(f"v_lshlrev_b32 v{t+11}, 2, v{t+11}")
    A(f"v_lshl_add_u32 v{t+11}, v{t+10}, 11, v{t+11}")
    A(f"v_mad_u32_u24 v{t+10}, v{t+7}, 37, s{sE}")
    A(f"v_and_b32 v{t+10}, 0x1fff, v{t+10}")
    A(f"v_lshl_or_b32 v{t+10}, s8, 13, v{t+10}")
    A("s_waitcnt lgkmcnt(0)")
    for k in range(4): A(f"v_add_f32 v{qr+k}, v{qr+k}, v{qr+4+k}")
    A(f"v_add_f32 v{qr}, v{qr}, v{qr+2}")
    A(f"v_add_f32 v{qr+1}, v{qr+1}, v{qr+3}")
    A(f"v_add_f32 v{qr}, v{qr}, v{qr+1}")
    A(f"v_cvt_pk_bf16_f32 v{qr}, 0, v{qr}")
    A(f"v_or_b32 v{v.e0}, v{t+10}, v{qr}")
    A(f"v_add_u32 v{v.e1}, s{sTmp}, v{t+11}")
    A(f"buffer_store_dword v{v.e0}, v{v.e1}, {sr(sWS)}, 0 offen{'' if qloc else ' sc1'}")
    A("L_nopub:")
    stamp(2)
    A("; ---- paced fill of the K backlog, set-up work in between, q hand-off ----")
    misc = []
    M_ = misc.append
    for k in range(4):
        M_(f"s_add_u32 s{sTag+k}, s{sE}, {37*k}")
        M_(f"s_and_b32 s{sQT+k}, s{sTag+k}, 0x1fff")
        M_(f"s_and_b32 s{sTag+k}, s{sTag+k}, 0xff")
        M_(f"s_lshl_b32 s4, s8, 13")
        M_(f"s_or_b32 s{sQT+k}, s{sQT+k}, s4")
    M_(f"v_lshl_add_u32 v{t+9}, v{t+5}, 2, v{t+6}")
    M_(f"v_lshlrev_b32 v{t+9}, 7, v{t+9}")
    M_(f"v_lshl_add_u32 v{t+9}, v{t+7}, 5, v{t+9}")
    M_(f"s_lshl_b32 s{sTmp}, s{sHkv}, 1")
    M_(f"s_lshr_b32 s{sTmp2}, s2, 7")
    M_(f"s_add_u32 s{sTmp}, s{sTmp}, s{sTmp2}")
    M_(f"s_lshl_b32 s{sTmp}, s{sTmp}, 11")
    M_(f"s_add_u32 s{sTmp}, s{sTmp}, {WS_Q:#x}")
    M_(f"s_add_u32 s{sTmp2}, s{sTmp}, 32768")
    M_(f"s_mov_b32 s{sSpin}, {spin}")
    if tlb:
        M_(f"s_lshl_b32 s9, s{sWave}, 21")
        M_(f"s_load_dword s10, {sr(sV,2)}, s9")
        M_(f"s_load_dword s11, {sr(sKB,2)}, s9")
        M_(f"s_load_dword s12, {sr(sKB+2,2)}, s9")
        M_(f"s_lshl_b32 s13, s{sHkv}, 19")
        M_(f"s_load_dword s14, {sr(sWO,2)}, s13")
        M_(f"s_load_dword s15, {sr(sWQ,2)}, s13")
        if tlb > 1: M_(f"s_load_dword s16, {sr(sK,2)}, s9")
        if tlb > 2:
            M_(f"s_lshl_b32 s100, s{sJ}, 5")
            M_(f"s_load_dword s100, {sr(sGW,2)}, s100")
        if tlb > 3: M_(f"s_load_dword s101, {sr(sOUT,2)}, 0")
    if cpf and not cpfe:
        M_("s_getpc_b64 s[18:19]")
        M_("L_pc:")
        M_(f"s_sub_u32 s18, s18, L_pc-{KNAME}")
        M_("s_subb_u32 s19, s19, 0")
        M_(f"s_lshl_b32 s17, s{sJ}, 2")
        M_(f"s_add_u32 s17, s17, s{sWave}")
        M_("s_lshl_b32 s17, s17, 7")
        M_(f"s_min_u32 s17, s17, L_last-{KNAME}")
        M_("s_load_dword s17, s[18:19], s17")
    t8 = tuple(thr) * (8 // len(thr))
    M_("s_lshl_b32 s4, s8, 2")
    M_(f"s_lshr_b32 s4, {sum((x - 18) << (4*k) for k, x in enumerate(t8)):#x}, s4")
    M_("s_and_b32 s4, s4, 15")
    M_(f"s_add_u32 s{sThr}, s4, 18")
    M_("s_lshl_b32 s4, s8, 12")
    M_(f"s_add_u32 s4, s4, {WS_B:#x}")
    M_(f"v_lshl_add_u32 v{v.br}, v0, 2, s4")
    M_(f"v_mov_b32 v{v.bl}, 0x7ffffff0")
    M_(f"v_cmp_gt_u32 vcc, 32, v0")
    M_(f"s_lshl_b32 s5, s{sWave}, 6")
    M_(f"s_add_u32 s5, s5, s{sJ}")
    M_(f"v_cndmask_b32 v{v.br}, v{v.bl}, v{v.br}, vcc")
    M_(f"v_cmp_eq_u32 vcc, s5, v0")
    M_(f"s_lshl_b32 s{sN}, s{sE}, 12")
    M_(f"s_mov_b32 s{sHi}, 0")
    M_(f"v_cndmask_b32 v{v.bw}, v{v.bl}, v{v.br}, vcc")
    M_(f"v_add_u32 v{v.bl}, s{sN}, v{v.bl}")
    M_(f"s_lshl_b32 s4, s{sHkv}, 11")
    M_(f"s_lshr_b32 s5, s2, 7")
    M_("s_lshl_b32 s5, s5, 10")
    M_("s_add_u32 s4, s4, s5")
    M_(f"s_add_u32 s4, s4, {WS_ML:#x}")
    M_(f"v_add_u32 v{v.aML}, s4, v{v.lin}")
    M_(f"v_mov_b32 v{c00}, 0xffffff00")
    def drain(n):
        for _ in range(n):
            if misc:
                s_ = misc.pop(0); A(s_)
                if s_.startswith(("s_bitcmp", "s_cmp", "s_getpc", "s_sub_u32 s18")): A(misc.pop(0))
    qp = v.acc
    assert v.D == v.acc + 8 and v.qB == v.q + 4
    def qpoll(fl="sc1"):
        A(f"buffer_load_dwordx4 {vr(qp,4)}, v{t+9}, {sr(sWS)}, s{sTmp} offen {fl}")
        A(f"buffer_load_dwordx4 {vr(qp+4,4)}, v{t+9}, {sr(sWS)}, s{sTmp} offen offset:16 {fl}")
        A(f"buffer_load_dwordx4 {vr(qp+8,4)}, v{t+9}, {sr(sWS)}, s{sTmp2} offen {fl}")
        A(f"buffer_load_dwordx4 {vr(qp+12,4)}, v{t+9}, {sr(sWS)}, s{sTmp2} offen offset:16 {fl}")
    ipoll = NPL - P - XQ
    while i < NPL - XQ:
        n = (wpro or waits)[i & 7]
        if i > ipoll and i - n - 1 < ipoll: n += 4
        A(f"s_waitcnt vmcnt({n})")
        if i == ipoll:
            assert not misc
            qpoll("nt" if qloc else "sc1")
        if i in sti: stamp3((4, 6, 7)[sti.index(i)])
        issue(i, "K", i); i += 1
        drain(6 if NPL > 24 else 9)
    A(f"s_waitcnt vmcnt({P})")
    def qacc():
        A(f"v_xor_b32 v{t+8}, s{sQT}, v{qp}")
        for k in range(1, 16): A(f"v_bitop3_b32 v{t+8}, v{qp+k}, s{sQT+(k&3)}, v{t+8} bitop3:0xbe")
    qacc()
    A(f"v_and_b32 v{t+10}, 0xffff, v{t+8}")
    A(f"v_cmp_ne_u32 vcc, 0, v{t+10}")
    A("s_cbranch_vccnz L_qslow")
    A("L_qok:")
    A(f"s_mov_b32 s4, 0x07060302")
    for k in range(8): A(f"v_perm_b32 v{v.q+k}, v{qp+2*k+1}, v{qp+2*k}, s4")
    A("s_cmp_eq_u64 vcc, 0")
    A(f"s_cselect_b32 s{sFast}, {fast}, 0")
    while i < NPL:
        A(f"s_waitcnt vmcnt({(wcat or waits)[i & 7]})")
        issue(i, "K", i); i += 1
    stamp(3)
    def red(u, T):
        D = v.D + 4 * (u & 1)
        A(f"v_add_f32_dpp v{v.y0}, v{D+(u^1)}, v{D+u} quad_perm:[1,0,3,2] {DPPM}")
        A(f"v_add_f32_dpp v{v.y1}, v{D+(u^3)}, v{D+(u^2)} quad_perm:[1,0,3,2] {DPPM}")
        dst = T if u == 0 else v.z
        A(f"v_add_f32_dpp v{dst}, v{v.y1}, v{v.y0} quad_perm:[2,3,0,1] {DPPM}")
        if u: A(f"v_cndmask_b32 v{T}, v{T}, v{v.z}, {sr((sQ1,sQ2,sQ3)[u-1],2)}")
    def finT(par):
        T = v.T + par
        red(3, T)
        A(f"v_cvt_pk_bf16_f32 v{T}, 0, v{T}")
        A(f"v_mul_f32 v{T}, {SCALE:#x}, v{T}")
        A(f"v_cvt_pk_bf16_f32 v{T}, 0, v{T}")
        if par:
            A(f"v_mul_f32 v{v.e2}, s{sL2E}, v{v.m}")
            A(f"v_max3_f32 v{v.m}, v{v.T}, v{v.T+1}, v{v.m}")
            A(f"ds_write_b64 v{v.ta}, {vr(v.T,2)}")
            A(f"v_mul_f32 v{v.p}, s{sL2E}, v{v.m}")
            A(f"v_add_u32 v{v.ta}, 512, v{v.ta}")
            A(f"v_fma_f32 v{v.e0}, v{v.T}, s{sL2E}, -v{v.p}")
            A(f"v_fma_f32 v{v.e1}, v{v.T+1}, s{sL2E}, -v{v.p}")
            A(f"v_sub_f32 v{v.e2}, v{v.e2}, v{v.p}")
    def lacc():
        A(f"v_exp_f32 v{v.e0}, v{v.e0}")
        A(f"v_exp_f32 v{v.e2}, v{v.e2}")
        A(f"v_exp_f32 v{v.e1}, v{v.e1}")
        A(f"v_fma_f32 v{v.l}, v{v.l}, v{v.e2}, v{v.e0}")
        A(f"v_add_f32 v{v.l}, v{v.l}, v{v.e1}")
    def procK(j, sl):
        u = j & 3
        A(f"v_mfma_f32_16x16x32_bf16 {vr(v.D+4*(u&1),4)}, {vr(v.buf+4*sl,4)}, {vr(v.q,4)}, 0")
        if u >= 1: red(u - 1, v.T + ((j >> 2) & 1))
        elif j > 0: finT(((j >> 2) - 1) & 1)
        if j & 7 == 1 and j > 1: lacc()
    def ands(u):
        w = v.W + 2 + 4 * u
        A(f"v_and_b32_dpp v{w}, v{v.pd}, v{v.mask0} quad_perm:[{u},{u},{u},{u}] {DPPM}")
        A(f"v_and_b32_dpp v{w+1}, v{v.pd}, v{v.mask1} quad_perm:[{u},{u},{u},{u}] {DPPM}")
    def prep(par, nextread=True):
        if par == 0: A("s_waitcnt lgkmcnt(0)")
        A(f"v_fma_f32 v{v.p}, v{v.TV+par}, s{sL2E}, -v{v.mL}")
        A(f"v_exp_f32 v{v.p}, v{v.p}")
        if par == 1 and nextread:
            A(f"v_add_u32 v{v.ta}, 512, v{v.ta}")
            A(f"ds_read_b64 {vr(v.TV,2)}, v{v.ta}")
        A(f"v_cvt_pk_bf16_f32 v{v.pd}, v{v.p}, v{v.p}")
        ands(0)
    def procV(j, sl, end=False):
        u = j & 3
        w = v.W + 4 * u
        A(f"v_mfma_f32_16x16x32_bf16 {vr(v.acc,4)}, {vr(v.buf+4*sl,4)}, {vr(w+2,4)}, {vr(v.acc,4)}")
        A(f"v_mfma_f32_16x16x32_bf16 {vr(v.acc+4,4)}, {vr(v.buf+4*sl,4)}, {vr(w,4)}, {vr(v.acc+4,4)}")
        if end and j >= 124: return
        if u < 3: ands(u + 1)
        else:
            prep(((j >> 2) + 1) & 1, nextread=not (end and j == 123))
            if end and j == 123:
                ands(1); ands(2); ands(3)
    def allred(op, r, tmp):
        A(f"{op}_dpp v{r}, v{r}, v{r} quad_perm:[1,0,3,2] {DPPM}")
        A(f"{op}_dpp v{r}, v{r}, v{r} quad_perm:[2,3,0,1] {DPPM}")
        A(f"v_mov_b32 v{tmp}, v{r}")
        A(f"v_permlane16_swap_b32 v{tmp}, v{r}")
        A(f"{op} v{r}, v{r}, v{tmp}")
        A(f"v_mov_b32 v{tmp}, v{r}")
        A(f"v_permlane32_swap_b32 v{tmp}, v{r}")
        A(f"{op} v{r}, v{r}, v{tmp}")
    def accaddr():
        A(f"s_lshl_b32 s4, s{sPh}, 2")
        A(f"s_add_u32 s4, s4, s{sWave}")
        A(f"s_lshl_b32 s5, s4, 11")
        A(f"v_add_u32 v{t+9}, s5, v{v.lin}")
    def accout():
        A(f"ds_write_b128 v{t+9}, {vr(v.acc,4)} offset:{L_O}")
        A(f"ds_write_b128 v{t+9}, {vr(v.acc+4,4)} offset:{L_O+1024}")
    def strip(base, first, emit=None):
        E = emit or A
        for r in range(4): E(f"v_xor_b32 v{base+r}, s{sTag+r}, v{base+r}")
        if first: E(f"v_or_b32 v{t+11}, v{base}, v{base+1}")
        else: E(f"v_or3_b32 v{t+11}, v{base}, v{base+1}, v{t+11}")
        E(f"v_or3_b32 v{t+11}, v{base+2}, v{base+3}, v{t+11}")
    def check(label):
        A(f"v_and_b32 v{t+11}, 0xff, v{t+11}")
        A(f"v_cmp_ne_u32 vcc, 0, v{t+11}")
        A(f"s_cbranch_vccnz {label}")
    A("; ---- catch-up: consume the backlog while the stream goes on ----")
    slotof = {k: k for k in range(NPL)}
    def newslot(i): return (i - NPL) if i < NPL + CU else (i & 7)
    j = 0
    landed = i - P
    while not (j == i - P and i % 8 == 0 and j >= NPL + (CU if CU > 8 else 0)):
        s = newslot(i)
        own = max(k for k in slotof if slotof[k] == s)
        while j <= own:
            assert j < landed, "catch-up needs data not yet landed"
            procK(j, slotof[j]); j += 1
        A(f"s_waitcnt vmcnt({(wcat or waits)[i&7]})")
        landed = max(landed, i - (wcat or waits)[i & 7])
        slotof[i] = s
        issue(i, "K", s); i += 1
        n = 0
        while n < R and j < i - P:
            assert j < landed
            procK(j, slotof[j]); j += 1; n += 1
    assert i < 128
    def enter(n):
        A(f"s_mov_b32 s{sCnt}, {n}")
        A(f"s_mov_b32 s{sNo}, {dep('n', n, 4):#x}")
    enter(i // 8)
    stamp(4); stamp3(8)
    def body(kind, proc, ww, extra):
        for k in range(8):
            n = ww[k] + (extra if k <= ww[k] else 0)
            issue(k, kind, k, loop=True)
            L.insert(len(L) - 1, f"s_waitcnt vmcnt({n})")
            if k == 7:
                A(f"s_add_u32 s{sCnt}, s{sCnt}, 1")
                sdep(sNo, sCnt, "n", 4, True, 4)
            proc(16 + k - P, (k - P) & 7)
    def loop(name, kind, proc):
        A(".p2align 6")
        A(f"L_{name}loop:")
        A(f"v_subrev_u32 v{v.bv}, s{sN}, v{v.bl}")
        A(f"s_add_u32 s{sN}, s{sN}, 1")
        A(f"v_cmp_gt_u32 vcc, 64, v{v.bv}")
        A(f"v_mov_b32 v{v.bv}, s{sN}")
        A(f"s_bcnt1_i32_b64 s4, vcc")
        A(f"buffer_store_dword v{v.bv}, v{v.bw}, {sr(sWS)}, 0 offen")
        A(f"buffer_load_dword v{v.bl}, v{v.br}, {sr(sWS)}, 0 offen nt")
        if kind == "V":
            A(f"s_cmp_eq_u32 s{sCnt}, {itml}")
            A("s_cbranch_scc1 L_side")
        if lasthi:
            A(f"s_cmp_ge_u32 s{sCnt}, {16 - lasthi}")
            A(f"s_cbranch_scc1 L_{name}hi")
        A(f"s_cmp_ge_u32 s4, s{sThr}")
        A(f"s_cbranch_scc1 L_{name}hi")
        for ver, ww in (("lo", waits), ("hi", whi)):
            if ver == "hi":
                A(f"L_{name}hi:")
                if stamps: A(f"s_add_u32 s{sHi}, s{sHi}, 1")
            body(kind, proc, ww, 2)
            A(f"s_cmp_lg_u32 s{sCnt}, 16")
            A(f"s_cbranch_scc1 L_{name}loop")
            if ver == "lo": A(f"s_branch L_{name}done")
        A(f"L_{name}done:")
    A("; ---- K loop (lo: 5 loads in flight, hi: 6) ----")
    loop("k", "K", procK)
    stamp4(1, 6)
    wk = wkv or waits
    for k in range(P):
        A(f"s_waitcnt vmcnt({wk[k]})")
        issue(k, "V", k)
        procK(128 + k - P, (k - P) & 7)
        if k == 0:
            A(f"v_subrev_u32 v{t+10}, {512*15}, v{v.ta}")
            A(f"ds_read_b64 {vr(v.TV,2)}, v{t+10}")
        if k == 1:
            for r in range(8): A(f"v_mov_b32 v{v.acc+r}, 0")
    for k in range(P, P + XT): issue(k, "V", k)
    finT(1)
    A(f"v_mov_b32 v{v.z}, v{v.p}")
    A(f"v_mov_b32 v{v.ta}, v{t+10}")
    allred("v_max_f32", v.m, v.y0)
    A(f"v_mul_f32 v{v.mL}, s{sL2E}, v{v.m}")
    prep(0)
    sv = L[:]; del L[:]
    lacc()
    A(f"v_sub_f32 v{v.z}, v{v.z}, v{v.mL}")
    A(f"v_exp_f32 v{v.z}, v{v.z}")
    A(f"s_lshl_b32 s5, s{sPh}, 11")
    A(f"s_lshl_b32 s4, s{sWave}, 9")
    A(f"v_mul_f32 v{v.l}, v{v.l}, v{v.z}")
    A(f"s_add_u32 s4, s4, s5")
    A(f"v_lshl_add_u32 v{t+9}, v0, 3, s4")
    allred("v_add_f32", v.l, v.y0)
    A(f"ds_write_b64 v{t+9}, {vr(v.m,2)} offset:{L_M}")
    A(f"v_lshl_add_u32 v{t+10}, v0, 3, s5")
    misc.extend(L); del L[:]; L.extend(sv)
    issued = P + XT
    for k in range(P, 8):
        if k == 7: drain(99)
        if k >= issued:
            A(f"s_waitcnt vmcnt({wk[k]})")
            issue(k, "V", k); issued += 1
        else:
            A(f"s_waitcnt vmcnt({issued - 1 - (k - P)})")
        procV(k - P, k - P)
    A("s_waitcnt lgkmcnt(0)")
    A("s_barrier")
    A(f"s_cmp_eq_u32 s{sWave}, 3")
    A("s_cbranch_scc1 L_pubml")
    A(f"s_lshl_b32 s4, s{sPh}, 1")
    A(f"s_cmp_lt_u32 s{sWave}, s4")
    A("s_cbranch_scc1 L_puba")
    A("L_vent:")
    enter(1)
    stamp4(2, 7)
    A("; ---- V loop ----")
    loop("v", "V", procV)
    stamp4(3, 8)
    A("L_mlchk:")
    strip(mlr, True)
    check("L_mlretry")
    def mlread():
        A(f"ds_read2st64_b64 {vr(v.D,4)}, v{t+10} offset0:{L_M//512} offset1:{L_M//512+1}")
        A(f"ds_read2st64_b64 {vr(v.D+4,4)}, v{t+10} offset0:{L_M//512+2} offset1:{L_M//512+3}")
    mlread()
    def fact(E):
        sv = L[:]; del L[:]
        A(f"v_mov_b32 v{mlr+2}, v{mlr}")
        allred("v_max_f32", mlr + 2, mlr + 3)
        A(f"v_mul_f32 v{mlr+2}, s{sL2E}, v{mlr+2}")
        A(f"v_fma_f32 v{mlr}, v{mlr}, s{sL2E}, -v{mlr+2}")
        A("s_waitcnt lgkmcnt(0)")
        for w in range(4): A(f"v_fma_f32 v{F+w}, v{v.D+2*w}, s{sL2E}, -v{mlr+2}")
        A(f"v_exp_f32 v{mlr}, v{mlr}")
        for w in range(4): A(f"v_exp_f32 v{F+w}, v{F+w}")
        A(f"v_mul_f32 v{mlr+1}, v{mlr+1}, v{mlr}")
        allred("v_add_f32", mlr + 1, mlr + 3)
        A(f"v_rcp_f32 v{mlr+1}, v{mlr+1}")
        code = L[:]; del L[:]; L.extend(sv)
        for c_ in code: E(c_)
    def gatef(E, g):
        E(f"v_mul_f32 v{mlr+1}, v{mlr+1}, v{g}")
        for w in range(4): E(f"v_mul_f32 v{F+w}, v{F+w}, v{mlr+1}")
    A(f"s_cmp_lg_u32 s{sPh}, 0")
    A("s_cbranch_scc1 L_epi")
    A(f"s_mov_b32 s{sK}, s{sKB}")
    A(f"s_mov_b32 s{sK+1}, s{sKB+1}")
    A(f"s_mov_b32 s{sV}, s{sKB+2}")
    A(f"s_mov_b32 s{sV+1}, s{sKB+3}")
    accaddr()
    fact(M_)
    ga = a
    for k in range(4):
        M_(f"v_lshlrev_b32 v{ga+2*k}, 16, v{gx+k}")
        M_(f"v_and_b32 v{ga+2*k+1}, 0xffff0000, v{gx+k}")
        M_(f"v_lshlrev_b32 v{ga+8+2*k}, 16, v{gx+4+k}")
        M_(f"v_and_b32 v{ga+8+2*k+1}, 0xffff0000, v{gx+4+k}")
    for k in range(8): M_(f"v_mul_f32 v{ga+k}, v{ga+k}, v{ga+8+k}")
    for k in range(8): M_(f"v_cvt_pk_bf16_f32 v{ga+k}, 0, v{ga+k}")
    for k in range(4): M_(f"v_add_f32 v{ga+k}, v{ga+k}, v{ga+4+k}")
    M_(f"v_add_f32 v{ga}, v{ga}, v{ga+2}")
    M_(f"v_add_f32 v{ga+1}, v{ga+1}, v{ga+3}")
    M_(f"v_add_f32 v{ga}, v{ga}, v{ga+1}")
    M_(f"v_add_f32_dpp v{ga}, v{ga}, v{ga} row_ror:4 {DPPM}")
    M_(f"v_add_f32_dpp v{ga}, v{ga}, v{ga} row_ror:8 {DPPM}")
    sv = L[:]; del L[:]; allred("v_add_f32", ga, ga + 1); code = L[:]; del L[:]; L.extend(sv)
    for c_ in code: M_(c_)
    M_(f"v_cvt_pk_bf16_f32 v{ga}, 0, v{ga}")
    M_(f"v_mul_f32 v{ga}, {LOG2E | 0x80000000:#x}, v{ga}")
    M_(f"v_exp_f32 v{ga}, v{ga}")
    M_(f"v_add_f32 v{ga}, 1.0, v{ga}")
    M_(f"v_rcp_f32 v{ga}, v{ga}")
    M_(f"v_cvt_pk_bf16_f32 v{gA}, 0, v{ga}")
    M_(f"v_sub_f32 v{gB}, 1.0, v{gA}")
    M_(f"v_cvt_pk_bf16_f32 v{gB}, 0, v{gB}")
    gatef(M_, gA)
    M_(f"s_lshr_b32 s8, s{sJ}, 3")
    M_(f"s_bfe_u32 s9, s{sJ}, 0x10002")
    M_(f"s_and_b32 s10, s{sJ}, 3")
    M_(f"s_lshl_b32 s12, s{sHkv}, 2")
    M_("s_add_u32 s12, s12, s8")
    M_("s_lshl_b32 s12, s12, 2")
    M_(f"s_add_u32 s12, s12, s{sWave}")
    M_("s_lshl_b32 s12, s12, 3")
    M_("s_add_u32 s12, s12, s9")
    M_("s_lshl_b32 s12, s12, 4")
    M_("s_add_u32 s12, s12, s10")
    M_("s_lshl_b32 s12, s12, 8")
    M_(f"v_and_b32 v{aWO}, 0xff, v{v.lin}")
    M_(f"v_lshl_add_u32 v{aWO}, v{t+6}, 10, v{aWO}")
    M_(f"v_add_u32 v{aWO}, s12, v{aWO}")
    M_(f"s_lshl_b32 s13, s{sWave}, 10")
    M_(f"v_add_u32 v{aLO}, s13, v{v.lin}")
    M_(f"s_lshl_b32 s12, s{sHkv}, 16")
    M_(f"s_add_u32 s12, s12, {WS_O:#x}")
    M_(f"s_lshl_b32 s13, s{sWave}, 13")
    M_("s_add_u32 s13, s13, s12")
    M_(f"s_lshr_b32 s14, s{sWave}, 1")
    M_("s_lshl_b32 s14, s14, 28")
    M_("s_add_u32 s13, s13, s14")
    M_(f"s_and_b32 s14, s{sJ}, 1")
    M_("s_lshl_b32 s14, s14, 10")
    M_("s_add_u32 s13, s13, s14")
    M_(f"s_lshr_b32 s14, s{sJ}, 1")
    M_(f"s_lshl_b32 s14, s14, {6 if run64 else 4}")
    M_("s_add_u32 s13, s13, s14")
    M_(f"v_lshl_add_u32 v{aSO}, v{t+5}, 14, s13")
    M_(f"v_lshl_add_u32 v{aSO}, v{t+6}, 11, v{aSO}")
    M_(f"v_lshl_add_u32 v{aSO}, v{t+7}, {4 if run64 else 8}, v{aSO}")
    M_(f"s_lshr_b32 s11, s{sJ}, 2")
    M_("s_lshl_b32 s13, s11, 2")
    M_(f"s_add_u32 s13, s13, s{sWave}")
    M_("s_lshl_b32 s13, s13, 11")
    M_("s_add_u32 s13, s13, s12")
    if run64 == 2:
        M_(f"v_bfe_u32 v{aBP}, v0, 3, 1")
        M_(f"v_lshl_add_u32 v{aBP}, v{aBP}, 5, v{t+6}")
        M_(f"v_lshlrev_b32 v{aBP}, 2, v{aBP}")
        if wosw:
            M_(f"s_and_b32 s14, s{sWave}, 2")
            M_("s_lshl_b32 s14, s14, 5")
            M_(f"v_xor_b32 v{aBP}, s14, v{aBP}")
        M_(f"v_xor_b32 v{aBP+1}, 64, v{aBP}")
    if run64 == 1:
        M_(f"v_and_b32 v{aPO}, 15, v0")
        M_(f"v_lshl_add_u32 v{aPO}, v{aPO}, 6, s13")
        M_(f"v_lshl_add_u32 v{aPO}, v{t+6}, 4, v{aPO}")
    else:
        M_(f"v_add_u32 v{aPO}, s13, v{v.lin}")
    M_(f"v_add_u32 v{v.aML}, 0x4000, v{v.aML}")
    M_("s_lshl_b32 s13, s10, 3")
    M_(f"s_add_u32 s13, s13, s{sHkv}")
    M_("s_lshl_b32 s13, s13, 3")
    M_("s_add_u32 s13, s13, s11")
    M_("s_lshl_b32 s13, s13, 10")
    M_(f"s_add_u32 s16, s13, {WS_P2:#x}")
    M_("s_mov_b32 s17, 0x80000")
    if p2t == 2:
        M_(f"s_lshl_b32 s13, s{sWave}, 8")
        M_("s_add_u32 s18, s13, s16")
        M_("s_add_u32 s19, s18, 128")
        M_(f"s_load_dword s100, {sr(sWS,2)}, s18")
        M_(f"s_load_dword s101, {sr(sWS,2)}, s19")
    M_(f"s_lshl_b32 s13, s{sJ}, 16")
    M_(f"s_lshl_b32 s14, s{sHkv}, 7")
    M_("s_add_u32 s13, s13, s14")
    M_(f"s_add_u32 s13, s13, {WS_P2:#x}")
    if c4:
        M_(f"s_lshl_b32 s14, s{sWave}, 5")
        M_("s_add_u32 s13, s13, s14")
        M_(f"v_and_b32 v{aPC}, 0x10, v{v.lin}")
        M_(f"v_lshrrev_b32 v{aOUT}, 1, v0")
        M_(f"v_lshl_add_u32 v{aPC}, v{aOUT}, 10, v{aPC}")
    else:
        M_(f"v_and_b32 v{aPC}, 0x70, v{v.lin}")
        M_(f"v_lshl_add_u32 v{aPC}, v{t+1}, 10, v{aPC}")
    M_(f"v_add_u32 v{aPC}, s13, v{aPC}")
    M_("s_and_b32 s13, s2, 1")
    M_("s_lshl_b32 s13, s13, 10")
    M_("s_lshr_b32 s14, s2, 1")
    M_("s_lshl_b32 s14, s14, 6")
    M_("s_add_u32 s14, s14, s13")
    if c4:
        M_(f"s_lshl_b32 s13, s{sWave}, 2")
        M_("s_add_u32 s14, s14, s13")
    M_(f"v_and_b32 v{aOUT}, 7, v0")
    M_(f"v_lshl_add_u32 v{aOUT}, v{t+6}, 3, v{aOUT}")
    M_(f"v_lshl_add_u32 v{aOUT}, v{aOUT}, 1, s14")
    M_(f"v_or_b32 v{a}, v{v.mask0}, v{v.mask1}")
    M_(f"v_mov_b32 v{a+1}, 0x0c0c0c0c")
    if wosw:
        M_(f"s_bitcmp1_b32 s{sWave}, 0")
        M_("s_cselect_b32 s12, 0x02020202, 0")
        M_("s_xor_b32 s13, s12, 0x03020302")
        M_("s_xor_b32 s12, s12, 0x01000100")
        for k in range(4):
            M_(f"s_xor_b32 s{sKB+k}, s{sWave}, {k}")
            M_(f"s_lshl_b32 s{sKB+k}, s{sKB+k}, 13")
    else:
        M_("s_mov_b32 s12, 0x01000100")
        M_("s_mov_b32 s13, 0x03020302")
        for k in range(4): M_(f"s_mov_b32 s{sKB+k}, {k << 13}")
    M_(f"v_bfi_b32 v{a+2}, v{a}, s12, v{a+1}")
    M_(f"v_bfi_b32 v{a+3}, v{a}, s13, v{a+1}")
    M_(f"v_bfe_u32 v{a}, v0, 1, 2")
    for d in range(4):
        M_(f"v_cmp_eq_u32 vcc, {d}, v{a}")
        M_(f"v_cndmask_b32 v{sb+d}, v{a+1}, v{a+2}, vcc")
        M_(f"v_cndmask_b32 v{sb+4+d}, v{a+1}, v{a+3}, vcc")
    for k in range(1, 8): M_(f"s_mov_b32 s{8+k}, {8192*k:#x}")
    per = -(-len(misc) // 8)
    for k in range(8):
        A(f"s_waitcnt vmcnt({(wvk or whi)[k]})")
        issue(k, "K", k)
        if k < P:
            procV(128 + k - P, (k - P) & 7, end=True)
            if k == P - 2:
                for r in range(4): A(f"v_mov_b32 v{v.q+r}, v{v.qB+r}")
                A(f"v_mov_b32 v{v.m}, 0xff800000")
                A(f"v_mov_b32 v{v.l}, 0")
                A(f"v_subrev_u32 v{v.ta}, {512*15}, v{v.ta}")
        else:
            procK(k - P, k - P)
            if k == P: accout()
        drain(per)
    assert not misc
    if stamps and tst == 4: A(f"s_memrealtime s[{sStamp+8}:{sStamp+9}]")
    A(f"s_mov_b32 s{sPh}, 1")
    enter(1)
    A("s_branch L_kloop")
    A("; ---- end of V_B: wo tiles take the place of the V loads ----")
    A("L_epi:")
    if cut in (1, 4):
        A(f"s_mov_b32 s{sWO+2}, 0")
        A(f"s_mov_b32 s{sWQ+2}, 0")
    def sta():
        A(f"s_cmp_lg_u32 s{sFast}, 0")
        A("s_cbranch_scc0 L_sta_slow")
        A(f"buffer_store_dwordx4 {vr(oA,4)}, v{aSO}, {sr(sWS)}, 0 offen")
        A("L_sta_back:")
    if not aside and not aearly: sta()
    def oald(fl):
        A(f"buffer_load_dwordx4 {vr(gx,4)}, v{aPO}, {sr(sWS)}, 0 offen {fl}")
        A(f"buffer_load_dwordx4 {vr(gx+4,4)}, v{aPO}, {sr(sWS)}, 0 offen offset:1024 {fl}")
    def oprep(base, frag, E):
        for r in range(4): E(f"v_add_f32 v{base+r}, v{base+r}, v{base+4+r}")
        if run64 == 2:
            for r in range(2): E(f"v_permlane16_swap_b32 v{base+r}, v{base+2+r}")
            for r in range(2): E(f"v_add_f32 v{base+r}, v{base+r}, v{base+2+r}")
            for pm in ("row_ror:4", "row_ror:8"):
                for r in range(2): E(f"v_add_f32_dpp v{base+r}, v{base+r}, v{base+r} {pm} {DPPM}")
            E(f"v_cvt_pk_bf16_f32 v{base+2}, v{base}, v{base+1}")
            E(f"ds_bpermute_b32 v{base}, v{aBP}, v{base+2}")
            E(f"ds_bpermute_b32 v{base+1}, v{aBP+1}, v{base+2}")
            E("s_waitcnt lgkmcnt(0)")
        else:
            for pm in ("quad_perm:[1,0,3,2]", "quad_perm:[2,3,0,1]", "row_half_mirror"):
                for r in range(4): E(f"v_add_f32_dpp v{base+r}, v{base+r}, v{base+r} {pm} {DPPM}")
            E(f"v_cvt_pk_bf16_f32 v{base}, v{base}, v{base+1}")
            E(f"v_cvt_pk_bf16_f32 v{base+1}, v{base+2}, v{base+3}")
        for r in range(4):
            for d in range(4): E(f"v_perm_b32 v{frag+4*r+d}, v{base+(r>>1)}, v{base+(r>>1)}, v{sb+4*(r&1)+d}")
    if aearly:
        A("L_oachk:")
        strip(gx, True)
        strip(gx + 4, False)
        check("L_oaretry")
    accaddr()
    fact(M_)
    gatef(M_, gB)
    if aearly: oprep(gx, bA, M_)
    def wold(k):
        so = f"s{sKB + (k & 3)}"
        A(f"buffer_load_dwordx4 {vr(wor+4*k,4)}, v{aWO}, {sr(sWO if k < 4 else sWQ)}, {so} offen {woflags}")
    nwo = 0
    for k in range(woburst): wold(nwo); nwo += 1
    per = -(-len(misc) // (P - 2))
    nx = 0 if (aside or aearly) else 1
    for k in range(-1, P):
        if k >= 0:
            A(f"s_waitcnt vmcnt({(P - 1 - k) + nwo + nx})")
            if nwo < 8 and k >= wodelay: wold(nwo); nwo += 1
        if k == pollak and not aearly:
            afterA = 8 - nwo
            A(f"s_cmp_lg_u32 s{sFast}, 0")
            A("s_cbranch_scc0 L_lda_slow")
            oald("nt")
            A("L_lda_back:")
            nx += 2
        if k < 0: continue
        procV(128 + k - P, (k - P) & 7, end=True)
        drain(per)
    assert not misc
    while nwo < 8: wold(nwo); nwo += 1
    accout()
    stamp(5)
    A(f"s_cmp_ge_u32 s{sWave}, 2")
    A("s_waitcnt lgkmcnt(0)")
    A("s_barrier")
    if cut in (1, 2): A("s_branch L_fin")
    stamp(1, True)
    A("s_cbranch_scc1 L_bfirst" if bafter else "s_cbranch_scc1 L_bsel")
    oo = a
    def stageA(br, dst):
        for w in range(4): A(f"ds_read_b128 {vr(oo+4*w,4)}, v{aLO} offset:{L_O+8192*br+2048*w}")
        A(f"s_cmp_lg_u32 s{sFast}, 0")
        for w in range(4):
            A(f"s_waitcnt lgkmcnt({0 if stamps else 3-w})")
            for r in range(4):
                if w == 0: A(f"v_mul_f32 v{oo+r}, v{oo+r}, v{F}")
                else: A(f"v_fmac_f32 v{oo+r}, v{oo+4*w+r}, v{F+w}")
        for r in range(4): A(f"v_and_or_b32 v{dst+r}, v{oo+r}, v{c00}, s{sTag+r}")
    stageA(1, oo)
    A("s_cbranch_scc0 L_oslow")
    A(f"buffer_store_dwordx4 {vr(oo,4)}, v{aSO}, {sr(sWS)}, s17 offen")
    pa = a + 16
    bb = a + 24
    def bpoll(fl):
        A(f"buffer_load_dwordx4 {vr(pa,4)}, v{aPO}, {sr(sWS)}, s17 offen {fl}")
        A(f"buffer_load_dwordx4 {vr(pa+4,4)}, v{aPO}, {sr(sWS)}, s17 offen offset:1024 {fl}")
    A("L_bfirst:")
    stamp(6)
    if not bafter: bpoll("nt")
    A("L_bmfa:")
    nb = 0 if bafter else 2
    if not aearly:
        A(f"s_waitcnt vmcnt({afterA + nb})")
        A("L_oachk:")
        strip(gx, True)
        strip(gx + 4, False)
        check("L_oaretry")
        oprep(gx, bA, A)
    if bafter:
        A(f"s_cmp_lg_u32 s{sFast}, 0")
        A("s_cbranch_scc0 L_bp_slow")
        bpoll("nt")
        A("L_bp_back:")
    A("s_waitcnt vmcnt(6)")
    for r in range(4):
        c = "0" if r == 0 else vr(v.D, 4)
        A(f"v_mfma_f32_16x16x32_bf16 {vr(v.D,4)}, {vr(wor+4*r,4)}, {vr(bA+4*r,4)}, {c}")
    if tst == 2:
        A("s_waitcnt vmcnt(2)")
        stamp(2, 2)
        A("s_waitcnt vmcnt(0)")
        stamp(3, 2)
    A("L_bchk:")
    A("s_waitcnt vmcnt(1)")
    strip(pa, True)
    A("s_waitcnt vmcnt(0)")
    strip(pa + 4, False)
    check("L_bretry")
    A("s_mov_b64 exec, -1")
    stamp(7)
    code = []
    oprep(pa, bb, code.append)
    for c_ in code[:-12]: A(c_)
    for r in range(4):
        for c_ in code[len(code) - 12 + 4 * r: len(code) - 8 + 4 * r]: A(c_)
        A(f"v_mfma_f32_16x16x32_bf16 {vr(v.D,4)}, {vr(wor+16+4*r,4)}, {vr(bb+4*r,4)}, {vr(v.D,4)}")
    A(f"s_cmp_lg_u32 s{sWave}, 0")
    A(f"ds_write_b128 v{aLP}, {vr(v.D,4)} offset:{L_P}")
    stamp(4, True)
    A("s_waitcnt lgkmcnt(0)")
    A("s_barrier")
    A("s_cbranch_scc1 L_cother" if c4 else "s_cbranch_scc1 L_fin")
    for w in range(1, 4): A(f"ds_read_b128 {vr(a+4*w,4)}, v{v.lin} offset:{L_P+1024*w}")
    A("s_cmp_ge_u32 s2, 32")
    A("s_waitcnt lgkmcnt(0)")
    for r in range(4): A(f"v_add_f32 v{a+4+r}, v{a+4+r}, v{v.D+r}")
    for r in range(4): A(f"v_add_f32 v{a+8+r}, v{a+8+r}, v{a+12+r}")
    for r in range(4): A(f"v_add_f32 v{a+4+r}, v{a+4+r}, v{a+8+r}")
    for r in range(4): A(f"v_and_or_b32 v{a+4+r}, v{a+4+r}, v{c00}, s{sTag+r}")
    A(f"buffer_store_dwordx4 {vr(a+4,4)}, v{v.lin}, {sr(sWS)}, s16 offen sc1")
    stamp(2, True)
    A("s_cbranch_scc1 L_fin")
    if amp:
        A("s_cmp_ge_u32 s2, 8")
        A("s_cbranch_scc1 L_noamp")
        A("s_getreg_b32 s84, hwreg(HW_REG_XCC_ID)")
        A("s_and_b32 s84, s84, 7")
        A("s_lshl_b32 s84, s84, 7")
        A("s_add_u32 s84, s84, 0x60000")
        A(f"v_mov_b32 v{v.W}, s80")
        A(f"v_mov_b32 v{v.W+1}, s82")
        A("s_mov_b64 exec, 1")
        A(f"buffer_store_dwordx2 {vr(v.W,2)}, v0, {sr(sWS)}, s84 offen sc1")
        A("s_mov_b64 exec, -1")
        A("L_noamp:")
    pc = a + 8
    if cwait: A("s_waitcnt vmcnt(0)")
    A("L_cbar:")
    mk = 0x00030003 if c4 else 0x00ff00ff
    A(f"s_mov_b32 s4, {mk:#x}")
    A(f"s_mov_b32 s5, {mk:#x}")
    if c4 and cwait == 1: A("s_barrier")
    stamp(3, True)
    A("L_cpoll:")
    nl = 2 if c4 else 8
    for k in range(nl): A(f"buffer_load_dwordx4 {vr(pc+4*k,4)}, v{aPC}, {sr(sWS)}, {'s%d' % (8+(4*k if c4 else k)) if k else 0} offen sc1")
    for k in range(nl):
        A(f"s_waitcnt vmcnt({nl-1-k})")
        strip(pc + 4 * k, k == 0)
    check("L_cretry")
    A("s_mov_b64 exec, -1")
    stamp(8)
    for n_ in ((4,) if c4 else (16, 8, 4)):
        for r in range(n_): A(f"v_add_f32 v{pc+r}, v{pc+r}, v{pc+n_+r}")
    for r in range(2): A(f"v_permlane32_swap_b32 v{pc+r}, v{pc+2+r}")
    for r in range(2): A(f"v_add_f32 v{pc+r}, v{pc+r}, v{pc+2+r}")
    A(f"v_permlane16_swap_b32 v{pc}, v{pc+1}")
    A(f"v_add_f32 v{pc}, v{pc}, v{pc+1}")
    A(f"v_add_f32_dpp v{pc}, v{pc}, v{pc} row_ror:8 {DPPM}")
    if c4:
        A(f"v_add_f32_dpp v{pc}, v{pc}, v{pc} row_ror:4 {DPPM}")
        A(f"v_add_f32_dpp v{pc}, v{pc}, v{pc} quad_perm:[2,3,0,1] {DPPM}")
    A(f"v_cvt_pk_bf16_f32 v{pc}, v{pc}, v{pc}")
    A("s_mov_b64 exec, s[4:5]")
    A(f"buffer_store_short v{pc}, v{aOUT}, {sr(sOUT)}, 0 offen")
    A(f"s_or_b32 s4, s2, s{sWave}")
    A("s_cbranch_scc1 L_fin")
    A("s_mov_b64 exec, 1")
    A(f"v_mov_b32 v{pc+1}, s{sE}")
    A(f"buffer_store_dword v{pc+1}, v0, {sr(sWS)}, 0 offen sc1")
    if amp:
        A("s_memrealtime s[90:91]")
        A("L_amp1:")
        A("s_memrealtime s[98:99]")
        A("s_waitcnt lgkmcnt(0)")
        A("s_sub_u32 s98, s98, s80")
        A("s_cmp_lt_u32 s98, 9000")
        A("s_cbranch_scc1 L_amp1")
        A("s_mov_b64 exec, -1")
        A(f"v_lshlrev_b32 v{v.W}, 7, v0")
        A("s_mov_b32 s84, 0x60000")
        A(f"buffer_load_dwordx2 {vr(v.W+2,2)}, v{v.W}, {sr(sWS)}, s84 offen sc1")
        A("s_waitcnt vmcnt(0)")
        ka, xa, kb, xb, off = amp
        if ka == 2: A("s_mov_b32 s86, s90")
        else: A(f"v_readlane_b32 s86, v{v.W+2+ka}, {xa}")
        A(f"v_readlane_b32 s87, v{v.W+2+kb}, {xb}")
        A("s_nop 4")
        A("s_sub_u32 s86, s86, s87")
        A(f"s_sub_u32 s86, s86, {off}")
        A("s_mul_i32 s86, s86, 10")
        A("s_add_u32 s86, s86, 13000")
        A("s_max_i32 s86, s86, 9000")
        A("s_min_i32 s86, s86, 30000")
        A("L_amp2:")
        A("s_memrealtime s[98:99]")
        A("s_waitcnt lgkmcnt(0)")
        A("s_sub_u32 s98, s98, s80")
        A("s_cmp_lt_u32 s98, s86")
        A("s_cbranch_scc1 L_amp2")
    if probe:
        A("L_probe:")
        A("s_memrealtime s[98:99]")
        A("s_waitcnt lgkmcnt(0)")
        A("s_sub_u32 s98, s98, s100")
        A(f"s_cmp_lt_u32 s98, {probe}")
        A("s_cbranch_scc1 L_probe")
    A("L_fin:")
    if stamps:
        A("s_mov_b64 exec, 1")
        stamp(9)
        A("s_waitcnt lgkmcnt(0)")
        A(f"s_lshl_b32 s{sTmp}, s2, 2")
        A(f"s_add_u32 s{sTmp}, s{sTmp}, s{sWave}")
        A(f"s_lshl_b32 s{sTmp}, s{sTmp}, 6")
        A(f"s_add_u32 s{sTmp}, s{sTmp}, {WS_ST}")
        A("s_getreg_b32 s4, hwreg(HW_REG_XCC_ID)")
        A("s_getreg_b32 s5, hwreg(HW_REG_HW_ID)")
        b = v.buf
        for k in range(10): A(f"v_mov_b32 v{b+k}, s{sStamp+2*k}")
        A(f"v_mov_b32 v{b+10}, s4")
        A(f"v_mov_b32 v{b+11}, s5")
        A(f"v_mov_b32 v{b+12}, s{sSpin}")
        A(f"v_mov_b32 v{b+13}, s{sHi}")
        A(f"v_mov_b32 v{b+14}, s{sFast}")
        for k in range(4): A(f"buffer_store_dwordx4 {vr(b+4*k,4)}, v0, {sr(sWS)}, s{sTmp} offen offset:{16*k}")
    A("L_end:")
    A("s_endpgm")
    def spinchk():
        A(f"s_sub_u32 s{sSpin}, s{sSpin}, 1")
        A("s_cbranch_scc1 L_end")
    A("L_bretry:")
    spinchk()
    A("s_mov_b64 exec, vcc")
    A(f"s_cmp_lg_u32 s{sFast}, 0")
    A("s_cbranch_scc0 L_bretry_slow")
    bpoll("nt")
    A("s_branch L_bchk")
    if c4:
        A("L_cother:")
        A("s_cmp_ge_u32 s2, 32")
        A("s_cbranch_scc1 L_fin")
        A("s_branch L_cbar")
    A("L_cretry:")
    spinchk()
    A("s_mov_b64 exec, vcc")
    A("s_branch L_cpoll")
    A("L_bsel:")
    A(f"s_cmp_lg_u32 s{sFast}, 0")
    A("s_cbranch_scc1 L_bfirst")
    A("s_branch L_bslow")
    A("L_oslow:")
    A(f"buffer_store_dwordx4 {vr(oo,4)}, v{aSO}, {sr(sWS)}, s17 offen sc1")
    A("L_bslow:")
    stamp(6)
    if not bafter: bpoll("sc1")
    A("s_branch L_bmfa")
    if bafter:
        A("L_bp_slow:")
        bpoll("sc1")
        A("s_branch L_bp_back")
    A("L_bretry_slow:")
    bpoll("sc1")
    A("s_branch L_bchk")
    def mlld(fl): A(f"buffer_load_dwordx4 {vr(mlr,4)}, v{v.aML}, {sr(sWS)}, 0 offen {fl}")
    A("L_side:")
    if aearly:
        A(f"s_cmp_lg_u32 s{sPh}, 0")
        A("s_cbranch_scc0 L_side5")
        A(f"s_cmp_lg_u32 s{sFast}, 0")
        A("s_cbranch_scc0 L_lda_slow")
        oald("nt")
        A("L_lda_back:")
        A("s_branch L_side4")
        A("L_side5:")
    A("s_lshr_b32 s5, s2, 7")
    A("s_lshl_b32 s5, s5, 10")
    if aside and not aearly:
        A(f"s_cmp_lg_u32 s{sPh}, 0")
        A("s_cbranch_scc0 L_side0")
        if p2t == 1:
            A(f"v_lshrrev_b32 v{gx}, 2, v{aLO}")
            A(f"buffer_load_dword v{gx}, v{gx}, {sr(sWS)}, s16 offen")
        elif obt:
            A(f"buffer_load_dword v{gx}, v{aSO}, {sr(sWS)}, s17 offen {tchflags}")
        else:
            A(f"buffer_load_dwordx4 {vr(gx,4)}, v{v.lin}, {sr(sX)}, s5 offen")
        sta()
        A("s_branch L_side4")
        A("L_side0:")
    A(f"buffer_load_dwordx4 {vr(gx,4)}, v{v.lin}, {sr(sX)}, s5 offen")
    A(f"buffer_load_dwordx4 {vr(gx+4,4)}, v{v.lin}, {sr(sGW)}, 0 offen")
    A("L_side4:")
    A(f"s_cmp_lg_u32 s{sFast}, 0")
    A("s_cbranch_scc1 L_side1")
    mlld("sc1")
    A("s_branch L_sidebody")
    A("L_side1:")
    mlld("nt")
    A("L_sidebody:")
    assert itml < 15
    body("V", procV, waits, 5)
    A("s_branch L_vloop")
    for nm, ld, back in (("ml", mlld, "L_mlchk"), ("oa", oald, "L_oachk")):
        A(f"L_{nm}retry:")
        spinchk()
        A(f"s_cmp_lg_u32 s{sFast}, 0")
        A(f"s_cbranch_scc0 L_{nm}retry_slow")
        ld("nt")
        A("s_waitcnt vmcnt(0)")
        A(f"s_branch {back}")
        A(f"L_{nm}retry_slow:")
        ld("sc1")
        A("s_waitcnt vmcnt(0)")
        A(f"s_branch {back}")
    A("L_pubml:")
    mlread()
    A(f"v_lshl_add_u32 v{v.y0}, v{t+6}, 2, v{t+7}")
    A(f"s_and_b32 s4, s{sJ}, 15")
    A(f"v_cmp_eq_u32 vcc, s4, v{v.y0}")
    A("s_waitcnt lgkmcnt(0)")
    A(f"v_max3_f32 v{v.y0}, v{v.D}, v{v.D+2}, v{v.D+4}")
    A(f"v_max_f32 v{v.y0}, v{v.y0}, v{v.D+6}")
    A(f"v_mul_f32 v{v.y1}, s{sL2E}, v{v.y0}")
    for w in range(4): A(f"v_fma_f32 v{v.D+2*w}, v{v.D+2*w}, s{sL2E}, -v{v.y1}")
    for w in range(4): A(f"v_exp_f32 v{v.D+2*w}, v{v.D+2*w}")
    A(f"v_mul_f32 v{v.D+1}, v{v.D}, v{v.D+1}")
    for w in range(1, 4): A(f"v_fmac_f32 v{v.D+1}, v{v.D+2*w}, v{v.D+2*w+1}")
    A(f"v_or_b32 v{v.D}, s{sTag}, v{v.y0}")
    A(f"v_and_or_b32 v{v.D+1}, v{v.D+1}, v{c00}, s{sTag+1}")
    A(f"v_mov_b32 v{v.D+2}, s{sTag+2}")
    A(f"v_mov_b32 v{v.D+3}, s{sTag+3}")
    A("s_mov_b64 exec, vcc")
    A(f"s_cmp_lg_u32 s{sFast}, 0")
    A("s_cbranch_scc0 L_pubml_slow")
    A(f"buffer_store_dwordx4 {vr(v.D,4)}, v{v.aML}, {sr(sWS)}, 0 offen")
    A("s_mov_b64 exec, -1")
    A("s_branch L_vent")
    A("L_pubml_slow:")
    A(f"buffer_store_dwordx4 {vr(v.D,4)}, v{v.aML}, {sr(sWS)}, 0 offen sc1")
    A("s_mov_b64 exec, -1")
    A("s_branch L_vent")
    A("L_puba:")
    stageA(0, oA)
    if aearly: sta()
    A("s_branch L_vent")
    A("L_sta_slow:")
    A(f"buffer_store_dwordx4 {vr(oA,4)}, v{aSO}, {sr(sWS)}, 0 offen sc1")
    A("s_branch L_sta_back")
    A("L_lda_slow:")
    oald("sc1")
    A("s_branch L_lda_back")
    A("L_qslow:")
    A(f"s_cmp_lg_u32 s{sWave}, 0")
    A("s_cbranch_scc1 L_qretry")
    A(f"buffer_store_dword v{v.e0}, v{v.e1}, {sr(sWS)}, 0 offen sc1")
    A("L_qretry:")
    spinchk(); qpoll()
    A("s_waitcnt vmcnt(0)")
    qacc()
    A(f"v_and_b32 v{t+10}, 0x1fff, v{t+8}")
    A(f"v_cmp_ne_u32 vcc, 0, v{t+10}")
    A("s_cbranch_vccnz L_qretry")
    A(f"v_and_b32 v{t+10}, 0xe000, v{t+8}")
    A("L_last:")
    A(f"v_cmp_ne_u32 vcc, 0, v{t+10}")
    A("s_branch L_qok")
    code_ = []
    cnt = 0; npad = 0; on = False
    for ln in pad([x for x in L if x != "@PAD"]):
        isins = ln.startswith("    ")
        if warm and (("only warms" in (code_[-1] if code_ else "")) or (on and isins and cnt >= warm)):
            on = True; cnt = 0
            code_.append(f"L_pad{npad}:")
            code_.append(f"    s_cbranch_execz @T{npad}")
            npad += 1
        code_.append(ln)
        cnt += isins
    if warm and helper:
        for k in range(npad):
            tgt = "L_end" if k == npad - 1 else ("L_hbar" if k == hbar else f"L_pad{k+1}")
            code_ = [x.replace(f"@T{k}", tgt) if x.endswith(f"@T{k}") else x for x in code_]
        code_ += ["L_hbar:", "    s_barrier", f"    s_branch L_pad{hbar+1}"]
    elif warm:
        i0 = code_.index("L_pad0:"); del code_[i0:i0+2]
        for k in range(1, npad):
            tgt = f"L_pad{k+4}" if k + 4 < npad else "L_wret"
            code_ = [x.replace(f"@T{k}", tgt) if x.endswith(f"@T{k}") else x for x in code_]
        for w in range(4): code_ = [x.replace(f"L_seg{w}", f"L_pad{w+1}") for x in code_]
    ref = open(os.path.join(os.path.dirname(os.path.abspath(__file__)), "header.txt")).read().rstrip("\n").split("\n")
    out = ref + [f"; @launch grid=(256,1,1) block=({320 if (warm and helper) else 256},1,1) lds={L_SZ}",
                 '.amdgcn_target "amdgcn-amd-amdhsa--gfx950"', ".text"] + DOC + [f".globl {KNAME}", ".p2align 8",
                 f".type {KNAME},@function"] + code_
    acc = (NV + 3) // 4 * 4
    out += ['.section .rodata,"a"', ".p2align 6", f".amdhsa_kernel {KNAME}",
            f"  .amdhsa_next_free_vgpr {NV}", "  .amdhsa_next_free_sgpr 102", f"  .amdhsa_accum_offset {acc}",
            "  .amdhsa_group_segment_fixed_size 0", "  .amdhsa_kernarg_size 112", "  .amdhsa_user_sgpr_count 2",
            "  .amdhsa_user_sgpr_kernarg_segment_ptr 1", "  .amdhsa_system_sgpr_workgroup_id_x 1",
            "  .amdhsa_float_denorm_mode_32 3", ".end_amdhsa_kernel"]
    return "\n".join(out) + "\n"

if __name__ == "__main__":
    kw = eval("dict(" + (sys.argv[1] if len(sys.argv) > 1 else "") + ")")
    sys.stdout.write(gen(**kw))
```

```python
import sys, os
sys.path.insert(0, os.path.dirname(os.path.abspath(__file__)))
from hz import pad

KNAME = "gated_mix__gqa_block_cached__gqa_block_cached__decode_kernel"
LOG2E = 0x3fb8aa3b
SCALE = 0x3db504f3

WS_Q  = 0x10000
WS_ML = 0x30000
WS_B  = 0x40000
WS_O  = 0x100000
WS_P2 = 0x80000
WS_ST = 0x300000
WS_SZ = 0x400000
L_T, L_O, L_M, L_P, L_SZ = 0, 32768, 49152, 53248, 57344
DPPM = "row_mask:0xf bank_mask:0xf"
PAT1 = "k0 s0 k1 s1 w0 g0 s3 s2 g1 n3 w1 n1 n2 n0 k2"


DOC = """
; ---------------------------------------------------------------------------------------------------------
; out = g*Attn_A(x) + (1-g)*Attn_B(x), one fused launch, 256 workgroups (one per CU) x 4 streaming waves.
; workgroup w: kv head hkv = w&7, j = w>>3 = (batch b, split s of 16); the 32 workgroups with equal hkv form a "set".
;
; 1. q projection: each workgroup computes 32 columns of x@wq (both batches), rounds to bf16 and hands them to
;    its set. K loads already stream into a register backlog meanwhile.
; 2. four streaming phases K_A, V_A, K_B, V_B (one array at a time chip-wide, keys visited in a DRAM friendly
;    permutation, about five 1-KiB loads in flight per wave, data goes straight from HBM into MFMA operands):
;      K phase: scores = bf16(bf16(q.k)*Dh^-0.5) -> LDS, running max / sum of exp per lane
;      V phase: p = exp(score - max of this wave's keys) (exact max), O += p*V
;    (max, sum) of every workgroup are exchanged inside the set during the V phase.
; 3. tail: partial O * g * exp(m-M)/L -> set; every workgroup adds 16 splits, rounds o to bf16 and multiplies
;    with a 64x128 tile of wo_A and of wo_B; 32 workgroups add the 64 partial rows and store bf16.
;
; Hand-offs through d_ws are self-validating: the low bits of every dword carry a tag derived from an epoch word
; (d_ws[0], read on entry, incremented once at the end), so words left by the harness or an earlier launch are
; never taken for this launch's data. Tags are removed before use: results do not depend on d_ws contents.
; Hand-offs inside a set use the XCD's L2 (plain stores, L1-bypassing loads) only if all 32 workgroups reported
; the same XCC id together with their q columns; under any other placement device-scope (sc1) stores and loads are used.
; The last hand-off is always device scope.
; Progress board: a per-XCD line with the loop counters of the workgroups on that XCD. It is a speed hint only: a
; wave that finds most of its neighbours ahead keeps six loads in flight instead of five for one iteration.
; Wave 4 is a warm-up wave: it walks the code once with EXEC = 0 (pad to pad, branching around everything) to fill the
; instruction cache, loads (and drops) one dword of the few small lines needed mid-stream, and exits.
; ---------------------------------------------------------------------------------------------------------
""".strip().split("\n")

def gen(NPL=40, waits=(4,)*8, whi=(5,)*8, wepi=None, R=3, XB=2, XT=2, P0=3, pollak=-1, tlb=3, cpf=1, wosw=1, XQ=0, wcat=(5,)*8, warm=96, hbar=3, helper=1, cpfe=0, c4=1, cwait=1, p2t=0, obt=0, sti=(16, 24, 32), KF=0, KM=0, qt=0, endthr=0, sidehi=0, bpw=None, wolate=0, mlt=0, ht=113, qloc=1, lasthi=0, CU=16, bafter=1, aside=1, run64=2, aearly=0, thr=(23, 30), wpro=None, wkv=None, pat=PAT1,
        wqflags="nt", woflags="nt", kvflags="nt", tchflags="nt", fast=1, touch=0, woburst=0, itml=12, wqfirst=0, wodelay=0, wvk=None,
        stamps=False, tst=False, spin=1 << 22, cut=0, probe=0, amp=None, ampat=5):
    P = max(max(waits), max(whi)) + 1
    if wepi is None: wepi = (P - 1,) * 8
    assert run64 == 2 and NPL % 8 == 0 and P + XT <= 8 and 5 <= P <= 6
    pos = {n: 8 + i for i, n in enumerate(pat.split())}
    assert len(pos) == 15
    def dep(c, val, nb): return sum(((val >> i) & 1) << pos[f"{c}{i}"] for i in range(nb))
    L = []
    def A(s): L.append(s)
    class V: pass
    v = V(); nv = [0]
    def valloc(name, n=1, al=1):
        nv[0] = (nv[0] + al - 1) // al * al
        setattr(v, name, nv[0]); nv[0] += n
    for nm in ("tid", "koff", "voff", "lin", "mask0", "mask1"): valloc(nm)
    valloc("T", 2, 2); valloc("TV", 2, 2)
    valloc("m", 2, 2); v.l = v.m + 1
    for nm in ("ta", "mL", "e0", "e1", "e2", "y0", "y1", "z", "p", "pd", "bw", "br", "bv", "bl", "aML", "c00"): valloc(nm)
    valloc("q", 4, 2); valloc("qB", 4, 2); valloc("acc", 8, 2); valloc("D", 8, 2)
    valloc("W", 18, 2)
    valloc("t", 12, 2)
    valloc("buf", max(4 * NPL, 160), 4)
    NV = nv[0]
    assert NV <= 256, NV
    def vr(a, n): return f"v[{a}:{a+n-1}]"
    wqr = v.buf + max(4 * NPL, 160) - 32
    xr = wqr - 16
    wor = v.buf + 32
    gx = v.buf + 64
    sb = v.buf + 72
    mlr = v.buf + 80
    (aWO, aLO, aSO, aPO, aPC, aOUT, gA, gB, F) = range(v.buf + 84, v.buf + 93)
    aLP = aLO
    c00 = v.c00
    bA = v.buf + 96
    oA = v.buf + 112
    aBP = v.buf + 116
    a = v.buf + 118
    assert a + 42 <= NV
    sK, sV, sWQ, sWO, sWS, sX, sGW, sOUT = 20, 24, 28, 32, 36, 40, 44, 48
    sWave, sOff, sCnt, sE, sL2E, sTmp, sTmp2, sSpin, sPh = 3, 52, 53, 54, 55, 56, 57, 58, 59
    sQ1, sQ2, sQ3 = 60, 62, 64
    sHi, sFast = 66, 67
    sTag, sTag16, sNo, sN, sThr = 68, 72, 73, 74, 75
    sKB = 76
    sHkv, sJ = 6, 7
    sQT = 96
    sStamp = 80
    def sr(a, n=4): return f"s[{a}:{a+n-1}]"
    def stamp3(k):
        if stamps and tst == 3: A(f"s_memrealtime s[{sStamp+2*k}:{sStamp+2*k+1}]")
    def stamp4(ka, kb):
        if stamps and tst == 4:
            n_ = len(L)
            A(f"s_cmp_lg_u32 s{sPh}, 0")
            A(f"s_cbranch_scc1 L_st{n_}")
            A(f"s_memrealtime s[{sStamp+2*ka}:{sStamp+2*ka+1}]")
            A(f"L_st{n_}:")
            A(f"s_memrealtime s[{sStamp+2*kb}:{sStamp+2*kb+1}]")
    def stamp(k, tail=False):
        if amp and k == ampat and not tail: A("s_memrealtime s[82:83]")
        if tst in (3, 4) and k in (6, 7, 8): return
        if stamps and (k not in (1, 2, 3, 4) or tail == tst or (tst == 2 and tail is True and k in (1, 4))): A(f"s_memrealtime s[{sStamp+2*k}:{sStamp+2*k+1}]")
    def sdep(dst, src, c, nb, first, tmp):
        groups = {}
        for i in range(nb): groups.setdefault(pos[f"{c}{i}"] - i, []).append(i)
        for sh, bits in groups.items():
            d = dst if first else tmp
            A(f"s_and_b32 s{d}, s{src}, {sum(1 << i for i in bits)}")
            A(f"s_lshl_b32 s{d}, s{d}, {sh}")
            if not first: A(f"s_add_u32 s{dst}, s{dst}, s{tmp}")
            first = False

    A(f"{KNAME}:")
    A("s_cmp_ge_u32 s2, 256")
    A("s_cbranch_scc1 L_end")
    stamp(0)
    if probe: A("s_memrealtime s[100:101]")
    if amp: A("s_memrealtime s[80:81]")
    A("s_lshr_b32 s4, s2, 7")
    A("s_mul_i32 s4, s4, 40")
    A("s_add_u32 s4, s0, s4")
    A("s_addc_u32 s5, s1, 0")
    A("s_load_dwordx2 s[12:13], s[4:5], 24")
    A(f"s_load_dwordx2 {sr(sX,2)}, s[0:1], 0")
    A("s_load_dwordx4 s[8:11], s[0:1], 8           ; K_A, V_A")
    A(f"s_load_dwordx2 {sr(sWS,2)}, s[0:1], 104")
    A(f"s_load_dwordx4 {sr(sKB)}, s[0:1], 48       ; K_B, V_B")
    A("s_load_dwordx4 s[16:19], s[0:1], 80")
    A(f"s_load_dwordx2 {sr(sWO,2)}, s[0:1], 32     ; wo_A")
    A("s_load_dwordx2 s[14:15], s[0:1], 72         ; wo_B")
    t = v.t
    A(f"v_lshrrev_b32 v{t}, 6, v0")
    A(f"v_and_b32 v0, 63, v0")
    A(f"v_readfirstlane_b32 s{sWave}, v{t}")
    if cpfe:
        A("s_getpc_b64 s[84:85]")
        A("L_pc:")
        A(f"s_sub_u32 s84, s84, L_pc-{KNAME}")
        A("s_subb_u32 s85, s85, 0")
        A("s_lshr_b32 s86, s2, 3")
        A("s_lshl_b32 s86, s86, 2")
        A(f"s_add_u32 s86, s86, s{sWave}")
        A("s_lshl_b32 s86, s86, 7")
        A(f"s_min_u32 s86, s86, L_last-{KNAME}")
        if cpfe == 1: A("s_load_dword s87, s[84:85], s86")
    if warm and helper:
        A(f"v_cmp_gt_u32 vcc, 4, v{t}")
        A("s_mov_b64 exec, vcc                         ; wave 4 only warms caches: EXEC = 0, hops pad to pad")
        A("@PAD")
    A(f"v_lshrrev_b32 v{t+1}, 3, v0")
    A(f"v_lshl_add_u32 v{t+2}, v{t}, 3, v{t+1}")
    A(f"v_and_b32 v{t+3}, 7, v0")
    A(f"v_lshlrev_b32 v{t+3}, 3, v{t+3}")
    A(f"v_lshl_add_u32 v{t+3}, v{t+2}, 17, v{t+3}")
    A(f"v_bfe_u32 v{t+4}, v0, 2, 1")
    A(f"v_lshlrev_b32 v{t+8}, 10, v{t+4}")
    A(f"v_lshl_add_u32 v{t+8}, v{t+2}, 5, v{t+8}")
    A(f"s_and_b32 s{sHkv}, s2, 7")
    A(f"s_lshr_b32 s{sJ}, s2, 3")
    A(f"s_and_b32 s{sTmp}, s{sJ}, 15")
    A(f"s_lshl_b32 s{sTmp}, s{sTmp}, 6")
    A(f"s_lshl_b32 s{sTmp2}, s{sHkv}, 10")
    A(f"s_add_u32 s{sTmp}, s{sTmp}, s{sTmp2}")
    A(f"s_mov_b32 s{sX+2}, 2048")
    A(f"s_mov_b32 s{sX+3}, 0x20000")
    A(f"s_mov_b32 s{sWQ+2}, 0x400000")
    A(f"s_mov_b32 s{sWQ+3}, 0x20000")
    A(f"s_lshr_b32 s{sTmp2}, s2, 7")
    A(f"s_lshl_b32 s{sTmp2}, s{sTmp2}, 3")
    A(f"s_add_u32 s{sTmp2}, s{sTmp2}, s{sHkv}")
    A(f"s_lshl_b32 s{sTmp2}, s{sTmp2}, 23")
    A(f"s_mov_b32 s{sK+2}, 0x800000")
    A(f"s_mov_b32 s{sK+3}, 0x20000")
    sdep(sNo, sWave, "w", 2, True, sCnt)
    sdep(sNo, sJ, "s", 4, False, sCnt)
    A(f"v_bfe_u32 v{t+5}, v0, 2, 2")
    A(f"v_lshrrev_b32 v{t+6}, 4, v0")
    A(f"v_and_b32 v{t+7}, 3, v0")
    A(f"v_lshlrev_b32 v{v.lin}, 4, v0")
    A(f"v_lshl_add_u32 v{v.koff}, v{t+6}, 6, s{sNo}")
    A(f"v_lshl_add_u32 v{v.koff}, v{t+7}, 4, v{v.koff}")
    A(f"v_lshl_add_u32 v{v.koff}, v{t+4}, {pos['g0']}, v{v.koff}")
    A(f"v_bfe_u32 v{t+9}, v0, 3, 1")
    A(f"v_lshl_add_u32 v{v.koff}, v{t+9}, {pos['g1']}, v{v.koff}")
    last = [None]
    def issue(i, kind, sl, loop=False):
        kd = dep("k", i & 7, 3)
        c = kd if loop else kd + dep("n", i >> 3, 4)
        imm, hi = c & 0xfff, c & ~0xfff
        if loop:
            if hi == 0: so = f"s{sNo}"
            else:
                if last[0] != ("l", hi): A(f"s_add_u32 s{sOff}, s{sNo}, {hi:#x}")
                last[0] = ("l", hi); so = f"s{sOff}"
        else:
            if hi == 0: so = "0"
            else:
                if last[0] != ("c", hi): A(f"s_mov_b32 s{sOff}, {hi:#x}")
                last[0] = ("c", hi); so = f"s{sOff}"
        if i & 7 == 7: last[0] = None
        off = f" offset:{imm}" if imm else ""
        r = v.buf + 4 * sl
        if kind == "K": A(f"buffer_load_dwordx4 {vr(r,4)}, v{v.koff}, {sr(sK)}, {so} offen{off} {kvflags}")
        else:           A(f"buffer_load_dwordx4 {vr(r,4)}, v{v.voff}, {sr(sV)}, {so} offen{off} {kvflags}")
    A("s_waitcnt lgkmcnt(0)")
    A(f"s_add_u32 s{sK}, s8, s{sTmp2}")
    A(f"s_addc_u32 s{sK+1}, s9, 0")
    for k in range(KF): issue(k, "K", k)
    stamp3(1)
    if cpfe == 2: A("s_load_dword s87, s[84:85], s86")
    A(f"s_mov_b32 s{sWQ}, s12")
    A(f"s_mov_b32 s{sWQ+1}, s13")
    for tt in range(16):
        if tt == wqfirst:
            A(f"buffer_load_dwordx4 {vr(xr,4)}, v{t+8}, {sr(sX)}, 0 offen")
            A(f"buffer_load_dwordx4 {vr(xr+4,4)}, v{t+8}, {sr(sX)}, 0 offen offset:16")
        A(f"buffer_load_dwordx2 {vr(wqr+2*tt,2)}, v{t+3}, {sr(sWQ)}, s{sTmp} offen {wqflags}")
        if tt < 15: A(f"s_add_u32 s{sTmp}, s{sTmp}, 8192")
        if tt == 7:
            for k in range(KF, KF + KM): issue(k, "K", k)
    assert wqfirst <= 2
    A(f"s_mov_b32 s{sWQ}, s14                      ; this descriptor now serves wo_B")
    A(f"s_mov_b32 s{sWQ+1}, s15")
    A(f"s_load_dword s{sE}, {sr(sWS,2)}, 0")
    if qt:
        A(f"s_lshr_b32 s{sTmp}, s2, 7")
        A(f"s_lshl_b32 s{sTmp}, s{sTmp}, 3")
        A(f"s_add_u32 s{sTmp}, s{sTmp}, s{sHkv}")
        A(f"s_lshl_b32 s{sTmp}, s{sTmp}, 1")
        A(f"s_and_b32 s4, s{sWave}, 1")
        A(f"s_add_u32 s{sTmp}, s{sTmp}, s4")
        A(f"s_lshl_b32 s{sTmp}, s{sTmp}, 4")
        A(f"s_and_b32 s4, s{sJ}, 15")
        A(f"s_add_u32 s{sTmp}, s{sTmp}, s4")
        A(f"s_lshl_b32 s{sTmp}, s{sTmp}, 7")
        A(f"s_add_u32 s{sTmp}, s{sTmp}, {WS_Q:#x}")
        A(f"s_load_dword s101, {sr(sWS,2)}, s{sTmp}")
    for k in range(KF + KM, KF + KM + P0): issue(k, "K", k)
    A(f"v_and_b32 v{v.voff}, 0xff, v{v.lin}")
    A(f"v_add_u32 v{v.voff}, s{sNo}, v{v.voff}")
    A(f"v_bfe_u32 v{t+8}, v0, 4, 1")
    A(f"v_lshl_add_u32 v{v.voff}, v{t+8}, {pos['g0']}, v{v.voff}")
    A(f"v_lshrrev_b32 v{t+8}, 5, v0")
    A(f"v_lshl_add_u32 v{v.voff}, v{t+8}, {pos['g1']}, v{v.voff}")
    A(f"s_add_u32 s{sV}, s10, s{sTmp2}")
    A(f"s_addc_u32 s{sV+1}, s11, 0")
    A(f"s_add_u32 s{sKB}, s{sKB}, s{sTmp2}")
    A(f"s_addc_u32 s{sKB+1}, s{sKB+1}, 0")
    A(f"s_add_u32 s{sKB+2}, s{sKB+2}, s{sTmp2}")
    A(f"s_addc_u32 s{sKB+3}, s{sKB+3}, 0")
    sel = xr + 8; bq = xr + 12
    for s_, b0, n_ in ((sV, None, 0x800000), (sWS, None, WS_SZ), (sWO, None, 0x400000), (sGW, 16, 1024), (sOUT, 18, 2048)):
        if b0 is not None:
            A(f"s_mov_b32 s{s_}, s{b0}")
            A(f"s_mov_b32 s{s_+1}, s{b0+1}")
        A(f"s_mov_b32 s{s_+2}, {n_:#x}")
        A(f"s_mov_b32 s{s_+3}, 0x20000")
    A(f"s_mov_b32 s{sL2E}, {LOG2E:#x}")
    A(f"s_mov_b32 s{sPh}, 0")
    for k, s in ((1, sQ1), (2, sQ2), (3, sQ3)):
        A(f"s_mov_b32 s{s}, {0x11111111 << k:#x}")
        A(f"s_mov_b32 s{s+1}, {0x11111111 << k:#x}")
    A(f"v_mov_b32 v{t+8}, 0xffff")
    A(f"v_mov_b32 v{t+9}, 0xffff0000")
    A(f"v_cndmask_b32 v{v.mask1}, 0, v{t+8}, {sr(sQ2,2)}")
    A(f"v_cndmask_b32 v{v.mask1}, v{v.mask1}, v{t+9}, {sr(sQ3,2)}")
    A(f"v_cndmask_b32 v{v.mask0}, v{t+8}, v{t+9}, {sr(sQ1,2)}")
    A(f"v_cmp_gt_u32 vcc, 2, v{t+7}")
    A(f"v_cndmask_b32 v{v.mask0}, 0, v{v.mask0}, vcc")
    A(f"s_mov_b32 s{sTmp}, 0x01000100")
    A(f"s_mov_b32 s{sTmp2}, 0x03020302")
    A(f"v_mov_b32 v{t+8}, 0x0c0c0c0c")
    A(f"v_bfi_b32 v{sel}, v{v.mask0}, s{sTmp}, v{t+8}")
    A(f"v_bfi_b32 v{sel+1}, v{v.mask1}, s{sTmp}, v{t+8}")
    A(f"v_bfi_b32 v{sel+2}, v{v.mask0}, s{sTmp2}, v{t+8}")
    A(f"v_bfi_b32 v{sel+3}, v{v.mask1}, s{sTmp2}, v{t+8}")
    for k in range(18):
        if k % 4 < 2: A(f"v_mov_b32 v{v.W+k}, 0")
    A(f"v_mov_b32 v{v.m}, 0xff800000")
    A(f"v_mov_b32 v{v.l}, 0")
    A(f"v_mov_b32 v{v.e1}, 0x7ffffff0")
    A(f"v_lshlrev_b32 v{v.ta}, 3, v0")
    A(f"v_lshl_add_u32 v{v.ta}, v{t}, 13, v{v.ta}")
    A(f"v_lshl_add_u32 v{t+8}, v{t}, 10, v{v.lin}")
    A("s_getreg_b32 s8, hwreg(HW_REG_XCC_ID)")
    A("s_and_b32 s8, s8, 7")
    if warm and not helper:
        A("s_mov_b64 exec, 0")
        for w in range(1, 4):
            A(f"s_cmp_eq_u32 s{sWave}, {w}")
            A(f"s_cbranch_scc1 L_seg{w}")
        A("s_branch L_seg0")
        A("L_wret:")
        A("s_mov_b64 exec, -1                          ; only warms")
    i = KF + KM + P0
    for m in range(8):
        A(f"s_waitcnt vmcnt({14 - 2*m + i - KF - (KM if m >= 4 else 0)})")
        if m == 0: stamp3(2)
        if m == 7: stamp3(3)
        if m >= 8 - (max(waits) + 1) + P0:
            issue(i, "K", i); i += 1
        for k in range(4):
            A(f"v_perm_b32 v{bq+k}, v{xr+m}, v{xr+m}, v{sel+k}")
        c = "0" if m == 0 else vr(v.D, 4)
        A(f"v_mfma_f32_16x16x32_bf16 {vr(v.D,4)}, {vr(wqr+4*m,4)}, {vr(bq,4)}, {c}")
    stamp(1)
    for k in range(XB):
        issue(i, "K", i); i += 1
    A(f"ds_write_b128 v{t+8}, {vr(v.D,4)} offset:{L_P}")
    A(f"v_bfe_u32 v{t+9}, v0, 4, 1")
    A(f"v_lshlrev_b32 v{t+9}, 8, v{t+9}")
    A(f"v_lshrrev_b32 v{t+10}, 5, v0")
    A(f"v_lshl_add_u32 v{t+9}, v{t+10}, 6, v{t+9}")
    A(f"v_lshl_add_u32 v{t+9}, v{t+7}, 4, v{t+9}")
    A(f"v_lshl_add_u32 v{t+9}, v{t+5}, 2, v{t+9}")
    A("s_waitcnt lgkmcnt(0)")
    A("s_barrier")
    A(f"s_add_u32 s{sE}, s{sE}, 1")
    A(f"s_cmp_lg_u32 s{sWave}, 0")
    A("s_cbranch_scc1 L_nopub")
    qr = wqr
    for w in range(4):
        for r1 in range(2):
            A(f"ds_read_b32 v{qr+2*w+r1}, v{t+9} offset:{L_P + 1024*w + 640*r1}")
    A(f"s_lshr_b32 s{sTmp}, s2, 7")
    A(f"s_lshl_b32 s{sTmp}, s{sTmp}, 3")
    A(f"s_add_u32 s{sTmp}, s{sTmp}, s{sHkv}")
    A(f"s_lshl_b32 s{sTmp}, s{sTmp}, 12")
    A(f"s_and_b32 s{sTmp2}, s{sJ}, 15")
    A(f"s_lshl_b32 s{sTmp2}, s{sTmp2}, 7")
    A(f"s_add_u32 s{sTmp}, s{sTmp}, s{sTmp2}")
    A(f"s_add_u32 s{sTmp}, s{sTmp}, {WS_Q:#x}")
    A(f"v_and_b32 v{t+11}, 31, v0")
    A(f"v_lshlrev_b32 v{t+11}, 2, v{t+11}")
    A(f"v_lshl_add_u32 v{t+11}, v{t+10}, 11, v{t+11}")
    A(f"v_mad_u32_u24 v{t+10}, v{t+7}, 37, s{sE}")
    A(f"v_and_b32 v{t+10}, 0x1fff, v{t+10}")
    A(f"v_lshl_or_b32 v{t+10}, s8, 13, v{t+10}")
    A("s_waitcnt lgkmcnt(0)")
    for k in range(4): A(f"v_add_f32 v{qr+k}, v{qr+k}, v{qr+4+k}")
    A(f"v_add_f32 v{qr}, v{qr}, v{qr+2}")
    A(f"v_add_f32 v{qr+1}, v{qr+1}, v{qr+3}")
    A(f"v_add_f32 v{qr}, v{qr}, v{qr+1}")
    A(f"v_cvt_pk_bf16_f32 v{qr}, 0, v{qr}")
    A(f"v_or_b32 v{v.e0}, v{t+10}, v{qr}")
    A(f"v_add_u32 v{v.e1}, s{sTmp}, v{t+11}")
    A(f"buffer_store_dword v{v.e0}, v{v.e1}, {sr(sWS)}, 0 offen{'' if qloc else ' sc1'}")
    A("L_nopub:")
    stamp(2)
    A("; ---- paced fill of the K backlog, set-up work in between, q hand-off ----")
    misc = []
    M_ = misc.append
    for k in range(4):
        M_(f"s_add_u32 s{sTag+k}, s{sE}, {37*k}")
        M_(f"s_and_b32 s{sQT+k}, s{sTag+k}, 0x1fff")
        M_(f"s_and_b32 s{sTag+k}, s{sTag+k}, 0xff")
        M_(f"s_lshl_b32 s4, s8, 13")
        M_(f"s_or_b32 s{sQT+k}, s{sQT+k}, s4")
    M_(f"v_lshl_add_u32 v{t+9}, v{t+5}, 2, v{t+6}")
    M_(f"v_lshlrev_b32 v{t+9}, 7, v{t+9}")
    M_(f"v_lshl_add_u32 v{t+9}, v{t+7}, 5, v{t+9}")
    M_(f"s_lshl_b32 s{sTmp}, s{sHkv}, 1")
    M_(f"s_lshr_b32 s{sTmp2}, s2, 7")
    M_(f"s_add_u32 s{sTmp}, s{sTmp}, s{sTmp2}")
    M_(f"s_lshl_b32 s{sTmp}, s{sTmp}, 11")
    M_(f"s_add_u32 s{sTmp}, s{sTmp}, {WS_Q:#x}")
    M_(f"s_add_u32 s{sTmp2}, s{sTmp}, 32768")
    M_(f"s_mov_b32 s{sSpin}, {spin}")
    if tlb:
        M_(f"s_lshl_b32 s9, s{sWave}, 21")
        M_(f"s_load_dword s10, {sr(sV,2)}, s9")
        M_(f"s_load_dword s11, {sr(sKB,2)}, s9")
        M_(f"s_load_dword s12, {sr(sKB+2,2)}, s9")
        M_(f"s_lshl_b32 s13, s{sHkv}, 19")
        M_(f"s_load_dword s14, {sr(sWO,2)}, s13")
        M_(f"s_load_dword s15, {sr(sWQ,2)}, s13")
        if tlb > 1: M_(f"s_load_dword s16, {sr(sK,2)}, s9")
        if tlb > 2:
            M_(f"s_lshl_b32 s100, s{sJ}, 5")
            M_(f"s_load_dword s100, {sr(sGW,2)}, s100")
        if tlb > 3: M_(f"s_load_dword s101, {sr(sOUT,2)}, 0")
    if cpf and not cpfe:
        M_("s_getpc_b64 s[18:19]")
        M_("L_pc:")
        M_(f"s_sub_u32 s18, s18, L_pc-{KNAME}")
        M_("s_subb_u32 s19, s19, 0")
        M_(f"s_lshl_b32 s17, s{sJ}, 2")
        M_(f"s_add_u32 s17, s17, s{sWave}")
        M_("s_lshl_b32 s17, s17, 7")
        M_(f"s_min_u32 s17, s17, L_last-{KNAME}")
        M_("s_load_dword s17, s[18:19], s17")
    t8 = tuple(thr) * (8 // len(thr))
    M_("s_lshl_b32 s4, s8, 2")
    M_(f"s_lshr_b32 s4, {sum((x - 18) << (4*k) for k, x in enumerate(t8)):#x}, s4")
    M_("s_and_b32 s4, s4, 15")
    M_(f"s_add_u32 s{sThr}, s4, 18")
    M_("s_lshl_b32 s4, s8, 12")
    M_(f"s_add_u32 s4, s4, {WS_B:#x}")
    M_(f"v_lshl_add_u32 v{v.br}, v0, 2, s4")
    M_(f"v_mov_b32 v{v.bl}, 0x7ffffff0")
    M_(f"v_cmp_gt_u32 vcc, 32, v0")
    M_(f"s_lshl_b32 s5, s{sWave}, 6")
    M_(f"s_add_u32 s5, s5, s{sJ}")
    M_(f"v_cndmask_b32 v{v.br}, v{v.bl}, v{v.br}, vcc")
    M_(f"v_cmp_eq_u32 vcc, s5, v0")
    M_(f"s_lshl_b32 s{sN}, s{sE}, 12")
    M_(f"s_mov_b32 s{sHi}, 0")
    M_(f"v_cndmask_b32 v{v.bw}, v{v.bl}, v{v.br}, vcc")
    M_(f"v_add_u32 v{v.bl}, s{sN}, v{v.bl}")
    M_(f"s_lshl_b32 s4, s{sHkv}, 11")
    M_(f"s_lshr_b32 s5, s2, 7")
    M_("s_lshl_b32 s5, s5, 10")
    M_("s_add_u32 s4, s4, s5")
    M_(f"s_add_u32 s4, s4, {WS_ML:#x}")
    M_(f"v_add_u32 v{v.aML}, s4, v{v.lin}")
    if mlt:
        M_(f"s_and_b32 s5, s{sJ}, 1")
        M_("s_lshl_b32 s5, s5, 2")
        M_(f"s_add_u32 s5, s5, s{sWave}")
        M_("s_lshl_b32 s5, s5, 7")
        M_("s_add_u32 s92, s4, s5")
        M_("s_add_u32 s93, s92, 0x4000")
        M_(f"s_load_dword s94, {sr(sWS,2)}, s92")
        M_(f"s_load_dword s95, {sr(sWS,2)}, s93")
    M_(f"v_mov_b32 v{c00}, 0xffffff00")
    def drain(n):
        for _ in range(n):
            if misc:
                s_ = misc.pop(0); A(s_)
                if s_.startswith(("s_bitcmp", "s_cmp", "s_getpc", "s_sub_u32 s18")): A(misc.pop(0))
    qp = v.acc
    assert v.D == v.acc + 8 and v.qB == v.q + 4
    def qpoll(fl="sc1"):
        A(f"buffer_load_dwordx4 {vr(qp,4)}, v{t+9}, {sr(sWS)}, s{sTmp} offen {fl}")
        A(f"buffer_load_dwordx4 {vr(qp+4,4)}, v{t+9}, {sr(sWS)}, s{sTmp} offen offset:16 {fl}")
        A(f"buffer_load_dwordx4 {vr(qp+8,4)}, v{t+9}, {sr(sWS)}, s{sTmp2} offen {fl}")
        A(f"buffer_load_dwordx4 {vr(qp+12,4)}, v{t+9}, {sr(sWS)}, s{sTmp2} offen offset:16 {fl}")
    ipoll = NPL - P - XQ
    while i < NPL - XQ:
        n = (wpro or waits)[i & 7]
        if i > ipoll and i - n - 1 < ipoll: n += 4
        A(f"s_waitcnt vmcnt({n})")
        if i == ipoll:
            assert not misc
            qpoll("nt" if qloc else "sc1")
        if i in sti: stamp3((4, 6, 7)[sti.index(i)])
        issue(i, "K", i); i += 1
        drain(6 if NPL > 24 else 9)
    A(f"s_waitcnt vmcnt({P})")
    def qacc():
        A(f"v_xor_b32 v{t+8}, s{sQT}, v{qp}")
        for k in range(1, 16): A(f"v_bitop3_b32 v{t+8}, v{qp+k}, s{sQT+(k&3)}, v{t+8} bitop3:0xbe")
    qacc()
    A(f"v_and_b32 v{t+10}, 0xffff, v{t+8}")
    A(f"v_cmp_ne_u32 vcc, 0, v{t+10}")
    A("s_cbranch_vccnz L_qslow")
    A("L_qok:")
    A(f"s_mov_b32 s4, 0x07060302")
    for k in range(8): A(f"v_perm_b32 v{v.q+k}, v{qp+2*k+1}, v{qp+2*k}, s4")
    A("s_cmp_eq_u64 vcc, 0")
    A(f"s_cselect_b32 s{sFast}, {fast}, 0")
    while i < NPL:
        A(f"s_waitcnt vmcnt({(wcat or waits)[i & 7]})")
        issue(i, "K", i); i += 1
    stamp(3)
    def red(u, T):
        D = v.D + 4 * (u & 1)
        A(f"v_add_f32_dpp v{v.y0}, v{D+(u^1)}, v{D+u} quad_perm:[1,0,3,2] {DPPM}")
        A(f"v_add_f32_dpp v{v.y1}, v{D+(u^3)}, v{D+(u^2)} quad_perm:[1,0,3,2] {DPPM}")
        dst = T if u == 0 else v.z
        A(f"v_add_f32_dpp v{dst}, v{v.y1}, v{v.y0} quad_perm:[2,3,0,1] {DPPM}")
        if u: A(f"v_cndmask_b32 v{T}, v{T}, v{v.z}, {sr((sQ1,sQ2,sQ3)[u-1],2)}")
    def finT(par):
        T = v.T + par
        red(3, T)
        A(f"v_cvt_pk_bf16_f32 v{T}, 0, v{T}")
        A(f"v_mul_f32 v{T}, {SCALE:#x}, v{T}")
        A(f"v_cvt_pk_bf16_f32 v{T}, 0, v{T}")
        if par:
            A(f"v_mul_f32 v{v.e2}, s{sL2E}, v{v.m}")
            A(f"v_max3_f32 v{v.m}, v{v.T}, v{v.T+1}, v{v.m}")
            A(f"ds_write_b64 v{v.ta}, {vr(v.T,2)}")
            A(f"v_mul_f32 v{v.p}, s{sL2E}, v{v.m}")
            A(f"v_add_u32 v{v.ta}, 512, v{v.ta}")
            A(f"v_fma_f32 v{v.e0}, v{v.T}, s{sL2E}, -v{v.p}")
            A(f"v_fma_f32 v{v.e1}, v{v.T+1}, s{sL2E}, -v{v.p}")
            A(f"v_sub_f32 v{v.e2}, v{v.e2}, v{v.p}")
    def lacc():
        A(f"v_exp_f32 v{v.e0}, v{v.e0}")
        A(f"v_exp_f32 v{v.e2}, v{v.e2}")
        A(f"v_exp_f32 v{v.e1}, v{v.e1}")
        A(f"v_fma_f32 v{v.l}, v{v.l}, v{v.e2}, v{v.e0}")
        A(f"v_add_f32 v{v.l}, v{v.l}, v{v.e1}")
    def procK(j, sl):
        u = j & 3
        A(f"v_mfma_f32_16x16x32_bf16 {vr(v.D+4*(u&1),4)}, {vr(v.buf+4*sl,4)}, {vr(v.q,4)}, 0")
        if u >= 1: red(u - 1, v.T + ((j >> 2) & 1))
        elif j > 0: finT(((j >> 2) - 1) & 1)
        if j & 7 == 1 and j > 1: lacc()
    def ands(u):
        w = v.W + 2 + 4 * u
        A(f"v_and_b32_dpp v{w}, v{v.pd}, v{v.mask0} quad_perm:[{u},{u},{u},{u}] {DPPM}")
        A(f"v_and_b32_dpp v{w+1}, v{v.pd}, v{v.mask1} quad_perm:[{u},{u},{u},{u}] {DPPM}")
    def prep(par, nextread=True):
        if par == 0: A("s_waitcnt lgkmcnt(0)")
        A(f"v_fma_f32 v{v.p}, v{v.TV+par}, s{sL2E}, -v{v.mL}")
        A(f"v_exp_f32 v{v.p}, v{v.p}")
        if par == 1 and nextread:
            A(f"v_add_u32 v{v.ta}, 512, v{v.ta}")
            A(f"ds_read_b64 {vr(v.TV,2)}, v{v.ta}")
        A(f"v_cvt_pk_bf16_f32 v{v.pd}, v{v.p}, v{v.p}")
        ands(0)
    def procV(j, sl, end=False):
        u = j & 3
        w = v.W + 4 * u
        A(f"v_mfma_f32_16x16x32_bf16 {vr(v.acc,4)}, {vr(v.buf+4*sl,4)}, {vr(w+2,4)}, {vr(v.acc,4)}")
        A(f"v_mfma_f32_16x16x32_bf16 {vr(v.acc+4,4)}, {vr(v.buf+4*sl,4)}, {vr(w,4)}, {vr(v.acc+4,4)}")
        if end and j >= 124: return
        if u < 3: ands(u + 1)
        else:
            prep(((j >> 2) + 1) & 1, nextread=not (end and j == 123))
            if end and j == 123:
                ands(1); ands(2); ands(3)
    def allred(op, r, tmp):
        A(f"{op}_dpp v{r}, v{r}, v{r} quad_perm:[1,0,3,2] {DPPM}")
        A(f"{op}_dpp v{r}, v{r}, v{r} quad_perm:[2,3,0,1] {DPPM}")
        A(f"v_mov_b32 v{tmp}, v{r}")
        A(f"v_permlane16_swap_b32 v{tmp}, v{r}")
        A(f"{op} v{r}, v{r}, v{tmp}")
        A(f"v_mov_b32 v{tmp}, v{r}")
        A(f"v_permlane32_swap_b32 v{tmp}, v{r}")
        A(f"{op} v{r}, v{r}, v{tmp}")
    def accaddr():
        A(f"s_lshl_b32 s4, s{sPh}, 2")
        A(f"s_add_u32 s4, s4, s{sWave}")
        A(f"s_lshl_b32 s5, s4, 11")
        A(f"v_add_u32 v{t+9}, s5, v{v.lin}")
    def accout():
        A(f"ds_write_b128 v{t+9}, {vr(v.acc,4)} offset:{L_O}")
        A(f"ds_write_b128 v{t+9}, {vr(v.acc+4,4)} offset:{L_O+1024}")
    def strip(base, first, emit=None):
        E = emit or A
        for r in range(4): E(f"v_xor_b32 v{base+r}, s{sTag+r}, v{base+r}")
        if first: E(f"v_or_b32 v{t+11}, v{base}, v{base+1}")
        else: E(f"v_or3_b32 v{t+11}, v{base}, v{base+1}, v{t+11}")
        E(f"v_or3_b32 v{t+11}, v{base+2}, v{base+3}, v{t+11}")
    def check(label):
        A(f"v_and_b32 v{t+11}, 0xff, v{t+11}")
        A(f"v_cmp_ne_u32 vcc, 0, v{t+11}")
        A(f"s_cbranch_vccnz {label}")
    A("; ---- catch-up: consume the backlog while the stream goes on ----")
    slotof = {k: k for k in range(NPL)}
    def newslot(i): return (i - NPL) if i < NPL + CU else (i & 7)
    j = 0
    landed = i - P
    while not (j == i - P and i % 8 == 0 and j >= NPL + (CU if CU > 8 else 0)):
        s = newslot(i)
        own = max(k for k in slotof if slotof[k] == s)
        while j <= own:
            assert j < landed, "catch-up needs data not yet landed"
            procK(j, slotof[j]); j += 1
        A(f"s_waitcnt vmcnt({(wcat or waits)[i&7]})")
        landed = max(landed, i - (wcat or waits)[i & 7])
        slotof[i] = s
        issue(i, "K", s); i += 1
        n = 0
        while n < R and j < i - P:
            assert j < landed
            procK(j, slotof[j]); j += 1; n += 1
    assert i < 128
    def enter(n):
        A(f"s_mov_b32 s{sCnt}, {n}")
        A(f"s_mov_b32 s{sNo}, {dep('n', n, 4):#x}")
    enter(i // 8)
    stamp(4); stamp3(8)
    def body(kind, proc, ww, extra):
        for k in range(8):
            n = ww[k] + (extra if k <= ww[k] else 0)
            issue(k, kind, k, loop=True)
            L.insert(len(L) - 1, f"s_waitcnt vmcnt({n})")
            if k == 7:
                A(f"s_add_u32 s{sCnt}, s{sCnt}, 1")
                sdep(sNo, sCnt, "n", 4, True, 4)
            proc(16 + k - P, (k - P) & 7)
    def loop(name, kind, proc):
        A(".p2align 6")
        A(f"L_{name}loop:")
        A(f"v_subrev_u32 v{v.bv}, s{sN}, v{v.bl}")
        A(f"s_add_u32 s{sN}, s{sN}, 1")
        A(f"v_cmp_gt_u32 vcc, 64, v{v.bv}")
        A(f"v_mov_b32 v{v.bv}, s{sN}")
        A(f"s_bcnt1_i32_b64 s4, vcc")
        A(f"buffer_store_dword v{v.bv}, v{v.bw}, {sr(sWS)}, 0 offen")
        A(f"buffer_load_dword v{v.bl}, v{v.br}, {sr(sWS)}, 0 offen nt")
        if kind == "V":
            A(f"s_cmp_eq_u32 s{sCnt}, {itml}")
            A("s_cbranch_scc1 L_side")
        if lasthi:
            A(f"s_cmp_ge_u32 s{sCnt}, {16 - lasthi}")
            A(f"s_cbranch_scc1 L_{name}hi")
        A(f"s_cmp_ge_u32 s4, s{sThr}")
        A(f"s_cbranch_scc1 L_{name}hi")
        for ver, ww in (("lo", waits), ("hi", whi)):
            if ver == "hi":
                A(f"L_{name}hi:")
                if stamps: A(f"s_add_u32 s{sHi}, s{sHi}, 1")
            body(kind, proc, ww, 2)
            A(f"s_cmp_lg_u32 s{sCnt}, 16")
            A(f"s_cbranch_scc1 L_{name}loop")
            if ver == "lo": A(f"s_branch L_{name}done")
        A(f"L_{name}done:")
    A("; ---- K loop (lo: 5 loads in flight, hi: 6) ----")
    loop("k", "K", procK)
    stamp4(1, 6)
    wk = wkv or waits
    for k in range(P):
        A(f"s_waitcnt vmcnt({wk[k]})")
        issue(k, "V", k)
        procK(128 + k - P, (k - P) & 7)
        if k == 0:
            A(f"v_subrev_u32 v{t+10}, {512*15}, v{v.ta}")
            A(f"ds_read_b64 {vr(v.TV,2)}, v{t+10}")
        if k == 1:
            for r in range(8): A(f"v_mov_b32 v{v.acc+r}, 0")
    for k in range(P, P + XT): issue(k, "V", k)
    finT(1)
    A(f"v_mov_b32 v{v.z}, v{v.p}")
    A(f"v_mov_b32 v{v.ta}, v{t+10}")
    allred("v_max_f32", v.m, v.y0)
    A(f"v_mul_f32 v{v.mL}, s{sL2E}, v{v.m}")
    prep(0)
    sv = L[:]; del L[:]
    lacc()
    A(f"v_sub_f32 v{v.z}, v{v.z}, v{v.mL}")
    A(f"v_exp_f32 v{v.z}, v{v.z}")
    A(f"s_lshl_b32 s5, s{sPh}, 11")
    A(f"s_lshl_b32 s4, s{sWave}, 9")
    A(f"v_mul_f32 v{v.l}, v{v.l}, v{v.z}")
    A(f"s_add_u32 s4, s4, s5")
    A(f"v_lshl_add_u32 v{t+9}, v0, 3, s4")
    allred("v_add_f32", v.l, v.y0)
    A(f"ds_write_b64 v{t+9}, {vr(v.m,2)} offset:{L_M}")
    A(f"v_lshl_add_u32 v{t+10}, v0, 3, s5")
    misc.extend(L); del L[:]; L.extend(sv)
    issued = P + XT
    for k in range(P, 8):
        if k == 7: drain(99)
        if k >= issued:
            A(f"s_waitcnt vmcnt({wk[k]})")
            issue(k, "V", k); issued += 1
        else:
            A(f"s_waitcnt vmcnt({issued - 1 - (k - P)})")
        procV(k - P, k - P)
    A("s_waitcnt lgkmcnt(0)")
    A("s_barrier")
    A(f"s_cmp_eq_u32 s{sWave}, 3")
    A("s_cbranch_scc1 L_pubml")
    A(f"s_lshl_b32 s4, s{sPh}, 1")
    A(f"s_cmp_lt_u32 s{sWave}, s4")
    A("s_cbranch_scc1 L_puba")
    A("L_vent:")
    enter(1)
    stamp4(2, 7)
    A("; ---- V loop ----")
    loop("v", "V", procV)
    stamp4(3, 8)
    A("L_mlchk:")
    strip(mlr, True)
    check("L_mlretry")
    def mlread():
        A(f"ds_read2st64_b64 {vr(v.D,4)}, v{t+10} offset0:{L_M//512} offset1:{L_M//512+1}")
        A(f"ds_read2st64_b64 {vr(v.D+4,4)}, v{t+10} offset0:{L_M//512+2} offset1:{L_M//512+3}")
    mlread()
    def fact(E):
        sv = L[:]; del L[:]
        A(f"v_mov_b32 v{mlr+2}, v{mlr}")
        allred("v_max_f32", mlr + 2, mlr + 3)
        A(f"v_mul_f32 v{mlr+2}, s{sL2E}, v{mlr+2}")
        A(f"v_fma_f32 v{mlr}, v{mlr}, s{sL2E}, -v{mlr+2}")
        A("s_waitcnt lgkmcnt(0)")
        for w in range(4): A(f"v_fma_f32 v{F+w}, v{v.D+2*w}, s{sL2E}, -v{mlr+2}")
        A(f"v_exp_f32 v{mlr}, v{mlr}")
        for w in range(4): A(f"v_exp_f32 v{F+w}, v{F+w}")
        A(f"v_mul_f32 v{mlr+1}, v{mlr+1}, v{mlr}")
        allred("v_add_f32", mlr + 1, mlr + 3)
        A(f"v_rcp_f32 v{mlr+1}, v{mlr+1}")
        code = L[:]; del L[:]; L.extend(sv)
        for c_ in code: E(c_)
    def gatef(E, g):
        E(f"v_mul_f32 v{mlr+1}, v{mlr+1}, v{g}")
        for w in range(4): E(f"v_mul_f32 v{F+w}, v{F+w}, v{mlr+1}")
    A(f"s_cmp_lg_u32 s{sPh}, 0")
    A("s_cbranch_scc1 L_epi")
    A(f"s_mov_b32 s{sK}, s{sKB}")
    A(f"s_mov_b32 s{sK+1}, s{sKB+1}")
    A(f"s_mov_b32 s{sV}, s{sKB+2}")
    A(f"s_mov_b32 s{sV+1}, s{sKB+3}")
    accaddr()
    fact(M_)
    ga = a
    for k in range(4):
        M_(f"v_lshlrev_b32 v{ga+2*k}, 16, v{gx+k}")
        M_(f"v_and_b32 v{ga+2*k+1}, 0xffff0000, v{gx+k}")
        M_(f"v_lshlrev_b32 v{ga+8+2*k}, 16, v{gx+4+k}")
        M_(f"v_and_b32 v{ga+8+2*k+1}, 0xffff0000, v{gx+4+k}")
    for k in range(8): M_(f"v_mul_f32 v{ga+k}, v{ga+k}, v{ga+8+k}")
    for k in range(8): M_(f"v_cvt_pk_bf16_f32 v{ga+k}, 0, v{ga+k}")
    for k in range(4): M_(f"v_add_f32 v{ga+k}, v{ga+k}, v{ga+4+k}")
    M_(f"v_add_f32 v{ga}, v{ga}, v{ga+2}")
    M_(f"v_add_f32 v{ga+1}, v{ga+1}, v{ga+3}")
    M_(f"v_add_f32 v{ga}, v{ga}, v{ga+1}")
    M_(f"v_add_f32_dpp v{ga}, v{ga}, v{ga} row_ror:4 {DPPM}")
    M_(f"v_add_f32_dpp v{ga}, v{ga}, v{ga} row_ror:8 {DPPM}")
    sv = L[:]; del L[:]; allred("v_add_f32", ga, ga + 1); code = L[:]; del L[:]; L.extend(sv)
    for c_ in code: M_(c_)
    M_(f"v_cvt_pk_bf16_f32 v{ga}, 0, v{ga}")
    M_(f"v_mul_f32 v{ga}, {LOG2E | 0x80000000:#x}, v{ga}")
    M_(f"v_exp_f32 v{ga}, v{ga}")
    M_(f"v_add_f32 v{ga}, 1.0, v{ga}")
    M_(f"v_rcp_f32 v{ga}, v{ga}")
    M_(f"v_cvt_pk_bf16_f32 v{gA}, 0, v{ga}")
    M_(f"v_sub_f32 v{gB}, 1.0, v{gA}")
    M_(f"v_cvt_pk_bf16_f32 v{gB}, 0, v{gB}")
    gatef(M_, gA)
    M_(f"s_lshr_b32 s8, s{sJ}, 3")
    M_(f"s_bfe_u32 s9, s{sJ}, 0x10002")
    M_(f"s_and_b32 s10, s{sJ}, 3")
    M_(f"s_lshl_b32 s12, s{sHkv}, 2")
    M_("s_add_u32 s12, s12, s8")
    M_("s_lshl_b32 s12, s12, 2")
    M_(f"s_add_u32 s12, s12, s{sWave}")
    M_("s_lshl_b32 s12, s12, 3")
    M_("s_add_u32 s12, s12, s9")
    M_("s_lshl_b32 s12, s12, 4")
    M_("s_add_u32 s12, s12, s10")
    M_("s_lshl_b32 s12, s12, 8")
    M_(f"v_and_b32 v{aWO}, 0xff, v{v.lin}")
    M_(f"v_lshl_add_u32 v{aWO}, v{t+6}, 10, v{aWO}")
    M_(f"v_add_u32 v{aWO}, s12, v{aWO}")
    M_(f"s_lshl_b32 s13, s{sWave}, 10")
    M_(f"v_add_u32 v{aLO}, s13, v{v.lin}")
    M_(f"s_lshl_b32 s12, s{sHkv}, 16")
    M_(f"s_add_u32 s12, s12, {WS_O:#x}")
    M_(f"s_lshl_b32 s13, s{sWave}, 13")
    M_("s_add_u32 s13, s13, s12")
    M_(f"s_lshr_b32 s14, s{sWave}, 1")
    M_("s_lshl_b32 s14, s14, 28")
    M_("s_add_u32 s13, s13, s14")
    M_(f"s_and_b32 s14, s{sJ}, 1")
    M_("s_lshl_b32 s14, s14, 10")
    M_("s_add_u32 s13, s13, s14")
    M_(f"s_lshr_b32 s14, s{sJ}, 1")
    M_(f"s_lshl_b32 s14, s14, {6 if run64 else 4}")
    M_("s_add_u32 s13, s13, s14")
    M_(f"v_lshl_add_u32 v{aSO}, v{t+5}, 14, s13")
    M_(f"v_lshl_add_u32 v{aSO}, v{t+6}, 11, v{aSO}")
    M_(f"v_lshl_add_u32 v{aSO}, v{t+7}, {4 if run64 else 8}, v{aSO}")
    M_(f"s_lshr_b32 s11, s{sJ}, 2")
    M_("s_lshl_b32 s13, s11, 2")
    M_(f"s_add_u32 s13, s13, s{sWave}")
    M_("s_lshl_b32 s13, s13, 11")
    M_("s_add_u32 s13, s13, s12")
    if run64 == 2:
        M_(f"v_bfe_u32 v{aBP}, v0, 3, 1")
        M_(f"v_lshl_add_u32 v{aBP}, v{aBP}, 5, v{t+6}")
        M_(f"v_lshlrev_b32 v{aBP}, 2, v{aBP}")
        if wosw:
            M_(f"s_and_b32 s14, s{sWave}, 2")
            M_("s_lshl_b32 s14, s14, 5")
            M_(f"v_xor_b32 v{aBP}, s14, v{aBP}")
        M_(f"v_xor_b32 v{aBP+1}, 64, v{aBP}")
    if run64 == 1:
        M_(f"v_and_b32 v{aPO}, 15, v0")
        M_(f"v_lshl_add_u32 v{aPO}, v{aPO}, 6, s13")
        M_(f"v_lshl_add_u32 v{aPO}, v{t+6}, 4, v{aPO}")
    else:
        M_(f"v_add_u32 v{aPO}, s13, v{v.lin}")
    M_(f"v_add_u32 v{v.aML}, 0x4000, v{v.aML}")
    M_("s_lshl_b32 s13, s10, 3")
    M_(f"s_add_u32 s13, s13, s{sHkv}")
    M_("s_lshl_b32 s13, s13, 3")
    M_("s_add_u32 s13, s13, s11")
    M_("s_lshl_b32 s13, s13, 10")
    M_(f"s_add_u32 s16, s13, {WS_P2:#x}")
    M_("s_mov_b32 s17, 0x80000")
    if p2t == 2:
        M_(f"s_lshl_b32 s13, s{sWave}, 8")
        M_("s_add_u32 s18, s13, s16")
        M_("s_add_u32 s19, s18, 128")
        M_(f"s_load_dword s100, {sr(sWS,2)}, s18")
        M_(f"s_load_dword s101, {sr(sWS,2)}, s19")
    M_(f"s_lshl_b32 s13, s{sJ}, 16")
    M_(f"s_lshl_b32 s14, s{sHkv}, 7")
    M_("s_add_u32 s13, s13, s14")
    M_(f"s_add_u32 s13, s13, {WS_P2:#x}")
    if c4:
        M_(f"s_lshl_b32 s14, s{sWave}, 5")
        M_("s_add_u32 s13, s13, s14")
        M_(f"v_and_b32 v{aPC}, 0x10, v{v.lin}")
        M_(f"v_lshrrev_b32 v{aOUT}, 1, v0")
        M_(f"v_lshl_add_u32 v{aPC}, v{aOUT}, 10, v{aPC}")
    else:
        M_(f"v_and_b32 v{aPC}, 0x70, v{v.lin}")
        M_(f"v_lshl_add_u32 v{aPC}, v{t+1}, 10, v{aPC}")
    M_(f"v_add_u32 v{aPC}, s13, v{aPC}")
    M_("s_and_b32 s13, s2, 1")
    M_("s_lshl_b32 s13, s13, 10")
    M_("s_lshr_b32 s14, s2, 1")
    M_("s_lshl_b32 s14, s14, 6")
    M_("s_add_u32 s14, s14, s13")
    if c4:
        M_(f"s_lshl_b32 s13, s{sWave}, 2")
        M_("s_add_u32 s14, s14, s13")
    M_(f"v_and_b32 v{aOUT}, 7, v0")
    M_(f"v_lshl_add_u32 v{aOUT}, v{t+6}, 3, v{aOUT}")
    M_(f"v_lshl_add_u32 v{aOUT}, v{aOUT}, 1, s14")
    M_(f"v_or_b32 v{a}, v{v.mask0}, v{v.mask1}")
    M_(f"v_mov_b32 v{a+1}, 0x0c0c0c0c")
    if wosw:
        M_(f"s_bitcmp1_b32 s{sWave}, 0")
        M_("s_cselect_b32 s12, 0x02020202, 0")
        M_("s_xor_b32 s13, s12, 0x03020302")
        M_("s_xor_b32 s12, s12, 0x01000100")
        for k in range(4):
            M_(f"s_xor_b32 s{sKB+k}, s{sWave}, {k}")
            M_(f"s_lshl_b32 s{sKB+k}, s{sKB+k}, 13")
    else:
        M_("s_mov_b32 s12, 0x01000100")
        M_("s_mov_b32 s13, 0x03020302")
        for k in range(4): M_(f"s_mov_b32 s{sKB+k}, {k << 13}")
    M_(f"v_bfi_b32 v{a+2}, v{a}, s12, v{a+1}")
    M_(f"v_bfi_b32 v{a+3}, v{a}, s13, v{a+1}")
    M_(f"v_bfe_u32 v{a}, v0, 1, 2")
    for d in range(4):
        M_(f"v_cmp_eq_u32 vcc, {d}, v{a}")
        M_(f"v_cndmask_b32 v{sb+d}, v{a+1}, v{a+2}, vcc")
        M_(f"v_cndmask_b32 v{sb+4+d}, v{a+1}, v{a+3}, vcc")
    for k in range(1, 8): M_(f"s_mov_b32 s{8+k}, {8192*k:#x}")
    per = -(-len(misc) // 8)
    for k in range(8):
        A(f"s_waitcnt vmcnt({(wvk or whi)[k]})")
        issue(k, "K", k)
        if k < P:
            procV(128 + k - P, (k - P) & 7, end=True)
            if k == P - 2:
                for r in range(4): A(f"v_mov_b32 v{v.q+r}, v{v.qB+r}")
                A(f"v_mov_b32 v{v.m}, 0xff800000")
                A(f"v_mov_b32 v{v.l}, 0")
                A(f"v_subrev_u32 v{v.ta}, {512*15}, v{v.ta}")
        else:
            procK(k - P, k - P)
            if k == P: accout()
        drain(per)
    assert not misc
    if stamps and tst == 4: A(f"s_memrealtime s[{sStamp+8}:{sStamp+9}]")
    A(f"s_mov_b32 s{sPh}, 1")
    enter(1)
    A("s_branch L_kloop")
    A("; ---- end of V_B: wo tiles take the place of the V loads ----")
    A("L_epi:")
    if cut in (1, 4):
        A(f"s_mov_b32 s{sWO+2}, 0")
        A(f"s_mov_b32 s{sWQ+2}, 0")
    def sta():
        A(f"s_cmp_lg_u32 s{sFast}, 0")
        A("s_cbranch_scc0 L_sta_slow")
        A(f"buffer_store_dwordx4 {vr(oA,4)}, v{aSO}, {sr(sWS)}, 0 offen")
        A("L_sta_back:")
    if not aside and not aearly: sta()
    def oald(fl):
        A(f"buffer_load_dwordx4 {vr(gx,4)}, v{aPO}, {sr(sWS)}, 0 offen {fl}")
        A(f"buffer_load_dwordx4 {vr(gx+4,4)}, v{aPO}, {sr(sWS)}, 0 offen offset:1024 {fl}")
    def oprep(base, frag, E):
        for r in range(4): E(f"v_add_f32 v{base+r}, v{base+r}, v{base+4+r}")
        if run64 == 2:
            for r in range(2): E(f"v_permlane16_swap_b32 v{base+r}, v{base+2+r}")
            for r in range(2): E(f"v_add_f32 v{base+r}, v{base+r}, v{base+2+r}")
            for pm in ("row_ror:4", "row_ror:8"):
                for r in range(2): E(f"v_add_f32_dpp v{base+r}, v{base+r}, v{base+r} {pm} {DPPM}")
            E(f"v_cvt_pk_bf16_f32 v{base+2}, v{base}, v{base+1}")
            E(f"ds_bpermute_b32 v{base}, v{aBP}, v{base+2}")
            E(f"ds_bpermute_b32 v{base+1}, v{aBP+1}, v{base+2}")
            E("s_waitcnt lgkmcnt(0)")
        else:
            for pm in ("quad_perm:[1,0,3,2]", "quad_perm:[2,3,0,1]", "row_half_mirror"):
                for r in range(4): E(f"v_add_f32_dpp v{base+r}, v{base+r}, v{base+r} {pm} {DPPM}")
            E(f"v_cvt_pk_bf16_f32 v{base}, v{base}, v{base+1}")
            E(f"v_cvt_pk_bf16_f32 v{base+1}, v{base+2}, v{base+3}")
        for r in range(4):
            for d in range(4): E(f"v_perm_b32 v{frag+4*r+d}, v{base+(r>>1)}, v{base+(r>>1)}, v{sb+4*(r&1)+d}")
    if aearly:
        A("L_oachk:")
        strip(gx, True)
        strip(gx + 4, False)
        check("L_oaretry")
    accaddr()
    fact(M_)
    gatef(M_, gB)
    if aearly: oprep(gx, bA, M_)
    def wold(k):
        so = f"s{sKB + (k & 3)}"
        A(f"buffer_load_dwordx4 {vr(wor+4*k,4)}, v{aWO}, {sr(sWO if k < 4 else sWQ)}, {so} offen {woflags}")
    nwo = 0
    for k in range(woburst): wold(nwo); nwo += 1
    per = -(-len(misc) // (P - 2))
    nx = 0 if (aside or aearly) else 1
    for k in range(-1, P):
        if k >= 0:
            A(f"s_waitcnt vmcnt({(P - 1 - k) + nwo + nx})")
            if nwo < 8 and k >= wodelay: wold(nwo); nwo += 1
        if k == pollak and not aearly:
            afterA = 8 - nwo
            A(f"s_cmp_lg_u32 s{sFast}, 0")
            A("s_cbranch_scc0 L_lda_slow")
            oald("nt")
            A("L_lda_back:")
            nx += 2
        if k < 0: continue
        procV(128 + k - P, (k - P) & 7, end=True)
        drain(per)
    assert not misc
    while nwo < 8 - wolate: wold(nwo); nwo += 1
    accout()
    stamp(5)
    A(f"s_cmp_ge_u32 s{sWave}, 2")
    A("s_waitcnt lgkmcnt(0)")
    A("s_barrier")
    if cut in (1, 2): A("s_branch L_fin")
    stamp(1, True)
    A("s_cbranch_scc1 L_bfirst" if bafter else "s_cbranch_scc1 L_bsel")
    oo = a
    def stageA(br, dst):
        for w in range(4): A(f"ds_read_b128 {vr(oo+4*w,4)}, v{aLO} offset:{L_O+8192*br+2048*w}")
        A(f"s_cmp_lg_u32 s{sFast}, 0")
        for w in range(4):
            A(f"s_waitcnt lgkmcnt({0 if stamps else 3-w})")
            for r in range(4):
                if w == 0: A(f"v_mul_f32 v{oo+r}, v{oo+r}, v{F}")
                else: A(f"v_fmac_f32 v{oo+r}, v{oo+4*w+r}, v{F+w}")
        for r in range(4): A(f"v_and_or_b32 v{dst+r}, v{oo+r}, v{c00}, s{sTag+r}")
    stageA(1, oo)
    A("s_cbranch_scc0 L_oslow")
    A(f"buffer_store_dwordx4 {vr(oo,4)}, v{aSO}, {sr(sWS)}, s17 offen")
    pa = a + 16
    bb = a + 24
    def bpoll(fl):
        A(f"buffer_load_dwordx4 {vr(pa,4)}, v{aPO}, {sr(sWS)}, s17 offen {fl}")
        A(f"buffer_load_dwordx4 {vr(pa+4,4)}, v{aPO}, {sr(sWS)}, s17 offen offset:1024 {fl}")
    A("L_bfirst:")
    stamp(6)
    if not bafter: bpoll("nt")
    A("L_bmfa:")
    while nwo < 8: wold(nwo); nwo += 1
    nb = 0 if bafter else 2
    if not aearly:
        A(f"s_waitcnt vmcnt({afterA + nb})")
        A("L_oachk:")
        strip(gx, True)
        strip(gx + 4, False)
        check("L_oaretry")
        oprep(gx, bA, A)
    def bfirst():
        A(f"s_cmp_lg_u32 s{sFast}, 0")
        A("s_cbranch_scc0 L_bp_slow")
        bpoll("nt")
        A("L_bp_back:")
    if bafter and bpw is None: bfirst()
    A(f"s_waitcnt vmcnt({6 if bpw is None else 4})")
    for r in range(4):
        c = "0" if r == 0 else vr(v.D, 4)
        A(f"v_mfma_f32_16x16x32_bf16 {vr(v.D,4)}, {vr(wor+4*r,4)}, {vr(bA+4*r,4)}, {c}")
    if bpw is not None:
        A(f"s_waitcnt vmcnt({bpw})")
        bfirst()
    if tst == 2:
        A("s_waitcnt vmcnt(2)")
        stamp(2, 2)
        A("s_waitcnt vmcnt(0)")
        stamp(3, 2)
    A("L_bchk:")
    A("s_waitcnt vmcnt(1)")
    strip(pa, True)
    A("s_waitcnt vmcnt(0)")
    strip(pa + 4, False)
    check("L_bretry")
    A("s_mov_b64 exec, -1")
    stamp(7)
    code = []
    oprep(pa, bb, code.append)
    for c_ in code[:-12]: A(c_)
    for r in range(4):
        for c_ in code[len(code) - 12 + 4 * r: len(code) - 8 + 4 * r]: A(c_)
        A(f"v_mfma_f32_16x16x32_bf16 {vr(v.D,4)}, {vr(wor+16+4*r,4)}, {vr(bb+4*r,4)}, {vr(v.D,4)}")
    A(f"s_cmp_lg_u32 s{sWave}, 0")
    A(f"ds_write_b128 v{aLP}, {vr(v.D,4)} offset:{L_P}")
    stamp(4, True)
    A("s_waitcnt lgkmcnt(0)")
    A("s_barrier")
    A("s_cbranch_scc1 L_cother" if c4 else "s_cbranch_scc1 L_fin")
    for w in range(1, 4): A(f"ds_read_b128 {vr(a+4*w,4)}, v{v.lin} offset:{L_P+1024*w}")
    A("s_cmp_ge_u32 s2, 32")
    A("s_waitcnt lgkmcnt(0)")
    for r in range(4): A(f"v_add_f32 v{a+4+r}, v{a+4+r}, v{v.D+r}")
    for r in range(4): A(f"v_add_f32 v{a+8+r}, v{a+8+r}, v{a+12+r}")
    for r in range(4): A(f"v_add_f32 v{a+4+r}, v{a+4+r}, v{a+8+r}")
    for r in range(4): A(f"v_and_or_b32 v{a+4+r}, v{a+4+r}, v{c00}, s{sTag+r}")
    A(f"buffer_store_dwordx4 {vr(a+4,4)}, v{v.lin}, {sr(sWS)}, s16 offen sc1")
    stamp(2, True)
    A("s_cbranch_scc1 L_fin")
    if amp:
        A("s_cmp_ge_u32 s2, 8")
        A("s_cbranch_scc1 L_noamp")
        A("s_getreg_b32 s84, hwreg(HW_REG_XCC_ID)")
        A("s_and_b32 s84, s84, 7")
        A("s_lshl_b32 s84, s84, 7")
        A("s_add_u32 s84, s84, 0x60000")
        A(f"v_mov_b32 v{v.W}, s80")
        A(f"v_mov_b32 v{v.W+1}, s82")
        A("s_mov_b64 exec, 1")
        A(f"buffer_store_dwordx2 {vr(v.W,2)}, v0, {sr(sWS)}, s84 offen sc1")
        A("s_mov_b64 exec, -1")
        A("L_noamp:")
    pc = a + 8
    if cwait: A("s_waitcnt vmcnt(0)")
    A("L_cbar:")
    mk = 0x00030003 if c4 else 0x00ff00ff
    A(f"s_mov_b32 s4, {mk:#x}")
    A(f"s_mov_b32 s5, {mk:#x}")
    if c4 and cwait == 1: A("s_barrier")
    stamp(3, True)
    A("L_cpoll:")
    nl = 2 if c4 else 8
    for k in range(nl): A(f"buffer_load_dwordx4 {vr(pc+4*k,4)}, v{aPC}, {sr(sWS)}, {'s%d' % (8+(4*k if c4 else k)) if k else 0} offen sc1")
    for k in range(nl):
        A(f"s_waitcnt vmcnt({nl-1-k})")
        strip(pc + 4 * k, k == 0)
    check("L_cretry")
    A("s_mov_b64 exec, -1")
    stamp(8)
    for n_ in ((4,) if c4 else (16, 8, 4)):
        for r in range(n_): A(f"v_add_f32 v{pc+r}, v{pc+r}, v{pc+n_+r}")
    for r in range(2): A(f"v_permlane32_swap_b32 v{pc+r}, v{pc+2+r}")
    for r in range(2): A(f"v_add_f32 v{pc+r}, v{pc+r}, v{pc+2+r}")
    A(f"v_permlane16_swap_b32 v{pc}, v{pc+1}")
    A(f"v_add_f32 v{pc}, v{pc}, v{pc+1}")
    A(f"v_add_f32_dpp v{pc}, v{pc}, v{pc} row_ror:8 {DPPM}")
    if c4:
        A(f"v_add_f32_dpp v{pc}, v{pc}, v{pc} row_ror:4 {DPPM}")
        A(f"v_add_f32_dpp v{pc}, v{pc}, v{pc} quad_perm:[2,3,0,1] {DPPM}")
    A(f"v_cvt_pk_bf16_f32 v{pc}, v{pc}, v{pc}")
    A("s_mov_b64 exec, s[4:5]")
    A(f"buffer_store_short v{pc}, v{aOUT}, {sr(sOUT)}, 0 offen")
    A(f"s_or_b32 s4, s2, s{sWave}")
    A("s_cbranch_scc1 L_fin")
    A("s_mov_b64 exec, 1")
    A(f"v_mov_b32 v{pc+1}, s{sE}")
    A(f"buffer_store_dword v{pc+1}, v0, {sr(sWS)}, 0 offen sc1")
    if amp:
        A("s_memrealtime s[90:91]")
        A("L_amp1:")
        A("s_memrealtime s[98:99]")
        A("s_waitcnt lgkmcnt(0)")
        A("s_sub_u32 s98, s98, s80")
        A("s_cmp_lt_u32 s98, 9000")
        A("s_cbranch_scc1 L_amp1")
        A("s_mov_b64 exec, -1")
        A(f"v_lshlrev_b32 v{v.W}, 7, v0")
        A("s_mov_b32 s84, 0x60000")
        A(f"buffer_load_dwordx2 {vr(v.W+2,2)}, v{v.W}, {sr(sWS)}, s84 offen sc1")
        A("s_waitcnt vmcnt(0)")
        ka, xa, kb, xb, off = amp
        if ka == 2: A("s_mov_b32 s86, s90")
        else: A(f"v_readlane_b32 s86, v{v.W+2+ka}, {xa}")
        A(f"v_readlane_b32 s87, v{v.W+2+kb}, {xb}")
        A("s_nop 4")
        A("s_sub_u32 s86, s86, s87")
        A(f"s_sub_u32 s86, s86, {off}")
        A("s_mul_i32 s86, s86, 10")
        A("s_add_u32 s86, s86, 13000")
        A("s_max_i32 s86, s86, 9000")
        A("s_min_i32 s86, s86, 30000")
        A("L_amp2:")
        A("s_memrealtime s[98:99]")
        A("s_waitcnt lgkmcnt(0)")
        A("s_sub_u32 s98, s98, s80")
        A("s_cmp_lt_u32 s98, s86")
        A("s_cbranch_scc1 L_amp2")
    if probe:
        A("L_probe:")
        A("s_memrealtime s[98:99]")
        A("s_waitcnt lgkmcnt(0)")
        A("s_sub_u32 s98, s98, s100")
        A(f"s_cmp_lt_u32 s98, {probe}")
        A("s_cbranch_scc1 L_probe")
    A("L_fin:")
    if stamps:
        A("s_mov_b64 exec, 1")
        stamp(9)
        A("s_waitcnt lgkmcnt(0)")
        A(f"s_lshl_b32 s{sTmp}, s2, 2")
        A(f"s_add_u32 s{sTmp}, s{sTmp}, s{sWave}")
        A(f"s_lshl_b32 s{sTmp}, s{sTmp}, 6")
        A(f"s_add_u32 s{sTmp}, s{sTmp}, {WS_ST}")
        A("s_getreg_b32 s4, hwreg(HW_REG_XCC_ID)")
        A("s_getreg_b32 s5, hwreg(HW_REG_HW_ID)")
        b = v.buf
        for k in range(10): A(f"v_mov_b32 v{b+k}, s{sStamp+2*k}")
        A(f"v_mov_b32 v{b+10}, s4")
        A(f"v_mov_b32 v{b+11}, s5")
        A(f"v_mov_b32 v{b+12}, s{sSpin}")
        A(f"v_mov_b32 v{b+13}, s{sHi}")
        A(f"v_mov_b32 v{b+14}, s{sFast}")
        for k in range(4): A(f"buffer_store_dwordx4 {vr(b+4*k,4)}, v0, {sr(sWS)}, s{sTmp} offen offset:{16*k}")
    A("L_end:")
    A("s_endpgm")
    def spinchk():
        A(f"s_sub_u32 s{sSpin}, s{sSpin}, 1")
        A("s_cbranch_scc1 L_end")
    A("L_bretry:")
    spinchk()
    A("s_mov_b64 exec, vcc")
    A(f"s_cmp_lg_u32 s{sFast}, 0")
    A("s_cbranch_scc0 L_bretry_slow")
    bpoll("nt")
    A("s_branch L_bchk")
    if c4:
        A("L_cother:")
        A("s_cmp_ge_u32 s2, 32")
        A("s_cbranch_scc1 L_fin")
        A("s_branch L_cbar")
    A("L_cretry:")
    spinchk()
    A("s_mov_b64 exec, vcc")
    A("s_branch L_cpoll")
    A("L_bsel:")
    A(f"s_cmp_lg_u32 s{sFast}, 0")
    A("s_cbranch_scc1 L_bfirst")
    A("s_branch L_bslow")
    A("L_oslow:")
    A(f"buffer_store_dwordx4 {vr(oo,4)}, v{aSO}, {sr(sWS)}, s17 offen sc1")
    A("L_bslow:")
    stamp(6)
    if not bafter: bpoll("sc1")
    A("s_branch L_bmfa")
    if bafter:
        A("L_bp_slow:")
        bpoll("sc1")
        A("s_branch L_bp_back")
    A("L_bretry_slow:")
    bpoll("sc1")
    A("s_branch L_bchk")
    def mlld(fl): A(f"buffer_load_dwordx4 {vr(mlr,4)}, v{v.aML}, {sr(sWS)}, 0 offen {fl}")
    A("L_side:")
    if aearly:
        A(f"s_cmp_lg_u32 s{sPh}, 0")
        A("s_cbranch_scc0 L_side5")
        A(f"s_cmp_lg_u32 s{sFast}, 0")
        A("s_cbranch_scc0 L_lda_slow")
        oald("nt")
        A("L_lda_back:")
        A("s_branch L_side4")
        A("L_side5:")
    A("s_lshr_b32 s5, s2, 7")
    A("s_lshl_b32 s5, s5, 10")
    if aside and not aearly:
        A(f"s_cmp_lg_u32 s{sPh}, 0")
        A("s_cbranch_scc0 L_side0")
        if p2t == 1:
            A(f"v_lshrrev_b32 v{gx}, 2, v{aLO}")
            A(f"buffer_load_dword v{gx}, v{gx}, {sr(sWS)}, s16 offen")
        elif obt:
            A(f"buffer_load_dword v{gx}, v{aSO}, {sr(sWS)}, s17 offen {tchflags}")
        else:
            A(f"buffer_load_dwordx4 {vr(gx,4)}, v{v.lin}, {sr(sX)}, s5 offen")
        if endthr: A(f"s_sub_u32 s{sThr}, s{sThr}, {endthr}")
        sta()
        A("s_branch L_side4")
        A("L_side0:")
    A(f"buffer_load_dwordx4 {vr(gx,4)}, v{v.lin}, {sr(sX)}, s5 offen")
    A(f"buffer_load_dwordx4 {vr(gx+4,4)}, v{v.lin}, {sr(sGW)}, 0 offen")
    A("L_side4:")
    A(f"s_cmp_lg_u32 s{sFast}, 0")
    A("s_cbranch_scc1 L_side1")
    mlld("sc1")
    A("s_branch L_sidebody")
    A("L_side1:")
    mlld("nt")
    A("L_sidebody:")
    assert itml < 15
    body("V", procV, whi if sidehi else waits, 5)
    A("s_branch L_vloop")
    for nm, ld, back in (("ml", mlld, "L_mlchk"), ("oa", oald, "L_oachk")):
        A(f"L_{nm}retry:")
        spinchk()
        A(f"s_cmp_lg_u32 s{sFast}, 0")
        A(f"s_cbranch_scc0 L_{nm}retry_slow")
        ld("nt")
        A("s_waitcnt vmcnt(0)")
        A(f"s_branch {back}")
        A(f"L_{nm}retry_slow:")
        ld("sc1")
        A("s_waitcnt vmcnt(0)")
        A(f"s_branch {back}")
    A("L_pubml:")
    mlread()
    A(f"v_lshl_add_u32 v{v.y0}, v{t+6}, 2, v{t+7}")
    A(f"s_and_b32 s4, s{sJ}, 15")
    A(f"v_cmp_eq_u32 vcc, s4, v{v.y0}")
    A("s_waitcnt lgkmcnt(0)")
    A(f"v_max3_f32 v{v.y0}, v{v.D}, v{v.D+2}, v{v.D+4}")
    A(f"v_max_f32 v{v.y0}, v{v.y0}, v{v.D+6}")
    A(f"v_mul_f32 v{v.y1}, s{sL2E}, v{v.y0}")
    for w in range(4): A(f"v_fma_f32 v{v.D+2*w}, v{v.D+2*w}, s{sL2E}, -v{v.y1}")
    for w in range(4): A(f"v_exp_f32 v{v.D+2*w}, v{v.D+2*w}")
    A(f"v_mul_f32 v{v.D+1}, v{v.D}, v{v.D+1}")
    for w in range(1, 4): A(f"v_fmac_f32 v{v.D+1}, v{v.D+2*w}, v{v.D+2*w+1}")
    A(f"v_or_b32 v{v.D}, s{sTag}, v{v.y0}")
    A(f"v_and_or_b32 v{v.D+1}, v{v.D+1}, v{c00}, s{sTag+1}")
    A(f"v_mov_b32 v{v.D+2}, s{sTag+2}")
    A(f"v_mov_b32 v{v.D+3}, s{sTag+3}")
    A("s_mov_b64 exec, vcc")
    A(f"s_cmp_lg_u32 s{sFast}, 0")
    A("s_cbranch_scc0 L_pubml_slow")
    A(f"buffer_store_dwordx4 {vr(v.D,4)}, v{v.aML}, {sr(sWS)}, 0 offen")
    A("s_mov_b64 exec, -1")
    A("s_branch L_vent")
    A("L_pubml_slow:")
    A(f"buffer_store_dwordx4 {vr(v.D,4)}, v{v.aML}, {sr(sWS)}, 0 offen sc1")
    A("s_mov_b64 exec, -1")
    A("s_branch L_vent")
    A("L_puba:")
    stageA(0, oA)
    if aearly: sta()
    A("s_branch L_vent")
    A("L_sta_slow:")
    A(f"buffer_store_dwordx4 {vr(oA,4)}, v{aSO}, {sr(sWS)}, 0 offen sc1")
    A("s_branch L_sta_back")
    A("L_lda_slow:")
    oald("sc1")
    A("s_branch L_lda_back")
    A("L_qslow:")
    A(f"s_cmp_lg_u32 s{sWave}, 0")
    A("s_cbranch_scc1 L_qretry")
    A(f"buffer_store_dword v{v.e0}, v{v.e1}, {sr(sWS)}, 0 offen sc1")
    A("L_qretry:")
    spinchk(); qpoll()
    A("s_waitcnt vmcnt(0)")
    qacc()
    A(f"v_and_b32 v{t+10}, 0x1fff, v{t+8}")
    A(f"v_cmp_ne_u32 vcc, 0, v{t+10}")
    A("s_cbranch_vccnz L_qretry")
    A(f"v_and_b32 v{t+10}, 0xe000, v{t+8}")
    A("L_last:")
    A(f"v_cmp_ne_u32 vcc, 0, v{t+10}")
    A("s_branch L_qok")
    code_ = []
    cnt = 0; npad = 0; on = False
    for ln in pad([x for x in L if x != "@PAD"]):
        isins = ln.startswith("    ")
        if warm and (("only warms" in (code_[-1] if code_ else "")) or (on and isins and cnt >= warm)):
            on = True; cnt = 0
            code_.append(f"L_pad{npad}:")
            code_.append(f"    s_cbranch_execz @T{npad}")
            npad += 1
        code_.append(ln)
        cnt += isins
    if warm and helper:
        for k in range(npad):
            tgt = "L_end" if k == npad - 1 else ("L_hbar" if k == hbar else f"L_pad{k+1}")
            code_ = [x.replace(f"@T{k}", tgt) if x.endswith(f"@T{k}") else x for x in code_]
        hb = ["L_hbar:"]
        if ht:
            hb += ["    s_mov_b64 exec, -1", "    s_waitcnt lgkmcnt(0)",
                   f"    s_mov_b32 s{sWS+2}, {WS_SZ:#x}", f"    s_mov_b32 s{sWS+3}, 0x20000",
                   "    s_and_b32 s4, s2, 7", "    s_lshr_b32 s5, s2, 3", "    v_lshlrev_b32 v1, 7, v0"]
            if ht & 8: hb += ["    s_barrier"]
            if ht & 1:
                hb += ["    s_lshr_b32 s6, s5, 4", "    s_lshl_b32 s6, s6, 3", "    s_add_u32 s6, s6, s4", "    s_lshl_b32 s6, s6, 4", "    s_and_b32 s7, s5, 15",
                       "    s_add_u32 s6, s6, s7", "    s_lshl_b32 s6, s6, 7", f"    s_add_u32 s6, s6, {WS_ML:#x}", "    s_mov_b64 exec, 1",
                       f"    buffer_load_dword v2, v1, {sr(sWS)}, s6 offen"]
            if ht & 2:
                hb += ["    s_lshl_b32 s6, s4, 5", "    s_add_u32 s6, s6, s5", "    s_lshl_b32 s6, s6, 11", f"    s_add_u32 s6, s6, {WS_O:#x}", "    s_add_u32 s7, s6, 0x80000",
                       "    s_mov_b64 exec, 0xffff", f"    buffer_load_dword v2, v1, {sr(sWS)}, s6 offen", f"    buffer_load_dword v3, v1, {sr(sWS)}, s7 offen"]
            if ht & 4:
                hb += ["    s_lshl_b32 s6, s2, 10", f"    s_add_u32 s6, s6, {WS_P2:#x}", "    s_mov_b64 exec, 0xff", f"    buffer_load_dword v4, v1, {sr(sWS)}, s6 offen"]
            if ht & 16:
                hb += ["    s_lshr_b32 s6, s5, 4", "    s_lshl_b32 s6, s6, 3", "    s_add_u32 s6, s6, s4", "    s_lshl_b32 s6, s6, 5", "    s_and_b32 s7, s5, 15",
                       "    s_add_u32 s6, s6, s7", "    s_lshl_b32 s6, s6, 7", f"    s_add_u32 s6, s6, {WS_Q:#x}", "    s_mov_b64 exec, 0x10001",
                       f"    buffer_load_dword v5, v1, {sr(sWS)}, s6 offen"]
            if ht & 32:
                hb += ["    s_getreg_b32 s6, hwreg(HW_REG_XCC_ID)", "    s_and_b32 s6, s6, 7", "    s_lshl_b32 s6, s6, 12", f"    s_add_u32 s6, s6, {WS_B:#x}", "    s_mov_b64 exec, 1",
                       f"    buffer_load_dword v6, v1, {sr(sWS)}, s6 offen"]
            if ht & 64:
                hb += [f"    s_mov_b32 s{sGW}, s16", f"    s_mov_b32 s{sGW+1}, s17", f"    s_mov_b32 s{sGW+2}, 1024", f"    s_mov_b32 s{sGW+3}, 0x20000", "    s_mov_b64 exec, 0xff",
                       f"    buffer_load_dword v7, v1, {sr(sGW)}, 0 offen"]
            hb += ["    s_mov_b64 exec, 0"]
        if not ht & 8: hb += ["    s_barrier"]
        code_ += hb + [f"    s_branch L_pad{hbar+1}"]
    elif warm:
        i0 = code_.index("L_pad0:"); del code_[i0:i0+2]
        for k in range(1, npad):
            tgt = f"L_pad{k+4}" if k + 4 < npad else "L_wret"
            code_ = [x.replace(f"@T{k}", tgt) if x.endswith(f"@T{k}") else x for x in code_]
        for w in range(4): code_ = [x.replace(f"L_seg{w}", f"L_pad{w+1}") for x in code_]
    ref = open(os.path.join(os.path.dirname(os.path.abspath(__file__)), "header.txt")).read().rstrip("\n").split("\n")
    out = ref + [f"; @launch grid=(256,1,1) block=({320 if (warm and helper) else 256},1,1) lds={L_SZ}",
                 '.amdgcn_target "amdgcn-amd-amdhsa--gfx950"', ".text"] + DOC + [f".globl {KNAME}", ".p2align 8",
                 f".type {KNAME},@function"] + code_
    acc = (NV + 3) // 4 * 4
    out += ['.section .rodata,"a"', ".p2align 6", f".amdhsa_kernel {KNAME}",
            f"  .amdhsa_next_free_vgpr {NV}", "  .amdhsa_next_free_sgpr 102", f"  .amdhsa_accum_offset {acc}",
            "  .amdhsa_group_segment_fixed_size 0", "  .amdhsa_kernarg_size 112", "  .amdhsa_user_sgpr_count 2",
            "  .amdhsa_user_sgpr_kernarg_segment_ptr 1", "  .amdhsa_system_sgpr_workgroup_id_x 1",
            "  .amdhsa_float_denorm_mode_32 3", ".end_amdhsa_kernel"]
    return "\n".join(out) + "\n"

if __name__ == "__main__":
    kw = eval("dict(" + (sys.argv[1] if len(sys.argv) > 1 else "") + ")")
    sys.stdout.write(gen(**kw))
```

```python
import sys, os
sys.path.insert(0, os.path.dirname(os.path.abspath(__file__)))
from hz import pad

KNAME = "gated_mix__gqa_block_cached__gqa_block_cached__decode_kernel"
LOG2E = 0x3fb8aa3b
SCALE = 0x3db504f3

WS_Q  = 0x10000
WS_ML = 0x30000
WS_B  = 0x40000
WS_C  = 0x50000
WS_O  = 0x100000
WS_P2 = 0x80000
WS_ST = 0x300000
WS_SZ = 0x400000
L_T, L_O, L_M, L_P, L_SZ = 0, 32768, 49152, 53248, 57344
DPPM = "row_mask:0xf bank_mask:0xf"
PAT1 = "k0 s0 k1 s1 w0 g0 s3 s2 g1 n3 w1 n1 n2 n0 k2"


DOC = """
; ---------------------------------------------------------------------------------------------------------
; out = g*Attn_A(x) + (1-g)*Attn_B(x), one fused launch, 256 workgroups (one per CU) x 4 streaming waves.
; workgroup w: kv head hkv = w&7, j = w>>3 = (batch b, split s of 16); the 32 workgroups with equal hkv form a "set".
;
; 1. q projection: each workgroup computes 32 columns of x@wq (both batches), rounds to bf16 and hands them to
;    its set. K loads already stream into a register backlog meanwhile.
; 2. four streaming phases K_A, V_A, K_B, V_B (one array at a time chip-wide, keys visited in a DRAM friendly
;    permutation, about five 1-KiB loads in flight per wave, data goes straight from HBM into MFMA operands):
;      K phase: scores = bf16(bf16(q.k)*Dh^-0.5) -> LDS, running max / sum of exp per lane
;      V phase: p = exp(score - max of this wave's keys) (exact max), O += p*V
;    (max, sum) of every workgroup are exchanged inside the set during the V phase.
; 3. tail: partial O * g * exp(m-M)/L -> set; every workgroup adds 16 splits, rounds o to bf16 and multiplies
;    with a 64x128 tile of wo_A and of wo_B; 32 workgroups add the 64 partial rows and store bf16.
;
; Hand-offs through d_ws are self-validating: the low bits of every dword carry a tag derived from an epoch word
; (d_ws[0], read on entry, incremented once at the end), so words left by the harness or an earlier launch are
; never taken for this launch's data. Tags are removed before use: results do not depend on d_ws contents.
; Hand-offs inside a set use the XCD's L2 (plain stores, L1-bypassing loads) only if all 32 workgroups reported
; the same XCC id together with their q columns; under any other placement device-scope (sc1) stores and loads are used.
; The last hand-off is always device scope.
; Load balancing (speed hints only, tagged, set up inside the launch; no result depends on them, nothing ever waits on them):
; a per-XCD line holds the loop counters of the workgroups on that XCD; a wave that finds most neighbours ahead keeps six
; loads in flight instead of five for one iteration (up to eight when a whole iteration behind). At 13 checkpoints one wave
; per XCD draws an arrival rank from a counter; a late XCD gets more "virtual" neighbours ahead, i.e. prefetches deeper.
; Wave 4 is a warm-up wave: it walks the code once with EXEC = 0 (pad to pad, branching around everything) to fill the
; instruction cache, loads (and drops) one dword of the few small lines needed mid-stream, sets the start values of the
; load-balancing hints and exits.
; ---------------------------------------------------------------------------------------------------------
""".strip().split("\n")

def gen(NPL=40, waits=(4,)*8, whi=(5,)*8, wepi=None, R=3, XB=2, XT=2, P0=3, pollak=-1, tlb=2, cpf=1, wosw=1, XQ=0, wcat=(5,)*8, warm=96, hbar=3, helper=1, cpfe=0, c4=1, cwait=1, p2t=0, obt=0, sti=(16, 24, 32), KF=0, KM=0, qt=0, endthr=0, sidehi=0, bpw=None, wolate=0, mlt=0, ht=113, wqp=0, wqf1=None, KI=0, cps=(2,6,10,14,18,21,25,29,33,36,40,44,48), xtab=(2,2,3,4,5,7,9,12), k0=4, cw=3, woil=0, obe=0, pafirst=0, wot=0, woe=0, tlo=None, wmin=(3,)*8, turbo=8, qloc=1, lasthi=0, CU=16, bafter=1, aside=1, run64=2, aearly=0, thr=(28, 33), wpro=None, wkv=None, pat=PAT1,
        wqflags="nt", woflags="nt", kvflags="nt", tchflags="nt", fast=1, touch=0, woburst=0, itml=12, wqfirst=0, wodelay=0, wvk=None,
        stamps=False, tst=False, spin=1 << 22, cut=0, probe=0, amp=None, ampat=5):
    P = max(max(waits), max(whi)) + 1
    if wepi is None: wepi = (P - 1,) * 8
    assert run64 == 2 and NPL % 8 == 0 and P + XT <= 8 and 5 <= P <= 6
    pos = {n: 8 + i for i, n in enumerate(pat.split())}
    assert len(pos) == 15
    def dep(c, val, nb): return sum(((val >> i) & 1) << pos[f"{c}{i}"] for i in range(nb))
    L = []
    def A(s): L.append(s)
    class V: pass
    v = V(); nv = [0]
    def valloc(name, n=1, al=1):
        nv[0] = (nv[0] + al - 1) // al * al
        setattr(v, name, nv[0]); nv[0] += n
    for nm in ("tid", "koff", "voff", "lin", "mask0", "mask1"): valloc(nm)
    valloc("T", 2, 2); valloc("TV", 2, 2)
    valloc("m", 2, 2); v.l = v.m + 1
    for nm in ("ta", "mL", "e0", "e1", "e2", "y0", "y1", "z", "p", "pd", "bw", "br", "bv", "bl", "aML", "c00"): valloc(nm)
    valloc("q", 4, 2); valloc("qB", 4, 2); valloc("acc", 8, 2); valloc("D", 8, 2)
    valloc("W", 18, 2)
    valloc("t", 12, 2)
    valloc("buf", max(4 * NPL, 160), 4)
    NV = nv[0]
    assert NV <= 256, NV
    def vr(a, n): return f"v[{a}:{a+n-1}]"
    wqr = v.buf + max(4 * NPL, 160) - 32
    xr = wqr - 16
    wor = v.buf + 32
    gx = v.buf + 64
    sb = v.buf + 72
    mlr = v.buf + 80
    (aWO, aLO, aSO, aPO, aPC, aOUT, gA, gB, F) = range(v.buf + 84, v.buf + 93)
    aLP = aLO
    c00 = v.c00
    bA = v.buf + 96
    oA = v.buf + 112
    aBP = v.buf + 116
    a = v.buf + 118
    assert a + 42 <= NV
    sK, sV, sWQ, sWO, sWS, sX, sGW, sOUT = 20, 24, 28, 32, 36, 40, 44, 48
    sWave, sOff, sCnt, sE, sL2E, sTmp, sTmp2, sSpin, sPh = 3, 52, 53, 54, 55, 56, 57, 58, 59
    sQ1, sQ2, sQ3 = 60, 62, 64
    sHi, sFast = 66, 67
    sTag, sTag16, sNo, sN, sThr = 68, 72, 73, 74, 75
    sKB = 76
    sHkv, sJ = 6, 7
    sQT = 96
    sStamp = 80
    def sr(a, n=4): return f"s[{a}:{a+n-1}]"
    def stamp3(k):
        if stamps and tst == 3: A(f"s_memrealtime s[{sStamp+2*k}:{sStamp+2*k+1}]")
    def stamp4(ka, kb):
        if stamps and tst == 4:
            n_ = len(L)
            A(f"s_cmp_lg_u32 s{sPh}, 0")
            A(f"s_cbranch_scc1 L_st{n_}")
            A(f"s_memrealtime s[{sStamp+2*ka}:{sStamp+2*ka+1}]")
            A(f"L_st{n_}:")
            A(f"s_memrealtime s[{sStamp+2*kb}:{sStamp+2*kb+1}]")
    def stamp(k, tail=False):
        if amp and k == ampat and not tail: A("s_memrealtime s[82:83]")
        if tst in (3, 4) and k in (6, 7, 8): return
        if stamps and (k not in (1, 2, 3, 4) or tail == tst or (tst == 2 and tail is True and k in (1, 4))): A(f"s_memrealtime s[{sStamp+2*k}:{sStamp+2*k+1}]")
    def sdep(dst, src, c, nb, first, tmp):
        groups = {}
        for i in range(nb): groups.setdefault(pos[f"{c}{i}"] - i, []).append(i)
        for sh, bits in groups.items():
            d = dst if first else tmp
            A(f"s_and_b32 s{d}, s{src}, {sum(1 << i for i in bits)}")
            A(f"s_lshl_b32 s{d}, s{d}, {sh}")
            if not first: A(f"s_add_u32 s{dst}, s{dst}, s{tmp}")
            first = False

    A(f"{KNAME}:")
    A("s_cmp_ge_u32 s2, 256")
    A("s_cbranch_scc1 L_end")
    stamp(0)
    if probe: A("s_memrealtime s[100:101]")
    if amp: A("s_memrealtime s[80:81]")
    A("s_lshr_b32 s4, s2, 7")
    A("s_mul_i32 s4, s4, 40")
    A("s_add_u32 s4, s0, s4")
    A("s_addc_u32 s5, s1, 0")
    A("s_load_dwordx2 s[12:13], s[4:5], 24")
    A(f"s_load_dwordx2 {sr(sX,2)}, s[0:1], 0")
    A("s_load_dwordx4 s[8:11], s[0:1], 8           ; K_A, V_A")
    A(f"s_load_dwordx2 {sr(sWS,2)}, s[0:1], 104")
    A(f"s_load_dwordx4 {sr(sKB)}, s[0:1], 48       ; K_B, V_B")
    A("s_load_dwordx4 s[16:19], s[0:1], 80")
    A(f"s_load_dwordx2 {sr(sWO,2)}, s[0:1], 32     ; wo_A")
    A("s_load_dwordx2 s[14:15], s[0:1], 72         ; wo_B")
    t = v.t
    A(f"v_lshrrev_b32 v{t}, 6, v0")
    A(f"v_and_b32 v0, 63, v0")
    A(f"v_readfirstlane_b32 s{sWave}, v{t}")
    if cpfe:
        A("s_getpc_b64 s[84:85]")
        A("L_pc:")
        A(f"s_sub_u32 s84, s84, L_pc-{KNAME}")
        A("s_subb_u32 s85, s85, 0")
        A("s_lshr_b32 s86, s2, 3")
        A("s_lshl_b32 s86, s86, 2")
        A(f"s_add_u32 s86, s86, s{sWave}")
        A("s_lshl_b32 s86, s86, 7")
        A(f"s_min_u32 s86, s86, L_last-{KNAME}")
        if cpfe == 1: A("s_load_dword s87, s[84:85], s86")
    if warm and helper:
        A(f"v_cmp_gt_u32 vcc, 4, v{t}")
        A("s_mov_b64 exec, vcc                         ; wave 4 only warms caches: EXEC = 0, hops pad to pad")
        A("@PAD")
    A(f"v_lshrrev_b32 v{t+1}, 3, v0")
    A(f"v_lshl_add_u32 v{t+2}, v{t}, 3, v{t+1}")
    A(f"v_and_b32 v{t+3}, 7, v0")
    A(f"v_lshlrev_b32 v{t+3}, 3, v{t+3}")
    A(f"v_lshl_add_u32 v{t+3}, v{t+2}, 17, v{t+3}")
    A(f"v_bfe_u32 v{t+4}, v0, 2, 1")
    A(f"v_lshlrev_b32 v{t+8}, 10, v{t+4}")
    A(f"v_lshl_add_u32 v{t+8}, v{t+2}, 5, v{t+8}")
    A(f"s_and_b32 s{sHkv}, s2, 7")
    A(f"s_lshr_b32 s{sJ}, s2, 3")
    A(f"s_and_b32 s{sTmp}, s{sJ}, 15")
    A(f"s_lshl_b32 s{sTmp}, s{sTmp}, 6")
    A(f"s_lshl_b32 s{sTmp2}, s{sHkv}, 10")
    A(f"s_add_u32 s{sTmp}, s{sTmp}, s{sTmp2}")
    A(f"s_mov_b32 s{sX+2}, 2048")
    A(f"s_mov_b32 s{sX+3}, 0x20000")
    A(f"s_mov_b32 s{sWQ+2}, 0x400000")
    A(f"s_mov_b32 s{sWQ+3}, 0x20000")
    A(f"s_lshr_b32 s{sTmp2}, s2, 7")
    A(f"s_lshl_b32 s{sTmp2}, s{sTmp2}, 3")
    A(f"s_add_u32 s{sTmp2}, s{sTmp2}, s{sHkv}")
    A(f"s_lshl_b32 s{sTmp2}, s{sTmp2}, 23")
    A(f"s_mov_b32 s{sK+2}, 0x800000")
    A(f"s_mov_b32 s{sK+3}, 0x20000")
    sdep(sNo, sWave, "w", 2, True, sCnt)
    sdep(sNo, sJ, "s", 4, False, sCnt)
    A(f"v_bfe_u32 v{t+5}, v0, 2, 2")
    A(f"v_lshrrev_b32 v{t+6}, 4, v0")
    A(f"v_and_b32 v{t+7}, 3, v0")
    A(f"v_lshlrev_b32 v{v.lin}, 4, v0")
    A(f"v_lshl_add_u32 v{v.koff}, v{t+6}, 6, s{sNo}")
    A(f"v_lshl_add_u32 v{v.koff}, v{t+7}, 4, v{v.koff}")
    A(f"v_lshl_add_u32 v{v.koff}, v{t+4}, {pos['g0']}, v{v.koff}")
    A(f"v_bfe_u32 v{t+9}, v0, 3, 1")
    A(f"v_lshl_add_u32 v{v.koff}, v{t+9}, {pos['g1']}, v{v.koff}")
    last = [None]
    def issue(i, kind, sl, loop=False):
        kd = dep("k", i & 7, 3)
        c = kd if loop else kd + dep("n", i >> 3, 4)
        imm, hi = c & 0xfff, c & ~0xfff
        if loop:
            if hi == 0: so = f"s{sNo}"
            else:
                if last[0] != ("l", hi): A(f"s_add_u32 s{sOff}, s{sNo}, {hi:#x}")
                last[0] = ("l", hi); so = f"s{sOff}"
        else:
            if hi == 0: so = "0"
            else:
                if last[0] != ("c", hi): A(f"s_mov_b32 s{sOff}, {hi:#x}")
                last[0] = ("c", hi); so = f"s{sOff}"
        if i & 7 == 7: last[0] = None
        off = f" offset:{imm}" if imm else ""
        r = v.buf + 4 * sl
        if kind == "K": A(f"buffer_load_dwordx4 {vr(r,4)}, v{v.koff}, {sr(sK)}, {so} offen{off} {kvflags}")
        else:           A(f"buffer_load_dwordx4 {vr(r,4)}, v{v.voff}, {sr(sV)}, {so} offen{off} {kvflags}")
    A("s_waitcnt lgkmcnt(0)")
    A(f"s_add_u32 s{sK}, s8, s{sTmp2}")
    A(f"s_addc_u32 s{sK+1}, s9, 0")
    for k in range(KF): issue(k, "K", k)
    stamp3(1)
    if cpfe == 2: A("s_load_dword s87, s[84:85], s86")
    A(f"s_mov_b32 s{sWQ}, s12")
    A(f"s_mov_b32 s{sWQ+1}, s13")
    seq = []
    ik = KF
    if wqp:
        A(f"s_and_b32 s4, s{sJ}, 1")
        A("s_lshl_b32 s5, s4, 16")
        A(f"s_add_u32 s{sTmp}, s{sTmp}, s5")
        A(f"s_xor_b32 s{sCnt}, s{sTmp}, 0x10000")
        A("s_lshl_b32 s4, s4, 4")
        A("s_xor_b32 s5, s4, 16")
        A(f"buffer_load_dwordx4 {vr(xr,4)}, v{t+8}, {sr(sX)}, s4 offen")
        A(f"buffer_load_dwordx4 {vr(xr+4,4)}, v{t+8}, {sr(sX)}, s5 offen")
    else:
        A(f"buffer_load_dwordx4 {vr(xr,4)}, v{t+8}, {sr(sX)}, 0 offen")
        A(f"buffer_load_dwordx4 {vr(xr+4,4)}, v{t+8}, {sr(sX)}, 0 offen offset:16")
    for tt in range(16):
        if tt >= 8 and KI and (tt - 8) % KI == 0:
            issue(ik, "K", ik); ik += 1; seq.append("k")
        so = sCnt if (wqp and tt >= 8) else sTmp
        fl = wqf1 if (wqf1 is not None and tt < 8) else wqflags
        A(f"buffer_load_dwordx2 {vr(wqr+2*tt,2)}, v{t+3}, {sr(sWQ)}, s{so} offen {fl}")
        seq.append(tt)
        if tt < 15: A(f"s_add_u32 s{so}, s{so}, 8192")
        if tt == 7:
            for k in range(KM):
                issue(ik, "K", ik); ik += 1; seq.append("k")
    assert wqfirst <= 2
    A(f"s_mov_b32 s{sWQ}, s14                      ; this descriptor now serves wo_B")
    A(f"s_mov_b32 s{sWQ+1}, s15")
    A(f"s_load_dword s{sE}, {sr(sWS,2)}, 0")
    if qt:
        A(f"s_lshr_b32 s{sTmp}, s2, 7")
        A(f"s_lshl_b32 s{sTmp}, s{sTmp}, 3")
        A(f"s_add_u32 s{sTmp}, s{sTmp}, s{sHkv}")
        A(f"s_lshl_b32 s{sTmp}, s{sTmp}, 1")
        A(f"s_and_b32 s4, s{sWave}, 1")
        A(f"s_add_u32 s{sTmp}, s{sTmp}, s4")
        A(f"s_lshl_b32 s{sTmp}, s{sTmp}, 4")
        A(f"s_and_b32 s4, s{sJ}, 15")
        A(f"s_add_u32 s{sTmp}, s{sTmp}, s4")
        A(f"s_lshl_b32 s{sTmp}, s{sTmp}, 7")
        A(f"s_add_u32 s{sTmp}, s{sTmp}, {WS_Q:#x}")
        A(f"s_load_dword s101, {sr(sWS,2)}, s{sTmp}")
    for k in range(ik, ik + P0): issue(k, "K", k)
    A(f"v_and_b32 v{v.voff}, 0xff, v{v.lin}")
    A(f"v_add_u32 v{v.voff}, s{sNo}, v{v.voff}")
    A(f"v_bfe_u32 v{t+8}, v0, 4, 1")
    A(f"v_lshl_add_u32 v{v.voff}, v{t+8}, {pos['g0']}, v{v.voff}")
    A(f"v_lshrrev_b32 v{t+8}, 5, v0")
    A(f"v_lshl_add_u32 v{v.voff}, v{t+8}, {pos['g1']}, v{v.voff}")
    A(f"s_add_u32 s{sV}, s10, s{sTmp2}")
    A(f"s_addc_u32 s{sV+1}, s11, 0")
    A(f"s_add_u32 s{sKB}, s{sKB}, s{sTmp2}")
    A(f"s_addc_u32 s{sKB+1}, s{sKB+1}, 0")
    A(f"s_add_u32 s{sKB+2}, s{sKB+2}, s{sTmp2}")
    A(f"s_addc_u32 s{sKB+3}, s{sKB+3}, 0")
    sel = xr + 8; bq = xr + 12
    for s_, b0, n_ in ((sV, None, 0x800000), (sWS, None, WS_SZ), (sWO, None, 0x400000), (sGW, 16, 1024), (sOUT, 18, 2048)):
        if b0 is not None:
            A(f"s_mov_b32 s{s_}, s{b0}")
            A(f"s_mov_b32 s{s_+1}, s{b0+1}")
        A(f"s_mov_b32 s{s_+2}, {n_:#x}")
        A(f"s_mov_b32 s{s_+3}, 0x20000")
    A(f"s_mov_b32 s{sL2E}, {LOG2E:#x}")
    A(f"s_mov_b32 s{sPh}, 0")
    for k, s in ((1, sQ1), (2, sQ2), (3, sQ3)):
        A(f"s_mov_b32 s{s}, {0x11111111 << k:#x}")
        A(f"s_mov_b32 s{s+1}, {0x11111111 << k:#x}")
    A(f"v_mov_b32 v{t+8}, 0xffff")
    A(f"v_mov_b32 v{t+9}, 0xffff0000")
    A(f"v_cndmask_b32 v{v.mask1}, 0, v{t+8}, {sr(sQ2,2)}")
    A(f"v_cndmask_b32 v{v.mask1}, v{v.mask1}, v{t+9}, {sr(sQ3,2)}")
    A(f"v_cndmask_b32 v{v.mask0}, v{t+8}, v{t+9}, {sr(sQ1,2)}")
    A(f"v_cmp_gt_u32 vcc, 2, v{t+7}")
    A(f"v_cndmask_b32 v{v.mask0}, 0, v{v.mask0}, vcc")
    A(f"s_mov_b32 s{sTmp}, 0x01000100")
    A(f"s_mov_b32 s{sTmp2}, 0x03020302")
    A(f"v_mov_b32 v{t+8}, 0x0c0c0c0c")
    A(f"v_bfi_b32 v{sel}, v{v.mask0}, s{sTmp}, v{t+8}")
    A(f"v_bfi_b32 v{sel+1}, v{v.mask1}, s{sTmp}, v{t+8}")
    A(f"v_bfi_b32 v{sel+2}, v{v.mask0}, s{sTmp2}, v{t+8}")
    A(f"v_bfi_b32 v{sel+3}, v{v.mask1}, s{sTmp2}, v{t+8}")
    for k in range(18):
        if k % 4 < 2: A(f"v_mov_b32 v{v.W+k}, 0")
    A(f"v_mov_b32 v{v.m}, 0xff800000")
    A(f"v_mov_b32 v{v.l}, 0")
    A(f"v_mov_b32 v{v.e1}, 0x7ffffff0")
    A(f"v_lshlrev_b32 v{v.ta}, 3, v0")
    A(f"v_lshl_add_u32 v{v.ta}, v{t}, 13, v{v.ta}")
    A(f"v_lshl_add_u32 v{t+8}, v{t}, 10, v{v.lin}")
    A("s_getreg_b32 s8, hwreg(HW_REG_XCC_ID)")
    A("s_and_b32 s8, s8, 7")
    if warm and not helper:
        A("s_mov_b64 exec, 0")
        for w in range(1, 4):
            A(f"s_cmp_eq_u32 s{sWave}, {w}")
            A(f"s_cbranch_scc1 L_seg{w}")
        A("s_branch L_seg0")
        A("L_wret:")
        A("s_mov_b64 exec, -1                          ; only warms")
    i = ik + P0
    for m in range(8):
        A(f"s_waitcnt vmcnt({len(seq) - 1 - seq.index(2*m + 1) + i - ik})")
        if m == 0: stamp3(2)
        if m == 7: stamp3(3)
        if m >= 8 - (max(waits) + 1) + P0:
            issue(i, "K", i); i += 1
        for k in range(4):
            A(f"v_perm_b32 v{bq+k}, v{xr+m}, v{xr+m}, v{sel+k}")
        c = "0" if m == 0 else vr(v.D, 4)
        A(f"v_mfma_f32_16x16x32_bf16 {vr(v.D,4)}, {vr(wqr+4*m,4)}, {vr(bq,4)}, {c}")
    stamp(1)
    for k in range(XB):
        issue(i, "K", i); i += 1
    A(f"ds_write_b128 v{t+8}, {vr(v.D,4)} offset:{L_P}")
    A(f"v_bfe_u32 v{t+9}, v0, 4, 1")
    A(f"v_lshlrev_b32 v{t+9}, 8, v{t+9}")
    A(f"v_lshrrev_b32 v{t+10}, 5, v0")
    A(f"v_lshl_add_u32 v{t+9}, v{t+10}, 6, v{t+9}")
    A(f"v_lshl_add_u32 v{t+9}, v{t+7}, 4, v{t+9}")
    A(f"v_lshl_add_u32 v{t+9}, v{t+5}, 2, v{t+9}")
    A("s_waitcnt lgkmcnt(0)")
    A("s_barrier")
    A(f"s_add_u32 s{sE}, s{sE}, 1")
    A(f"s_cmp_lg_u32 s{sWave}, 0")
    A("s_cbranch_scc1 L_nopub")
    qr = wqr
    for w in range(4):
        for r1 in range(2):
            A(f"ds_read_b32 v{qr+2*w+r1}, v{t+9} offset:{L_P + 1024*w + 640*r1}")
    A(f"s_lshr_b32 s{sTmp}, s2, 7")
    A(f"s_lshl_b32 s{sTmp}, s{sTmp}, 3")
    A(f"s_add_u32 s{sTmp}, s{sTmp}, s{sHkv}")
    A(f"s_lshl_b32 s{sTmp}, s{sTmp}, 12")
    A(f"s_and_b32 s{sTmp2}, s{sJ}, 15")
    A(f"s_lshl_b32 s{sTmp2}, s{sTmp2}, 7")
    A(f"s_add_u32 s{sTmp}, s{sTmp}, s{sTmp2}")
    A(f"s_add_u32 s{sTmp}, s{sTmp}, {WS_Q:#x}")
    A(f"v_and_b32 v{t+11}, 31, v0")
    A(f"v_lshlrev_b32 v{t+11}, 2, v{t+11}")
    A(f"v_lshl_add_u32 v{t+11}, v{t+10}, 11, v{t+11}")
    A(f"v_mad_u32_u24 v{t+10}, v{t+7}, 37, s{sE}")
    A(f"v_and_b32 v{t+10}, 0x1fff, v{t+10}")
    A(f"v_lshl_or_b32 v{t+10}, s8, 13, v{t+10}")
    A("s_waitcnt lgkmcnt(0)")
    for k in range(4): A(f"v_add_f32 v{qr+k}, v{qr+k}, v{qr+4+k}")
    A(f"v_add_f32 v{qr}, v{qr}, v{qr+2}")
    A(f"v_add_f32 v{qr+1}, v{qr+1}, v{qr+3}")
    A(f"v_add_f32 v{qr}, v{qr}, v{qr+1}")
    A(f"v_cvt_pk_bf16_f32 v{qr}, 0, v{qr}")
    A(f"v_or_b32 v{v.e0}, v{t+10}, v{qr}")
    A(f"v_add_u32 v{v.e1}, s{sTmp}, v{t+11}")
    A(f"buffer_store_dword v{v.e0}, v{v.e1}, {sr(sWS)}, 0 offen{'' if qloc else ' sc1'}")
    A("L_nopub:")
    stamp(2)
    misc = []
    M_ = misc.append
    for k in range(4):
        M_(f"s_add_u32 s{sTag+k}, s{sE}, {37*k}")
        M_(f"s_and_b32 s{sQT+k}, s{sTag+k}, 0x1fff")
        M_(f"s_and_b32 s{sTag+k}, s{sTag+k}, 0xff")
        M_(f"s_lshl_b32 s4, s8, 13")
        M_(f"s_or_b32 s{sQT+k}, s{sQT+k}, s4")
    M_(f"v_lshl_add_u32 v{t+9}, v{t+5}, 2, v{t+6}")
    M_(f"v_lshlrev_b32 v{t+9}, 7, v{t+9}")
    M_(f"v_lshl_add_u32 v{t+9}, v{t+7}, 5, v{t+9}")
    M_(f"s_lshl_b32 s{sTmp}, s{sHkv}, 1")
    M_(f"s_lshr_b32 s{sTmp2}, s2, 7")
    M_(f"s_add_u32 s{sTmp}, s{sTmp}, s{sTmp2}")
    M_(f"s_lshl_b32 s{sTmp}, s{sTmp}, 11")
    M_(f"s_add_u32 s{sTmp}, s{sTmp}, {WS_Q:#x}")
    M_(f"s_add_u32 s{sTmp2}, s{sTmp}, 32768")
    M_(f"s_mov_b32 s{sSpin}, {spin}")
    if tlb:
        M_(f"s_lshl_b32 s9, s{sWave}, 21")
        M_(f"s_load_dword s10, {sr(sV,2)}, s9")
        M_(f"s_load_dword s11, {sr(sKB,2)}, s9")
        M_(f"s_load_dword s12, {sr(sKB+2,2)}, s9")
        M_(f"s_lshl_b32 s13, s{sHkv}, 19")
        M_(f"s_load_dword s14, {sr(sWO,2)}, s13")
        M_(f"s_load_dword s15, {sr(sWQ,2)}, s13")
        if tlb > 1: M_(f"s_load_dword s16, {sr(sK,2)}, s9")
        if tlb > 2:
            M_(f"s_lshl_b32 s100, s{sJ}, 5")
            M_(f"s_load_dword s100, {sr(sGW,2)}, s100")
        if tlb > 3: M_(f"s_load_dword s101, {sr(sOUT,2)}, 0")
    if cpf and not cpfe:
        M_("s_getpc_b64 s[18:19]")
        M_("L_pc:")
        M_(f"s_sub_u32 s18, s18, L_pc-{KNAME}")
        M_("s_subb_u32 s19, s19, 0")
        M_(f"s_lshl_b32 s17, s{sJ}, 2")
        M_(f"s_add_u32 s17, s17, s{sWave}")
        M_("s_lshl_b32 s17, s17, 7")
        M_(f"s_min_u32 s17, s17, L_last-{KNAME}")
        M_("s_load_dword s17, s[18:19], s17")
    t8 = tuple(thr) * (8 // len(thr))
    M_("s_lshl_b32 s4, s8, 2")
    M_(f"s_lshr_b32 s4, {sum((x - 20) << (4*k) for k, x in enumerate(t8)):#x}, s4")
    M_("s_and_b32 s4, s4, 15")
    M_(f"s_add_u32 s{sThr}, s4, 20")
    sTlo = 100
    if tlo:
        assert tlb < 3
        M_("s_bitcmp1_b32 s8, 0")
        M_(f"s_cselect_b32 s{sTlo}, {tlo[1]}, {tlo[0]}")
    M_("s_lshl_b32 s4, s8, 12")
    M_(f"s_add_u32 s4, s4, {WS_B:#x}")
    M_(f"v_lshl_add_u32 v{v.br}, v0, 2, s4")
    M_(f"v_mov_b32 v{v.bl}, 0x7ffffff0")
    M_(f"s_lshl_b32 s5, s{sWave}, 6")
    M_(f"s_add_u32 s5, s5, s{sJ}")
    M_(f"v_cmp_eq_u32 vcc, s5, v0")
    M_(f"s_lshl_b32 s{sN}, s{sE}, 12")
    M_(f"s_mov_b32 s{sHi}, 0")
    M_(f"v_cndmask_b32 v{v.bw}, v{v.bl}, v{v.br}, vcc")
    M_(f"v_add_u32 v{v.bl}, s{sN}, v{v.bl}")
    sCk, sRk = sTag16, 101
    assert len(cps) <= 15 and max(cps) < 52
    lo = sum(c << (6*k) for k, c in enumerate(cps[:10])); hi = sum(c << (6*k) for k, c in enumerate(cps[10:]))
    M_(f"s_mov_b32 s4, {lo & 0xffffffff:#x}")
    M_(f"s_mov_b32 s5, {lo >> 32:#x}")
    M_(f"s_mul_i32 s{sCk}, s{sJ}, 6")
    M_(f"s_lshr_b64 s[4:5], s[4:5], s{sCk}")
    M_(f"s_sub_u32 s{sCk}, s{sCk}, 60")
    M_(f"s_lshr_b32 s5, {hi:#x}, s{sCk}")
    M_(f"s_cmp_lt_u32 s{sJ}, 10")
    M_("s_cselect_b32 s4, s4, s5")
    M_("s_and_b32 s4, s4, 63")
    M_(f"s_xor_b32 s5, s{sWave}, {cw}")
    M_("s_lshl_b32 s5, s5, 5")
    M_(f"s_add_u32 s5, s5, s{sJ}")
    M_(f"s_cmp_lt_u32 s5, {len(cps)}")
    M_("s_cselect_b32 s4, s4, 0x400")
    M_(f"s_add_u32 s{sCk}, s{sN}, s4")
    M_(f"s_lshl_b32 s4, s{sHkv}, 11")
    M_(f"s_lshr_b32 s5, s2, 7")
    M_("s_lshl_b32 s5, s5, 10")
    M_("s_add_u32 s4, s4, s5")
    M_(f"s_add_u32 s4, s4, {WS_ML:#x}")
    M_(f"v_add_u32 v{v.aML}, s4, v{v.lin}")
    if mlt:
        M_(f"s_and_b32 s5, s{sJ}, 1")
        M_("s_lshl_b32 s5, s5, 2")
        M_(f"s_add_u32 s5, s5, s{sWave}")
        M_("s_lshl_b32 s5, s5, 7")
        M_("s_add_u32 s92, s4, s5")
        M_("s_add_u32 s93, s92, 0x4000")
        M_(f"s_load_dword s94, {sr(sWS,2)}, s92")
        M_(f"s_load_dword s95, {sr(sWS,2)}, s93")
    M_(f"v_mov_b32 v{c00}, 0xffffff00")
    def drain(n):
        for _ in range(n):
            if misc:
                s_ = misc.pop(0); A(s_)
                if s_.startswith(("s_bitcmp", "s_cmp", "s_getpc", "s_sub_u32 s18")): A(misc.pop(0))
    qp = v.acc
    assert v.D == v.acc + 8 and v.qB == v.q + 4
    def qpoll(fl="sc1"):
        A(f"buffer_load_dwordx4 {vr(qp,4)}, v{t+9}, {sr(sWS)}, s{sTmp} offen {fl}")
        A(f"buffer_load_dwordx4 {vr(qp+4,4)}, v{t+9}, {sr(sWS)}, s{sTmp} offen offset:16 {fl}")
        A(f"buffer_load_dwordx4 {vr(qp+8,4)}, v{t+9}, {sr(sWS)}, s{sTmp2} offen {fl}")
        A(f"buffer_load_dwordx4 {vr(qp+12,4)}, v{t+9}, {sr(sWS)}, s{sTmp2} offen offset:16 {fl}")
    ipoll = NPL - P - XQ
    while i < NPL - XQ:
        n = (wpro or waits)[i & 7]
        if i > ipoll and i - n - 1 < ipoll: n += 4
        A(f"s_waitcnt vmcnt({n})")
        if i == ipoll:
            assert not misc
            qpoll("nt" if qloc else "sc1")
        if i in sti: stamp3((4, 6, 7)[sti.index(i)])
        issue(i, "K", i); i += 1
        drain(6 if NPL > 24 else 9)
    A(f"s_waitcnt vmcnt({P})")
    def qacc():
        A(f"v_xor_b32 v{t+8}, s{sQT}, v{qp}")
        for k in range(1, 16): A(f"v_bitop3_b32 v{t+8}, v{qp+k}, s{sQT+(k&3)}, v{t+8} bitop3:0xbe")
    qacc()
    A(f"v_and_b32 v{t+10}, 0xffff, v{t+8}")
    A(f"v_cmp_ne_u32 vcc, 0, v{t+10}")
    A("s_cbranch_vccnz L_qslow")
    A("L_qok:")
    A(f"s_mov_b32 s4, 0x07060302")
    for k in range(8): A(f"v_perm_b32 v{v.q+k}, v{qp+2*k+1}, v{qp+2*k}, s4")
    A("s_cmp_eq_u64 vcc, 0")
    A(f"s_cselect_b32 s{sFast}, {fast}, 0")
    while i < NPL:
        A(f"s_waitcnt vmcnt({(wcat or waits)[i & 7]})")
        issue(i, "K", i); i += 1
    stamp(3)
    def red(u, T):
        D = v.D + 4 * (u & 1)
        A(f"v_add_f32_dpp v{v.y0}, v{D+(u^1)}, v{D+u} quad_perm:[1,0,3,2] {DPPM}")
        A(f"v_add_f32_dpp v{v.y1}, v{D+(u^3)}, v{D+(u^2)} quad_perm:[1,0,3,2] {DPPM}")
        dst = T if u == 0 else v.z
        A(f"v_add_f32_dpp v{dst}, v{v.y1}, v{v.y0} quad_perm:[2,3,0,1] {DPPM}")
        if u: A(f"v_cndmask_b32 v{T}, v{T}, v{v.z}, {sr((sQ1,sQ2,sQ3)[u-1],2)}")
    def finT(par):
        T = v.T + par
        red(3, T)
        A(f"v_cvt_pk_bf16_f32 v{T}, 0, v{T}")
        A(f"v_mul_f32 v{T}, {SCALE:#x}, v{T}")
        A(f"v_cvt_pk_bf16_f32 v{T}, 0, v{T}")
        if par:
            A(f"v_mul_f32 v{v.e2}, s{sL2E}, v{v.m}")
            A(f"v_max3_f32 v{v.m}, v{v.T}, v{v.T+1}, v{v.m}")
            A(f"ds_write_b64 v{v.ta}, {vr(v.T,2)}")
            A(f"v_mul_f32 v{v.p}, s{sL2E}, v{v.m}")
            A(f"v_add_u32 v{v.ta}, 512, v{v.ta}")
            A(f"v_fma_f32 v{v.e0}, v{v.T}, s{sL2E}, -v{v.p}")
            A(f"v_fma_f32 v{v.e1}, v{v.T+1}, s{sL2E}, -v{v.p}")
            A(f"v_sub_f32 v{v.e2}, v{v.e2}, v{v.p}")
    def lacc():
        A(f"v_exp_f32 v{v.e0}, v{v.e0}")
        A(f"v_exp_f32 v{v.e2}, v{v.e2}")
        A(f"v_exp_f32 v{v.e1}, v{v.e1}")
        A(f"v_fma_f32 v{v.l}, v{v.l}, v{v.e2}, v{v.e0}")
        A(f"v_add_f32 v{v.l}, v{v.l}, v{v.e1}")
    def procK(j, sl):
        u = j & 3
        A(f"v_mfma_f32_16x16x32_bf16 {vr(v.D+4*(u&1),4)}, {vr(v.buf+4*sl,4)}, {vr(v.q,4)}, 0")
        if u >= 1: red(u - 1, v.T + ((j >> 2) & 1))
        elif j > 0: finT(((j >> 2) - 1) & 1)
        if j & 7 == 1 and j > 1: lacc()
    def ands(u):
        w = v.W + 2 + 4 * u
        A(f"v_and_b32_dpp v{w}, v{v.pd}, v{v.mask0} quad_perm:[{u},{u},{u},{u}] {DPPM}")
        A(f"v_and_b32_dpp v{w+1}, v{v.pd}, v{v.mask1} quad_perm:[{u},{u},{u},{u}] {DPPM}")
    def prep(par, nextread=True):
        if par == 0: A("s_waitcnt lgkmcnt(0)")
        A(f"v_fma_f32 v{v.p}, v{v.TV+par}, s{sL2E}, -v{v.mL}")
        A(f"v_exp_f32 v{v.p}, v{v.p}")
        if par == 1 and nextread:
            A(f"v_add_u32 v{v.ta}, 512, v{v.ta}")
            A(f"ds_read_b64 {vr(v.TV,2)}, v{v.ta}")
        A(f"v_cvt_pk_bf16_f32 v{v.pd}, v{v.p}, v{v.p}")
        ands(0)
    def procV(j, sl, end=False):
        u = j & 3
        w = v.W + 4 * u
        A(f"v_mfma_f32_16x16x32_bf16 {vr(v.acc,4)}, {vr(v.buf+4*sl,4)}, {vr(w+2,4)}, {vr(v.acc,4)}")
        A(f"v_mfma_f32_16x16x32_bf16 {vr(v.acc+4,4)}, {vr(v.buf+4*sl,4)}, {vr(w,4)}, {vr(v.acc+4,4)}")
        if end and j >= 124: return
        if u < 3: ands(u + 1)
        else:
            prep(((j >> 2) + 1) & 1, nextread=not (end and j == 123))
            if end and j == 123:
                ands(1); ands(2); ands(3)
    def allred(op, r, tmp):
        A(f"{op}_dpp v{r}, v{r}, v{r} quad_perm:[1,0,3,2] {DPPM}")
        A(f"{op}_dpp v{r}, v{r}, v{r} quad_perm:[2,3,0,1] {DPPM}")
        A(f"v_mov_b32 v{tmp}, v{r}")
        A(f"v_permlane16_swap_b32 v{tmp}, v{r}")
        A(f"{op} v{r}, v{r}, v{tmp}")
        A(f"v_mov_b32 v{tmp}, v{r}")
        A(f"v_permlane32_swap_b32 v{tmp}, v{r}")
        A(f"{op} v{r}, v{r}, v{tmp}")
    def accaddr():
        A(f"s_lshl_b32 s4, s{sPh}, 2")
        A(f"s_add_u32 s4, s4, s{sWave}")
        A(f"s_lshl_b32 s5, s4, 11")
        A(f"v_add_u32 v{t+9}, s5, v{v.lin}")
    def accout():
        A(f"ds_write_b128 v{t+9}, {vr(v.acc,4)} offset:{L_O}")
        A(f"ds_write_b128 v{t+9}, {vr(v.acc+4,4)} offset:{L_O+1024}")
    def strip(base, first, emit=None):
        E = emit or A
        for r in range(4): E(f"v_xor_b32 v{base+r}, s{sTag+r}, v{base+r}")
        if first: E(f"v_or_b32 v{t+11}, v{base}, v{base+1}")
        else: E(f"v_or3_b32 v{t+11}, v{base}, v{base+1}, v{t+11}")
        E(f"v_or3_b32 v{t+11}, v{base+2}, v{base+3}, v{t+11}")
    def check(label):
        A(f"v_and_b32 v{t+11}, 0xff, v{t+11}")
        A(f"v_cmp_ne_u32 vcc, 0, v{t+11}")
        A(f"s_cbranch_vccnz {label}")
    A("; ---- catch-up: consume the backlog while the stream goes on ----")
    slotof = {k: k for k in range(NPL)}
    def newslot(i): return (i - NPL) if i < NPL + CU else (i & 7)
    j = 0
    landed = i - P
    while not (j == i - P and i % 8 == 0 and j >= NPL + (CU if CU > 8 else 0)):
        s = newslot(i)
        own = max(k for k in slotof if slotof[k] == s)
        while j <= own:
            assert j < landed, "catch-up needs data not yet landed"
            procK(j, slotof[j]); j += 1
        A(f"s_waitcnt vmcnt({(wcat or waits)[i&7]})")
        landed = max(landed, i - (wcat or waits)[i & 7])
        slotof[i] = s
        issue(i, "K", s); i += 1
        n = 0
        while n < R and j < i - P:
            assert j < landed
            procK(j, slotof[j]); j += 1; n += 1
    assert i < 128
    def enter(n):
        A(f"s_mov_b32 s{sCnt}, {n}")
        A(f"s_mov_b32 s{sNo}, {dep('n', n, 4):#x}")
    enter(i // 8)
    stamp(4); stamp3(8)
    def body(kind, proc, ww, extra):
        for k in range(8):
            n = ww[k] + (extra if k <= ww[k] else 0)
            issue(k, kind, k, loop=True)
            L.insert(len(L) - 1, f"s_waitcnt vmcnt({n})")
            if k == 7:
                A(f"s_add_u32 s{sCnt}, s{sCnt}, 1")
                sdep(sNo, sCnt, "n", 4, True, 4)
            proc(16 + k - P, (k - P) & 7)
    def loop(name, kind, proc):
        A(".p2align 6")
        A(f"L_{name}loop:")
        dd = t + 2 if turbo else v.bv
        A(f"v_subrev_u32 v{dd}, s{sN}, v{v.bl}")
        A(f"s_add_u32 s{sN}, s{sN}, 1")
        A(f"v_cmp_gt_u32 vcc, 64, v{dd}")
        A(f"v_mov_b32 v{v.bv}, s{sN}")
        A(f"s_bcnt1_i32_b64 s4, vcc")
        A(f"buffer_store_dword v{v.bv}, v{v.bw}, {sr(sWS)}, 0 offen")
        A(f"buffer_load_dword v{v.bl}, v{v.br}, {sr(sWS)}, 0 offen nt")
        A(f"s_sub_u32 s5, s{sN}, s{sCk}")
        A("s_cmp_lt_u32 s5, 2")
        A(f"s_cbranch_scc1 L_{name}ctl")
        A(f"L_{name}ctlb:")
        if kind == "V":
            A(f"s_cmp_eq_u32 s{sCnt}, {itml}")
            A("s_cbranch_scc1 L_side")
        if lasthi:
            A(f"s_cmp_ge_u32 s{sCnt}, {16 - lasthi}")
            A(f"s_cbranch_scc1 L_{name}hi")
        A(f"s_cmp_ge_u32 s4, s{sThr}")
        A(f"s_cbranch_scc1 L_{name}hi")
        if tlo:
            A("s_sub_u32 s4, s4, 1")
            A(f"s_cmp_lt_u32 s4, s{sTlo}")
            A(f"s_cbranch_scc1 L_{name}min")
        for ver, ww in ((("lo", waits), ("min", wmin), ("hi", whi)) if tlo else (("lo", waits), ("hi", whi))):
            if ver == "min": A(f"L_{name}min:")
            if ver == "hi":
                A(f"L_{name}hi:")
                if stamps: A(f"s_add_u32 s{sHi}, s{sHi}, 1")
                if turbo:
                    A(f"v_add_u32 v{dd}, -1, v{dd}")
                    A(f"v_cmp_gt_u32 vcc, 63, v{dd}")
                    A("s_bcnt1_i32_b32 s4, vcc_lo")
                    A(f"s_cmp_ge_u32 s4, {turbo}")
                    A(f"s_cbranch_scc1 L_{name}turbo")
            body(kind, proc, ww, 2)
            A(f"s_cmp_lg_u32 s{sCnt}, 16")
            A(f"s_cbranch_scc1 L_{name}loop")
            if ver != "hi": A(f"s_branch L_{name}done")
        A(f"L_{name}done:")
    A("; ---- K loop (lo: 5 loads in flight, hi: 6) ----")
    loop("k", "K", procK)
    stamp4(1, 6)
    wk = wkv or waits
    for k in range(P):
        A(f"s_waitcnt vmcnt({wk[k]})")
        issue(k, "V", k)
        procK(128 + k - P, (k - P) & 7)
        if k == 0:
            A(f"v_subrev_u32 v{t+10}, {512*15}, v{v.ta}")
            A(f"ds_read_b64 {vr(v.TV,2)}, v{t+10}")
        if k == 1:
            for r in range(8): A(f"v_mov_b32 v{v.acc+r}, 0")
    for k in range(P, P + XT): issue(k, "V", k)
    finT(1)
    A(f"v_mov_b32 v{v.z}, v{v.p}")
    A(f"v_mov_b32 v{v.ta}, v{t+10}")
    allred("v_max_f32", v.m, v.y0)
    A(f"v_mul_f32 v{v.mL}, s{sL2E}, v{v.m}")
    prep(0)
    sv = L[:]; del L[:]
    lacc()
    A(f"v_sub_f32 v{v.z}, v{v.z}, v{v.mL}")
    A(f"v_exp_f32 v{v.z}, v{v.z}")
    A(f"s_lshl_b32 s5, s{sPh}, 11")
    A(f"s_lshl_b32 s4, s{sWave}, 9")
    A(f"v_mul_f32 v{v.l}, v{v.l}, v{v.z}")
    A(f"s_add_u32 s4, s4, s5")
    A(f"v_lshl_add_u32 v{t+9}, v0, 3, s4")
    allred("v_add_f32", v.l, v.y0)
    A(f"ds_write_b64 v{t+9}, {vr(v.m,2)} offset:{L_M}")
    A(f"v_lshl_add_u32 v{t+10}, v0, 3, s5")
    misc.extend(L); del L[:]; L.extend(sv)
    issued = P + XT
    for k in range(P, 8):
        if k == 7: drain(99)
        if k >= issued:
            A(f"s_waitcnt vmcnt({wk[k]})")
            issue(k, "V", k); issued += 1
        else:
            A(f"s_waitcnt vmcnt({issued - 1 - (k - P)})")
        procV(k - P, k - P)
    A("s_waitcnt lgkmcnt(0)")
    A("s_barrier")
    A(f"s_cmp_eq_u32 s{sWave}, 3")
    A("s_cbranch_scc1 L_pubml")
    A(f"s_lshl_b32 s4, s{sPh}, 1")
    A(f"s_cmp_lt_u32 s{sWave}, s4")
    A("s_cbranch_scc1 L_puba")
    A("L_vent:")
    enter(1)
    stamp4(2, 7)
    A("; ---- V loop ----")
    loop("v", "V", procV)
    stamp4(3, 8)
    A("L_mlchk:")
    strip(mlr, True)
    check("L_mlretry")
    def mlread():
        A(f"ds_read2st64_b64 {vr(v.D,4)}, v{t+10} offset0:{L_M//512} offset1:{L_M//512+1}")
        A(f"ds_read2st64_b64 {vr(v.D+4,4)}, v{t+10} offset0:{L_M//512+2} offset1:{L_M//512+3}")
    mlread()
    def fact(E):
        sv = L[:]; del L[:]
        A(f"v_mov_b32 v{mlr+2}, v{mlr}")
        allred("v_max_f32", mlr + 2, mlr + 3)
        A(f"v_mul_f32 v{mlr+2}, s{sL2E}, v{mlr+2}")
        A(f"v_fma_f32 v{mlr}, v{mlr}, s{sL2E}, -v{mlr+2}")
        A("s_waitcnt lgkmcnt(0)")
        for w in range(4): A(f"v_fma_f32 v{F+w}, v{v.D+2*w}, s{sL2E}, -v{mlr+2}")
        A(f"v_exp_f32 v{mlr}, v{mlr}")
        for w in range(4): A(f"v_exp_f32 v{F+w}, v{F+w}")
        A(f"v_mul_f32 v{mlr+1}, v{mlr+1}, v{mlr}")
        allred("v_add_f32", mlr + 1, mlr + 3)
        A(f"v_rcp_f32 v{mlr+1}, v{mlr+1}")
        code = L[:]; del L[:]; L.extend(sv)
        for c_ in code: E(c_)
    def gatef(E, g):
        E(f"v_mul_f32 v{mlr+1}, v{mlr+1}, v{g}")
        for w in range(4): E(f"v_mul_f32 v{F+w}, v{F+w}, v{mlr+1}")
    A(f"s_cmp_lg_u32 s{sPh}, 0")
    A("s_cbranch_scc1 L_epi")
    A(f"s_mov_b32 s{sK}, s{sKB}")
    A(f"s_mov_b32 s{sK+1}, s{sKB+1}")
    A(f"s_mov_b32 s{sV}, s{sKB+2}")
    A(f"s_mov_b32 s{sV+1}, s{sKB+3}")
    accaddr()
    fact(M_)
    ga = a
    for k in range(4):
        M_(f"v_lshlrev_b32 v{ga+2*k}, 16, v{gx+k}")
        M_(f"v_and_b32 v{ga+2*k+1}, 0xffff0000, v{gx+k}")
        M_(f"v_lshlrev_b32 v{ga+8+2*k}, 16, v{gx+4+k}")
        M_(f"v_and_b32 v{ga+8+2*k+1}, 0xffff0000, v{gx+4+k}")
    for k in range(8): M_(f"v_mul_f32 v{ga+k}, v{ga+k}, v{ga+8+k}")
    for k in range(8): M_(f"v_cvt_pk_bf16_f32 v{ga+k}, 0, v{ga+k}")
    for k in range(4): M_(f"v_add_f32 v{ga+k}, v{ga+k}, v{ga+4+k}")
    M_(f"v_add_f32 v{ga}, v{ga}, v{ga+2}")
    M_(f"v_add_f32 v{ga+1}, v{ga+1}, v{ga+3}")
    M_(f"v_add_f32 v{ga}, v{ga}, v{ga+1}")
    M_(f"v_add_f32_dpp v{ga}, v{ga}, v{ga} row_ror:4 {DPPM}")
    M_(f"v_add_f32_dpp v{ga}, v{ga}, v{ga} row_ror:8 {DPPM}")
    sv = L[:]; del L[:]; allred("v_add_f32", ga, ga + 1); code = L[:]; del L[:]; L.extend(sv)
    for c_ in code: M_(c_)
    M_(f"v_cvt_pk_bf16_f32 v{ga}, 0, v{ga}")
    M_(f"v_mul_f32 v{ga}, {LOG2E | 0x80000000:#x}, v{ga}")
    M_(f"v_exp_f32 v{ga}, v{ga}")
    M_(f"v_add_f32 v{ga}, 1.0, v{ga}")
    M_(f"v_rcp_f32 v{ga}, v{ga}")
    M_(f"v_cvt_pk_bf16_f32 v{gA}, 0, v{ga}")
    M_(f"v_sub_f32 v{gB}, 1.0, v{gA}")
    M_(f"v_cvt_pk_bf16_f32 v{gB}, 0, v{gB}")
    gatef(M_, gA)
    M_(f"s_lshr_b32 s8, s{sJ}, 3")
    M_(f"s_bfe_u32 s9, s{sJ}, 0x10002")
    M_(f"s_and_b32 s10, s{sJ}, 3")
    M_(f"s_lshl_b32 s12, s{sHkv}, 2")
    M_("s_add_u32 s12, s12, s8")
    M_("s_lshl_b32 s12, s12, 2")
    M_(f"s_add_u32 s12, s12, s{sWave}")
    M_("s_lshl_b32 s12, s12, 3")
    M_("s_add_u32 s12, s12, s9")
    M_("s_lshl_b32 s12, s12, 4")
    M_("s_add_u32 s12, s12, s10")
    M_("s_lshl_b32 s12, s12, 8")
    M_(f"v_and_b32 v{aWO}, 0xff, v{v.lin}")
    M_(f"v_lshl_add_u32 v{aWO}, v{t+6}, 10, v{aWO}")
    M_(f"v_add_u32 v{aWO}, s12, v{aWO}")
    M_(f"s_lshl_b32 s13, s{sWave}, 10")
    M_(f"v_add_u32 v{aLO}, s13, v{v.lin}")
    M_(f"s_lshl_b32 s12, s{sHkv}, 16")
    M_(f"s_add_u32 s12, s12, {WS_O:#x}")
    M_(f"s_lshl_b32 s13, s{sWave}, 13")
    M_("s_add_u32 s13, s13, s12")
    M_(f"s_lshr_b32 s14, s{sWave}, 1")
    M_("s_lshl_b32 s14, s14, 28")
    M_("s_add_u32 s13, s13, s14")
    M_(f"s_and_b32 s14, s{sJ}, 1")
    M_("s_lshl_b32 s14, s14, 10")
    M_("s_add_u32 s13, s13, s14")
    M_(f"s_lshr_b32 s14, s{sJ}, 1")
    M_(f"s_lshl_b32 s14, s14, {6 if run64 else 4}")
    M_("s_add_u32 s13, s13, s14")
    M_(f"v_lshl_add_u32 v{aSO}, v{t+5}, 14, s13")
    M_(f"v_lshl_add_u32 v{aSO}, v{t+6}, 11, v{aSO}")
    M_(f"v_lshl_add_u32 v{aSO}, v{t+7}, {4 if run64 else 8}, v{aSO}")
    M_(f"s_lshr_b32 s11, s{sJ}, 2")
    M_("s_lshl_b32 s13, s11, 2")
    M_(f"s_add_u32 s13, s13, s{sWave}")
    M_("s_lshl_b32 s13, s13, 11")
    M_("s_add_u32 s13, s13, s12")
    if run64 == 2:
        M_(f"v_bfe_u32 v{aBP}, v0, 3, 1")
        M_(f"v_lshl_add_u32 v{aBP}, v{aBP}, 5, v{t+6}")
        M_(f"v_lshlrev_b32 v{aBP}, 2, v{aBP}")
        if wosw:
            M_(f"s_and_b32 s14, s{sWave}, 2")
            M_("s_lshl_b32 s14, s14, 5")
            M_(f"v_xor_b32 v{aBP}, s14, v{aBP}")
        M_(f"v_xor_b32 v{aBP+1}, 64, v{aBP}")
    if run64 == 1:
        M_(f"v_and_b32 v{aPO}, 15, v0")
        M_(f"v_lshl_add_u32 v{aPO}, v{aPO}, 6, s13")
        M_(f"v_lshl_add_u32 v{aPO}, v{t+6}, 4, v{aPO}")
    else:
        M_(f"v_add_u32 v{aPO}, s13, v{v.lin}")
    M_(f"v_add_u32 v{v.aML}, 0x4000, v{v.aML}")
    M_("s_lshl_b32 s13, s10, 3")
    M_(f"s_add_u32 s13, s13, s{sHkv}")
    M_("s_lshl_b32 s13, s13, 3")
    M_("s_add_u32 s13, s13, s11")
    M_("s_lshl_b32 s13, s13, 10")
    M_(f"s_add_u32 s16, s13, {WS_P2:#x}")
    M_("s_mov_b32 s17, 0x80000")
    if p2t == 2:
        M_(f"s_lshl_b32 s13, s{sWave}, 8")
        M_("s_add_u32 s18, s13, s16")
        M_("s_add_u32 s19, s18, 128")
        M_(f"s_load_dword s100, {sr(sWS,2)}, s18")
        M_(f"s_load_dword s101, {sr(sWS,2)}, s19")
    M_(f"s_lshl_b32 s13, s{sJ}, 16")
    M_(f"s_lshl_b32 s14, s{sHkv}, 7")
    M_("s_add_u32 s13, s13, s14")
    M_(f"s_add_u32 s13, s13, {WS_P2:#x}")
    if c4:
        M_(f"s_lshl_b32 s14, s{sWave}, 5")
        M_("s_add_u32 s13, s13, s14")
        M_(f"v_and_b32 v{aPC}, 0x10, v{v.lin}")
        M_(f"v_lshrrev_b32 v{aOUT}, 1, v0")
        M_(f"v_lshl_add_u32 v{aPC}, v{aOUT}, 10, v{aPC}")
    else:
        M_(f"v_and_b32 v{aPC}, 0x70, v{v.lin}")
        M_(f"v_lshl_add_u32 v{aPC}, v{t+1}, 10, v{aPC}")
    M_(f"v_add_u32 v{aPC}, s13, v{aPC}")
    M_("s_and_b32 s13, s2, 1")
    M_("s_lshl_b32 s13, s13, 10")
    M_("s_lshr_b32 s14, s2, 1")
    M_("s_lshl_b32 s14, s14, 6")
    M_("s_add_u32 s14, s14, s13")
    if c4:
        M_(f"s_lshl_b32 s13, s{sWave}, 2")
        M_("s_add_u32 s14, s14, s13")
    M_(f"v_and_b32 v{aOUT}, 7, v0")
    M_(f"v_lshl_add_u32 v{aOUT}, v{t+6}, 3, v{aOUT}")
    M_(f"v_lshl_add_u32 v{aOUT}, v{aOUT}, 1, s14")
    M_(f"v_or_b32 v{a}, v{v.mask0}, v{v.mask1}")
    M_(f"v_mov_b32 v{a+1}, 0x0c0c0c0c")
    if wosw:
        M_(f"s_bitcmp1_b32 s{sWave}, 0")
        M_("s_cselect_b32 s12, 0x02020202, 0")
        M_("s_xor_b32 s13, s12, 0x03020302")
        M_("s_xor_b32 s12, s12, 0x01000100")
        for k in range(4):
            M_(f"s_xor_b32 s{sKB+k}, s{sWave}, {k}")
            M_(f"s_lshl_b32 s{sKB+k}, s{sKB+k}, 13")
    else:
        M_("s_mov_b32 s12, 0x01000100")
        M_("s_mov_b32 s13, 0x03020302")
        for k in range(4): M_(f"s_mov_b32 s{sKB+k}, {k << 13}")
    M_(f"v_bfi_b32 v{a+2}, v{a}, s12, v{a+1}")
    M_(f"v_bfi_b32 v{a+3}, v{a}, s13, v{a+1}")
    M_(f"v_bfe_u32 v{a}, v0, 1, 2")
    for d in range(4):
        M_(f"v_cmp_eq_u32 vcc, {d}, v{a}")
        M_(f"v_cndmask_b32 v{sb+d}, v{a+1}, v{a+2}, vcc")
        M_(f"v_cndmask_b32 v{sb+4+d}, v{a+1}, v{a+3}, vcc")
    for k in range(1, 8): M_(f"s_mov_b32 s{8+k}, {8192*k:#x}")
    per = -(-len(misc) // 8)
    for k in range(8):
        A(f"s_waitcnt vmcnt({(wvk or whi)[k]})")
        issue(k, "K", k)
        if k < P:
            procV(128 + k - P, (k - P) & 7, end=True)
            if k == P - 2:
                for r in range(4): A(f"v_mov_b32 v{v.q+r}, v{v.qB+r}")
                A(f"v_mov_b32 v{v.m}, 0xff800000")
                A(f"v_mov_b32 v{v.l}, 0")
                A(f"v_subrev_u32 v{v.ta}, {512*15}, v{v.ta}")
        else:
            procK(k - P, k - P)
            if k == P: accout()
        drain(per)
    def wold(k):
        if woil: k = (k >> 1) + 4 * (k & 1)
        so = f"s{sKB + (k & 3)}"
        A(f"buffer_load_dwordx4 {vr(wor+4*k,4)}, v{aWO}, {sr(sWO if k < 4 else sWQ)}, {so} offen {woflags}")
    assert not misc
    for z in range(woe):
        A(f"s_waitcnt vmcnt({waits[0]})")
        wold(z)
    if stamps and tst == 4: A(f"s_memrealtime s[{sStamp+8}:{sStamp+9}]")
    A(f"s_mov_b32 s{sPh}, 1")
    enter(1)
    A("s_branch L_kloop")
    A("L_epi:")
    if cut in (1, 4):
        A(f"s_mov_b32 s{sWO+2}, 0")
        A(f"s_mov_b32 s{sWQ+2}, 0")
    def sta():
        A(f"s_cmp_lg_u32 s{sFast}, 0")
        A("s_cbranch_scc0 L_sta_slow")
        A(f"buffer_store_dwordx4 {vr(oA,4)}, v{aSO}, {sr(sWS)}, 0 offen")
        A("L_sta_back:")
    if not aside and not aearly: sta()
    def oald(fl):
        A(f"buffer_load_dwordx4 {vr(gx,4)}, v{aPO}, {sr(sWS)}, 0 offen {fl}")
        A(f"buffer_load_dwordx4 {vr(gx+4,4)}, v{aPO}, {sr(sWS)}, 0 offen offset:1024 {fl}")
    def oprep(base, frag, E):
        for r in range(4): E(f"v_add_f32 v{base+r}, v{base+r}, v{base+4+r}")
        if run64 == 2:
            for r in range(2): E(f"v_permlane16_swap_b32 v{base+r}, v{base+2+r}")
            for r in range(2): E(f"v_add_f32 v{base+r}, v{base+r}, v{base+2+r}")
            for pm in ("row_ror:4", "row_ror:8"):
                for r in range(2): E(f"v_add_f32_dpp v{base+r}, v{base+r}, v{base+r} {pm} {DPPM}")
            E(f"v_cvt_pk_bf16_f32 v{base+2}, v{base}, v{base+1}")
            E(f"ds_bpermute_b32 v{base}, v{aBP}, v{base+2}")
            E(f"ds_bpermute_b32 v{base+1}, v{aBP+1}, v{base+2}")
            E("s_waitcnt lgkmcnt(0)")
        else:
            for pm in ("quad_perm:[1,0,3,2]", "quad_perm:[2,3,0,1]", "row_half_mirror"):
                for r in range(4): E(f"v_add_f32_dpp v{base+r}, v{base+r}, v{base+r} {pm} {DPPM}")
            E(f"v_cvt_pk_bf16_f32 v{base}, v{base}, v{base+1}")
            E(f"v_cvt_pk_bf16_f32 v{base+1}, v{base+2}, v{base+3}")
        for r in range(4):
            for d in range(4): E(f"v_perm_b32 v{frag+4*r+d}, v{base+(r>>1)}, v{base+(r>>1)}, v{sb+4*(r&1)+d}")
    if aearly:
        A("L_oachk:")
        strip(gx, True)
        strip(gx + 4, False)
        check("L_oaretry")
    accaddr()
    fact(M_)
    gatef(M_, gB)
    if aearly: oprep(gx, bA, M_)
    nwo = woe
    if not pafirst:
        for k in range(woburst): wold(nwo); nwo += 1
    per = -(-len(misc) // (P - 2))
    nx = 0 if (aside or aearly) else 1
    for k in range(-1, P):
        if k >= 0:
            A(f"s_waitcnt vmcnt({(P - 1 - k) + nwo - woe + nx})")
            if nwo < 8 and k >= wodelay: wold(nwo); nwo += 1
        if k == pollak and not aearly:
            afterA = 8 - nwo
            A(f"s_cmp_lg_u32 s{sFast}, 0")
            A("s_cbranch_scc0 L_lda_slow")
            oald("nt")
            A("L_lda_back:")
            nx += 2
            if obe:
                A(f"v_lshlrev_b32 v{a+40}, 7, v0")
                A(f"v_sub_u32 v{a+40}, v{a+40}, v{v.lin}")
                A(f"v_add_u32 v{a+40}, v{a+40}, v{aPO}")
                A("s_mov_b64 exec, 0xffff")
                A(f"buffer_load_dword v{a+40}, v{a+40}, {sr(sWS)}, s17 offen nt")
                A("s_mov_b64 exec, -1")
                nx += 1
        if k < 0:
            if pafirst:
                for z in range(woburst): wold(nwo); nwo += 1
            continue
        procV(128 + k - P, (k - P) & 7, end=True)
        drain(per)
    assert not misc
    while nwo < 8 - wolate: wold(nwo); nwo += 1
    accout()
    stamp(5)
    A(f"s_cmp_ge_u32 s{sWave}, 2")
    A("s_waitcnt lgkmcnt(0)")
    A("s_barrier")
    if cut in (1, 2): A("s_branch L_fin")
    stamp(1, True)
    A("s_cbranch_scc1 L_bfirst" if bafter else "s_cbranch_scc1 L_bsel")
    oo = a
    def stageA(br, dst):
        for w in range(4): A(f"ds_read_b128 {vr(oo+4*w,4)}, v{aLO} offset:{L_O+8192*br+2048*w}")
        A(f"s_cmp_lg_u32 s{sFast}, 0")
        for w in range(4):
            A(f"s_waitcnt lgkmcnt({0 if stamps else 3-w})")
            for r in range(4):
                if w == 0: A(f"v_mul_f32 v{oo+r}, v{oo+r}, v{F}")
                else: A(f"v_fmac_f32 v{oo+r}, v{oo+4*w+r}, v{F+w}")
        for r in range(4): A(f"v_and_or_b32 v{dst+r}, v{oo+r}, v{c00}, s{sTag+r}")
    stageA(1, oo)
    A("s_cbranch_scc0 L_oslow")
    A(f"buffer_store_dwordx4 {vr(oo,4)}, v{aSO}, {sr(sWS)}, s17 offen")
    pa = a + 16
    bb = a + 24
    def bpoll(fl):
        A(f"buffer_load_dwordx4 {vr(pa,4)}, v{aPO}, {sr(sWS)}, s17 offen {fl}")
        A(f"buffer_load_dwordx4 {vr(pa+4,4)}, v{aPO}, {sr(sWS)}, s17 offen offset:1024 {fl}")
    A("L_bfirst:")
    stamp(6)
    if not bafter: bpoll("nt")
    A("L_bmfa:")
    while nwo < 8: wold(nwo); nwo += 1
    nb = 0 if bafter else 2
    if not aearly:
        A(f"s_waitcnt vmcnt({afterA + nb})")
        A("L_oachk:")
        strip(gx, True)
        strip(gx + 4, False)
        check("L_oaretry")
        oprep(gx, bA, A)
    def bfirst():
        A(f"s_cmp_lg_u32 s{sFast}, 0")
        A("s_cbranch_scc0 L_bp_slow")
        bpoll("nt")
        A("L_bp_back:")
    if bafter and bpw is None: bfirst()
    A(f"s_waitcnt vmcnt({(6 if bpw is None else 4) - (3 if woil else 0)})")
    for r in range(4):
        c = "0" if r == 0 else vr(v.D, 4)
        A(f"v_mfma_f32_16x16x32_bf16 {vr(v.D,4)}, {vr(wor+4*r,4)}, {vr(bA+4*r,4)}, {c}")
    if bpw is not None:
        A(f"s_waitcnt vmcnt({bpw})")
        bfirst()
    if tst == 2:
        A("s_waitcnt vmcnt(2)")
        stamp(2, 2)
        A("s_waitcnt vmcnt(0)")
        stamp(3, 2)
    A("L_bchk:")
    A("s_waitcnt vmcnt(1)")
    strip(pa, True)
    A("s_waitcnt vmcnt(0)")
    strip(pa + 4, False)
    check("L_bretry")
    A("s_mov_b64 exec, -1")
    stamp(7)
    code = []
    oprep(pa, bb, code.append)
    for c_ in code[:-12]: A(c_)
    for r in range(4):
        for c_ in code[len(code) - 12 + 4 * r: len(code) - 8 + 4 * r]: A(c_)
        A(f"v_mfma_f32_16x16x32_bf16 {vr(v.D,4)}, {vr(wor+16+4*r,4)}, {vr(bb+4*r,4)}, {vr(v.D,4)}")
    A(f"s_cmp_lg_u32 s{sWave}, 0")
    A(f"ds_write_b128 v{aLP}, {vr(v.D,4)} offset:{L_P}")
    stamp(4, True)
    A("s_waitcnt lgkmcnt(0)")
    A("s_barrier")
    A("s_cbranch_scc1 L_cother" if c4 else "s_cbranch_scc1 L_fin")
    for w in range(1, 4): A(f"ds_read_b128 {vr(a+4*w,4)}, v{v.lin} offset:{L_P+1024*w}")
    A("s_cmp_ge_u32 s2, 32")
    A("s_waitcnt lgkmcnt(0)")
    for r in range(4): A(f"v_add_f32 v{a+4+r}, v{a+4+r}, v{v.D+r}")
    for r in range(4): A(f"v_add_f32 v{a+8+r}, v{a+8+r}, v{a+12+r}")
    for r in range(4): A(f"v_add_f32 v{a+4+r}, v{a+4+r}, v{a+8+r}")
    for r in range(4): A(f"v_and_or_b32 v{a+4+r}, v{a+4+r}, v{c00}, s{sTag+r}")
    A(f"buffer_store_dwordx4 {vr(a+4,4)}, v{v.lin}, {sr(sWS)}, s16 offen sc1")
    stamp(2, True)
    A("s_cbranch_scc1 L_fin")
    if amp:
        A("s_cmp_ge_u32 s2, 8")
        A("s_cbranch_scc1 L_noamp")
        A("s_getreg_b32 s84, hwreg(HW_REG_XCC_ID)")
        A("s_and_b32 s84, s84, 7")
        A("s_lshl_b32 s84, s84, 7")
        A("s_add_u32 s84, s84, 0x60000")
        A(f"v_mov_b32 v{v.W}, s80")
        A(f"v_mov_b32 v{v.W+1}, s82")
        A("s_mov_b64 exec, 1")
        A(f"buffer_store_dwordx2 {vr(v.W,2)}, v0, {sr(sWS)}, s84 offen sc1")
        A("s_mov_b64 exec, -1")
        A("L_noamp:")
    pc = a + 8
    if cwait: A("s_waitcnt vmcnt(0)")
    A("L_cbar:")
    mk = 0x00030003 if c4 else 0x00ff00ff
    A(f"s_mov_b32 s4, {mk:#x}")
    A(f"s_mov_b32 s5, {mk:#x}")
    if c4 and cwait == 1: A("s_barrier")
    stamp(3, True)
    A("L_cpoll:")
    nl = 2 if c4 else 8
    for k in range(nl): A(f"buffer_load_dwordx4 {vr(pc+4*k,4)}, v{aPC}, {sr(sWS)}, {'s%d' % (8+(4*k if c4 else k)) if k else 0} offen sc1")
    for k in range(nl):
        A(f"s_waitcnt vmcnt({nl-1-k})")
        strip(pc + 4 * k, k == 0)
    check("L_cretry")
    A("s_mov_b64 exec, -1")
    stamp(8)
    for n_ in ((4,) if c4 else (16, 8, 4)):
        for r in range(n_): A(f"v_add_f32 v{pc+r}, v{pc+r}, v{pc+n_+r}")
    for r in range(2): A(f"v_permlane32_swap_b32 v{pc+r}, v{pc+2+r}")
    for r in range(2): A(f"v_add_f32 v{pc+r}, v{pc+r}, v{pc+2+r}")
    A(f"v_permlane16_swap_b32 v{pc}, v{pc+1}")
    A(f"v_add_f32 v{pc}, v{pc}, v{pc+1}")
    A(f"v_add_f32_dpp v{pc}, v{pc}, v{pc} row_ror:8 {DPPM}")
    if c4:
        A(f"v_add_f32_dpp v{pc}, v{pc}, v{pc} row_ror:4 {DPPM}")
        A(f"v_add_f32_dpp v{pc}, v{pc}, v{pc} quad_perm:[2,3,0,1] {DPPM}")
    A(f"v_cvt_pk_bf16_f32 v{pc}, v{pc}, v{pc}")
    A("s_mov_b64 exec, s[4:5]")
    A(f"buffer_store_short v{pc}, v{aOUT}, {sr(sOUT)}, 0 offen")
    A(f"s_or_b32 s4, s2, s{sWave}")
    A("s_cbranch_scc1 L_fin")
    A("s_mov_b64 exec, 1")
    A(f"v_mov_b32 v{pc+1}, s{sE}")
    A(f"buffer_store_dword v{pc+1}, v0, {sr(sWS)}, 0 offen sc1")
    if amp:
        A("s_memrealtime s[90:91]")
        A("L_amp1:")
        A("s_memrealtime s[98:99]")
        A("s_waitcnt lgkmcnt(0)")
        A("s_sub_u32 s98, s98, s80")
        A("s_cmp_lt_u32 s98, 9000")
        A("s_cbranch_scc1 L_amp1")
        A("s_mov_b64 exec, -1")
        A(f"v_lshlrev_b32 v{v.W}, 7, v0")
        A("s_mov_b32 s84, 0x60000")
        A(f"buffer_load_dwordx2 {vr(v.W+2,2)}, v{v.W}, {sr(sWS)}, s84 offen sc1")
        A("s_waitcnt vmcnt(0)")
        ka, xa, kb, xb, off = amp
        if ka == 2: A("s_mov_b32 s86, s90")
        else: A(f"v_readlane_b32 s86, v{v.W+2+ka}, {xa}")
        A(f"v_readlane_b32 s87, v{v.W+2+kb}, {xb}")
        A("s_nop 4")
        A("s_sub_u32 s86, s86, s87")
        A(f"s_sub_u32 s86, s86, {off}")
        A("s_mul_i32 s86, s86, 10")
        A("s_add_u32 s86, s86, 13000")
        A("s_max_i32 s86, s86, 9000")
        A("s_min_i32 s86, s86, 30000")
        A("L_amp2:")
        A("s_memrealtime s[98:99]")
        A("s_waitcnt lgkmcnt(0)")
        A("s_sub_u32 s98, s98, s80")
        A("s_cmp_lt_u32 s98, s86")
        A("s_cbranch_scc1 L_amp2")
    if probe:
        A("L_probe:")
        A("s_memrealtime s[98:99]")
        A("s_waitcnt lgkmcnt(0)")
        A("s_sub_u32 s98, s98, s100")
        A(f"s_cmp_lt_u32 s98, {probe}")
        A("s_cbranch_scc1 L_probe")
    A("L_fin:")
    if stamps:
        A("s_mov_b64 exec, 1")
        stamp(9)
        A("s_waitcnt lgkmcnt(0)")
        A(f"s_lshl_b32 s{sTmp}, s2, 2")
        A(f"s_add_u32 s{sTmp}, s{sTmp}, s{sWave}")
        A(f"s_lshl_b32 s{sTmp}, s{sTmp}, 6")
        A(f"s_add_u32 s{sTmp}, s{sTmp}, {WS_ST}")
        A("s_getreg_b32 s4, hwreg(HW_REG_XCC_ID)")
        A("s_getreg_b32 s5, hwreg(HW_REG_HW_ID)")
        b = v.buf
        for k in range(10): A(f"v_mov_b32 v{b+k}, s{sStamp+2*k}")
        A(f"v_mov_b32 v{b+10}, s4")
        A(f"v_mov_b32 v{b+11}, s5")
        A(f"v_mov_b32 v{b+12}, s{sSpin}")
        A(f"v_mov_b32 v{b+13}, s{sHi}")
        A(f"v_mov_b32 v{b+14}, s{sFast}")
        for k in range(4): A(f"buffer_store_dwordx4 {vr(b+4*k,4)}, v0, {sr(sWS)}, s{sTmp} offen offset:{16*k}")
    A("L_end:")
    A("s_endpgm")
    def spinchk():
        A(f"s_sub_u32 s{sSpin}, s{sSpin}, 1")
        A("s_cbranch_scc1 L_end")
    A("L_bretry:")
    spinchk()
    A("s_mov_b64 exec, vcc")
    A(f"s_cmp_lg_u32 s{sFast}, 0")
    A("s_cbranch_scc0 L_bretry_slow")
    bpoll("nt")
    A("s_branch L_bchk")
    if c4:
        A("L_cother:")
        A("s_cmp_ge_u32 s2, 32")
        A("s_cbranch_scc1 L_fin")
        A("s_branch L_cbar")
    A("L_cretry:")
    spinchk()
    A("s_mov_b64 exec, vcc")
    A("s_branch L_cpoll")
    A("L_bsel:")
    A(f"s_cmp_lg_u32 s{sFast}, 0")
    A("s_cbranch_scc1 L_bfirst")
    A("s_branch L_bslow")
    A("L_oslow:")
    A(f"buffer_store_dwordx4 {vr(oo,4)}, v{aSO}, {sr(sWS)}, s17 offen sc1")
    A("L_bslow:")
    stamp(6)
    if not bafter: bpoll("sc1")
    A("s_branch L_bmfa")
    if bafter:
        A("L_bp_slow:")
        bpoll("sc1")
        A("s_branch L_bp_back")
    A("L_bretry_slow:")
    bpoll("sc1")
    A("s_branch L_bchk")
    def mlld(fl): A(f"buffer_load_dwordx4 {vr(mlr,4)}, v{v.aML}, {sr(sWS)}, 0 offen {fl}")
    A("L_side:")
    if aearly:
        A(f"s_cmp_lg_u32 s{sPh}, 0")
        A("s_cbranch_scc0 L_side5")
        A(f"s_cmp_lg_u32 s{sFast}, 0")
        A("s_cbranch_scc0 L_lda_slow")
        oald("nt")
        A("L_lda_back:")
        A("s_branch L_side4")
        A("L_side5:")
    A("s_lshr_b32 s5, s2, 7")
    A("s_lshl_b32 s5, s5, 10")
    if aside and not aearly:
        A(f"s_cmp_lg_u32 s{sPh}, 0")
        A("s_cbranch_scc0 L_side0")
        if p2t == 1:
            A(f"v_lshrrev_b32 v{gx}, 2, v{aLO}")
            A(f"buffer_load_dword v{gx}, v{gx}, {sr(sWS)}, s16 offen")
        elif wot:
            A(f"s_lshl_b32 s5, s{sHkv}, 19")
            A("s_mov_b64 exec, 1")
            A(f"buffer_load_dword v{gx}, v0, {sr(sWO)}, s5 offen")
            A(f"buffer_load_dword v{gx+1}, v0, {sr(sWQ)}, s5 offen")
            A("s_mov_b64 exec, -1")
        elif obt:
            A(f"buffer_load_dword v{gx}, v{aSO}, {sr(sWS)}, s17 offen {tchflags}")
        else:
            A(f"buffer_load_dwordx4 {vr(gx,4)}, v{v.lin}, {sr(sX)}, s5 offen")
        if endthr: A(f"s_sub_u32 s{sThr}, s{sThr}, {endthr}")
        sta()
        A("s_branch L_side4")
        A("L_side0:")
    if wot: A(f"buffer_load_dwordx4 {vr(gx,4)}, v{v.lin}, {sr(sX)}, s5 offen")
    A(f"buffer_load_dwordx4 {vr(gx,4)}, v{v.lin}, {sr(sX)}, s5 offen")
    A(f"buffer_load_dwordx4 {vr(gx+4,4)}, v{v.lin}, {sr(sGW)}, 0 offen")
    A("L_side4:")
    A(f"s_cmp_lg_u32 s{sFast}, 0")
    A("s_cbranch_scc1 L_side1")
    mlld("sc1")
    A("s_branch L_sidebody")
    A("L_side1:")
    mlld("nt")
    A("L_sidebody:")
    assert itml < 15
    body("V", procV, whi if sidehi else waits, 6 if wot else 5)
    A("s_branch L_vloop")
    for nm, ld, back in (("ml", mlld, "L_mlchk"), ("oa", oald, "L_oachk")):
        A(f"L_{nm}retry:")
        spinchk()
        A(f"s_cmp_lg_u32 s{sFast}, 0")
        A(f"s_cbranch_scc0 L_{nm}retry_slow")
        ld("nt")
        A("s_waitcnt vmcnt(0)")
        A(f"s_branch {back}")
        A(f"L_{nm}retry_slow:")
        ld("sc1")
        A("s_waitcnt vmcnt(0)")
        A(f"s_branch {back}")
    A("; ---- far behind: refill every slot as soon as it is consumed ----")
    if turbo:
        for nm, kind, proc in (("k", "K", procK), ("v", "V", procV)):
            A(f"L_{nm}turbo:")
            free = 8 - P
            for k in range(free): issue(k, kind, k, loop=True)
            for k in range(8):
                issued_ = min(8, free + k)
                n = (P - 1 - k) + 2 + issued_ if k < P else issued_ - 1 - (k - P)
                A(f"s_waitcnt vmcnt({n})")
                mark = len(L)
                proc(16 + k - P, (k - P) & 7)
                if free + k < 8:
                    nm_ = 1 if kind == "K" else 2
                    rest = L[mark + nm_:]; del L[mark + nm_:]
                    issue(free + k, kind, free + k, loop=True)
                    L.extend(rest)
                if k == 7:
                    A(f"s_add_u32 s{sCnt}, s{sCnt}, 1")
                    sdep(sNo, sCnt, "n", 4, True, 4)
            A(f"s_cmp_lg_u32 s{sCnt}, 16")
            A(f"s_cbranch_scc1 L_{nm}loop")
            A(f"s_branch L_{nm}done")
    A("; ---- checkpoint: arrival rank of this XCD -> number of virtual neighbours ahead ----")
    for nm in ("k", "v"):
        A(f"L_{nm}ctl:")
        A("s_cmp_lg_u32 s5, 0")
        A(f"s_cbranch_scc1 L_{nm}ctl2")
        A(f"s_lshl_b32 s5, s{sJ}, 8")
        A(f"s_add_u32 s5, s5, {WS_C + 256:#x}")
        A(f"s_mov_b32 s{sRk}, 1")
        A(f"s_atomic_add s{sRk}, {sr(sWS,2)}, s5 glc")
        A(f"s_branch L_{nm}ctlb")
        A(f"L_{nm}ctl2:")
        A(f"s_lshl_b32 s5, s{sE}, 12")
        A("s_waitcnt lgkmcnt(0)")
        A(f"s_sub_u32 s{sRk}, s{sRk}, s5")
        A(f"s_cmp_ge_u32 s{sRk}, 8")
        A(f"s_cbranch_scc1 L_{nm}ctlb")
        A(f"s_lshl_b32 s{sRk}, s{sRk}, 2")
        A(f"s_lshr_b32 s{sRk}, {sum(x << (4*k) for k, x in enumerate(xtab)):#x}, s{sRk}")
        A(f"s_and_b32 s{sRk}, s{sRk}, 15")
        A(f"s_add_u32 s{sRk}, s{sRk}, 32")
        A("s_add_u32 s5, s5, 63")
        A(f"v_cmp_gt_u32 vcc, s{sRk}, v0")
        A(f"v_mov_b32 v{t+8}, s5")
        A(f"v_add_u32 v{t+11}, 0x800, v{t+8}")
        A(f"v_cndmask_b32 v{t+8}, v{t+11}, v{t+8}, vcc")
        A("s_mov_b32 exec_lo, 0")
        A(f"buffer_store_dword v{t+8}, v{v.br}, {sr(sWS)}, 0 offen")
        A("s_mov_b32 exec_lo, -1")
        A(f"s_branch L_{nm}ctlb")
    A("L_pubml:")
    mlread()
    A(f"v_lshl_add_u32 v{v.y0}, v{t+6}, 2, v{t+7}")
    A(f"s_and_b32 s4, s{sJ}, 15")
    A(f"v_cmp_eq_u32 vcc, s4, v{v.y0}")
    A("s_waitcnt lgkmcnt(0)")
    A(f"v_max3_f32 v{v.y0}, v{v.D}, v{v.D+2}, v{v.D+4}")
    A(f"v_max_f32 v{v.y0}, v{v.y0}, v{v.D+6}")
    A(f"v_mul_f32 v{v.y1}, s{sL2E}, v{v.y0}")
    for w in range(4): A(f"v_fma_f32 v{v.D+2*w}, v{v.D+2*w}, s{sL2E}, -v{v.y1}")
    for w in range(4): A(f"v_exp_f32 v{v.D+2*w}, v{v.D+2*w}")
    A(f"v_mul_f32 v{v.D+1}, v{v.D}, v{v.D+1}")
    for w in range(1, 4): A(f"v_fmac_f32 v{v.D+1}, v{v.D+2*w}, v{v.D+2*w+1}")
    A(f"v_or_b32 v{v.D}, s{sTag}, v{v.y0}")
    A(f"v_and_or_b32 v{v.D+1}, v{v.D+1}, v{c00}, s{sTag+1}")
    A(f"v_mov_b32 v{v.D+2}, s{sTag+2}")
    A(f"v_mov_b32 v{v.D+3}, s{sTag+3}")
    A("s_mov_b64 exec, vcc")
    A(f"s_cmp_lg_u32 s{sFast}, 0")
    A("s_cbranch_scc0 L_pubml_slow")
    A(f"buffer_store_dwordx4 {vr(v.D,4)}, v{v.aML}, {sr(sWS)}, 0 offen")
    A("s_mov_b64 exec, -1")
    A("s_branch L_vent")
    A("L_pubml_slow:")
    A(f"buffer_store_dwordx4 {vr(v.D,4)}, v{v.aML}, {sr(sWS)}, 0 offen sc1")
    A("s_mov_b64 exec, -1")
    A("s_branch L_vent")
    A("L_puba:")
    stageA(0, oA)
    if aearly: sta()
    A("s_branch L_vent")
    A("L_sta_slow:")
    A(f"buffer_store_dwordx4 {vr(oA,4)}, v{aSO}, {sr(sWS)}, 0 offen sc1")
    A("s_branch L_sta_back")
    A("L_lda_slow:")
    oald("sc1")
    A("s_branch L_lda_back")
    A("L_qslow:")
    A(f"s_cmp_lg_u32 s{sWave}, 0")
    A("s_cbranch_scc1 L_qretry")
    A(f"buffer_store_dword v{v.e0}, v{v.e1}, {sr(sWS)}, 0 offen sc1")
    A("L_qretry:")
    spinchk(); qpoll()
    A("s_waitcnt vmcnt(0)")
    qacc()
    A(f"v_and_b32 v{t+10}, 0x1fff, v{t+8}")
    A(f"v_cmp_ne_u32 vcc, 0, v{t+10}")
    A("s_cbranch_vccnz L_qretry")
    A(f"v_and_b32 v{t+10}, 0xe000, v{t+8}")
    A("L_last:")
    A(f"v_cmp_ne_u32 vcc, 0, v{t+10}")
    A("s_branch L_qok")
    code_ = []
    cnt = 0; npad = 0; on = False
    for ln in pad([x for x in L if x != "@PAD"]):
        isins = ln.startswith("    ")
        if warm and (("only warms" in (code_[-1] if code_ else "")) or (on and isins and cnt >= warm)):
            on = True; cnt = 0
            code_.append(f"L_pad{npad}:")
            code_.append(f"    s_cbranch_execz @T{npad}")
            npad += 1
        code_.append(ln)
        cnt += isins
    if warm and helper:
        for k in range(npad):
            tgt = "L_end" if k == npad - 1 else ("L_hbar" if k == hbar else f"L_pad{k+1}")
            code_ = [x.replace(f"@T{k}", tgt) if x.endswith(f"@T{k}") else x for x in code_]
        hb = ["L_hbar:"]
        if ht:
            hb += ["    s_mov_b64 exec, -1", "    s_waitcnt lgkmcnt(0)",
                   f"    s_mov_b32 s{sWS+2}, {WS_SZ:#x}", f"    s_mov_b32 s{sWS+3}, 0x20000",
                   "    s_and_b32 s4, s2, 7", "    s_lshr_b32 s5, s2, 3", "    v_lshlrev_b32 v1, 7, v0"]
            if ht & 8: hb += ["    s_barrier"]
            if ht & 1:
                hb += ["    s_lshr_b32 s6, s5, 4", "    s_lshl_b32 s6, s6, 3", "    s_add_u32 s6, s6, s4", "    s_lshl_b32 s6, s6, 4", "    s_and_b32 s7, s5, 15",
                       "    s_add_u32 s6, s6, s7", "    s_lshl_b32 s6, s6, 7", f"    s_add_u32 s6, s6, {WS_ML:#x}", "    s_mov_b64 exec, 1",
                       f"    buffer_load_dword v2, v1, {sr(sWS)}, s6 offen"]
            if ht & 2:
                hb += ["    s_lshl_b32 s6, s4, 5", "    s_add_u32 s6, s6, s5", "    s_lshl_b32 s6, s6, 11", f"    s_add_u32 s6, s6, {WS_O:#x}", "    s_add_u32 s7, s6, 0x80000",
                       "    s_mov_b64 exec, 0xffff", f"    buffer_load_dword v2, v1, {sr(sWS)}, s6 offen", f"    buffer_load_dword v3, v1, {sr(sWS)}, s7 offen"]
            if ht & 4:
                hb += ["    s_lshl_b32 s6, s2, 10", f"    s_add_u32 s6, s6, {WS_P2:#x}", "    s_mov_b64 exec, 0xff", f"    buffer_load_dword v4, v1, {sr(sWS)}, s6 offen"]
            if ht & 16:
                hb += ["    s_lshr_b32 s6, s5, 4", "    s_lshl_b32 s6, s6, 3", "    s_add_u32 s6, s6, s4", "    s_lshl_b32 s6, s6, 5", "    s_and_b32 s7, s5, 15",
                       "    s_add_u32 s6, s6, s7", "    s_lshl_b32 s6, s6, 7", f"    s_add_u32 s6, s6, {WS_Q:#x}", "    s_mov_b64 exec, 0x10001",
                       f"    buffer_load_dword v5, v1, {sr(sWS)}, s6 offen"]
            if wot:
                hb += [f"    s_mov_b32 s{sWO+2}, 0x400000", f"    s_mov_b32 s{sWO+3}, 0x20000", f"    s_mov_b32 s{sWQ}, s14", f"    s_mov_b32 s{sWQ+1}, s15",
                       f"    s_mov_b32 s{sWQ+2}, 0x400000", f"    s_mov_b32 s{sWQ+3}, 0x20000", "    s_lshl_b32 s6, s4, 19", "    s_mov_b64 exec, 1",
                       f"    buffer_load_dword v13, v1, {sr(sWO)}, s6 offen", f"    buffer_load_dword v14, v1, {sr(sWQ)}, s6 offen"]
            if ht & 64:
                hb += [f"    s_mov_b32 s{sGW}, s16", f"    s_mov_b32 s{sGW+1}, s17", f"    s_mov_b32 s{sGW+2}, 1024", f"    s_mov_b32 s{sGW+3}, 0x20000", "    s_mov_b64 exec, 0xff",
                       f"    buffer_load_dword v7, v1, {sr(sGW)}, 0 offen"]
            assert ht & 32
            if ht & 32:
                hb += [f"    s_load_dword s8, {sr(sWS,2)}, 0",
                       "    s_getreg_b32 s6, hwreg(HW_REG_XCC_ID)", "    s_and_b32 s6, s6, 7", "    s_lshl_b32 s6, s6, 12", f"    s_add_u32 s6, s6, {WS_B:#x}", "    s_mov_b64 exec, 3",
                       f"    buffer_load_dword v6, v1, {sr(sWS)}, s6 offen",
                       "    s_barrier", "    s_cmp_ge_u32 s2, 8", "    s_cbranch_scc1 L_hnoinit",
                       "    s_waitcnt vmcnt(0) lgkmcnt(0)", "    s_add_u32 s8, s8, 1", "    s_lshl_b32 s8, s8, 12", "    s_add_u32 s9, s8, 63",
                       "    s_mov_b32 exec_lo, -1", f"    v_cmp_gt_u32 vcc, {k0}, v0", "    v_mov_b32 v8, s9", "    v_add_u32 v9, 0x800, v8", "    v_lshlrev_b32 v10, 2, v0",
                       "    v_cndmask_b32 v8, v9, v8, vcc", f"    buffer_store_dword v8, v10, {sr(sWS)}, s6 offen offset:128",
                       "    s_cmp_lg_u32 s2, 0", "    s_cbranch_scc1 L_hnoinit",
                       "    v_mov_b32 v11, s8", "    v_lshlrev_b32 v12, 8, v0", f"    s_mov_b32 s7, {WS_C + 256:#x}", "    s_mov_b64 exec, 0x7fff",
                       f"    buffer_store_dword v11, v12, {sr(sWS)}, s7 offen sc1",
                       "L_hnoinit:"]
            hb += ["    s_mov_b64 exec, 0"]
        assert not ht & 8
        code_ += hb + [f"    s_branch L_pad{hbar+1}"]
    elif warm:
        i0 = code_.index("L_pad0:"); del code_[i0:i0+2]
        for k in range(1, npad):
            tgt = f"L_pad{k+4}" if k + 4 < npad else "L_wret"
            code_ = [x.replace(f"@T{k}", tgt) if x.endswith(f"@T{k}") else x for x in code_]
        for w in range(4): code_ = [x.replace(f"L_seg{w}", f"L_pad{w+1}") for x in code_]
    ref = open(os.path.join(os.path.dirname(os.path.abspath(__file__)), "header.txt")).read().rstrip("\n").split("\n")
    out = ref + [f"; @launch grid=(256,1,1) block=({320 if (warm and helper) else 256},1,1) lds={L_SZ}",
                 '.amdgcn_target "amdgcn-amd-amdhsa--gfx950"', ".text"] + DOC + [f".globl {KNAME}", ".p2align 8",
                 f".type {KNAME},@function"] + code_
    acc = (NV + 3) // 4 * 4
    out += ['.section .rodata,"a"', ".p2align 6", f".amdhsa_kernel {KNAME}",
            f"  .amdhsa_next_free_vgpr {NV}", "  .amdhsa_next_free_sgpr 102", f"  .amdhsa_accum_offset {acc}",
            "  .amdhsa_group_segment_fixed_size 0", "  .amdhsa_kernarg_size 112", "  .amdhsa_user_sgpr_count 2",
            "  .amdhsa_user_sgpr_kernarg_segment_ptr 1", "  .amdhsa_system_sgpr_workgroup_id_x 1",
            "  .amdhsa_float_denorm_mode_32 3", ".end_amdhsa_kernel"]
    return "\n".join(out) + "\n"

if __name__ == "__main__":
    kw = eval("dict(" + (sys.argv[1] if len(sys.argv) > 1 else "") + ")")
    sys.stdout.write(gen(**kw))
```

```python
import sys, os
sys.path.insert(0, os.path.dirname(os.path.abspath(__file__)))
from hz import pad

KNAME = "gated_mix__gqa_block_cached__gqa_block_cached__decode_kernel"
LOG2E = 0x3fb8aa3b
SCALE = 0x3db504f3

WS_Q  = 0x10000
WS_ML = 0x30000
WS_B  = 0x40000
WS_C  = 0x50000
WS_O  = 0x100000
WS_P2 = 0x80000
WS_ST = 0x300000
WS_SZ = 0x400000
L_T, L_O, L_M, L_P, L_SZ = 0, 32768, 49152, 53248, 57344
DPPM = "row_mask:0xf bank_mask:0xf"
PAT1 = "k0 s0 k1 s1 w0 g0 s3 s2 g1 n3 w1 n1 n2 n0 k2"


DOC = """
; ---------------------------------------------------------------------------------------------------------
; out = g*Attn_A(x) + (1-g)*Attn_B(x), one fused launch, 256 workgroups (one per CU) x 4 streaming waves.
; workgroup w: kv head hkv = w&7, j = w>>3 = (batch b, split s of 16); the 32 workgroups with equal hkv form a "set".
;
; 1. q projection: each workgroup computes 32 columns of x@wq (both batches), rounds to bf16 and hands them to
;    its set. K loads already stream into a register backlog meanwhile.
; 2. four streaming phases K_A, V_A, K_B, V_B (one array at a time chip-wide, keys visited in a DRAM friendly
;    permutation, about five 1-KiB loads in flight per wave, data goes straight from HBM into MFMA operands):
;      K phase: scores = bf16(bf16(q.k)*Dh^-0.5) -> LDS, running max / sum of exp per lane
;      V phase: p = exp(score - max of this wave's keys) (exact max), O += p*V
;    (max, sum) of every workgroup are exchanged inside the set during the V phase.
; 3. tail: partial O * g * exp(m-M)/L -> set; every workgroup adds 16 splits, rounds o to bf16 and multiplies
;    with a 64x128 tile of wo_A and of wo_B; 32 workgroups add the 64 partial rows and store bf16.
;
; Hand-offs through d_ws are self-validating: the low bits of every dword carry a tag derived from an epoch word
; (d_ws[0], read on entry, incremented once at the end), so words left by the harness or an earlier launch are
; never taken for this launch's data. Tags are removed before use: results do not depend on d_ws contents.
; Hand-offs inside a set use the XCD's L2 (plain stores, L1-bypassing loads) only if all 32 workgroups reported
; the same XCC id together with their q columns; under any other placement device-scope (sc1) stores and loads are used.
; The last hand-off is always device scope.
; Load balancing (speed hints only, tagged, set up inside the launch; no result depends on them, nothing ever waits on them):
; a per-XCD line holds the loop counters of the workgroups on that XCD; a wave that finds most neighbours ahead keeps six
; loads in flight instead of five for one iteration (up to eight when a whole iteration behind). At 13 checkpoints one wave
; per XCD draws an arrival rank from a counter; a late XCD gets more "virtual" neighbours ahead, i.e. prefetches deeper.
; Wave 4 is a warm-up wave: it walks the code once with EXEC = 0 (pad to pad, branching around everything) to fill the
; instruction cache, loads (and drops) one dword of the few small lines needed mid-stream, sets the start values of the
; load-balancing hints and exits.
; ---------------------------------------------------------------------------------------------------------
""".strip().split("\n")

def gen(NPL=40, waits=(4,)*8, whi=(5,)*8, wepi=None, R=3, XB=2, XT=2, P0=3, pollak=-1, tlb=2, cpf=1, wosw=1, XQ=0, wcat=(5,)*8, warm=96, hbar=3, helper=1, cpfe=0, c4=1, cwait=1, p2t=0, obt=0, sti=(16, 24, 32), KF=0, KM=0, qt=0, endthr=0, sidehi=0, bpw=None, wolate=0, mlt=0, ht=113, wqp=0, wqf1=None, KI=0, cps=(2,6,10,14,18,21,25,29,33,36,40,44,48), xtab=(2,2,3,4,5,7,9,12), k0=4, cw=3, woil=0, obe=0, pafirst=0, wot=0, woe=0, tlo=None, wmin=(3,)*8, turbo=8, xh=0, xs=0, ksat=15, xlate=0, qloc=1, lasthi=0, CU=16, bafter=1, aside=1, run64=2, aearly=0, thr=(28, 33), wpro=None, wkv=None, pat=PAT1,
        wqflags="nt", woflags="nt", kvflags="nt", tchflags="nt", fast=1, touch=0, woburst=0, itml=12, wqfirst=0, wodelay=0, wvk=None,
        stamps=False, tst=False, spin=1 << 22, cut=0, probe=0, amp=None, ampat=5):
    P = max(max(waits), max(whi)) + 1
    if wepi is None: wepi = (P - 1,) * 8
    assert run64 == 2 and NPL % 8 == 0 and P + XT <= 8 and 5 <= P <= 6
    pos = {n: 8 + i for i, n in enumerate(pat.split())}
    assert len(pos) == 15
    def dep(c, val, nb): return sum(((val >> i) & 1) << pos[f"{c}{i}"] for i in range(nb))
    L = []
    def A(s): L.append(s)
    class V: pass
    v = V(); nv = [0]
    def valloc(name, n=1, al=1):
        nv[0] = (nv[0] + al - 1) // al * al
        setattr(v, name, nv[0]); nv[0] += n
    for nm in ("tid", "koff", "voff", "lin", "mask0", "mask1"): valloc(nm)
    valloc("T", 2, 2); valloc("TV", 2, 2)
    valloc("m", 2, 2); v.l = v.m + 1
    for nm in ("ta", "mL", "e0", "e1", "e2", "y0", "y1", "z", "p", "pd", "bw", "br", "bv", "bl", "aML", "c00"): valloc(nm)
    valloc("q", 4, 2); valloc("qB", 4, 2); valloc("acc", 8, 2); valloc("D", 8, 2)
    valloc("W", 18, 2)
    valloc("t", 12, 2)
    valloc("buf", max(4 * NPL, 160), 4)
    NV = nv[0]
    assert NV <= 256, NV
    def vr(a, n): return f"v[{a}:{a+n-1}]"
    wqr = v.buf + max(4 * NPL, 160) - 32
    xr = wqr - 16
    wor = v.buf + 32
    gx = v.buf + 64
    sb = v.buf + 72
    mlr = v.buf + 80
    (aWO, aLO, aSO, aPO, aPC, aOUT, gA, gB, F) = range(v.buf + 84, v.buf + 93)
    aLP = aLO
    c00 = v.c00
    bA = v.buf + 96
    oA = v.buf + 112
    aBP = v.buf + 116
    a = v.buf + 118
    assert a + 42 <= NV
    sK, sV, sWQ, sWO, sWS, sX, sGW, sOUT = 20, 24, 28, 32, 36, 40, 44, 48
    sWave, sOff, sCnt, sE, sL2E, sTmp, sTmp2, sSpin, sPh = 3, 52, 53, 54, 55, 56, 57, 58, 59
    sQ1, sQ2, sQ3 = 60, 62, 64
    sHi, sFast = 66, 67
    sTag, sTag16, sNo, sN, sThr = 68, 72, 73, 74, 75
    sKB = 76
    sHkv, sJ = 6, 7
    sQT = 96
    sStamp = 80
    def sr(a, n=4): return f"s[{a}:{a+n-1}]"
    def stamp3(k):
        if amp and ampat == 10 + k: A("s_memrealtime s[82:83]")
        if stamps and tst == 3: A(f"s_memrealtime s[{sStamp+2*k}:{sStamp+2*k+1}]")
    def stamp4(ka, kb):
        if stamps and tst == 4:
            n_ = len(L)
            A(f"s_cmp_lg_u32 s{sPh}, 0")
            A(f"s_cbranch_scc1 L_st{n_}")
            A(f"s_memrealtime s[{sStamp+2*ka}:{sStamp+2*ka+1}]")
            A(f"L_st{n_}:")
            A(f"s_memrealtime s[{sStamp+2*kb}:{sStamp+2*kb+1}]")
    def stamp(k, tail=False):
        if amp and k == ampat and not tail: A("s_memrealtime s[82:83]")
        if tst in (3, 4) and k in (6, 7, 8): return
        if stamps and (k not in (1, 2, 3, 4) or tail == tst or (tst == 2 and tail is True and k in (1, 4))): A(f"s_memrealtime s[{sStamp+2*k}:{sStamp+2*k+1}]")
    def sdep(dst, src, c, nb, first, tmp):
        groups = {}
        for i in range(nb): groups.setdefault(pos[f"{c}{i}"] - i, []).append(i)
        for sh, bits in groups.items():
            d = dst if first else tmp
            A(f"s_and_b32 s{d}, s{src}, {sum(1 << i for i in bits)}")
            A(f"s_lshl_b32 s{d}, s{d}, {sh}")
            if not first: A(f"s_add_u32 s{dst}, s{dst}, s{tmp}")
            first = False

    A(f"{KNAME}:")
    A("s_cmp_ge_u32 s2, 256")
    A("s_cbranch_scc1 L_end")
    stamp(0)
    if probe: A("s_memrealtime s[100:101]")
    if amp: A("s_memrealtime s[80:81]")
    A("s_load_dwordx8 s[60:67], s[0:1], 8")
    A("s_load_dwordx8 s[12:19], s[0:1], 64")
    A(f"s_load_dwordx2 {sr(sX,2)}, s[0:1], 0")
    A(f"s_load_dwordx2 {sr(sWS,2)}, s[0:1], 104")
    A(f"s_load_dwordx4 {sr(sKB)}, s[0:1], 48       ; K_B, V_B")
    t = v.t
    A(f"v_lshrrev_b32 v{t}, 6, v0")
    A(f"v_and_b32 v0, 63, v0")
    A(f"v_readfirstlane_b32 s{sWave}, v{t}")
    if cpfe:
        A("s_getpc_b64 s[84:85]")
        A("L_pc:")
        A(f"s_sub_u32 s84, s84, L_pc-{KNAME}")
        A("s_subb_u32 s85, s85, 0")
        A("s_lshr_b32 s86, s2, 3")
        A("s_lshl_b32 s86, s86, 2")
        A(f"s_add_u32 s86, s86, s{sWave}")
        A("s_lshl_b32 s86, s86, 7")
        A(f"s_min_u32 s86, s86, L_last-{KNAME}")
        if cpfe == 1: A("s_load_dword s87, s[84:85], s86")
    if warm and helper:
        A(f"v_cmp_gt_u32 vcc, 4, v{t}")
        A("s_mov_b64 exec, vcc                         ; wave 4 only warms caches: EXEC = 0, hops pad to pad")
        A("@PAD")
    A(f"v_lshrrev_b32 v{t+1}, 3, v0")
    A(f"v_lshl_add_u32 v{t+2}, v{t}, 3, v{t+1}")
    A(f"v_and_b32 v{t+3}, 7, v0")
    A(f"v_lshlrev_b32 v{t+3}, 3, v{t+3}")
    A(f"v_lshl_add_u32 v{t+3}, v{t+2}, 17, v{t+3}")
    xset = [f"v_bfe_u32 v{t+4}, v0, 2, 1", f"v_lshlrev_b32 v{t+8}, 10, v{t+4}", f"v_lshl_add_u32 v{t+8}, v{t+2}, 5, v{t+8}",
            f"s_movk_i32 s{sX+2}, 0x800", f"s_mov_b32 s{sX+3}, 0x20000"]
    if not xlate: L.extend(xset); xset = []
    A(f"s_and_b32 s{sHkv}, s2, 7")
    A(f"s_lshr_b32 s{sJ}, s2, 3")
    A(f"s_and_b32 s{sTmp}, s{sJ}, 15")
    A(f"s_lshl_b32 s{sTmp}, s{sTmp}, 6")
    A(f"s_lshl_b32 s{sTmp2}, s{sHkv}, 10")
    A(f"s_add_u32 s{sTmp}, s{sTmp}, s{sTmp2}")
    A(f"s_mov_b32 s{sWQ+2}, 0x400000")
    A(f"s_mov_b32 s{sWQ+3}, 0x20000")
    mark_k = len(L)
    A(f"s_lshr_b32 s{sTmp2}, s2, 7")
    A(f"s_lshl_b32 s{sTmp2}, s{sTmp2}, 3")
    A(f"s_add_u32 s{sTmp2}, s{sTmp2}, s{sHkv}")
    A(f"s_lshl_b32 s{sTmp2}, s{sTmp2}, 23")
    A(f"s_mov_b32 s{sK+2}, 0x800000")
    A(f"s_mov_b32 s{sK+3}, 0x20000")
    sdep(sNo, sWave, "w", 2, True, sCnt)
    sdep(sNo, sJ, "s", 4, False, sCnt)
    A(f"v_bfe_u32 v{t+5}, v0, 2, 2")
    A(f"v_lshrrev_b32 v{t+6}, 4, v0")
    A(f"v_and_b32 v{t+7}, 3, v0")
    A(f"v_lshlrev_b32 v{v.lin}, 4, v0")
    A(f"v_lshl_add_u32 v{v.koff}, v{t+6}, 6, s{sNo}")
    A(f"v_lshl_add_u32 v{v.koff}, v{t+7}, 4, v{v.koff}")
    A(f"v_lshl_add_u32 v{v.koff}, v{t+4}, {pos['g0']}, v{v.koff}")
    A(f"v_bfe_u32 v{t+9}, v0, 3, 1")
    A(f"v_lshl_add_u32 v{v.koff}, v{t+9}, {pos['g1']}, v{v.koff}")
    last = [None]
    sXm = 100
    xm = [dep("k", m_ & 7, 3) + dep("n", (m_ >> 3) & 15, 4) for m_ in [(xh >> (7*i)) & 127 for i in range(4)] + [(xs >> (7*i)) & 127 for i in range(4)]]
    xall = 0
    for m_ in xm: xall |= m_
    if xall:
        assert tlb < 3 and p2t != 2
        A(f"s_mov_b32 s{sXm}, 0")
        for i_, m_ in enumerate(xm):
            if m_:
                A(f"s_bitcmp1_b32 s2, {(0, 1, 2, 7, 3, 4, 5, 6)[i_]}")
                A(f"s_cselect_b32 s{sCnt}, {m_:#x}, 0")
                A(f"s_xor_b32 s{sXm}, s{sXm}, s{sCnt}")
    def issue(i, kind, sl, loop=False):
        kd = dep("k", i & 7, 3)
        c = kd if loop else kd + dep("n", i >> 3, 4)
        imm = c & 0xfff & ~xall
        hi = c ^ imm
        if loop:
            if hi == 0: so = f"s{sNo}"
            else:
                if last[0] != ("l", hi): A(f"s_xor_b32 s{sOff}, s{sNo}, {hi:#x}")
                last[0] = ("l", hi); so = f"s{sOff}"
        else:
            if hi == 0: so = f"s{sXm}" if xall else "0"
            else:
                if last[0] != ("c", hi): A(f"s_xor_b32 s{sOff}, s{sXm}, {hi:#x}" if xall else f"s_mov_b32 s{sOff}, {hi:#x}")
                last[0] = ("c", hi); so = f"s{sOff}"
        if i & 7 == 7: last[0] = None
        off = f" offset:{imm}" if imm else ""
        r = v.buf + 4 * sl
        if kind == "K": A(f"buffer_load_dwordx4 {vr(r,4)}, v{v.koff}, {sr(sK)}, {so} offen{off} {kvflags}")
        else:           A(f"buffer_load_dwordx4 {vr(r,4)}, v{v.voff}, {sr(sV)}, {so} offen{off} {kvflags}")
    kset = L[mark_k:]; del L[mark_k:]
    A("s_cmp_ge_u32 s2, 128")
    A("s_waitcnt lgkmcnt(0)")
    A(f"s_cselect_b64 {sr(sWQ,2)}, s[12:13], s[64:65]")
    assert KF == 0 and KM == 0 and KI == 0
    stamp3(1)
    if cpfe == 2: A("s_load_dword s87, s[84:85], s86")
    seq = []
    ik = KF
    if wqp:
        A(f"s_and_b32 s4, s{sJ}, 1")
        A("s_lshl_b32 s5, s4, 16")
        A(f"s_add_u32 s{sTmp}, s{sTmp}, s5")
        A(f"s_xor_b32 s{sCnt}, s{sTmp}, 0x10000")
        A("s_lshl_b32 s4, s4, 4")
        A("s_xor_b32 s5, s4, 16")
        A(f"buffer_load_dwordx4 {vr(xr,4)}, v{t+8}, {sr(sX)}, s4 offen")
        A(f"buffer_load_dwordx4 {vr(xr+4,4)}, v{t+8}, {sr(sX)}, s5 offen")
    for tt in range(16):
        if tt == xlate and not wqp:
            L.extend(xset)
            A(f"buffer_load_dwordx4 {vr(xr,4)}, v{t+8}, {sr(sX)}, 0 offen")
            A(f"buffer_load_dwordx4 {vr(xr+4,4)}, v{t+8}, {sr(sX)}, 0 offen offset:16")
            seq += ["x", "x1"]
        if tt == 2: A(f"s_load_dword s{sE}, {sr(sWS,2)}, 0           ; epoch")
        if tt >= 8 and KI and (tt - 8) % KI == 0:
            issue(ik, "K", ik); ik += 1; seq.append("k")
        so = sCnt if (wqp and tt >= 8) else sTmp
        fl = wqf1 if (wqf1 is not None and tt < 8) else wqflags
        A(f"buffer_load_dwordx2 {vr(wqr+2*tt,2)}, v{t+3}, {sr(sWQ)}, s{so} offen {fl}")
        seq.append(tt)
        if tt < 15: A(f"s_addk_i32 s{so}, 0x2000")
        if tt == ksat: L.extend(kset)
        if tt == 7:
            for k in range(KM):
                issue(ik, "K", ik); ik += 1; seq.append("k")
    assert wqfirst <= 2
    A(f"s_mov_b32 s{sWQ}, s14                      ; this descriptor now serves wo_B")
    A(f"s_mov_b32 s{sWQ+1}, s15")
    if qt:
        A(f"s_lshr_b32 s{sTmp}, s2, 7")
        A(f"s_lshl_b32 s{sTmp}, s{sTmp}, 3")
        A(f"s_add_u32 s{sTmp}, s{sTmp}, s{sHkv}")
        A(f"s_lshl_b32 s{sTmp}, s{sTmp}, 1")
        A(f"s_and_b32 s4, s{sWave}, 1")
        A(f"s_add_u32 s{sTmp}, s{sTmp}, s4")
        A(f"s_lshl_b32 s{sTmp}, s{sTmp}, 4")
        A(f"s_and_b32 s4, s{sJ}, 15")
        A(f"s_add_u32 s{sTmp}, s{sTmp}, s4")
        A(f"s_lshl_b32 s{sTmp}, s{sTmp}, 7")
        A(f"s_add_u32 s{sTmp}, s{sTmp}, {WS_Q:#x}")
        A(f"s_load_dword s101, {sr(sWS,2)}, s{sTmp}")
    A(f"s_add_u32 s{sK}, s60, s{sTmp2}")
    A(f"s_addc_u32 s{sK+1}, s61, 0")
    for k in range(ik, ik + P0): issue(k, "K", k)
    A(f"v_and_b32 v{v.voff}, 0xff, v{v.lin}")
    A(f"v_add_u32 v{v.voff}, s{sNo}, v{v.voff}")
    A(f"v_bfe_u32 v{t+8}, v0, 4, 1")
    A(f"v_lshl_add_u32 v{v.voff}, v{t+8}, {pos['g0']}, v{v.voff}")
    A(f"v_lshrrev_b32 v{t+8}, 5, v0")
    A(f"v_lshl_add_u32 v{v.voff}, v{t+8}, {pos['g1']}, v{v.voff}")
    A(f"s_add_u32 s{sV}, s62, s{sTmp2}")
    A(f"s_addc_u32 s{sV+1}, s63, 0")
    A(f"s_add_u32 s{sKB}, s{sKB}, s{sTmp2}")
    A(f"s_addc_u32 s{sKB+1}, s{sKB+1}, 0")
    A(f"s_add_u32 s{sKB+2}, s{sKB+2}, s{sTmp2}")
    A(f"s_addc_u32 s{sKB+3}, s{sKB+3}, 0")
    sel = xr + 8; bq = xr + 12
    for s_, b0, n_ in ((sV, None, 0x800000), (sWS, None, WS_SZ), (sWO, 66, 0x400000), (sGW, 16, 1024), (sOUT, 18, 2048)):
        if b0 is not None:
            A(f"s_mov_b32 s{s_}, s{b0}")
            A(f"s_mov_b32 s{s_+1}, s{b0+1}")
        A(f"s_mov_b32 s{s_+2}, {n_:#x}")
        A(f"s_mov_b32 s{s_+3}, 0x20000")
    A(f"s_mov_b32 s{sL2E}, {LOG2E:#x}")
    A(f"s_mov_b32 s{sPh}, 0")
    for k, s in ((1, sQ1), (2, sQ2), (3, sQ3)):
        A(f"s_mov_b32 s{s}, {0x11111111 << k:#x}")
        A(f"s_mov_b32 s{s+1}, {0x11111111 << k:#x}")
    A(f"v_mov_b32 v{t+8}, 0xffff")
    A(f"v_mov_b32 v{t+9}, 0xffff0000")
    A(f"v_cndmask_b32 v{v.mask1}, 0, v{t+8}, {sr(sQ2,2)}")
    A(f"v_cndmask_b32 v{v.mask1}, v{v.mask1}, v{t+9}, {sr(sQ3,2)}")
    A(f"v_cndmask_b32 v{v.mask0}, v{t+8}, v{t+9}, {sr(sQ1,2)}")
    A(f"v_cmp_gt_u32 vcc, 2, v{t+7}")
    A(f"v_cndmask_b32 v{v.mask0}, 0, v{v.mask0}, vcc")
    A(f"s_mov_b32 s{sTmp}, 0x01000100")
    A(f"s_mov_b32 s{sTmp2}, 0x03020302")
    A(f"v_mov_b32 v{t+8}, 0x0c0c0c0c")
    A(f"v_bfi_b32 v{sel}, v{v.mask0}, s{sTmp}, v{t+8}")
    A(f"v_bfi_b32 v{sel+1}, v{v.mask1}, s{sTmp}, v{t+8}")
    A(f"v_bfi_b32 v{sel+2}, v{v.mask0}, s{sTmp2}, v{t+8}")
    A(f"v_bfi_b32 v{sel+3}, v{v.mask1}, s{sTmp2}, v{t+8}")
    for k in range(18):
        if k % 4 < 2: A(f"v_mov_b32 v{v.W+k}, 0")
    A(f"v_mov_b32 v{v.m}, 0xff800000")
    A(f"v_mov_b32 v{v.l}, 0")
    A(f"v_mov_b32 v{v.e1}, 0x7ffffff0")
    A(f"v_lshlrev_b32 v{v.ta}, 3, v0")
    A(f"v_lshl_add_u32 v{v.ta}, v{t}, 13, v{v.ta}")
    A(f"v_lshl_add_u32 v{t+8}, v{t}, 10, v{v.lin}")
    A("s_getreg_b32 s8, hwreg(HW_REG_XCC_ID)")
    A("s_and_b32 s8, s8, 7")
    if warm and not helper:
        A("s_mov_b64 exec, 0")
        for w in range(1, 4):
            A(f"s_cmp_eq_u32 s{sWave}, {w}")
            A(f"s_cbranch_scc1 L_seg{w}")
        A("s_branch L_seg0")
        A("L_wret:")
        A("s_mov_b64 exec, -1                          ; only warms")
    i = ik + P0
    for m in range(8):
        A(f"s_waitcnt vmcnt({len(seq) - 1 - max(seq.index(2*m + 1), seq.index('x1')) + i - ik})")
        if m == 0: stamp3(2)
        if m == 7: stamp3(3)
        if m >= 8 - (max(waits) + 1) + P0:
            issue(i, "K", i); i += 1
        for k in range(4):
            A(f"v_perm_b32 v{bq+k}, v{xr+m}, v{xr+m}, v{sel+k}")
        c = "0" if m == 0 else vr(v.D, 4)
        A(f"v_mfma_f32_16x16x32_bf16 {vr(v.D,4)}, {vr(wqr+4*m,4)}, {vr(bq,4)}, {c}")
    stamp(1)
    for k in range(XB):
        issue(i, "K", i); i += 1
    A(f"ds_write_b128 v{t+8}, {vr(v.D,4)} offset:{L_P}")
    A(f"v_bfe_u32 v{t+9}, v0, 4, 1")
    A(f"v_lshlrev_b32 v{t+9}, 8, v{t+9}")
    A(f"v_lshrrev_b32 v{t+10}, 5, v0")
    A(f"v_lshl_add_u32 v{t+9}, v{t+10}, 6, v{t+9}")
    A(f"v_lshl_add_u32 v{t+9}, v{t+7}, 4, v{t+9}")
    A(f"v_lshl_add_u32 v{t+9}, v{t+5}, 2, v{t+9}")
    A("s_waitcnt lgkmcnt(0)")
    A("s_barrier")
    A(f"s_add_u32 s{sE}, s{sE}, 1")
    A(f"s_cmp_lg_u32 s{sWave}, 0")
    A("s_cbranch_scc1 L_nopub")
    qr = wqr
    for w in range(4):
        for r1 in range(2):
            A(f"ds_read_b32 v{qr+2*w+r1}, v{t+9} offset:{L_P + 1024*w + 640*r1}")
    A(f"s_lshr_b32 s{sTmp}, s2, 7")
    A(f"s_lshl_b32 s{sTmp}, s{sTmp}, 3")
    A(f"s_add_u32 s{sTmp}, s{sTmp}, s{sHkv}")
    A(f"s_lshl_b32 s{sTmp}, s{sTmp}, 12")
    A(f"s_and_b32 s{sTmp2}, s{sJ}, 15")
    A(f"s_lshl_b32 s{sTmp2}, s{sTmp2}, 7")
    A(f"s_add_u32 s{sTmp}, s{sTmp}, s{sTmp2}")
    A(f"s_add_u32 s{sTmp}, s{sTmp}, {WS_Q:#x}")
    A(f"v_and_b32 v{t+11}, 31, v0")
    A(f"v_lshlrev_b32 v{t+11}, 2, v{t+11}")
    A(f"v_lshl_add_u32 v{t+11}, v{t+10}, 11, v{t+11}")
    A(f"v_mad_u32_u24 v{t+10}, v{t+7}, 37, s{sE}")
    A(f"v_and_b32 v{t+10}, 0x1fff, v{t+10}")
    A(f"v_lshl_or_b32 v{t+10}, s8, 13, v{t+10}")
    A("s_waitcnt lgkmcnt(0)")
    for k in range(4): A(f"v_add_f32 v{qr+k}, v{qr+k}, v{qr+4+k}")
    A(f"v_add_f32 v{qr}, v{qr}, v{qr+2}")
    A(f"v_add_f32 v{qr+1}, v{qr+1}, v{qr+3}")
    A(f"v_add_f32 v{qr}, v{qr}, v{qr+1}")
    A(f"v_cvt_pk_bf16_f32 v{qr}, 0, v{qr}")
    A(f"v_or_b32 v{v.e0}, v{t+10}, v{qr}")
    A(f"v_add_u32 v{v.e1}, s{sTmp}, v{t+11}")
    A(f"buffer_store_dword v{v.e0}, v{v.e1}, {sr(sWS)}, 0 offen{'' if qloc else ' sc1'}")
    A("L_nopub:")
    stamp(2)
    misc = []
    M_ = misc.append
    for k in range(4):
        M_(f"s_add_u32 s{sTag+k}, s{sE}, {37*k}")
        M_(f"s_and_b32 s{sQT+k}, s{sTag+k}, 0x1fff")
        M_(f"s_and_b32 s{sTag+k}, s{sTag+k}, 0xff")
        M_(f"s_lshl_b32 s4, s8, 13")
        M_(f"s_or_b32 s{sQT+k}, s{sQT+k}, s4")
    M_(f"v_lshl_add_u32 v{t+9}, v{t+5}, 2, v{t+6}")
    M_(f"v_lshlrev_b32 v{t+9}, 7, v{t+9}")
    M_(f"v_lshl_add_u32 v{t+9}, v{t+7}, 5, v{t+9}")
    M_(f"s_lshl_b32 s{sTmp}, s{sHkv}, 1")
    M_(f"s_lshr_b32 s{sTmp2}, s2, 7")
    M_(f"s_add_u32 s{sTmp}, s{sTmp}, s{sTmp2}")
    M_(f"s_lshl_b32 s{sTmp}, s{sTmp}, 11")
    M_(f"s_add_u32 s{sTmp}, s{sTmp}, {WS_Q:#x}")
    M_(f"s_add_u32 s{sTmp2}, s{sTmp}, 32768")
    M_(f"s_mov_b32 s{sSpin}, {spin}")
    if tlb:
        M_(f"s_lshl_b32 s9, s{sWave}, 21")
        M_(f"s_load_dword s10, {sr(sV,2)}, s9")
        M_(f"s_load_dword s11, {sr(sKB,2)}, s9")
        M_(f"s_load_dword s12, {sr(sKB+2,2)}, s9")
        M_(f"s_lshl_b32 s13, s{sHkv}, 19")
        M_(f"s_load_dword s14, {sr(sWO,2)}, s13")
        M_(f"s_load_dword s15, {sr(sWQ,2)}, s13")
        if tlb > 1: M_(f"s_load_dword s16, {sr(sK,2)}, s9")
        if tlb > 2:
            M_(f"s_lshl_b32 s100, s{sJ}, 5")
            M_(f"s_load_dword s100, {sr(sGW,2)}, s100")
        if tlb > 3: M_(f"s_load_dword s101, {sr(sOUT,2)}, 0")
    if cpf and not cpfe:
        M_("s_getpc_b64 s[18:19]")
        M_("L_pc:")
        M_(f"s_sub_u32 s18, s18, L_pc-{KNAME}")
        M_("s_subb_u32 s19, s19, 0")
        M_(f"s_lshl_b32 s17, s{sJ}, 2")
        M_(f"s_add_u32 s17, s17, s{sWave}")
        M_("s_lshl_b32 s17, s17, 7")
        M_(f"s_min_u32 s17, s17, L_last-{KNAME}")
        M_("s_load_dword s17, s[18:19], s17")
    t8 = tuple(thr) * (8 // len(thr))
    M_("s_lshl_b32 s4, s8, 2")
    M_(f"s_lshr_b32 s4, {sum((x - 20) << (4*k) for k, x in enumerate(t8)):#x}, s4")
    M_("s_and_b32 s4, s4, 15")
    M_(f"s_add_u32 s{sThr}, s4, 20")
    sTlo = 19
    if tlo:
        assert tlb < 3
        M_("s_bitcmp1_b32 s8, 0")
        M_(f"s_cselect_b32 s{sTlo}, {tlo[1]}, {tlo[0]}")
    M_("s_lshl_b32 s4, s8, 12")
    M_(f"s_add_u32 s4, s4, {WS_B:#x}")
    M_(f"v_lshl_add_u32 v{v.br}, v0, 2, s4")
    M_(f"v_mov_b32 v{v.bl}, 0x7ffffff0")
    M_(f"s_lshl_b32 s5, s{sWave}, 6")
    M_(f"s_add_u32 s5, s5, s{sJ}")
    M_(f"v_cmp_eq_u32 vcc, s5, v0")
    M_(f"s_lshl_b32 s{sN}, s{sE}, 12")
    M_(f"s_mov_b32 s{sHi}, 0")
    M_(f"v_cndmask_b32 v{v.bw}, v{v.bl}, v{v.br}, vcc")
    M_(f"v_add_u32 v{v.bl}, s{sN}, v{v.bl}")
    sCk, sRk = sTag16, 101
    assert len(cps) <= 15 and max(cps) < 52
    lo = sum(c << (6*k) for k, c in enumerate(cps[:10])); hi = sum(c << (6*k) for k, c in enumerate(cps[10:]))
    M_(f"s_mov_b32 s4, {lo & 0xffffffff:#x}")
    M_(f"s_mov_b32 s5, {lo >> 32:#x}")
    M_(f"s_mul_i32 s{sCk}, s{sJ}, 6")
    M_(f"s_lshr_b64 s[4:5], s[4:5], s{sCk}")
    M_(f"s_sub_u32 s{sCk}, s{sCk}, 60")
    M_(f"s_lshr_b32 s5, {hi:#x}, s{sCk}")
    M_(f"s_cmp_lt_u32 s{sJ}, 10")
    M_("s_cselect_b32 s4, s4, s5")
    M_("s_and_b32 s4, s4, 63")
    M_(f"s_xor_b32 s5, s{sWave}, {cw}")
    M_("s_lshl_b32 s5, s5, 5")
    M_(f"s_add_u32 s5, s5, s{sJ}")
    M_(f"s_cmp_lt_u32 s5, {len(cps)}")
    M_("s_cselect_b32 s4, s4, 0x400")
    M_(f"s_add_u32 s{sCk}, s{sN}, s4")
    M_(f"s_lshl_b32 s4, s{sHkv}, 11")
    M_(f"s_lshr_b32 s5, s2, 7")
    M_("s_lshl_b32 s5, s5, 10")
    M_("s_add_u32 s4, s4, s5")
    M_(f"s_add_u32 s4, s4, {WS_ML:#x}")
    M_(f"v_add_u32 v{v.aML}, s4, v{v.lin}")
    if mlt:
        M_(f"s_and_b32 s5, s{sJ}, 1")
        M_("s_lshl_b32 s5, s5, 2")
        M_(f"s_add_u32 s5, s5, s{sWave}")
        M_("s_lshl_b32 s5, s5, 7")
        M_("s_add_u32 s92, s4, s5")
        M_("s_add_u32 s93, s92, 0x4000")
        M_(f"s_load_dword s94, {sr(sWS,2)}, s92")
        M_(f"s_load_dword s95, {sr(sWS,2)}, s93")
    M_(f"v_mov_b32 v{c00}, 0xffffff00")
    def drain(n):
        for _ in range(n):
            if misc:
                s_ = misc.pop(0); A(s_)
                if s_.startswith(("s_bitcmp", "s_cmp", "s_getpc", "s_sub_u32 s18")): A(misc.pop(0))
    qp = v.acc
    assert v.D == v.acc + 8 and v.qB == v.q + 4
    def qpoll(fl="sc1"):
        A(f"buffer_load_dwordx4 {vr(qp,4)}, v{t+9}, {sr(sWS)}, s{sTmp} offen {fl}")
        A(f"buffer_load_dwordx4 {vr(qp+4,4)}, v{t+9}, {sr(sWS)}, s{sTmp} offen offset:16 {fl}")
        A(f"buffer_load_dwordx4 {vr(qp+8,4)}, v{t+9}, {sr(sWS)}, s{sTmp2} offen {fl}")
        A(f"buffer_load_dwordx4 {vr(qp+12,4)}, v{t+9}, {sr(sWS)}, s{sTmp2} offen offset:16 {fl}")
    ipoll = NPL - P - XQ
    while i < NPL - XQ:
        n = (wpro or waits)[i & 7]
        if i > ipoll and i - n - 1 < ipoll: n += 4
        A(f"s_waitcnt vmcnt({n})")
        if i == ipoll:
            assert not misc
            qpoll("nt" if qloc else "sc1")
        if i in sti: stamp3((4, 6, 7)[sti.index(i)])
        issue(i, "K", i); i += 1
        drain(6 if NPL > 24 else 9)
    A(f"s_waitcnt vmcnt({P})")
    def qacc():
        A(f"v_xor_b32 v{t+8}, s{sQT}, v{qp}")
        for k in range(1, 16): A(f"v_bitop3_b32 v{t+8}, v{qp+k}, s{sQT+(k&3)}, v{t+8} bitop3:0xbe")
    qacc()
    A(f"v_and_b32 v{t+10}, 0xffff, v{t+8}")
    A(f"v_cmp_ne_u32 vcc, 0, v{t+10}")
    A("s_cbranch_vccnz L_qslow")
    A("L_qok:")
    A(f"s_mov_b32 s4, 0x07060302")
    for k in range(8): A(f"v_perm_b32 v{v.q+k}, v{qp+2*k+1}, v{qp+2*k}, s4")
    A("s_cmp_eq_u64 vcc, 0")
    A(f"s_cselect_b32 s{sFast}, {fast}, 0")
    while i < NPL:
        A(f"s_waitcnt vmcnt({(wcat or waits)[i & 7]})")
        issue(i, "K", i); i += 1
    stamp(3)
    def red(u, T):
        D = v.D + 4 * (u & 1)
        A(f"v_add_f32_dpp v{v.y0}, v{D+(u^1)}, v{D+u} quad_perm:[1,0,3,2] {DPPM}")
        A(f"v_add_f32_dpp v{v.y1}, v{D+(u^3)}, v{D+(u^2)} quad_perm:[1,0,3,2] {DPPM}")
        dst = T if u == 0 else v.z
        A(f"v_add_f32_dpp v{dst}, v{v.y1}, v{v.y0} quad_perm:[2,3,0,1] {DPPM}")
        if u: A(f"v_cndmask_b32 v{T}, v{T}, v{v.z}, {sr((sQ1,sQ2,sQ3)[u-1],2)}")
    def finT(par):
        T = v.T + par
        red(3, T)
        A(f"v_cvt_pk_bf16_f32 v{T}, 0, v{T}")
        A(f"v_mul_f32 v{T}, {SCALE:#x}, v{T}")
        A(f"v_cvt_pk_bf16_f32 v{T}, 0, v{T}")
        if par:
            A(f"v_mul_f32 v{v.e2}, s{sL2E}, v{v.m}")
            A(f"v_max3_f32 v{v.m}, v{v.T}, v{v.T+1}, v{v.m}")
            A(f"ds_write_b64 v{v.ta}, {vr(v.T,2)}")
            A(f"v_mul_f32 v{v.p}, s{sL2E}, v{v.m}")
            A(f"v_add_u32 v{v.ta}, 512, v{v.ta}")
            A(f"v_fma_f32 v{v.e0}, v{v.T}, s{sL2E}, -v{v.p}")
            A(f"v_fma_f32 v{v.e1}, v{v.T+1}, s{sL2E}, -v{v.p}")
            A(f"v_sub_f32 v{v.e2}, v{v.e2}, v{v.p}")
    def lacc():
        A(f"v_exp_f32 v{v.e0}, v{v.e0}")
        A(f"v_exp_f32 v{v.e2}, v{v.e2}")
        A(f"v_exp_f32 v{v.e1}, v{v.e1}")
        A(f"v_fma_f32 v{v.l}, v{v.l}, v{v.e2}, v{v.e0}")
        A(f"v_add_f32 v{v.l}, v{v.l}, v{v.e1}")
    def procK(j, sl):
        u = j & 3
        A(f"v_mfma_f32_16x16x32_bf16 {vr(v.D+4*(u&1),4)}, {vr(v.buf+4*sl,4)}, {vr(v.q,4)}, 0")
        if u >= 1: red(u - 1, v.T + ((j >> 2) & 1))
        elif j > 0: finT(((j >> 2) - 1) & 1)
        if j & 7 == 1 and j > 1: lacc()
    def ands(u):
        w = v.W + 2 + 4 * u
        A(f"v_and_b32_dpp v{w}, v{v.pd}, v{v.mask0} quad_perm:[{u},{u},{u},{u}] {DPPM}")
        A(f"v_and_b32_dpp v{w+1}, v{v.pd}, v{v.mask1} quad_perm:[{u},{u},{u},{u}] {DPPM}")
    def prep(par, nextread=True):
        if par == 0: A("s_waitcnt lgkmcnt(0)")
        A(f"v_fma_f32 v{v.p}, v{v.TV+par}, s{sL2E}, -v{v.mL}")
        A(f"v_exp_f32 v{v.p}, v{v.p}")
        if par == 1 and nextread:
            A(f"v_add_u32 v{v.ta}, 512, v{v.ta}")
            A(f"ds_read_b64 {vr(v.TV,2)}, v{v.ta}")
        A(f"v_cvt_pk_bf16_f32 v{v.pd}, v{v.p}, v{v.p}")
        ands(0)
    def procV(j, sl, end=False):
        u = j & 3
        w = v.W + 4 * u
        A(f"v_mfma_f32_16x16x32_bf16 {vr(v.acc,4)}, {vr(v.buf+4*sl,4)}, {vr(w+2,4)}, {vr(v.acc,4)}")
        A(f"v_mfma_f32_16x16x32_bf16 {vr(v.acc+4,4)}, {vr(v.buf+4*sl,4)}, {vr(w,4)}, {vr(v.acc+4,4)}")
        if end and j >= 124: return
        if u < 3: ands(u + 1)
        else:
            prep(((j >> 2) + 1) & 1, nextread=not (end and j == 123))
            if end and j == 123:
                ands(1); ands(2); ands(3)
    def allred(op, r, tmp):
        A(f"{op}_dpp v{r}, v{r}, v{r} quad_perm:[1,0,3,2] {DPPM}")
        A(f"{op}_dpp v{r}, v{r}, v{r} quad_perm:[2,3,0,1] {DPPM}")
        A(f"v_mov_b32 v{tmp}, v{r}")
        A(f"v_permlane16_swap_b32 v{tmp}, v{r}")
        A(f"{op} v{r}, v{r}, v{tmp}")
        A(f"v_mov_b32 v{tmp}, v{r}")
        A(f"v_permlane32_swap_b32 v{tmp}, v{r}")
        A(f"{op} v{r}, v{r}, v{tmp}")
    def accaddr():
        A(f"s_lshl_b32 s4, s{sPh}, 2")
        A(f"s_add_u32 s4, s4, s{sWave}")
        A(f"s_lshl_b32 s5, s4, 11")
        A(f"v_add_u32 v{t+9}, s5, v{v.lin}")
    def accout():
        A(f"ds_write_b128 v{t+9}, {vr(v.acc,4)} offset:{L_O}")
        A(f"ds_write_b128 v{t+9}, {vr(v.acc+4,4)} offset:{L_O+1024}")
    def strip(base, first, emit=None):
        E = emit or A
        for r in range(4): E(f"v_xor_b32 v{base+r}, s{sTag+r}, v{base+r}")
        if first: E(f"v_or_b32 v{t+11}, v{base}, v{base+1}")
        else: E(f"v_or3_b32 v{t+11}, v{base}, v{base+1}, v{t+11}")
        E(f"v_or3_b32 v{t+11}, v{base+2}, v{base+3}, v{t+11}")
    def check(label):
        A(f"v_and_b32 v{t+11}, 0xff, v{t+11}")
        A(f"v_cmp_ne_u32 vcc, 0, v{t+11}")
        A(f"s_cbranch_vccnz {label}")
    A("; ---- catch-up: consume the backlog while the stream goes on ----")
    slotof = {k: k for k in range(NPL)}
    def newslot(i): return (i - NPL) if i < NPL + CU else (i & 7)
    j = 0
    landed = i - P
    while not (j == i - P and i % 8 == 0 and j >= NPL + (CU if CU > 8 else 0)):
        s = newslot(i)
        own = max(k for k in slotof if slotof[k] == s)
        while j <= own:
            assert j < landed, "catch-up needs data not yet landed"
            procK(j, slotof[j]); j += 1
        A(f"s_waitcnt vmcnt({(wcat or waits)[i&7]})")
        landed = max(landed, i - (wcat or waits)[i & 7])
        slotof[i] = s
        issue(i, "K", s); i += 1
        n = 0
        while n < R and j < i - P:
            assert j < landed
            procK(j, slotof[j]); j += 1; n += 1
    assert i < 128
    def enter(n):
        A(f"s_mov_b32 s{sCnt}, {n}")
        A(f"s_xor_b32 s{sNo}, s{sXm}, {dep('n', n, 4):#x}" if xall else f"s_mov_b32 s{sNo}, {dep('n', n, 4):#x}")
    enter(i // 8)
    stamp(4); stamp3(8)
    def body(kind, proc, ww, extra):
        for k in range(8):
            n = ww[k] + (extra if k <= ww[k] else 0)
            issue(k, kind, k, loop=True)
            L.insert(len(L) - 1, f"s_waitcnt vmcnt({n})")
            if k == 7:
                A(f"s_add_u32 s{sCnt}, s{sCnt}, 1")
                sdep(sNo, sCnt, "n", 4, True, 4); xall and A(f"s_xor_b32 s{sNo}, s{sNo}, s{sXm}")
            proc(16 + k - P, (k - P) & 7)
    def loop(name, kind, proc):
        A(".p2align 6")
        A(f"L_{name}loop:")
        dd = t + 2 if turbo else v.bv
        A(f"v_subrev_u32 v{dd}, s{sN}, v{v.bl}")
        A(f"s_add_u32 s{sN}, s{sN}, 1")
        A(f"v_cmp_gt_u32 vcc, 64, v{dd}")
        A(f"v_mov_b32 v{v.bv}, s{sN}")
        A(f"s_bcnt1_i32_b64 s4, vcc")
        A(f"buffer_store_dword v{v.bv}, v{v.bw}, {sr(sWS)}, 0 offen")
        A(f"buffer_load_dword v{v.bl}, v{v.br}, {sr(sWS)}, 0 offen nt")
        A(f"s_sub_u32 s5, s{sN}, s{sCk}")
        A("s_cmp_lt_u32 s5, 2")
        A(f"s_cbranch_scc1 L_{name}ctl")
        A(f"L_{name}ctlb:")
        if kind == "V":
            A(f"s_cmp_eq_u32 s{sCnt}, {itml}")
            A("s_cbranch_scc1 L_side")
        if lasthi:
            A(f"s_cmp_ge_u32 s{sCnt}, {16 - lasthi}")
            A(f"s_cbranch_scc1 L_{name}hi")
        A(f"s_cmp_ge_u32 s4, s{sThr}")
        A(f"s_cbranch_scc1 L_{name}hi")
        if tlo:
            A("s_sub_u32 s4, s4, 1")
            A(f"s_cmp_lt_u32 s4, s{sTlo}")
            A(f"s_cbranch_scc1 L_{name}min")
        for ver, ww in ((("lo", waits), ("min", wmin), ("hi", whi)) if tlo else (("lo", waits), ("hi", whi))):
            if ver == "min": A(f"L_{name}min:")
            if ver == "hi":
                A(f"L_{name}hi:")
                if stamps: A(f"s_add_u32 s{sHi}, s{sHi}, 1")
                if turbo:
                    A(f"v_add_u32 v{dd}, -1, v{dd}")
                    A(f"v_cmp_gt_u32 vcc, 63, v{dd}")
                    A("s_bcnt1_i32_b32 s4, vcc_lo")
                    A(f"s_cmp_ge_u32 s4, {max(turbo, 0)}")
                    A(f"s_cbranch_scc1 L_{name}turbo")
            body(kind, proc, ww, 2)
            A(f"s_cmp_lg_u32 s{sCnt}, 16")
            A(f"s_cbranch_scc1 L_{name}loop")
            if ver != "hi": A(f"s_branch L_{name}done")
        A(f"L_{name}done:")
    A("; ---- K loop (lo: 5 loads in flight, hi: 6) ----")
    loop("k", "K", procK)
    stamp4(1, 6)
    wk = wkv or waits
    for k in range(P):
        A(f"s_waitcnt vmcnt({wk[k]})")
        issue(k, "V", k)
        procK(128 + k - P, (k - P) & 7)
        if k == 0:
            A(f"v_subrev_u32 v{t+10}, {512*15}, v{v.ta}")
            A(f"ds_read_b64 {vr(v.TV,2)}, v{t+10}")
        if k == 1:
            for r in range(8): A(f"v_mov_b32 v{v.acc+r}, 0")
    for k in range(P, P + XT): issue(k, "V", k)
    finT(1)
    A(f"v_mov_b32 v{v.z}, v{v.p}")
    A(f"v_mov_b32 v{v.ta}, v{t+10}")
    allred("v_max_f32", v.m, v.y0)
    A(f"v_mul_f32 v{v.mL}, s{sL2E}, v{v.m}")
    prep(0)
    sv = L[:]; del L[:]
    lacc()
    A(f"v_sub_f32 v{v.z}, v{v.z}, v{v.mL}")
    A(f"v_exp_f32 v{v.z}, v{v.z}")
    A(f"s_lshl_b32 s5, s{sPh}, 11")
    A(f"s_lshl_b32 s4, s{sWave}, 9")
    A(f"v_mul_f32 v{v.l}, v{v.l}, v{v.z}")
    A(f"s_add_u32 s4, s4, s5")
    A(f"v_lshl_add_u32 v{t+9}, v0, 3, s4")
    allred("v_add_f32", v.l, v.y0)
    A(f"ds_write_b64 v{t+9}, {vr(v.m,2)} offset:{L_M}")
    A(f"v_lshl_add_u32 v{t+10}, v0, 3, s5")
    misc.extend(L); del L[:]; L.extend(sv)
    issued = P + XT
    for k in range(P, 8):
        if k == 7: drain(99)
        if k >= issued:
            A(f"s_waitcnt vmcnt({wk[k]})")
            issue(k, "V", k); issued += 1
        else:
            A(f"s_waitcnt vmcnt({issued - 1 - (k - P)})")
        procV(k - P, k - P)
    A("s_waitcnt lgkmcnt(0)")
    A("s_barrier")
    A(f"s_cmp_eq_u32 s{sWave}, 3")
    A("s_cbranch_scc1 L_pubml")
    A(f"s_lshl_b32 s4, s{sPh}, 1")
    A(f"s_cmp_lt_u32 s{sWave}, s4")
    A("s_cbranch_scc1 L_puba")
    A("L_vent:")
    enter(1)
    stamp4(2, 7)
    A("; ---- V loop ----")
    loop("v", "V", procV)
    stamp4(3, 8)
    A("L_mlchk:")
    strip(mlr, True)
    check("L_mlretry")
    def mlread():
        A(f"ds_read2st64_b64 {vr(v.D,4)}, v{t+10} offset0:{L_M//512} offset1:{L_M//512+1}")
        A(f"ds_read2st64_b64 {vr(v.D+4,4)}, v{t+10} offset0:{L_M//512+2} offset1:{L_M//512+3}")
    mlread()
    def fact(E):
        sv = L[:]; del L[:]
        A(f"v_mov_b32 v{mlr+2}, v{mlr}")
        allred("v_max_f32", mlr + 2, mlr + 3)
        A(f"v_mul_f32 v{mlr+2}, s{sL2E}, v{mlr+2}")
        A(f"v_fma_f32 v{mlr}, v{mlr}, s{sL2E}, -v{mlr+2}")
        A("s_waitcnt lgkmcnt(0)")
        for w in range(4): A(f"v_fma_f32 v{F+w}, v{v.D+2*w}, s{sL2E}, -v{mlr+2}")
        A(f"v_exp_f32 v{mlr}, v{mlr}")
        for w in range(4): A(f"v_exp_f32 v{F+w}, v{F+w}")
        A(f"v_mul_f32 v{mlr+1}, v{mlr+1}, v{mlr}")
        allred("v_add_f32", mlr + 1, mlr + 3)
        A(f"v_rcp_f32 v{mlr+1}, v{mlr+1}")
        code = L[:]; del L[:]; L.extend(sv)
        for c_ in code: E(c_)
    def gatef(E, g):
        E(f"v_mul_f32 v{mlr+1}, v{mlr+1}, v{g}")
        for w in range(4): E(f"v_mul_f32 v{F+w}, v{F+w}, v{mlr+1}")
    A(f"s_cmp_lg_u32 s{sPh}, 0")
    A("s_cbranch_scc1 L_epi")
    A(f"s_mov_b32 s{sK}, s{sKB}")
    A(f"s_mov_b32 s{sK+1}, s{sKB+1}")
    A(f"s_mov_b32 s{sV}, s{sKB+2}")
    A(f"s_mov_b32 s{sV+1}, s{sKB+3}")
    accaddr()
    fact(M_)
    ga = a
    for k in range(4):
        M_(f"v_lshlrev_b32 v{ga+2*k}, 16, v{gx+k}")
        M_(f"v_and_b32 v{ga+2*k+1}, 0xffff0000, v{gx+k}")
        M_(f"v_lshlrev_b32 v{ga+8+2*k}, 16, v{gx+4+k}")
        M_(f"v_and_b32 v{ga+8+2*k+1}, 0xffff0000, v{gx+4+k}")
    for k in range(8): M_(f"v_mul_f32 v{ga+k}, v{ga+k}, v{ga+8+k}")
    for k in range(8): M_(f"v_cvt_pk_bf16_f32 v{ga+k}, 0, v{ga+k}")
    for k in range(4): M_(f"v_add_f32 v{ga+k}, v{ga+k}, v{ga+4+k}")
    M_(f"v_add_f32 v{ga}, v{ga}, v{ga+2}")
    M_(f"v_add_f32 v{ga+1}, v{ga+1}, v{ga+3}")
    M_(f"v_add_f32 v{ga}, v{ga}, v{ga+1}")
    M_(f"v_add_f32_dpp v{ga}, v{ga}, v{ga} row_ror:4 {DPPM}")
    M_(f"v_add_f32_dpp v{ga}, v{ga}, v{ga} row_ror:8 {DPPM}")
    sv = L[:]; del L[:]; allred("v_add_f32", ga, ga + 1); code = L[:]; del L[:]; L.extend(sv)
    for c_ in code: M_(c_)
    M_(f"v_cvt_pk_bf16_f32 v{ga}, 0, v{ga}")
    M_(f"v_mul_f32 v{ga}, {LOG2E | 0x80000000:#x}, v{ga}")
    M_(f"v_exp_f32 v{ga}, v{ga}")
    M_(f"v_add_f32 v{ga}, 1.0, v{ga}")
    M_(f"v_rcp_f32 v{ga}, v{ga}")
    M_(f"v_cvt_pk_bf16_f32 v{gA}, 0, v{ga}")
    M_(f"v_sub_f32 v{gB}, 1.0, v{gA}")
    M_(f"v_cvt_pk_bf16_f32 v{gB}, 0, v{gB}")
    gatef(M_, gA)
    M_(f"s_lshr_b32 s8, s{sJ}, 3")
    M_(f"s_bfe_u32 s9, s{sJ}, 0x10002")
    M_(f"s_and_b32 s10, s{sJ}, 3")
    M_(f"s_lshl_b32 s12, s{sHkv}, 2")
    M_("s_add_u32 s12, s12, s8")
    M_("s_lshl_b32 s12, s12, 2")
    M_(f"s_add_u32 s12, s12, s{sWave}")
    M_("s_lshl_b32 s12, s12, 3")
    M_("s_add_u32 s12, s12, s9")
    M_("s_lshl_b32 s12, s12, 4")
    M_("s_add_u32 s12, s12, s10")
    M_("s_lshl_b32 s12, s12, 8")
    M_(f"v_and_b32 v{aWO}, 0xff, v{v.lin}")
    M_(f"v_lshl_add_u32 v{aWO}, v{t+6}, 10, v{aWO}")
    M_(f"v_add_u32 v{aWO}, s12, v{aWO}")
    M_(f"s_lshl_b32 s13, s{sWave}, 10")
    M_(f"v_add_u32 v{aLO}, s13, v{v.lin}")
    M_(f"s_lshl_b32 s12, s{sHkv}, 16")
    M_(f"s_add_u32 s12, s12, {WS_O:#x}")
    M_(f"s_lshl_b32 s13, s{sWave}, 13")
    M_("s_add_u32 s13, s13, s12")
    M_(f"s_lshr_b32 s14, s{sWave}, 1")
    M_("s_lshl_b32 s14, s14, 28")
    M_("s_add_u32 s13, s13, s14")
    M_(f"s_and_b32 s14, s{sJ}, 1")
    M_("s_lshl_b32 s14, s14, 10")
    M_("s_add_u32 s13, s13, s14")
    M_(f"s_lshr_b32 s14, s{sJ}, 1")
    M_(f"s_lshl_b32 s14, s14, {6 if run64 else 4}")
    M_("s_add_u32 s13, s13, s14")
    M_(f"v_lshl_add_u32 v{aSO}, v{t+5}, 14, s13")
    M_(f"v_lshl_add_u32 v{aSO}, v{t+6}, 11, v{aSO}")
    M_(f"v_lshl_add_u32 v{aSO}, v{t+7}, {4 if run64 else 8}, v{aSO}")
    M_(f"s_lshr_b32 s11, s{sJ}, 2")
    M_("s_lshl_b32 s13, s11, 2")
    M_(f"s_add_u32 s13, s13, s{sWave}")
    M_("s_lshl_b32 s13, s13, 11")
    M_("s_add_u32 s13, s13, s12")
    if run64 == 2:
        M_(f"v_bfe_u32 v{aBP}, v0, 3, 1")
        M_(f"v_lshl_add_u32 v{aBP}, v{aBP}, 5, v{t+6}")
        M_(f"v_lshlrev_b32 v{aBP}, 2, v{aBP}")
        if wosw:
            M_(f"s_and_b32 s14, s{sWave}, 2")
            M_("s_lshl_b32 s14, s14, 5")
            M_(f"v_xor_b32 v{aBP}, s14, v{aBP}")
        M_(f"v_xor_b32 v{aBP+1}, 64, v{aBP}")
    if run64 == 1:
        M_(f"v_and_b32 v{aPO}, 15, v0")
        M_(f"v_lshl_add_u32 v{aPO}, v{aPO}, 6, s13")
        M_(f"v_lshl_add_u32 v{aPO}, v{t+6}, 4, v{aPO}")
    else:
        M_(f"v_add_u32 v{aPO}, s13, v{v.lin}")
    M_(f"v_add_u32 v{v.aML}, 0x4000, v{v.aML}")
    M_("s_lshl_b32 s13, s10, 3")
    M_(f"s_add_u32 s13, s13, s{sHkv}")
    M_("s_lshl_b32 s13, s13, 3")
    M_("s_add_u32 s13, s13, s11")
    M_("s_lshl_b32 s13, s13, 10")
    M_(f"s_add_u32 s16, s13, {WS_P2:#x}")
    M_("s_mov_b32 s17, 0x80000")
    if p2t == 2:
        M_(f"s_lshl_b32 s13, s{sWave}, 8")
        M_("s_add_u32 s18, s13, s16")
        M_("s_add_u32 s19, s18, 128")
        M_(f"s_load_dword s100, {sr(sWS,2)}, s18")
        M_(f"s_load_dword s101, {sr(sWS,2)}, s19")
    M_(f"s_lshl_b32 s13, s{sJ}, 16")
    M_(f"s_lshl_b32 s14, s{sHkv}, 7")
    M_("s_add_u32 s13, s13, s14")
    M_(f"s_add_u32 s13, s13, {WS_P2:#x}")
    if c4:
        M_(f"s_lshl_b32 s14, s{sWave}, 5")
        M_("s_add_u32 s13, s13, s14")
        M_(f"v_and_b32 v{aPC}, 0x10, v{v.lin}")
        M_(f"v_lshrrev_b32 v{aOUT}, 1, v0")
        M_(f"v_lshl_add_u32 v{aPC}, v{aOUT}, 10, v{aPC}")
    else:
        M_(f"v_and_b32 v{aPC}, 0x70, v{v.lin}")
        M_(f"v_lshl_add_u32 v{aPC}, v{t+1}, 10, v{aPC}")
    M_(f"v_add_u32 v{aPC}, s13, v{aPC}")
    M_("s_and_b32 s13, s2, 1")
    M_("s_lshl_b32 s13, s13, 10")
    M_("s_lshr_b32 s14, s2, 1")
    M_("s_lshl_b32 s14, s14, 6")
    M_("s_add_u32 s14, s14, s13")
    if c4:
        M_(f"s_lshl_b32 s13, s{sWave}, 2")
        M_("s_add_u32 s14, s14, s13")
    M_(f"v_and_b32 v{aOUT}, 7, v0")
    M_(f"v_lshl_add_u32 v{aOUT}, v{t+6}, 3, v{aOUT}")
    M_(f"v_lshl_add_u32 v{aOUT}, v{aOUT}, 1, s14")
    M_(f"v_or_b32 v{a}, v{v.mask0}, v{v.mask1}")
    M_(f"v_mov_b32 v{a+1}, 0x0c0c0c0c")
    if wosw:
        M_(f"s_bitcmp1_b32 s{sWave}, 0")
        M_("s_cselect_b32 s12, 0x02020202, 0")
        M_("s_xor_b32 s13, s12, 0x03020302")
        M_("s_xor_b32 s12, s12, 0x01000100")
        for k in range(4):
            M_(f"s_xor_b32 s{sKB+k}, s{sWave}, {k}")
            M_(f"s_lshl_b32 s{sKB+k}, s{sKB+k}, 13")
    else:
        M_("s_mov_b32 s12, 0x01000100")
        M_("s_mov_b32 s13, 0x03020302")
        for k in range(4): M_(f"s_mov_b32 s{sKB+k}, {k << 13}")
    M_(f"v_bfi_b32 v{a+2}, v{a}, s12, v{a+1}")
    M_(f"v_bfi_b32 v{a+3}, v{a}, s13, v{a+1}")
    M_(f"v_bfe_u32 v{a}, v0, 1, 2")
    for d in range(4):
        M_(f"v_cmp_eq_u32 vcc, {d}, v{a}")
        M_(f"v_cndmask_b32 v{sb+d}, v{a+1}, v{a+2}, vcc")
        M_(f"v_cndmask_b32 v{sb+4+d}, v{a+1}, v{a+3}, vcc")
    for k in range(1, 8): M_(f"s_mov_b32 s{8+k}, {8192*k:#x}")
    per = -(-len(misc) // 8)
    for k in range(8):
        A(f"s_waitcnt vmcnt({(wvk or whi)[k]})")
        issue(k, "K", k)
        if k < P:
            procV(128 + k - P, (k - P) & 7, end=True)
            if k == P - 2:
                for r in range(4): A(f"v_mov_b32 v{v.q+r}, v{v.qB+r}")
                A(f"v_mov_b32 v{v.m}, 0xff800000")
                A(f"v_mov_b32 v{v.l}, 0")
                A(f"v_subrev_u32 v{v.ta}, {512*15}, v{v.ta}")
        else:
            procK(k - P, k - P)
            if k == P: accout()
        drain(per)
    def wold(k):
        if woil: k = (k >> 1) + 4 * (k & 1)
        so = f"s{sKB + (k & 3)}"
        A(f"buffer_load_dwordx4 {vr(wor+4*k,4)}, v{aWO}, {sr(sWO if k < 4 else sWQ)}, {so} offen {woflags}")
    assert not misc
    for z in range(woe):
        A(f"s_waitcnt vmcnt({waits[0]})")
        wold(z)
    if stamps and tst == 4: A(f"s_memrealtime s[{sStamp+8}:{sStamp+9}]")
    A(f"s_mov_b32 s{sPh}, 1")
    enter(1)
    A("s_branch L_kloop")
    A("L_epi:")
    if cut in (1, 4):
        A(f"s_mov_b32 s{sWO+2}, 0")
        A(f"s_mov_b32 s{sWQ+2}, 0")
    def sta():
        A(f"s_cmp_lg_u32 s{sFast}, 0")
        A("s_cbranch_scc0 L_sta_slow")
        A(f"buffer_store_dwordx4 {vr(oA,4)}, v{aSO}, {sr(sWS)}, 0 offen")
        A("L_sta_back:")
    if not aside and not aearly: sta()
    def oald(fl):
        A(f"buffer_load_dwordx4 {vr(gx,4)}, v{aPO}, {sr(sWS)}, 0 offen {fl}")
        A(f"buffer_load_dwordx4 {vr(gx+4,4)}, v{aPO}, {sr(sWS)}, 0 offen offset:1024 {fl}")
    def oprep(base, frag, E):
        for r in range(4): E(f"v_add_f32 v{base+r}, v{base+r}, v{base+4+r}")
        if run64 == 2:
            for r in range(2): E(f"v_permlane16_swap_b32 v{base+r}, v{base+2+r}")
            for r in range(2): E(f"v_add_f32 v{base+r}, v{base+r}, v{base+2+r}")
            for pm in ("row_ror:4", "row_ror:8"):
                for r in range(2): E(f"v_add_f32_dpp v{base+r}, v{base+r}, v{base+r} {pm} {DPPM}")
            E(f"v_cvt_pk_bf16_f32 v{base+2}, v{base}, v{base+1}")
            E(f"ds_bpermute_b32 v{base}, v{aBP}, v{base+2}")
            E(f"ds_bpermute_b32 v{base+1}, v{aBP+1}, v{base+2}")
            E("s_waitcnt lgkmcnt(0)")
        else:
            for pm in ("quad_perm:[1,0,3,2]", "quad_perm:[2,3,0,1]", "row_half_mirror"):
                for r in range(4): E(f"v_add_f32_dpp v{base+r}, v{base+r}, v{base+r} {pm} {DPPM}")
            E(f"v_cvt_pk_bf16_f32 v{base}, v{base}, v{base+1}")
            E(f"v_cvt_pk_bf16_f32 v{base+1}, v{base+2}, v{base+3}")
        for r in range(4):
            for d in range(4): E(f"v_perm_b32 v{frag+4*r+d}, v{base+(r>>1)}, v{base+(r>>1)}, v{sb+4*(r&1)+d}")
    if aearly:
        A("L_oachk:")
        strip(gx, True)
        strip(gx + 4, False)
        check("L_oaretry")
    accaddr()
    fact(M_)
    gatef(M_, gB)
    if aearly: oprep(gx, bA, M_)
    nwo = woe
    if not pafirst:
        for k in range(woburst): wold(nwo); nwo += 1
    per = -(-len(misc) // (P - 2))
    nx = 0 if (aside or aearly) else 1
    for k in range(-1, P):
        if k >= 0:
            A(f"s_waitcnt vmcnt({(P - 1 - k) + nwo - woe + nx})")
            if nwo < 8 and k >= wodelay: wold(nwo); nwo += 1
        if k == pollak and not aearly:
            afterA = 8 - nwo
            A(f"s_cmp_lg_u32 s{sFast}, 0")
            A("s_cbranch_scc0 L_lda_slow")
            oald("nt")
            A("L_lda_back:")
            nx += 2
            if obe:
                A(f"v_lshlrev_b32 v{a+40}, 7, v0")
                A(f"v_sub_u32 v{a+40}, v{a+40}, v{v.lin}")
                A(f"v_add_u32 v{a+40}, v{a+40}, v{aPO}")
                A("s_mov_b64 exec, 0xffff")
                A(f"buffer_load_dword v{a+40}, v{a+40}, {sr(sWS)}, s17 offen nt")
                A("s_mov_b64 exec, -1")
                nx += 1
        if k < 0:
            if pafirst:
                for z in range(woburst): wold(nwo); nwo += 1
            continue
        procV(128 + k - P, (k - P) & 7, end=True)
        drain(per)
    assert not misc
    while nwo < 8 - wolate: wold(nwo); nwo += 1
    accout()
    stamp(5)
    A(f"s_cmp_ge_u32 s{sWave}, 2")
    A("s_waitcnt lgkmcnt(0)")
    A("s_barrier")
    if cut in (1, 2): A("s_branch L_fin")
    stamp(1, True)
    A("s_cbranch_scc1 L_bfirst" if bafter else "s_cbranch_scc1 L_bsel")
    oo = a
    def stageA(br, dst):
        for w in range(4): A(f"ds_read_b128 {vr(oo+4*w,4)}, v{aLO} offset:{L_O+8192*br+2048*w}")
        A(f"s_cmp_lg_u32 s{sFast}, 0")
        for w in range(4):
            A(f"s_waitcnt lgkmcnt({0 if stamps else 3-w})")
            for r in range(4):
                if w == 0: A(f"v_mul_f32 v{oo+r}, v{oo+r}, v{F}")
                else: A(f"v_fmac_f32 v{oo+r}, v{oo+4*w+r}, v{F+w}")
        for r in range(4): A(f"v_and_or_b32 v{dst+r}, v{oo+r}, v{c00}, s{sTag+r}")
    stageA(1, oo)
    A("s_cbranch_scc0 L_oslow")
    A(f"buffer_store_dwordx4 {vr(oo,4)}, v{aSO}, {sr(sWS)}, s17 offen")
    pa = a + 16
    bb = a + 24
    def bpoll(fl):
        A(f"buffer_load_dwordx4 {vr(pa,4)}, v{aPO}, {sr(sWS)}, s17 offen {fl}")
        A(f"buffer_load_dwordx4 {vr(pa+4,4)}, v{aPO}, {sr(sWS)}, s17 offen offset:1024 {fl}")
    A("L_bfirst:")
    stamp(6)
    if not bafter: bpoll("nt")
    A("L_bmfa:")
    while nwo < 8: wold(nwo); nwo += 1
    nb = 0 if bafter else 2
    if not aearly:
        A(f"s_waitcnt vmcnt({afterA + nb})")
        A("L_oachk:")
        strip(gx, True)
        strip(gx + 4, False)
        check("L_oaretry")
        oprep(gx, bA, A)
    def bfirst():
        A(f"s_cmp_lg_u32 s{sFast}, 0")
        A("s_cbranch_scc0 L_bp_slow")
        bpoll("nt")
        A("L_bp_back:")
    if bafter and bpw is None: bfirst()
    A(f"s_waitcnt vmcnt({(6 if bpw is None else 4) - (3 if woil else 0)})")
    for r in range(4):
        c = "0" if r == 0 else vr(v.D, 4)
        A(f"v_mfma_f32_16x16x32_bf16 {vr(v.D,4)}, {vr(wor+4*r,4)}, {vr(bA+4*r,4)}, {c}")
    if bpw is not None:
        A(f"s_waitcnt vmcnt({bpw})")
        bfirst()
    if tst == 2:
        A("s_waitcnt vmcnt(2)")
        stamp(2, 2)
        A("s_waitcnt vmcnt(0)")
        stamp(3, 2)
    A("L_bchk:")
    A("s_waitcnt vmcnt(1)")
    strip(pa, True)
    A("s_waitcnt vmcnt(0)")
    strip(pa + 4, False)
    check("L_bretry")
    A("s_mov_b64 exec, -1")
    stamp(7)
    code = []
    oprep(pa, bb, code.append)
    for c_ in code[:-12]: A(c_)
    for r in range(4):
        for c_ in code[len(code) - 12 + 4 * r: len(code) - 8 + 4 * r]: A(c_)
        A(f"v_mfma_f32_16x16x32_bf16 {vr(v.D,4)}, {vr(wor+16+4*r,4)}, {vr(bb+4*r,4)}, {vr(v.D,4)}")
    A(f"s_cmp_lg_u32 s{sWave}, 0")
    A(f"ds_write_b128 v{aLP}, {vr(v.D,4)} offset:{L_P}")
    stamp(4, True)
    A("s_waitcnt lgkmcnt(0)")
    A("s_barrier")
    A("s_cbranch_scc1 L_cother" if c4 else "s_cbranch_scc1 L_fin")
    for w in range(1, 4): A(f"ds_read_b128 {vr(a+4*w,4)}, v{v.lin} offset:{L_P+1024*w}")
    A("s_cmp_ge_u32 s2, 32")
    A("s_waitcnt lgkmcnt(0)")
    for r in range(4): A(f"v_add_f32 v{a+4+r}, v{a+4+r}, v{v.D+r}")
    for r in range(4): A(f"v_add_f32 v{a+8+r}, v{a+8+r}, v{a+12+r}")
    for r in range(4): A(f"v_add_f32 v{a+4+r}, v{a+4+r}, v{a+8+r}")
    for r in range(4): A(f"v_and_or_b32 v{a+4+r}, v{a+4+r}, v{c00}, s{sTag+r}")
    A(f"buffer_store_dwordx4 {vr(a+4,4)}, v{v.lin}, {sr(sWS)}, s16 offen sc1")
    stamp(2, True)
    A("s_cbranch_scc1 L_fin")
    if amp:
        A("s_cmp_ge_u32 s2, 8")
        A("s_cbranch_scc1 L_noamp")
        A("s_getreg_b32 s84, hwreg(HW_REG_XCC_ID)")
        A("s_and_b32 s84, s84, 7")
        A("s_lshl_b32 s84, s84, 7")
        A("s_add_u32 s84, s84, 0x60000")
        A(f"v_mov_b32 v{v.W}, s80")
        A(f"v_mov_b32 v{v.W+1}, s82")
        A("s_mov_b64 exec, 1")
        A(f"buffer_store_dwordx2 {vr(v.W,2)}, v0, {sr(sWS)}, s84 offen sc1")
        A("s_mov_b64 exec, -1")
        A("L_noamp:")
    pc = a + 8
    if cwait: A("s_waitcnt vmcnt(0)")
    A("L_cbar:")
    mk = 0x00030003 if c4 else 0x00ff00ff
    A(f"s_mov_b32 s4, {mk:#x}")
    A(f"s_mov_b32 s5, {mk:#x}")
    if c4 and cwait == 1: A("s_barrier")
    stamp(3, True)
    A("L_cpoll:")
    nl = 2 if c4 else 8
    for k in range(nl): A(f"buffer_load_dwordx4 {vr(pc+4*k,4)}, v{aPC}, {sr(sWS)}, {'s%d' % (8+(4*k if c4 else k)) if k else 0} offen sc1")
    for k in range(nl):
        A(f"s_waitcnt vmcnt({nl-1-k})")
        strip(pc + 4 * k, k == 0)
    check("L_cretry")
    A("s_mov_b64 exec, -1")
    stamp(8)
    for n_ in ((4,) if c4 else (16, 8, 4)):
        for r in range(n_): A(f"v_add_f32 v{pc+r}, v{pc+r}, v{pc+n_+r}")
    for r in range(2): A(f"v_permlane32_swap_b32 v{pc+r}, v{pc+2+r}")
    for r in range(2): A(f"v_add_f32 v{pc+r}, v{pc+r}, v{pc+2+r}")
    A(f"v_permlane16_swap_b32 v{pc}, v{pc+1}")
    A(f"v_add_f32 v{pc}, v{pc}, v{pc+1}")
    A(f"v_add_f32_dpp v{pc}, v{pc}, v{pc} row_ror:8 {DPPM}")
    if c4:
        A(f"v_add_f32_dpp v{pc}, v{pc}, v{pc} row_ror:4 {DPPM}")
        A(f"v_add_f32_dpp v{pc}, v{pc}, v{pc} quad_perm:[2,3,0,1] {DPPM}")
    A(f"v_cvt_pk_bf16_f32 v{pc}, v{pc}, v{pc}")
    A("s_mov_b64 exec, s[4:5]")
    A(f"buffer_store_short v{pc}, v{aOUT}, {sr(sOUT)}, 0 offen")
    A(f"s_or_b32 s4, s2, s{sWave}")
    A("s_cbranch_scc1 L_fin")
    A("s_mov_b64 exec, 1")
    A(f"v_mov_b32 v{pc+1}, s{sE}")
    A(f"buffer_store_dword v{pc+1}, v0, {sr(sWS)}, 0 offen sc1")
    if amp:
        A("s_memrealtime s[90:91]")
        A("L_amp1:")
        A("s_memrealtime s[98:99]")
        A("s_waitcnt lgkmcnt(0)")
        A("s_sub_u32 s98, s98, s80")
        A("s_cmp_lt_u32 s98, 9000")
        A("s_cbranch_scc1 L_amp1")
        A("s_mov_b64 exec, -1")
        A(f"v_lshlrev_b32 v{v.W}, 7, v0")
        A("s_mov_b32 s84, 0x60000")
        A(f"buffer_load_dwordx2 {vr(v.W+2,2)}, v{v.W}, {sr(sWS)}, s84 offen sc1")
        A("s_waitcnt vmcnt(0)")
        ka, xa, kb, xb, off = amp
        if ka == 2: A("s_mov_b32 s86, s90")
        else: A(f"v_readlane_b32 s86, v{v.W+2+ka}, {xa}")
        A(f"v_readlane_b32 s87, v{v.W+2+kb}, {xb}")
        A("s_nop 4")
        A("s_sub_u32 s86, s86, s87")
        A(f"s_sub_u32 s86, s86, {off}")
        A("s_mul_i32 s86, s86, 10")
        A("s_add_u32 s86, s86, 13000")
        A("s_max_i32 s86, s86, 9000")
        A("s_min_i32 s86, s86, 30000")
        A("L_amp2:")
        A("s_memrealtime s[98:99]")
        A("s_waitcnt lgkmcnt(0)")
        A("s_sub_u32 s98, s98, s80")
        A("s_cmp_lt_u32 s98, s86")
        A("s_cbranch_scc1 L_amp2")
    if probe:
        A("L_probe:")
        A("s_memrealtime s[98:99]")
        A("s_waitcnt lgkmcnt(0)")
        A("s_sub_u32 s98, s98, s100")
        A(f"s_cmp_lt_u32 s98, {probe}")
        A("s_cbranch_scc1 L_probe")
    A("L_fin:")
    if stamps:
        A("s_mov_b64 exec, 1")
        stamp(9)
        A("s_waitcnt lgkmcnt(0)")
        A(f"s_lshl_b32 s{sTmp}, s2, 2")
        A(f"s_add_u32 s{sTmp}, s{sTmp}, s{sWave}")
        A(f"s_lshl_b32 s{sTmp}, s{sTmp}, 6")
        A(f"s_add_u32 s{sTmp}, s{sTmp}, {WS_ST}")
        A("s_getreg_b32 s4, hwreg(HW_REG_XCC_ID)")
        A("s_getreg_b32 s5, hwreg(HW_REG_HW_ID)")
        b = v.buf
        for k in range(10): A(f"v_mov_b32 v{b+k}, s{sStamp+2*k}")
        A(f"v_mov_b32 v{b+10}, s4")
        A(f"v_mov_b32 v{b+11}, s5")
        A(f"v_mov_b32 v{b+12}, s{sSpin}")
        A(f"v_mov_b32 v{b+13}, s{sHi}")
        A(f"v_mov_b32 v{b+14}, s{sFast}")
        for k in range(4): A(f"buffer_store_dwordx4 {vr(b+4*k,4)}, v0, {sr(sWS)}, s{sTmp} offen offset:{16*k}")
    A("L_end:")
    A("s_endpgm")
    def spinchk():
        A(f"s_sub_u32 s{sSpin}, s{sSpin}, 1")
        A("s_cbranch_scc1 L_end")
    A("L_bretry:")
    spinchk()
    A("s_mov_b64 exec, vcc")
    A(f"s_cmp_lg_u32 s{sFast}, 0")
    A("s_cbranch_scc0 L_bretry_slow")
    bpoll("nt")
    A("s_branch L_bchk")
    if c4:
        A("L_cother:")
        A("s_cmp_ge_u32 s2, 32")
        A("s_cbranch_scc1 L_fin")
        A("s_branch L_cbar")
    A("L_cretry:")
    spinchk()
    A("s_mov_b64 exec, vcc")
    A("s_branch L_cpoll")
    A("L_bsel:")
    A(f"s_cmp_lg_u32 s{sFast}, 0")
    A("s_cbranch_scc1 L_bfirst")
    A("s_branch L_bslow")
    A("L_oslow:")
    A(f"buffer_store_dwordx4 {vr(oo,4)}, v{aSO}, {sr(sWS)}, s17 offen sc1")
    A("L_bslow:")
    stamp(6)
    if not bafter: bpoll("sc1")
    A("s_branch L_bmfa")
    if bafter:
        A("L_bp_slow:")
        bpoll("sc1")
        A("s_branch L_bp_back")
    A("L_bretry_slow:")
    bpoll("sc1")
    A("s_branch L_bchk")
    def mlld(fl): A(f"buffer_load_dwordx4 {vr(mlr,4)}, v{v.aML}, {sr(sWS)}, 0 offen {fl}")
    A("L_side:")
    if aearly:
        A(f"s_cmp_lg_u32 s{sPh}, 0")
        A("s_cbranch_scc0 L_side5")
        A(f"s_cmp_lg_u32 s{sFast}, 0")
        A("s_cbranch_scc0 L_lda_slow")
        oald("nt")
        A("L_lda_back:")
        A("s_branch L_side4")
        A("L_side5:")
    A("s_lshr_b32 s5, s2, 7")
    A("s_lshl_b32 s5, s5, 10")
    if aside and not aearly:
        A(f"s_cmp_lg_u32 s{sPh}, 0")
        A("s_cbranch_scc0 L_side0")
        if p2t == 1:
            A(f"v_lshrrev_b32 v{gx}, 2, v{aLO}")
            A(f"buffer_load_dword v{gx}, v{gx}, {sr(sWS)}, s16 offen")
        elif wot:
            A(f"s_lshl_b32 s5, s{sHkv}, 19")
            A("s_mov_b64 exec, 1")
            A(f"buffer_load_dword v{gx}, v0, {sr(sWO)}, s5 offen")
            A(f"buffer_load_dword v{gx+1}, v0, {sr(sWQ)}, s5 offen")
            A("s_mov_b64 exec, -1")
        elif obt:
            A(f"buffer_load_dword v{gx}, v{aSO}, {sr(sWS)}, s17 offen {tchflags}")
        else:
            A(f"buffer_load_dwordx4 {vr(gx,4)}, v{v.lin}, {sr(sX)}, s5 offen")
        if endthr: A(f"s_sub_u32 s{sThr}, s{sThr}, {endthr}")
        sta()
        A("s_branch L_side4")
        A("L_side0:")
    if wot: A(f"buffer_load_dwordx4 {vr(gx,4)}, v{v.lin}, {sr(sX)}, s5 offen")
    A(f"buffer_load_dwordx4 {vr(gx,4)}, v{v.lin}, {sr(sX)}, s5 offen")
    A(f"buffer_load_dwordx4 {vr(gx+4,4)}, v{v.lin}, {sr(sGW)}, 0 offen")
    A("L_side4:")
    A(f"s_cmp_lg_u32 s{sFast}, 0")
    A("s_cbranch_scc1 L_side1")
    mlld("sc1")
    A("s_branch L_sidebody")
    A("L_side1:")
    mlld("nt")
    A("L_sidebody:")
    assert itml < 15
    body("V", procV, whi if sidehi else waits, 6 if wot else 5)
    A("s_branch L_vloop")
    for nm, ld, back in (("ml", mlld, "L_mlchk"), ("oa", oald, "L_oachk")):
        A(f"L_{nm}retry:")
        spinchk()
        A(f"s_cmp_lg_u32 s{sFast}, 0")
        A(f"s_cbranch_scc0 L_{nm}retry_slow")
        ld("nt")
        A("s_waitcnt vmcnt(0)")
        A(f"s_branch {back}")
        A(f"L_{nm}retry_slow:")
        ld("sc1")
        A("s_waitcnt vmcnt(0)")
        A(f"s_branch {back}")
    A("; ---- far behind: refill every slot as soon as it is consumed ----")
    if turbo:
        for nm, kind, proc in (("k", "K", procK), ("v", "V", procV)):
            A(f"L_{nm}turbo:")
            free = 8 - P
            for k in range(free): issue(k, kind, k, loop=True)
            for k in range(8):
                issued_ = min(8, free + k)
                n = (P - 1 - k) + 2 + issued_ if k < P else issued_ - 1 - (k - P)
                A(f"s_waitcnt vmcnt({n})")
                mark = len(L)
                proc(16 + k - P, (k - P) & 7)
                if free + k < 8:
                    nm_ = 1 if kind == "K" else 2
                    rest = L[mark + nm_:]; del L[mark + nm_:]
                    issue(free + k, kind, free + k, loop=True)
                    L.extend(rest)
                if k == 7:
                    A(f"s_add_u32 s{sCnt}, s{sCnt}, 1")
                    sdep(sNo, sCnt, "n", 4, True, 4); xall and A(f"s_xor_b32 s{sNo}, s{sNo}, s{sXm}")
            A(f"s_cmp_lg_u32 s{sCnt}, 16")
            A(f"s_cbranch_scc1 L_{nm}loop")
            A(f"s_branch L_{nm}done")
    A("; ---- checkpoint: arrival rank of this XCD -> number of virtual neighbours ahead ----")
    for nm in ("k", "v"):
        A(f"L_{nm}ctl:")
        A("s_cmp_lg_u32 s5, 0")
        A(f"s_cbranch_scc1 L_{nm}ctl2")
        A(f"s_lshl_b32 s5, s{sJ}, 8")
        A(f"s_add_u32 s5, s5, {WS_C + 256:#x}")
        A(f"s_mov_b32 s{sRk}, 1")
        A(f"s_atomic_add s{sRk}, {sr(sWS,2)}, s5 glc")
        A(f"s_branch L_{nm}ctlb")
        A(f"L_{nm}ctl2:")
        A(f"s_lshl_b32 s5, s{sE}, 12")
        A("s_waitcnt lgkmcnt(0)")
        A(f"s_sub_u32 s{sRk}, s{sRk}, s5")
        A(f"s_cmp_ge_u32 s{sRk}, 8")
        A(f"s_cbranch_scc1 L_{nm}ctlb")
        A(f"s_lshl_b32 s{sRk}, s{sRk}, 2")
        A(f"s_lshr_b32 s{sRk}, {sum(x << (4*k) for k, x in enumerate(xtab)):#x}, s{sRk}")
        A(f"s_and_b32 s{sRk}, s{sRk}, 15")
        A(f"s_add_u32 s{sRk}, s{sRk}, 32")
        A("s_add_u32 s5, s5, 63")
        A(f"v_cmp_gt_u32 vcc, s{sRk}, v0")
        A(f"v_mov_b32 v{t+8}, s5")
        A(f"v_add_u32 v{t+11}, 0x800, v{t+8}")
        A(f"v_cndmask_b32 v{t+8}, v{t+11}, v{t+8}, vcc")
        A("s_mov_b32 exec_lo, 0")
        A(f"buffer_store_dword v{t+8}, v{v.br}, {sr(sWS)}, 0 offen")
        A("s_mov_b32 exec_lo, -1")
        A(f"s_branch L_{nm}ctlb")
    A("L_pubml:")
    mlread()
    A(f"v_lshl_add_u32 v{v.y0}, v{t+6}, 2, v{t+7}")
    A(f"s_and_b32 s4, s{sJ}, 15")
    A(f"v_cmp_eq_u32 vcc, s4, v{v.y0}")
    A("s_waitcnt lgkmcnt(0)")
    A(f"v_max3_f32 v{v.y0}, v{v.D}, v{v.D+2}, v{v.D+4}")
    A(f"v_max_f32 v{v.y0}, v{v.y0}, v{v.D+6}")
    A(f"v_mul_f32 v{v.y1}, s{sL2E}, v{v.y0}")
    for w in range(4): A(f"v_fma_f32 v{v.D+2*w}, v{v.D+2*w}, s{sL2E}, -v{v.y1}")
    for w in range(4): A(f"v_exp_f32 v{v.D+2*w}, v{v.D+2*w}")
    A(f"v_mul_f32 v{v.D+1}, v{v.D}, v{v.D+1}")
    for w in range(1, 4): A(f"v_fmac_f32 v{v.D+1}, v{v.D+2*w}, v{v.D+2*w+1}")
    A(f"v_or_b32 v{v.D}, s{sTag}, v{v.y0}")
    A(f"v_and_or_b32 v{v.D+1}, v{v.D+1}, v{c00}, s{sTag+1}")
    A(f"v_mov_b32 v{v.D+2}, s{sTag+2}")
    A(f"v_mov_b32 v{v.D+3}, s{sTag+3}")
    A("s_mov_b64 exec, vcc")
    A(f"s_cmp_lg_u32 s{sFast}, 0")
    A("s_cbranch_scc0 L_pubml_slow")
    A(f"buffer_store_dwordx4 {vr(v.D,4)}, v{v.aML}, {sr(sWS)}, 0 offen")
    A("s_mov_b64 exec, -1")
    A("s_branch L_vent")
    A("L_pubml_slow:")
    A(f"buffer_store_dwordx4 {vr(v.D,4)}, v{v.aML}, {sr(sWS)}, 0 offen sc1")
    A("s_mov_b64 exec, -1")
    A("s_branch L_vent")
    A("L_puba:")
    stageA(0, oA)
    if aearly: sta()
    A("s_branch L_vent")
    A("L_sta_slow:")
    A(f"buffer_store_dwordx4 {vr(oA,4)}, v{aSO}, {sr(sWS)}, 0 offen sc1")
    A("s_branch L_sta_back")
    A("L_lda_slow:")
    oald("sc1")
    A("s_branch L_lda_back")
    A("L_qslow:")
    A(f"s_cmp_lg_u32 s{sWave}, 0")
    A("s_cbranch_scc1 L_qretry")
    A(f"buffer_store_dword v{v.e0}, v{v.e1}, {sr(sWS)}, 0 offen sc1")
    A("L_qretry:")
    spinchk(); qpoll()
    A("s_waitcnt vmcnt(0)")
    qacc()
    A(f"v_and_b32 v{t+10}, 0x1fff, v{t+8}")
    A(f"v_cmp_ne_u32 vcc, 0, v{t+10}")
    A("s_cbranch_vccnz L_qretry")
    A(f"v_and_b32 v{t+10}, 0xe000, v{t+8}")
    A("L_last:")
    A(f"v_cmp_ne_u32 vcc, 0, v{t+10}")
    A("s_branch L_qok")
    code_ = []
    cnt = 0; npad = 0; on = False
    for ln in pad([x for x in L if x != "@PAD"]):
        isins = ln.startswith("    ")
        if warm and (("only warms" in (code_[-1] if code_ else "")) or (on and isins and cnt >= warm)):
            on = True; cnt = 0
            code_.append(f"L_pad{npad}:")
            code_.append(f"    s_cbranch_execz @T{npad}")
            npad += 1
        code_.append(ln)
        cnt += isins
    if warm and helper:
        for k in range(npad):
            tgt = "L_end" if k == npad - 1 else ("L_hbar" if k == hbar else f"L_pad{k+1}")
            code_ = [x.replace(f"@T{k}", tgt) if x.endswith(f"@T{k}") else x for x in code_]
        hb = ["L_hbar:"]
        if ht:
            hb += ["    s_mov_b64 exec, -1", "    s_waitcnt lgkmcnt(0)",
                   f"    s_mov_b32 s{sWS+2}, {WS_SZ:#x}", f"    s_mov_b32 s{sWS+3}, 0x20000",
                   "    s_and_b32 s4, s2, 7", "    s_lshr_b32 s5, s2, 3", "    v_lshlrev_b32 v1, 7, v0"]
            if ht & 8: hb += ["    s_barrier"]
            if ht & 1:
                hb += ["    s_lshr_b32 s6, s5, 4", "    s_lshl_b32 s6, s6, 3", "    s_add_u32 s6, s6, s4", "    s_lshl_b32 s6, s6, 4", "    s_and_b32 s7, s5, 15",
                       "    s_add_u32 s6, s6, s7", "    s_lshl_b32 s6, s6, 7", f"    s_add_u32 s6, s6, {WS_ML:#x}", "    s_mov_b64 exec, 1",
                       f"    buffer_load_dword v2, v1, {sr(sWS)}, s6 offen"]
            if ht & 2:
                hb += ["    s_lshl_b32 s6, s4, 5", "    s_add_u32 s6, s6, s5", "    s_lshl_b32 s6, s6, 11", f"    s_add_u32 s6, s6, {WS_O:#x}", "    s_add_u32 s7, s6, 0x80000",
                       "    s_mov_b64 exec, 0xffff", f"    buffer_load_dword v2, v1, {sr(sWS)}, s6 offen", f"    buffer_load_dword v3, v1, {sr(sWS)}, s7 offen"]
            if ht & 4:
                hb += ["    s_lshl_b32 s6, s2, 10", f"    s_add_u32 s6, s6, {WS_P2:#x}", "    s_mov_b64 exec, 0xff", f"    buffer_load_dword v4, v1, {sr(sWS)}, s6 offen"]
            if ht & 16:
                hb += ["    s_lshr_b32 s6, s5, 4", "    s_lshl_b32 s6, s6, 3", "    s_add_u32 s6, s6, s4", "    s_lshl_b32 s6, s6, 5", "    s_and_b32 s7, s5, 15",
                       "    s_add_u32 s6, s6, s7", "    s_lshl_b32 s6, s6, 7", f"    s_add_u32 s6, s6, {WS_Q:#x}", "    s_mov_b64 exec, 0x10001",
                       f"    buffer_load_dword v5, v1, {sr(sWS)}, s6 offen"]
            if wot:
                hb += [f"    s_mov_b32 s{sWO+2}, 0x400000", f"    s_mov_b32 s{sWO+3}, 0x20000", f"    s_mov_b32 s{sWQ}, s14", f"    s_mov_b32 s{sWQ+1}, s15",
                       f"    s_mov_b32 s{sWQ+2}, 0x400000", f"    s_mov_b32 s{sWQ+3}, 0x20000", "    s_lshl_b32 s6, s4, 19", "    s_mov_b64 exec, 1",
                       f"    buffer_load_dword v13, v1, {sr(sWO)}, s6 offen", f"    buffer_load_dword v14, v1, {sr(sWQ)}, s6 offen"]
            if ht & 64:
                hb += [f"    s_mov_b32 s{sGW}, s16", f"    s_mov_b32 s{sGW+1}, s17", f"    s_mov_b32 s{sGW+2}, 1024", f"    s_mov_b32 s{sGW+3}, 0x20000", "    s_mov_b64 exec, 0xff",
                       f"    buffer_load_dword v7, v1, {sr(sGW)}, 0 offen"]
            assert ht & 32
            if ht & 32:
                hb += [f"    s_load_dword s8, {sr(sWS,2)}, 0",
                       "    s_getreg_b32 s6, hwreg(HW_REG_XCC_ID)", "    s_and_b32 s6, s6, 7", "    s_lshl_b32 s6, s6, 12", f"    s_add_u32 s6, s6, {WS_B:#x}", "    s_mov_b64 exec, 3",
                       f"    buffer_load_dword v6, v1, {sr(sWS)}, s6 offen",
                       "    s_barrier", "    s_cmp_ge_u32 s2, 8", "    s_cbranch_scc1 L_hnoinit",
                       "    s_waitcnt vmcnt(0) lgkmcnt(0)", "    s_add_u32 s8, s8, 1", "    s_lshl_b32 s8, s8, 12", "    s_add_u32 s9, s8, 63",
                       "    s_mov_b32 exec_lo, -1", f"    v_cmp_gt_u32 vcc, {k0}, v0", "    v_mov_b32 v8, s9", "    v_add_u32 v9, 0x800, v8", "    v_lshlrev_b32 v10, 2, v0",
                       "    v_cndmask_b32 v8, v9, v8, vcc", f"    buffer_store_dword v8, v10, {sr(sWS)}, s6 offen offset:128",
                       "    s_cmp_lg_u32 s2, 0", "    s_cbranch_scc1 L_hnoinit",
                       "    v_mov_b32 v11, s8", "    v_lshlrev_b32 v12, 8, v0", f"    s_mov_b32 s7, {WS_C + 256:#x}", "    s_mov_b64 exec, 0x7fff",
                       f"    buffer_store_dword v11, v12, {sr(sWS)}, s7 offen sc1",
                       "L_hnoinit:"]
            hb += ["    s_mov_b64 exec, 0"]
        assert not ht & 8
        code_ += hb + [f"    s_branch L_pad{hbar+1}"]
    elif warm:
        i0 = code_.index("L_pad0:"); del code_[i0:i0+2]
        for k in range(1, npad):
            tgt = f"L_pad{k+4}" if k + 4 < npad else "L_wret"
            code_ = [x.replace(f"@T{k}", tgt) if x.endswith(f"@T{k}") else x for x in code_]
        for w in range(4): code_ = [x.replace(f"L_seg{w}", f"L_pad{w+1}") for x in code_]
    ref = open(os.path.join(os.path.dirname(os.path.abspath(__file__)), "header.txt")).read().rstrip("\n").split("\n")
    out = ref + [f"; @launch grid=(256,1,1) block=({320 if (warm and helper) else 256},1,1) lds={L_SZ}",
                 '.amdgcn_target "amdgcn-amd-amdhsa--gfx950"', ".text"] + DOC + [f".globl {KNAME}", ".p2align 8",
                 f".type {KNAME},@function"] + code_
    acc = (NV + 3) // 4 * 4
    out += ['.section .rodata,"a"', ".p2align 6", f".amdhsa_kernel {KNAME}",
            f"  .amdhsa_next_free_vgpr {NV}", "  .amdhsa_next_free_sgpr 102", f"  .amdhsa_accum_offset {acc}",
            "  .amdhsa_group_segment_fixed_size 0", "  .amdhsa_kernarg_size 112", "  .amdhsa_user_sgpr_count 2",
            "  .amdhsa_user_sgpr_kernarg_segment_ptr 1", "  .amdhsa_system_sgpr_workgroup_id_x 1",
            "  .amdhsa_float_denorm_mode_32 3", ".end_amdhsa_kernel"]
    return "\n".join(out) + "\n"

if __name__ == "__main__":
    kw = eval("dict(" + (sys.argv[1] if len(sys.argv) > 1 else "") + ")")
    sys.stdout.write(gen(**kw))
```

```python
import sys, os
sys.path.insert(0, os.path.dirname(os.path.abspath(__file__)))
from hz import pad

KNAME = "gated_mix__gqa_block_cached__gqa_block_cached__decode_kernel"
LOG2E = 0x3fb8aa3b
SCALE = 0x3db504f3

WS_Q  = 0x10000
WS_ML = 0x30000
WS_B  = 0x40000
WS_C  = 0x50000
WS_O  = 0x100000
WS_P2 = 0x80000
WS_ST = 0x300000
WS_SZ = 0x400000
L_T, L_O, L_M, L_P, L_SZ = 0, 32768, 49152, 53248, 57344
DPPM = "row_mask:0xf bank_mask:0xf"
PAT1 = "k0 s0 k1 s1 w0 g0 s3 s2 g1 n3 w1 n1 n2 n0 k2"


DOC = """
; ---------------------------------------------------------------------------------------------------------
; out = g*Attn_A(x) + (1-g)*Attn_B(x), one fused launch, 256 workgroups (one per CU) x 4 streaming waves.
; workgroup w: kv head hkv = w&7, j = w>>3 = (batch b, split s of 16); the 32 workgroups with equal hkv form a "set".
;
; 1. q projection: each workgroup computes 32 columns of x@wq (both batches), rounds to bf16 and hands them to
;    its set. K loads already stream into a register backlog meanwhile.
; 2. four streaming phases K_A, V_A, K_B, V_B (one array at a time chip-wide, keys visited in a DRAM friendly
;    permutation, about five 1-KiB loads in flight per wave, data goes straight from HBM into MFMA operands):
;      K phase: scores = bf16(bf16(q.k)*Dh^-0.5) -> LDS, running max / sum of exp per lane
;      V phase: p = exp(score - max of this wave's keys) (exact max), O += p*V
;    (max, sum) of every workgroup are exchanged inside the set during the V phase.
; 3. tail: partial O * g * exp(m-M)/L -> set; every workgroup adds 16 splits, rounds o to bf16 and multiplies
;    with a 64x128 tile of wo_A and of wo_B; 32 workgroups add the 64 partial rows and store bf16.
;
; Hand-offs through d_ws are self-validating: the low bits of every dword carry a tag derived from an epoch word
; (d_ws[0], read on entry, incremented once at the end), so words left by the harness or an earlier launch are
; never taken for this launch's data. Tags are removed before use: results do not depend on d_ws contents.
; Hand-offs inside a set use the XCD's L2 (plain stores, L1-bypassing loads) only if all 32 workgroups reported
; the same XCC id together with their q columns; under any other placement device-scope (sc1) stores and loads are used.
; The last hand-off is always device scope.
; Load balancing (speed hints only, tagged, set up inside the launch; no result depends on them, nothing ever waits on them):
; a per-XCD line holds the loop counters of the workgroups on that XCD; a wave that finds most neighbours ahead keeps six
; loads in flight instead of five for one iteration (up to eight when a whole iteration behind). At 13 checkpoints one wave
; per XCD draws an arrival rank from a counter; a late XCD gets more "virtual" neighbours ahead, i.e. prefetches deeper.
; Wave 4 is a warm-up wave: it walks the code once with EXEC = 0 (pad to pad, branching around everything) to fill the
; instruction cache, loads (and drops) one dword of the few small lines needed mid-stream, sets the start values of the
; load-balancing hints and exits.
; ---------------------------------------------------------------------------------------------------------
""".strip().split("\n")

def gen(NPL=40, waits=(4,)*8, whi=(5,)*8, wepi=None, R=3, XB=2, XT=2, P0=3, pollak=-1, tlb=2, cpf=1, wosw=1, XQ=0, wcat=(5,)*8, warm=96, hbar=3, helper=1, cpfe=0, c4=1, cwait=1, p2t=0, obt=0, sti=(16, 24, 32), KF=0, KM=0, qt=0, endthr=0, sidehi=0, bpw=None, wolate=0, mlt=0, ht=113, wqp=0, wqf1=None, KI=0, cps=(2,6,10,14,18,21,25,29,33,36,40,44,48), xtab=(2,2,3,4,5,7,9,12), k0=4, cw=3, woil=0, obe=0, pafirst=0, wot=0, woe=0, tlo=None, wmin=(3,)*8, turbo=8, xh=0, xs=0, ksat=15, xlate=0, efl='', ofl='', outfl='', wb=0, qloc=1, lasthi=0, CU=16, bafter=1, aside=1, run64=2, aearly=0, thr=(28, 33), wpro=None, wkv=None, pat=PAT1,
        wqflags="nt", woflags="nt", kvflags="nt", tchflags="nt", fast=1, touch=0, woburst=0, itml=12, wqfirst=0, wodelay=0, wvk=None,
        stamps=False, tst=False, spin=1 << 22, cut=0, probe=0, amp=None, ampat=5):
    P = max(max(waits), max(whi)) + 1
    if wepi is None: wepi = (P - 1,) * 8
    assert run64 == 2 and NPL % 8 == 0 and P + XT <= 8 and 5 <= P <= 6
    pos = {n: 8 + i for i, n in enumerate(pat.split())}
    assert len(pos) == 15
    def dep(c, val, nb): return sum(((val >> i) & 1) << pos[f"{c}{i}"] for i in range(nb))
    L = []
    def A(s): L.append(s)
    class V: pass
    v = V(); nv = [0]
    def valloc(name, n=1, al=1):
        nv[0] = (nv[0] + al - 1) // al * al
        setattr(v, name, nv[0]); nv[0] += n
    for nm in ("tid", "koff", "voff", "lin", "mask0", "mask1"): valloc(nm)
    valloc("T", 2, 2); valloc("TV", 2, 2)
    valloc("m", 2, 2); v.l = v.m + 1
    for nm in ("ta", "mL", "e0", "e1", "e2", "y0", "y1", "z", "p", "pd", "bw", "br", "bv", "bl", "aML", "c00"): valloc(nm)
    valloc("q", 4, 2); valloc("qB", 4, 2); valloc("acc", 8, 2); valloc("D", 8, 2)
    valloc("W", 18, 2)
    valloc("t", 12, 2)
    valloc("buf", max(4 * NPL, 160), 4)
    NV = nv[0]
    assert NV <= 256, NV
    def vr(a, n): return f"v[{a}:{a+n-1}]"
    wqr = v.buf + max(4 * NPL, 160) - 32
    xr = wqr - 16
    wor = v.buf + 32
    gx = v.buf + 64
    sb = v.buf + 72
    mlr = v.buf + 80
    (aWO, aLO, aSO, aPO, aPC, aOUT, gA, gB, F) = range(v.buf + 84, v.buf + 93)
    aLP = aLO
    c00 = v.c00
    bA = v.buf + 96
    oA = v.buf + 112
    aBP = v.buf + 116
    a = v.buf + 118
    assert a + 42 <= NV
    sK, sV, sWQ, sWO, sWS, sX, sGW, sOUT = 20, 24, 28, 32, 36, 40, 44, 48
    sWave, sOff, sCnt, sE, sL2E, sTmp, sTmp2, sSpin, sPh = 3, 52, 53, 54, 55, 56, 57, 58, 59
    sQ1, sQ2, sQ3 = 60, 62, 64
    sHi, sFast = 66, 67
    sTag, sTag16, sNo, sN, sThr = 68, 72, 73, 74, 75
    sKB = 76
    sHkv, sJ = 6, 7
    sQT = 96
    sStamp = 80
    def sr(a, n=4): return f"s[{a}:{a+n-1}]"
    def stamp3(k):
        if amp and ampat == 10 + k: A("s_memrealtime s[82:83]")
        if stamps and tst == 3: A(f"s_memrealtime s[{sStamp+2*k}:{sStamp+2*k+1}]")
    def stamp4(ka, kb):
        if stamps and tst == 4:
            n_ = len(L)
            A(f"s_cmp_lg_u32 s{sPh}, 0")
            A(f"s_cbranch_scc1 L_st{n_}")
            A(f"s_memrealtime s[{sStamp+2*ka}:{sStamp+2*ka+1}]")
            A(f"L_st{n_}:")
            A(f"s_memrealtime s[{sStamp+2*kb}:{sStamp+2*kb+1}]")
    def stamp(k, tail=False):
        if amp and k == ampat and not tail: A("s_memrealtime s[82:83]")
        if tst in (3, 4) and k in (6, 7, 8): return
        if stamps and (k not in (1, 2, 3, 4) or tail == tst or (tst == 2 and tail is True and k in (1, 4))): A(f"s_memrealtime s[{sStamp+2*k}:{sStamp+2*k+1}]")
    def sdep(dst, src, c, nb, first, tmp):
        groups = {}
        for i in range(nb): groups.setdefault(pos[f"{c}{i}"] - i, []).append(i)
        for sh, bits in groups.items():
            d = dst if first else tmp
            A(f"s_and_b32 s{d}, s{src}, {sum(1 << i for i in bits)}")
            A(f"s_lshl_b32 s{d}, s{d}, {sh}")
            if not first: A(f"s_add_u32 s{dst}, s{dst}, s{tmp}")
            first = False

    A(f"{KNAME}:")
    A("s_cmp_ge_u32 s2, 256")
    A("s_cbranch_scc1 L_end")
    stamp(0)
    if probe: A("s_memrealtime s[100:101]")
    if amp: A("s_memrealtime s[80:81]")
    A("s_load_dwordx8 s[60:67], s[0:1], 8")
    A("s_load_dwordx8 s[12:19], s[0:1], 64")
    A(f"s_load_dwordx2 {sr(sX,2)}, s[0:1], 0")
    A(f"s_load_dwordx2 {sr(sWS,2)}, s[0:1], 104")
    A(f"s_load_dwordx4 {sr(sKB)}, s[0:1], 48       ; K_B, V_B")
    t = v.t
    A(f"v_lshrrev_b32 v{t}, 6, v0")
    A(f"v_and_b32 v0, 63, v0")
    A(f"v_readfirstlane_b32 s{sWave}, v{t}")
    if cpfe:
        A("s_getpc_b64 s[84:85]")
        A("L_pc:")
        A(f"s_sub_u32 s84, s84, L_pc-{KNAME}")
        A("s_subb_u32 s85, s85, 0")
        A("s_lshr_b32 s86, s2, 3")
        A("s_lshl_b32 s86, s86, 2")
        A(f"s_add_u32 s86, s86, s{sWave}")
        A("s_lshl_b32 s86, s86, 7")
        A(f"s_min_u32 s86, s86, L_last-{KNAME}")
        if cpfe == 1: A("s_load_dword s87, s[84:85], s86")
    if warm and helper:
        A(f"v_cmp_gt_u32 vcc, 4, v{t}")
        A("s_mov_b64 exec, vcc                         ; wave 4 only warms caches: EXEC = 0, hops pad to pad")
        A("@PAD")
    A(f"v_lshrrev_b32 v{t+1}, 3, v0")
    A(f"v_lshl_add_u32 v{t+2}, v{t}, 3, v{t+1}")
    A(f"v_and_b32 v{t+3}, 7, v0")
    A(f"v_lshlrev_b32 v{t+3}, 3, v{t+3}")
    A(f"v_lshl_add_u32 v{t+3}, v{t+2}, 17, v{t+3}")
    xset = [f"v_bfe_u32 v{t+4}, v0, 2, 1", f"v_lshlrev_b32 v{t+8}, 10, v{t+4}", f"v_lshl_add_u32 v{t+8}, v{t+2}, 5, v{t+8}",
            f"s_movk_i32 s{sX+2}, 0x800", f"s_mov_b32 s{sX+3}, 0x20000"]
    if not xlate: L.extend(xset); xset = []
    A(f"s_and_b32 s{sHkv}, s2, 7")
    A(f"s_lshr_b32 s{sJ}, s2, 3")
    A(f"s_and_b32 s{sTmp}, s{sJ}, 15")
    A(f"s_lshl_b32 s{sTmp}, s{sTmp}, 6")
    A(f"s_lshl_b32 s{sTmp2}, s{sHkv}, 10")
    A(f"s_add_u32 s{sTmp}, s{sTmp}, s{sTmp2}")
    A(f"s_mov_b32 s{sWQ+2}, 0x400000")
    A(f"s_mov_b32 s{sWQ+3}, 0x20000")
    mark_k = len(L)
    A(f"s_lshr_b32 s{sTmp2}, s2, 7")
    A(f"s_lshl_b32 s{sTmp2}, s{sTmp2}, 3")
    A(f"s_add_u32 s{sTmp2}, s{sTmp2}, s{sHkv}")
    A(f"s_lshl_b32 s{sTmp2}, s{sTmp2}, 23")
    A(f"s_mov_b32 s{sK+2}, 0x800000")
    A(f"s_mov_b32 s{sK+3}, 0x20000")
    sdep(sNo, sWave, "w", 2, True, sCnt)
    sdep(sNo, sJ, "s", 4, False, sCnt)
    A(f"v_bfe_u32 v{t+5}, v0, 2, 2")
    A(f"v_lshrrev_b32 v{t+6}, 4, v0")
    A(f"v_and_b32 v{t+7}, 3, v0")
    A(f"v_lshlrev_b32 v{v.lin}, 4, v0")
    A(f"v_lshl_add_u32 v{v.koff}, v{t+6}, 6, s{sNo}")
    A(f"v_lshl_add_u32 v{v.koff}, v{t+7}, 4, v{v.koff}")
    A(f"v_lshl_add_u32 v{v.koff}, v{t+4}, {pos['g0']}, v{v.koff}")
    A(f"v_bfe_u32 v{t+9}, v0, 3, 1")
    A(f"v_lshl_add_u32 v{v.koff}, v{t+9}, {pos['g1']}, v{v.koff}")
    last = [None]
    sXm = 100
    xm = [dep("k", m_ & 7, 3) + dep("n", (m_ >> 3) & 15, 4) for m_ in [(xh >> (7*i)) & 127 for i in range(4)] + [(xs >> (7*i)) & 127 for i in range(4)]]
    xall = 0
    for m_ in xm: xall |= m_
    if xall:
        assert tlb < 3 and p2t != 2
        A(f"s_mov_b32 s{sXm}, 0")
        for i_, m_ in enumerate(xm):
            if m_:
                A(f"s_bitcmp1_b32 s2, {(0, 1, 2, 7, 3, 4, 5, 6)[i_]}")
                A(f"s_cselect_b32 s{sCnt}, {m_:#x}, 0")
                A(f"s_xor_b32 s{sXm}, s{sXm}, s{sCnt}")
    def issue(i, kind, sl, loop=False):
        kd = dep("k", i & 7, 3)
        c = kd if loop else kd + dep("n", i >> 3, 4)
        imm = c & 0xfff & ~xall
        hi = c ^ imm
        if loop:
            if hi == 0: so = f"s{sNo}"
            else:
                if last[0] != ("l", hi): A(f"s_xor_b32 s{sOff}, s{sNo}, {hi:#x}")
                last[0] = ("l", hi); so = f"s{sOff}"
        else:
            if hi == 0: so = f"s{sXm}" if xall else "0"
            else:
                if last[0] != ("c", hi): A(f"s_xor_b32 s{sOff}, s{sXm}, {hi:#x}" if xall else f"s_mov_b32 s{sOff}, {hi:#x}")
                last[0] = ("c", hi); so = f"s{sOff}"
        if i & 7 == 7: last[0] = None
        off = f" offset:{imm}" if imm else ""
        r = v.buf + 4 * sl
        if kind == "K": A(f"buffer_load_dwordx4 {vr(r,4)}, v{v.koff}, {sr(sK)}, {so} offen{off} {kvflags}")
        else:           A(f"buffer_load_dwordx4 {vr(r,4)}, v{v.voff}, {sr(sV)}, {so} offen{off} {kvflags}")
    kset = L[mark_k:]; del L[mark_k:]
    A("s_cmp_ge_u32 s2, 128")
    A("s_waitcnt lgkmcnt(0)")
    A(f"s_cselect_b64 {sr(sWQ,2)}, s[12:13], s[64:65]")
    assert KF == 0 and KM == 0 and KI == 0
    stamp3(1)
    if cpfe == 2: A("s_load_dword s87, s[84:85], s86")
    seq = []
    ik = KF
    if wqp:
        A(f"s_and_b32 s4, s{sJ}, 1")
        A("s_lshl_b32 s5, s4, 16")
        A(f"s_add_u32 s{sTmp}, s{sTmp}, s5")
        A(f"s_xor_b32 s{sCnt}, s{sTmp}, 0x10000")
        A("s_lshl_b32 s4, s4, 4")
        A("s_xor_b32 s5, s4, 16")
        A(f"buffer_load_dwordx4 {vr(xr,4)}, v{t+8}, {sr(sX)}, s4 offen")
        A(f"buffer_load_dwordx4 {vr(xr+4,4)}, v{t+8}, {sr(sX)}, s5 offen")
    for tt in range(16):
        if tt == xlate and not wqp:
            L.extend(xset)
            A(f"buffer_load_dwordx4 {vr(xr,4)}, v{t+8}, {sr(sX)}, 0 offen")
            A(f"buffer_load_dwordx4 {vr(xr+4,4)}, v{t+8}, {sr(sX)}, 0 offen offset:16")
            seq += ["x", "x1"]
        if tt == 2: A(f"s_load_dword s{sE}, {sr(sWS,2)}, 0           ; epoch")
        if tt >= 8 and KI and (tt - 8) % KI == 0:
            issue(ik, "K", ik); ik += 1; seq.append("k")
        so = sCnt if (wqp and tt >= 8) else sTmp
        fl = wqf1 if (wqf1 is not None and tt < 8) else wqflags
        A(f"buffer_load_dwordx2 {vr(wqr+2*tt,2)}, v{t+3}, {sr(sWQ)}, s{so} offen {fl}")
        seq.append(tt)
        if tt < 15: A(f"s_addk_i32 s{so}, 0x2000")
        if tt == ksat: L.extend(kset)
        if tt == 7:
            for k in range(KM):
                issue(ik, "K", ik); ik += 1; seq.append("k")
    assert wqfirst <= 2
    A(f"s_mov_b32 s{sWQ}, s14                      ; this descriptor now serves wo_B")
    A(f"s_mov_b32 s{sWQ+1}, s15")
    if qt:
        A(f"s_lshr_b32 s{sTmp}, s2, 7")
        A(f"s_lshl_b32 s{sTmp}, s{sTmp}, 3")
        A(f"s_add_u32 s{sTmp}, s{sTmp}, s{sHkv}")
        A(f"s_lshl_b32 s{sTmp}, s{sTmp}, 1")
        A(f"s_and_b32 s4, s{sWave}, 1")
        A(f"s_add_u32 s{sTmp}, s{sTmp}, s4")
        A(f"s_lshl_b32 s{sTmp}, s{sTmp}, 4")
        A(f"s_and_b32 s4, s{sJ}, 15")
        A(f"s_add_u32 s{sTmp}, s{sTmp}, s4")
        A(f"s_lshl_b32 s{sTmp}, s{sTmp}, 7")
        A(f"s_add_u32 s{sTmp}, s{sTmp}, {WS_Q:#x}")
        A(f"s_load_dword s101, {sr(sWS,2)}, s{sTmp}")
    A(f"s_add_u32 s{sK}, s60, s{sTmp2}")
    A(f"s_addc_u32 s{sK+1}, s61, 0")
    for k in range(ik, ik + P0): issue(k, "K", k)
    A(f"v_and_b32 v{v.voff}, 0xff, v{v.lin}")
    A(f"v_add_u32 v{v.voff}, s{sNo}, v{v.voff}")
    A(f"v_bfe_u32 v{t+8}, v0, 4, 1")
    A(f"v_lshl_add_u32 v{v.voff}, v{t+8}, {pos['g0']}, v{v.voff}")
    A(f"v_lshrrev_b32 v{t+8}, 5, v0")
    A(f"v_lshl_add_u32 v{v.voff}, v{t+8}, {pos['g1']}, v{v.voff}")
    A(f"s_add_u32 s{sV}, s62, s{sTmp2}")
    A(f"s_addc_u32 s{sV+1}, s63, 0")
    A(f"s_add_u32 s{sKB}, s{sKB}, s{sTmp2}")
    A(f"s_addc_u32 s{sKB+1}, s{sKB+1}, 0")
    A(f"s_add_u32 s{sKB+2}, s{sKB+2}, s{sTmp2}")
    A(f"s_addc_u32 s{sKB+3}, s{sKB+3}, 0")
    sel = xr + 8; bq = xr + 12
    for s_, b0, n_ in ((sV, None, 0x800000), (sWS, None, WS_SZ), (sWO, 66, 0x400000), (sGW, 16, 1024), (sOUT, 18, 2048)):
        if b0 is not None:
            A(f"s_mov_b32 s{s_}, s{b0}")
            A(f"s_mov_b32 s{s_+1}, s{b0+1}")
        A(f"s_mov_b32 s{s_+2}, {n_:#x}")
        A(f"s_mov_b32 s{s_+3}, 0x20000")
    A(f"s_mov_b32 s{sL2E}, {LOG2E:#x}")
    A(f"s_mov_b32 s{sPh}, 0")
    for k, s in ((1, sQ1), (2, sQ2), (3, sQ3)):
        A(f"s_mov_b32 s{s}, {0x11111111 << k:#x}")
        A(f"s_mov_b32 s{s+1}, {0x11111111 << k:#x}")
    A(f"v_mov_b32 v{t+8}, 0xffff")
    A(f"v_mov_b32 v{t+9}, 0xffff0000")
    A(f"v_cndmask_b32 v{v.mask1}, 0, v{t+8}, {sr(sQ2,2)}")
    A(f"v_cndmask_b32 v{v.mask1}, v{v.mask1}, v{t+9}, {sr(sQ3,2)}")
    A(f"v_cndmask_b32 v{v.mask0}, v{t+8}, v{t+9}, {sr(sQ1,2)}")
    A(f"v_cmp_gt_u32 vcc, 2, v{t+7}")
    A(f"v_cndmask_b32 v{v.mask0}, 0, v{v.mask0}, vcc")
    A(f"s_mov_b32 s{sTmp}, 0x01000100")
    A(f"s_mov_b32 s{sTmp2}, 0x03020302")
    A(f"v_mov_b32 v{t+8}, 0x0c0c0c0c")
    A(f"v_bfi_b32 v{sel}, v{v.mask0}, s{sTmp}, v{t+8}")
    A(f"v_bfi_b32 v{sel+1}, v{v.mask1}, s{sTmp}, v{t+8}")
    A(f"v_bfi_b32 v{sel+2}, v{v.mask0}, s{sTmp2}, v{t+8}")
    A(f"v_bfi_b32 v{sel+3}, v{v.mask1}, s{sTmp2}, v{t+8}")
    for k in range(18):
        if k % 4 < 2: A(f"v_mov_b32 v{v.W+k}, 0")
    A(f"v_mov_b32 v{v.m}, 0xff800000")
    A(f"v_mov_b32 v{v.l}, 0")
    A(f"v_mov_b32 v{v.e1}, 0x7ffffff0")
    A(f"v_lshlrev_b32 v{v.ta}, 3, v0")
    A(f"v_lshl_add_u32 v{v.ta}, v{t}, 13, v{v.ta}")
    A(f"v_lshl_add_u32 v{t+8}, v{t}, 10, v{v.lin}")
    A("s_getreg_b32 s8, hwreg(HW_REG_XCC_ID)")
    A("s_and_b32 s8, s8, 7")
    if warm and not helper:
        A("s_mov_b64 exec, 0")
        for w in range(1, 4):
            A(f"s_cmp_eq_u32 s{sWave}, {w}")
            A(f"s_cbranch_scc1 L_seg{w}")
        A("s_branch L_seg0")
        A("L_wret:")
        A("s_mov_b64 exec, -1                          ; only warms")
    i = ik + P0
    for m in range(8):
        A(f"s_waitcnt vmcnt({len(seq) - 1 - max(seq.index(2*m + 1), seq.index('x1')) + i - ik})")
        if m == 0: stamp3(2)
        if m == 7: stamp3(3)
        if m >= 8 - (max(waits) + 1) + P0:
            issue(i, "K", i); i += 1
        for k in range(4):
            A(f"v_perm_b32 v{bq+k}, v{xr+m}, v{xr+m}, v{sel+k}")
        c = "0" if m == 0 else vr(v.D, 4)
        A(f"v_mfma_f32_16x16x32_bf16 {vr(v.D,4)}, {vr(wqr+4*m,4)}, {vr(bq,4)}, {c}")
    stamp(1)
    for k in range(XB):
        issue(i, "K", i); i += 1
    A(f"ds_write_b128 v{t+8}, {vr(v.D,4)} offset:{L_P}")
    A(f"v_bfe_u32 v{t+9}, v0, 4, 1")
    A(f"v_lshlrev_b32 v{t+9}, 8, v{t+9}")
    A(f"v_lshrrev_b32 v{t+10}, 5, v0")
    A(f"v_lshl_add_u32 v{t+9}, v{t+10}, 6, v{t+9}")
    A(f"v_lshl_add_u32 v{t+9}, v{t+7}, 4, v{t+9}")
    A(f"v_lshl_add_u32 v{t+9}, v{t+5}, 2, v{t+9}")
    A("s_waitcnt lgkmcnt(0)")
    A("s_barrier")
    A(f"s_add_u32 s{sE}, s{sE}, 1")
    A(f"s_cmp_lg_u32 s{sWave}, 0")
    A("s_cbranch_scc1 L_nopub")
    qr = wqr
    for w in range(4):
        for r1 in range(2):
            A(f"ds_read_b32 v{qr+2*w+r1}, v{t+9} offset:{L_P + 1024*w + 640*r1}")
    A(f"s_lshr_b32 s{sTmp}, s2, 7")
    A(f"s_lshl_b32 s{sTmp}, s{sTmp}, 3")
    A(f"s_add_u32 s{sTmp}, s{sTmp}, s{sHkv}")
    A(f"s_lshl_b32 s{sTmp}, s{sTmp}, 12")
    A(f"s_and_b32 s{sTmp2}, s{sJ}, 15")
    A(f"s_lshl_b32 s{sTmp2}, s{sTmp2}, 7")
    A(f"s_add_u32 s{sTmp}, s{sTmp}, s{sTmp2}")
    A(f"s_add_u32 s{sTmp}, s{sTmp}, {WS_Q:#x}")
    A(f"v_and_b32 v{t+11}, 31, v0")
    A(f"v_lshlrev_b32 v{t+11}, 2, v{t+11}")
    A(f"v_lshl_add_u32 v{t+11}, v{t+10}, 11, v{t+11}")
    A(f"v_mad_u32_u24 v{t+10}, v{t+7}, 37, s{sE}")
    A(f"v_and_b32 v{t+10}, 0x1fff, v{t+10}")
    A(f"v_lshl_or_b32 v{t+10}, s8, 13, v{t+10}")
    A("s_waitcnt lgkmcnt(0)")
    for k in range(4): A(f"v_add_f32 v{qr+k}, v{qr+k}, v{qr+4+k}")
    A(f"v_add_f32 v{qr}, v{qr}, v{qr+2}")
    A(f"v_add_f32 v{qr+1}, v{qr+1}, v{qr+3}")
    A(f"v_add_f32 v{qr}, v{qr}, v{qr+1}")
    A(f"v_cvt_pk_bf16_f32 v{qr}, 0, v{qr}")
    A(f"v_or_b32 v{v.e0}, v{t+10}, v{qr}")
    A(f"v_add_u32 v{v.e1}, s{sTmp}, v{t+11}")
    A(f"buffer_store_dword v{v.e0}, v{v.e1}, {sr(sWS)}, 0 offen{'' if qloc else ' sc1'}")
    A("L_nopub:")
    stamp(2)
    misc = []
    M_ = misc.append
    for k in range(4):
        M_(f"s_add_u32 s{sTag+k}, s{sE}, {37*k}")
        M_(f"s_and_b32 s{sQT+k}, s{sTag+k}, 0x1fff")
        M_(f"s_and_b32 s{sTag+k}, s{sTag+k}, 0xff")
        M_(f"s_lshl_b32 s4, s8, 13")
        M_(f"s_or_b32 s{sQT+k}, s{sQT+k}, s4")
    M_(f"v_lshl_add_u32 v{t+9}, v{t+5}, 2, v{t+6}")
    M_(f"v_lshlrev_b32 v{t+9}, 7, v{t+9}")
    M_(f"v_lshl_add_u32 v{t+9}, v{t+7}, 5, v{t+9}")
    M_(f"s_lshl_b32 s{sTmp}, s{sHkv}, 1")
    M_(f"s_lshr_b32 s{sTmp2}, s2, 7")
    M_(f"s_add_u32 s{sTmp}, s{sTmp}, s{sTmp2}")
    M_(f"s_lshl_b32 s{sTmp}, s{sTmp}, 11")
    M_(f"s_add_u32 s{sTmp}, s{sTmp}, {WS_Q:#x}")
    M_(f"s_add_u32 s{sTmp2}, s{sTmp}, 32768")
    M_(f"s_mov_b32 s{sSpin}, {spin}")
    if tlb:
        M_(f"s_lshl_b32 s9, s{sWave}, 21")
        M_(f"s_load_dword s10, {sr(sV,2)}, s9")
        M_(f"s_load_dword s11, {sr(sKB,2)}, s9")
        M_(f"s_load_dword s12, {sr(sKB+2,2)}, s9")
        M_(f"s_lshl_b32 s13, s{sHkv}, 19")
        M_(f"s_load_dword s14, {sr(sWO,2)}, s13")
        M_(f"s_load_dword s15, {sr(sWQ,2)}, s13")
        if tlb > 1: M_(f"s_load_dword s16, {sr(sK,2)}, s9")
        if tlb > 2:
            M_(f"s_lshl_b32 s100, s{sJ}, 5")
            M_(f"s_load_dword s100, {sr(sGW,2)}, s100")
        if tlb > 3: M_(f"s_load_dword s101, {sr(sOUT,2)}, 0")
    if cpf and not cpfe:
        M_("s_getpc_b64 s[18:19]")
        M_("L_pc:")
        M_(f"s_sub_u32 s18, s18, L_pc-{KNAME}")
        M_("s_subb_u32 s19, s19, 0")
        M_(f"s_lshl_b32 s17, s{sJ}, 2")
        M_(f"s_add_u32 s17, s17, s{sWave}")
        M_("s_lshl_b32 s17, s17, 7")
        M_(f"s_min_u32 s17, s17, L_last-{KNAME}")
        M_("s_load_dword s17, s[18:19], s17")
    t8 = tuple(thr) * (8 // len(thr))
    M_("s_lshl_b32 s4, s8, 2")
    M_(f"s_lshr_b32 s4, {sum((x - 20) << (4*k) for k, x in enumerate(t8)):#x}, s4")
    M_("s_and_b32 s4, s4, 15")
    M_(f"s_add_u32 s{sThr}, s4, 20")
    sTlo = 19
    if tlo:
        assert tlb < 3
        M_("s_bitcmp1_b32 s8, 0")
        M_(f"s_cselect_b32 s{sTlo}, {tlo[1]}, {tlo[0]}")
    M_("s_lshl_b32 s4, s8, 12")
    M_(f"s_add_u32 s4, s4, {WS_B:#x}")
    M_(f"v_lshl_add_u32 v{v.br}, v0, 2, s4")
    M_(f"v_mov_b32 v{v.bl}, 0x7ffffff0")
    M_(f"s_lshl_b32 s5, s{sWave}, 6")
    M_(f"s_add_u32 s5, s5, s{sJ}")
    M_(f"v_cmp_eq_u32 vcc, s5, v0")
    M_(f"s_lshl_b32 s{sN}, s{sE}, 12")
    M_(f"s_mov_b32 s{sHi}, 0")
    M_(f"v_cndmask_b32 v{v.bw}, v{v.bl}, v{v.br}, vcc")
    M_(f"v_add_u32 v{v.bl}, s{sN}, v{v.bl}")
    sCk, sRk = sTag16, 101
    assert len(cps) <= 15 and max(cps) < 52
    lo = sum(c << (6*k) for k, c in enumerate(cps[:10])); hi = sum(c << (6*k) for k, c in enumerate(cps[10:]))
    M_(f"s_mov_b32 s4, {lo & 0xffffffff:#x}")
    M_(f"s_mov_b32 s5, {lo >> 32:#x}")
    M_(f"s_mul_i32 s{sCk}, s{sJ}, 6")
    M_(f"s_lshr_b64 s[4:5], s[4:5], s{sCk}")
    M_(f"s_sub_u32 s{sCk}, s{sCk}, 60")
    M_(f"s_lshr_b32 s5, {hi:#x}, s{sCk}")
    M_(f"s_cmp_lt_u32 s{sJ}, 10")
    M_("s_cselect_b32 s4, s4, s5")
    M_("s_and_b32 s4, s4, 63")
    M_(f"s_xor_b32 s5, s{sWave}, {cw}")
    M_("s_lshl_b32 s5, s5, 5")
    M_(f"s_add_u32 s5, s5, s{sJ}")
    M_(f"s_cmp_lt_u32 s5, {len(cps)}")
    M_("s_cselect_b32 s4, s4, 0x400")
    M_(f"s_add_u32 s{sCk}, s{sN}, s4")
    M_(f"s_lshl_b32 s4, s{sHkv}, 11")
    M_(f"s_lshr_b32 s5, s2, 7")
    M_("s_lshl_b32 s5, s5, 10")
    M_("s_add_u32 s4, s4, s5")
    M_(f"s_add_u32 s4, s4, {WS_ML:#x}")
    M_(f"v_add_u32 v{v.aML}, s4, v{v.lin}")
    if mlt:
        M_(f"s_and_b32 s5, s{sJ}, 1")
        M_("s_lshl_b32 s5, s5, 2")
        M_(f"s_add_u32 s5, s5, s{sWave}")
        M_("s_lshl_b32 s5, s5, 7")
        M_("s_add_u32 s92, s4, s5")
        M_("s_add_u32 s93, s92, 0x4000")
        M_(f"s_load_dword s94, {sr(sWS,2)}, s92")
        M_(f"s_load_dword s95, {sr(sWS,2)}, s93")
    M_(f"v_mov_b32 v{c00}, 0xffffff00")
    def drain(n):
        for _ in range(n):
            if misc:
                s_ = misc.pop(0); A(s_)
                if s_.startswith(("s_bitcmp", "s_cmp", "s_getpc", "s_sub_u32 s18")): A(misc.pop(0))
    qp = v.acc
    assert v.D == v.acc + 8 and v.qB == v.q + 4
    def qpoll(fl="sc1"):
        A(f"buffer_load_dwordx4 {vr(qp,4)}, v{t+9}, {sr(sWS)}, s{sTmp} offen {fl}")
        A(f"buffer_load_dwordx4 {vr(qp+4,4)}, v{t+9}, {sr(sWS)}, s{sTmp} offen offset:16 {fl}")
        A(f"buffer_load_dwordx4 {vr(qp+8,4)}, v{t+9}, {sr(sWS)}, s{sTmp2} offen {fl}")
        A(f"buffer_load_dwordx4 {vr(qp+12,4)}, v{t+9}, {sr(sWS)}, s{sTmp2} offen offset:16 {fl}")
    ipoll = NPL - P - XQ
    while i < NPL - XQ:
        n = (wpro or waits)[i & 7]
        if i > ipoll and i - n - 1 < ipoll: n += 4
        A(f"s_waitcnt vmcnt({n})")
        if i == ipoll:
            assert not misc
            qpoll("nt" if qloc else "sc1")
        if i in sti: stamp3((4, 6, 7)[sti.index(i)])
        issue(i, "K", i); i += 1
        drain(6 if NPL > 24 else 9)
    A(f"s_waitcnt vmcnt({P})")
    def qacc():
        A(f"v_xor_b32 v{t+8}, s{sQT}, v{qp}")
        for k in range(1, 16): A(f"v_bitop3_b32 v{t+8}, v{qp+k}, s{sQT+(k&3)}, v{t+8} bitop3:0xbe")
    qacc()
    A(f"v_and_b32 v{t+10}, 0xffff, v{t+8}")
    A(f"v_cmp_ne_u32 vcc, 0, v{t+10}")
    A("s_cbranch_vccnz L_qslow")
    A("L_qok:")
    A(f"s_mov_b32 s4, 0x07060302")
    for k in range(8): A(f"v_perm_b32 v{v.q+k}, v{qp+2*k+1}, v{qp+2*k}, s4")
    A("s_cmp_eq_u64 vcc, 0")
    A(f"s_cselect_b32 s{sFast}, {fast}, 0")
    while i < NPL:
        A(f"s_waitcnt vmcnt({(wcat or waits)[i & 7]})")
        issue(i, "K", i); i += 1
    stamp(3)
    def red(u, T):
        D = v.D + 4 * (u & 1)
        A(f"v_add_f32_dpp v{v.y0}, v{D+(u^1)}, v{D+u} quad_perm:[1,0,3,2] {DPPM}")
        A(f"v_add_f32_dpp v{v.y1}, v{D+(u^3)}, v{D+(u^2)} quad_perm:[1,0,3,2] {DPPM}")
        dst = T if u == 0 else v.z
        A(f"v_add_f32_dpp v{dst}, v{v.y1}, v{v.y0} quad_perm:[2,3,0,1] {DPPM}")
        if u: A(f"v_cndmask_b32 v{T}, v{T}, v{v.z}, {sr((sQ1,sQ2,sQ3)[u-1],2)}")
    def finT(par):
        T = v.T + par
        red(3, T)
        A(f"v_cvt_pk_bf16_f32 v{T}, 0, v{T}")
        A(f"v_mul_f32 v{T}, {SCALE:#x}, v{T}")
        A(f"v_cvt_pk_bf16_f32 v{T}, 0, v{T}")
        if par:
            A(f"v_mul_f32 v{v.e2}, s{sL2E}, v{v.m}")
            A(f"v_max3_f32 v{v.m}, v{v.T}, v{v.T+1}, v{v.m}")
            A(f"ds_write_b64 v{v.ta}, {vr(v.T,2)}")
            A(f"v_mul_f32 v{v.p}, s{sL2E}, v{v.m}")
            A(f"v_add_u32 v{v.ta}, 512, v{v.ta}")
            A(f"v_fma_f32 v{v.e0}, v{v.T}, s{sL2E}, -v{v.p}")
            A(f"v_fma_f32 v{v.e1}, v{v.T+1}, s{sL2E}, -v{v.p}")
            A(f"v_sub_f32 v{v.e2}, v{v.e2}, v{v.p}")
    def lacc():
        A(f"v_exp_f32 v{v.e0}, v{v.e0}")
        A(f"v_exp_f32 v{v.e2}, v{v.e2}")
        A(f"v_exp_f32 v{v.e1}, v{v.e1}")
        A(f"v_fma_f32 v{v.l}, v{v.l}, v{v.e2}, v{v.e0}")
        A(f"v_add_f32 v{v.l}, v{v.l}, v{v.e1}")
    def procK(j, sl):
        u = j & 3
        A(f"v_mfma_f32_16x16x32_bf16 {vr(v.D+4*(u&1),4)}, {vr(v.buf+4*sl,4)}, {vr(v.q,4)}, 0")
        if u >= 1: red(u - 1, v.T + ((j >> 2) & 1))
        elif j > 0: finT(((j >> 2) - 1) & 1)
        if j & 7 == 1 and j > 1: lacc()
    def ands(u):
        w = v.W + 2 + 4 * u
        A(f"v_and_b32_dpp v{w}, v{v.pd}, v{v.mask0} quad_perm:[{u},{u},{u},{u}] {DPPM}")
        A(f"v_and_b32_dpp v{w+1}, v{v.pd}, v{v.mask1} quad_perm:[{u},{u},{u},{u}] {DPPM}")
    def prep(par, nextread=True):
        if par == 0: A("s_waitcnt lgkmcnt(0)")
        A(f"v_fma_f32 v{v.p}, v{v.TV+par}, s{sL2E}, -v{v.mL}")
        A(f"v_exp_f32 v{v.p}, v{v.p}")
        if par == 1 and nextread:
            A(f"v_add_u32 v{v.ta}, 512, v{v.ta}")
            A(f"ds_read_b64 {vr(v.TV,2)}, v{v.ta}")
        A(f"v_cvt_pk_bf16_f32 v{v.pd}, v{v.p}, v{v.p}")
        ands(0)
    def procV(j, sl, end=False):
        u = j & 3
        w = v.W + 4 * u
        A(f"v_mfma_f32_16x16x32_bf16 {vr(v.acc,4)}, {vr(v.buf+4*sl,4)}, {vr(w+2,4)}, {vr(v.acc,4)}")
        A(f"v_mfma_f32_16x16x32_bf16 {vr(v.acc+4,4)}, {vr(v.buf+4*sl,4)}, {vr(w,4)}, {vr(v.acc+4,4)}")
        if end and j >= 124: return
        if u < 3: ands(u + 1)
        else:
            prep(((j >> 2) + 1) & 1, nextread=not (end and j == 123))
            if end and j == 123:
                ands(1); ands(2); ands(3)
    def allred(op, r, tmp):
        A(f"{op}_dpp v{r}, v{r}, v{r} quad_perm:[1,0,3,2] {DPPM}")
        A(f"{op}_dpp v{r}, v{r}, v{r} quad_perm:[2,3,0,1] {DPPM}")
        A(f"v_mov_b32 v{tmp}, v{r}")
        A(f"v_permlane16_swap_b32 v{tmp}, v{r}")
        A(f"{op} v{r}, v{r}, v{tmp}")
        A(f"v_mov_b32 v{tmp}, v{r}")
        A(f"v_permlane32_swap_b32 v{tmp}, v{r}")
        A(f"{op} v{r}, v{r}, v{tmp}")
    def accaddr():
        A(f"s_lshl_b32 s4, s{sPh}, 2")
        A(f"s_add_u32 s4, s4, s{sWave}")
        A(f"s_lshl_b32 s5, s4, 11")
        A(f"v_add_u32 v{t+9}, s5, v{v.lin}")
    def accout():
        A(f"ds_write_b128 v{t+9}, {vr(v.acc,4)} offset:{L_O}")
        A(f"ds_write_b128 v{t+9}, {vr(v.acc+4,4)} offset:{L_O+1024}")
    def strip(base, first, emit=None):
        E = emit or A
        for r in range(4): E(f"v_xor_b32 v{base+r}, s{sTag+r}, v{base+r}")
        if first: E(f"v_or_b32 v{t+11}, v{base}, v{base+1}")
        else: E(f"v_or3_b32 v{t+11}, v{base}, v{base+1}, v{t+11}")
        E(f"v_or3_b32 v{t+11}, v{base+2}, v{base+3}, v{t+11}")
    def check(label):
        A(f"v_and_b32 v{t+11}, 0xff, v{t+11}")
        A(f"v_cmp_ne_u32 vcc, 0, v{t+11}")
        A(f"s_cbranch_vccnz {label}")
    A("; ---- catch-up: consume the backlog while the stream goes on ----")
    slotof = {k: k for k in range(NPL)}
    def newslot(i): return (i - NPL) if i < NPL + CU else (i & 7)
    j = 0
    landed = i - P
    while not (j == i - P and i % 8 == 0 and j >= NPL + (CU if CU > 8 else 0)):
        s = newslot(i)
        own = max(k for k in slotof if slotof[k] == s)
        while j <= own:
            assert j < landed, "catch-up needs data not yet landed"
            procK(j, slotof[j]); j += 1
        A(f"s_waitcnt vmcnt({(wcat or waits)[i&7]})")
        landed = max(landed, i - (wcat or waits)[i & 7])
        slotof[i] = s
        issue(i, "K", s); i += 1
        n = 0
        while n < R and j < i - P:
            assert j < landed
            procK(j, slotof[j]); j += 1; n += 1
    assert i < 128
    def enter(n):
        A(f"s_mov_b32 s{sCnt}, {n}")
        A(f"s_xor_b32 s{sNo}, s{sXm}, {dep('n', n, 4):#x}" if xall else f"s_mov_b32 s{sNo}, {dep('n', n, 4):#x}")
    enter(i // 8)
    stamp(4); stamp3(8)
    def body(kind, proc, ww, extra):
        for k in range(8):
            n = ww[k] + (extra if k <= ww[k] else 0)
            issue(k, kind, k, loop=True)
            L.insert(len(L) - 1, f"s_waitcnt vmcnt({n})")
            if k == 7:
                A(f"s_add_u32 s{sCnt}, s{sCnt}, 1")
                sdep(sNo, sCnt, "n", 4, True, 4); xall and A(f"s_xor_b32 s{sNo}, s{sNo}, s{sXm}")
            proc(16 + k - P, (k - P) & 7)
    def loop(name, kind, proc):
        A(".p2align 6")
        A(f"L_{name}loop:")
        dd = t + 2 if turbo else v.bv
        A(f"v_subrev_u32 v{dd}, s{sN}, v{v.bl}")
        A(f"s_add_u32 s{sN}, s{sN}, 1")
        A(f"v_cmp_gt_u32 vcc, 64, v{dd}")
        A(f"v_mov_b32 v{v.bv}, s{sN}")
        A(f"s_bcnt1_i32_b64 s4, vcc")
        A(f"buffer_store_dword v{v.bv}, v{v.bw}, {sr(sWS)}, 0 offen")
        A(f"buffer_load_dword v{v.bl}, v{v.br}, {sr(sWS)}, 0 offen nt")
        A(f"s_sub_u32 s5, s{sN}, s{sCk}")
        A("s_cmp_lt_u32 s5, 2")
        A(f"s_cbranch_scc1 L_{name}ctl")
        A(f"L_{name}ctlb:")
        if kind == "V":
            A(f"s_cmp_eq_u32 s{sCnt}, {itml}")
            A("s_cbranch_scc1 L_side")
        if lasthi:
            A(f"s_cmp_ge_u32 s{sCnt}, {16 - lasthi}")
            A(f"s_cbranch_scc1 L_{name}hi")
        A(f"s_cmp_ge_u32 s4, s{sThr}")
        A(f"s_cbranch_scc1 L_{name}hi")
        if tlo:
            A("s_sub_u32 s4, s4, 1")
            A(f"s_cmp_lt_u32 s4, s{sTlo}")
            A(f"s_cbranch_scc1 L_{name}min")
        for ver, ww in ((("lo", waits), ("min", wmin), ("hi", whi)) if tlo else (("lo", waits), ("hi", whi))):
            if ver == "min": A(f"L_{name}min:")
            if ver == "hi":
                A(f"L_{name}hi:")
                if stamps: A(f"s_add_u32 s{sHi}, s{sHi}, 1")
                if turbo:
                    A(f"v_add_u32 v{dd}, -1, v{dd}")
                    A(f"v_cmp_gt_u32 vcc, 63, v{dd}")
                    A("s_bcnt1_i32_b32 s4, vcc_lo")
                    A(f"s_cmp_ge_u32 s4, {max(turbo, 0)}")
                    A(f"s_cbranch_scc1 L_{name}turbo")
            body(kind, proc, ww, 2)
            A(f"s_cmp_lg_u32 s{sCnt}, 16")
            A(f"s_cbranch_scc1 L_{name}loop")
            if ver != "hi": A(f"s_branch L_{name}done")
        A(f"L_{name}done:")
    A("; ---- K loop (lo: 5 loads in flight, hi: 6) ----")
    loop("k", "K", procK)
    stamp4(1, 6)
    wk = wkv or waits
    for k in range(P):
        A(f"s_waitcnt vmcnt({wk[k]})")
        issue(k, "V", k)
        procK(128 + k - P, (k - P) & 7)
        if k == 0:
            A(f"v_subrev_u32 v{t+10}, {512*15}, v{v.ta}")
            A(f"ds_read_b64 {vr(v.TV,2)}, v{t+10}")
        if k == 1:
            for r in range(8): A(f"v_mov_b32 v{v.acc+r}, 0")
    for k in range(P, P + XT): issue(k, "V", k)
    finT(1)
    A(f"v_mov_b32 v{v.z}, v{v.p}")
    A(f"v_mov_b32 v{v.ta}, v{t+10}")
    allred("v_max_f32", v.m, v.y0)
    A(f"v_mul_f32 v{v.mL}, s{sL2E}, v{v.m}")
    prep(0)
    sv = L[:]; del L[:]
    lacc()
    A(f"v_sub_f32 v{v.z}, v{v.z}, v{v.mL}")
    A(f"v_exp_f32 v{v.z}, v{v.z}")
    A(f"s_lshl_b32 s5, s{sPh}, 11")
    A(f"s_lshl_b32 s4, s{sWave}, 9")
    A(f"v_mul_f32 v{v.l}, v{v.l}, v{v.z}")
    A(f"s_add_u32 s4, s4, s5")
    A(f"v_lshl_add_u32 v{t+9}, v0, 3, s4")
    allred("v_add_f32", v.l, v.y0)
    A(f"ds_write_b64 v{t+9}, {vr(v.m,2)} offset:{L_M}")
    A(f"v_lshl_add_u32 v{t+10}, v0, 3, s5")
    misc.extend(L); del L[:]; L.extend(sv)
    issued = P + XT
    for k in range(P, 8):
        if k == 7: drain(99)
        if k >= issued:
            A(f"s_waitcnt vmcnt({wk[k]})")
            issue(k, "V", k); issued += 1
        else:
            A(f"s_waitcnt vmcnt({issued - 1 - (k - P)})")
        procV(k - P, k - P)
    A("s_waitcnt lgkmcnt(0)")
    A("s_barrier")
    A(f"s_cmp_eq_u32 s{sWave}, 3")
    A("s_cbranch_scc1 L_pubml")
    A(f"s_lshl_b32 s4, s{sPh}, 1")
    A(f"s_cmp_lt_u32 s{sWave}, s4")
    A("s_cbranch_scc1 L_puba")
    A("L_vent:")
    enter(1)
    stamp4(2, 7)
    A("; ---- V loop ----")
    loop("v", "V", procV)
    stamp4(3, 8)
    A("L_mlchk:")
    strip(mlr, True)
    check("L_mlretry")
    def mlread():
        A(f"ds_read2st64_b64 {vr(v.D,4)}, v{t+10} offset0:{L_M//512} offset1:{L_M//512+1}")
        A(f"ds_read2st64_b64 {vr(v.D+4,4)}, v{t+10} offset0:{L_M//512+2} offset1:{L_M//512+3}")
    mlread()
    def fact(E):
        sv = L[:]; del L[:]
        A(f"v_mov_b32 v{mlr+2}, v{mlr}")
        allred("v_max_f32", mlr + 2, mlr + 3)
        A(f"v_mul_f32 v{mlr+2}, s{sL2E}, v{mlr+2}")
        A(f"v_fma_f32 v{mlr}, v{mlr}, s{sL2E}, -v{mlr+2}")
        A("s_waitcnt lgkmcnt(0)")
        for w in range(4): A(f"v_fma_f32 v{F+w}, v{v.D+2*w}, s{sL2E}, -v{mlr+2}")
        A(f"v_exp_f32 v{mlr}, v{mlr}")
        for w in range(4): A(f"v_exp_f32 v{F+w}, v{F+w}")
        A(f"v_mul_f32 v{mlr+1}, v{mlr+1}, v{mlr}")
        allred("v_add_f32", mlr + 1, mlr + 3)
        A(f"v_rcp_f32 v{mlr+1}, v{mlr+1}")
        code = L[:]; del L[:]; L.extend(sv)
        for c_ in code: E(c_)
    def gatef(E, g):
        E(f"v_mul_f32 v{mlr+1}, v{mlr+1}, v{g}")
        for w in range(4): E(f"v_mul_f32 v{F+w}, v{F+w}, v{mlr+1}")
    A(f"s_cmp_lg_u32 s{sPh}, 0")
    A("s_cbranch_scc1 L_epi")
    A(f"s_mov_b32 s{sK}, s{sKB}")
    A(f"s_mov_b32 s{sK+1}, s{sKB+1}")
    A(f"s_mov_b32 s{sV}, s{sKB+2}")
    A(f"s_mov_b32 s{sV+1}, s{sKB+3}")
    accaddr()
    fact(M_)
    ga = a
    for k in range(4):
        M_(f"v_lshlrev_b32 v{ga+2*k}, 16, v{gx+k}")
        M_(f"v_and_b32 v{ga+2*k+1}, 0xffff0000, v{gx+k}")
        M_(f"v_lshlrev_b32 v{ga+8+2*k}, 16, v{gx+4+k}")
        M_(f"v_and_b32 v{ga+8+2*k+1}, 0xffff0000, v{gx+4+k}")
    for k in range(8): M_(f"v_mul_f32 v{ga+k}, v{ga+k}, v{ga+8+k}")
    for k in range(8): M_(f"v_cvt_pk_bf16_f32 v{ga+k}, 0, v{ga+k}")
    for k in range(4): M_(f"v_add_f32 v{ga+k}, v{ga+k}, v{ga+4+k}")
    M_(f"v_add_f32 v{ga}, v{ga}, v{ga+2}")
    M_(f"v_add_f32 v{ga+1}, v{ga+1}, v{ga+3}")
    M_(f"v_add_f32 v{ga}, v{ga}, v{ga+1}")
    M_(f"v_add_f32_dpp v{ga}, v{ga}, v{ga} row_ror:4 {DPPM}")
    M_(f"v_add_f32_dpp v{ga}, v{ga}, v{ga} row_ror:8 {DPPM}")
    sv = L[:]; del L[:]; allred("v_add_f32", ga, ga + 1); code = L[:]; del L[:]; L.extend(sv)
    for c_ in code: M_(c_)
    M_(f"v_cvt_pk_bf16_f32 v{ga}, 0, v{ga}")
    M_(f"v_mul_f32 v{ga}, {LOG2E | 0x80000000:#x}, v{ga}")
    M_(f"v_exp_f32 v{ga}, v{ga}")
    M_(f"v_add_f32 v{ga}, 1.0, v{ga}")
    M_(f"v_rcp_f32 v{ga}, v{ga}")
    M_(f"v_cvt_pk_bf16_f32 v{gA}, 0, v{ga}")
    M_(f"v_sub_f32 v{gB}, 1.0, v{gA}")
    M_(f"v_cvt_pk_bf16_f32 v{gB}, 0, v{gB}")
    gatef(M_, gA)
    M_(f"s_lshr_b32 s8, s{sJ}, 3")
    M_(f"s_bfe_u32 s9, s{sJ}, 0x10002")
    M_(f"s_and_b32 s10, s{sJ}, 3")
    M_(f"s_lshl_b32 s12, s{sHkv}, 2")
    M_("s_add_u32 s12, s12, s8")
    M_("s_lshl_b32 s12, s12, 2")
    M_(f"s_add_u32 s12, s12, s{sWave}")
    M_("s_lshl_b32 s12, s12, 3")
    M_("s_add_u32 s12, s12, s9")
    M_("s_lshl_b32 s12, s12, 4")
    M_("s_add_u32 s12, s12, s10")
    M_("s_lshl_b32 s12, s12, 8")
    M_(f"v_and_b32 v{aWO}, 0xff, v{v.lin}")
    M_(f"v_lshl_add_u32 v{aWO}, v{t+6}, 10, v{aWO}")
    M_(f"v_add_u32 v{aWO}, s12, v{aWO}")
    M_(f"s_lshl_b32 s13, s{sWave}, 10")
    M_(f"v_add_u32 v{aLO}, s13, v{v.lin}")
    M_(f"s_lshl_b32 s12, s{sHkv}, 16")
    M_(f"s_add_u32 s12, s12, {WS_O:#x}")
    M_(f"s_lshl_b32 s13, s{sWave}, 13")
    M_("s_add_u32 s13, s13, s12")
    M_(f"s_lshr_b32 s14, s{sWave}, 1")
    M_("s_lshl_b32 s14, s14, 28")
    M_("s_add_u32 s13, s13, s14")
    M_(f"s_and_b32 s14, s{sJ}, 1")
    M_("s_lshl_b32 s14, s14, 10")
    M_("s_add_u32 s13, s13, s14")
    M_(f"s_lshr_b32 s14, s{sJ}, 1")
    M_(f"s_lshl_b32 s14, s14, {6 if run64 else 4}")
    M_("s_add_u32 s13, s13, s14")
    M_(f"v_lshl_add_u32 v{aSO}, v{t+5}, 14, s13")
    M_(f"v_lshl_add_u32 v{aSO}, v{t+6}, 11, v{aSO}")
    M_(f"v_lshl_add_u32 v{aSO}, v{t+7}, {4 if run64 else 8}, v{aSO}")
    M_(f"s_lshr_b32 s11, s{sJ}, 2")
    M_("s_lshl_b32 s13, s11, 2")
    M_(f"s_add_u32 s13, s13, s{sWave}")
    M_("s_lshl_b32 s13, s13, 11")
    M_("s_add_u32 s13, s13, s12")
    if run64 == 2:
        M_(f"v_bfe_u32 v{aBP}, v0, 3, 1")
        M_(f"v_lshl_add_u32 v{aBP}, v{aBP}, 5, v{t+6}")
        M_(f"v_lshlrev_b32 v{aBP}, 2, v{aBP}")
        if wosw:
            M_(f"s_and_b32 s14, s{sWave}, 2")
            M_("s_lshl_b32 s14, s14, 5")
            M_(f"v_xor_b32 v{aBP}, s14, v{aBP}")
        M_(f"v_xor_b32 v{aBP+1}, 64, v{aBP}")
    if run64 == 1:
        M_(f"v_and_b32 v{aPO}, 15, v0")
        M_(f"v_lshl_add_u32 v{aPO}, v{aPO}, 6, s13")
        M_(f"v_lshl_add_u32 v{aPO}, v{t+6}, 4, v{aPO}")
    else:
        M_(f"v_add_u32 v{aPO}, s13, v{v.lin}")
    M_(f"v_add_u32 v{v.aML}, 0x4000, v{v.aML}")
    M_("s_lshl_b32 s13, s10, 3")
    M_(f"s_add_u32 s13, s13, s{sHkv}")
    M_("s_lshl_b32 s13, s13, 3")
    M_("s_add_u32 s13, s13, s11")
    M_("s_lshl_b32 s13, s13, 10")
    M_(f"s_add_u32 s16, s13, {WS_P2:#x}")
    M_("s_mov_b32 s17, 0x80000")
    if p2t == 2:
        M_(f"s_lshl_b32 s13, s{sWave}, 8")
        M_("s_add_u32 s18, s13, s16")
        M_("s_add_u32 s19, s18, 128")
        M_(f"s_load_dword s100, {sr(sWS,2)}, s18")
        M_(f"s_load_dword s101, {sr(sWS,2)}, s19")
    M_(f"s_lshl_b32 s13, s{sJ}, 16")
    M_(f"s_lshl_b32 s14, s{sHkv}, 7")
    M_("s_add_u32 s13, s13, s14")
    M_(f"s_add_u32 s13, s13, {WS_P2:#x}")
    if c4:
        M_(f"s_lshl_b32 s14, s{sWave}, 5")
        M_("s_add_u32 s13, s13, s14")
        M_(f"v_and_b32 v{aPC}, 0x10, v{v.lin}")
        M_(f"v_lshrrev_b32 v{aOUT}, 1, v0")
        M_(f"v_lshl_add_u32 v{aPC}, v{aOUT}, 10, v{aPC}")
    else:
        M_(f"v_and_b32 v{aPC}, 0x70, v{v.lin}")
        M_(f"v_lshl_add_u32 v{aPC}, v{t+1}, 10, v{aPC}")
    M_(f"v_add_u32 v{aPC}, s13, v{aPC}")
    M_("s_and_b32 s13, s2, 1")
    M_("s_lshl_b32 s13, s13, 10")
    M_("s_lshr_b32 s14, s2, 1")
    M_("s_lshl_b32 s14, s14, 6")
    M_("s_add_u32 s14, s14, s13")
    if c4:
        M_(f"s_lshl_b32 s13, s{sWave}, 2")
        M_("s_add_u32 s14, s14, s13")
    M_(f"v_and_b32 v{aOUT}, 7, v0")
    M_(f"v_lshl_add_u32 v{aOUT}, v{t+6}, 3, v{aOUT}")
    M_(f"v_lshl_add_u32 v{aOUT}, v{aOUT}, 1, s14")
    M_(f"v_or_b32 v{a}, v{v.mask0}, v{v.mask1}")
    M_(f"v_mov_b32 v{a+1}, 0x0c0c0c0c")
    if wosw:
        M_(f"s_bitcmp1_b32 s{sWave}, 0")
        M_("s_cselect_b32 s12, 0x02020202, 0")
        M_("s_xor_b32 s13, s12, 0x03020302")
        M_("s_xor_b32 s12, s12, 0x01000100")
        for k in range(4):
            M_(f"s_xor_b32 s{sKB+k}, s{sWave}, {k}")
            M_(f"s_lshl_b32 s{sKB+k}, s{sKB+k}, 13")
    else:
        M_("s_mov_b32 s12, 0x01000100")
        M_("s_mov_b32 s13, 0x03020302")
        for k in range(4): M_(f"s_mov_b32 s{sKB+k}, {k << 13}")
    M_(f"v_bfi_b32 v{a+2}, v{a}, s12, v{a+1}")
    M_(f"v_bfi_b32 v{a+3}, v{a}, s13, v{a+1}")
    M_(f"v_bfe_u32 v{a}, v0, 1, 2")
    for d in range(4):
        M_(f"v_cmp_eq_u32 vcc, {d}, v{a}")
        M_(f"v_cndmask_b32 v{sb+d}, v{a+1}, v{a+2}, vcc")
        M_(f"v_cndmask_b32 v{sb+4+d}, v{a+1}, v{a+3}, vcc")
    for k in range(1, 8): M_(f"s_mov_b32 s{8+k}, {8192*k:#x}")
    per = -(-len(misc) // 8)
    for k in range(8):
        A(f"s_waitcnt vmcnt({(wvk or whi)[k]})")
        issue(k, "K", k)
        if k < P:
            procV(128 + k - P, (k - P) & 7, end=True)
            if k == P - 2:
                for r in range(4): A(f"v_mov_b32 v{v.q+r}, v{v.qB+r}")
                A(f"v_mov_b32 v{v.m}, 0xff800000")
                A(f"v_mov_b32 v{v.l}, 0")
                A(f"v_subrev_u32 v{v.ta}, {512*15}, v{v.ta}")
        else:
            procK(k - P, k - P)
            if k == P: accout()
        drain(per)
    def wold(k):
        if woil: k = (k >> 1) + 4 * (k & 1)
        so = f"s{sKB + (k & 3)}"
        A(f"buffer_load_dwordx4 {vr(wor+4*k,4)}, v{aWO}, {sr(sWO if k < 4 else sWQ)}, {so} offen {woflags}")
    assert not misc
    for z in range(woe):
        A(f"s_waitcnt vmcnt({waits[0]})")
        wold(z)
    if stamps and tst == 4: A(f"s_memrealtime s[{sStamp+8}:{sStamp+9}]")
    A(f"s_mov_b32 s{sPh}, 1")
    enter(1)
    A("s_branch L_kloop")
    A("L_epi:")
    if cut in (1, 4):
        A(f"s_mov_b32 s{sWO+2}, 0")
        A(f"s_mov_b32 s{sWQ+2}, 0")
    def sta():
        A(f"s_cmp_lg_u32 s{sFast}, 0")
        A("s_cbranch_scc0 L_sta_slow")
        A(f"buffer_store_dwordx4 {vr(oA,4)}, v{aSO}, {sr(sWS)}, 0 offen {ofl}")
        A("L_sta_back:")
    if not aside and not aearly: sta()
    def oald(fl):
        A(f"buffer_load_dwordx4 {vr(gx,4)}, v{aPO}, {sr(sWS)}, 0 offen {fl}")
        A(f"buffer_load_dwordx4 {vr(gx+4,4)}, v{aPO}, {sr(sWS)}, 0 offen offset:1024 {fl}")
    def oprep(base, frag, E):
        for r in range(4): E(f"v_add_f32 v{base+r}, v{base+r}, v{base+4+r}")
        if run64 == 2:
            for r in range(2): E(f"v_permlane16_swap_b32 v{base+r}, v{base+2+r}")
            for r in range(2): E(f"v_add_f32 v{base+r}, v{base+r}, v{base+2+r}")
            for pm in ("row_ror:4", "row_ror:8"):
                for r in range(2): E(f"v_add_f32_dpp v{base+r}, v{base+r}, v{base+r} {pm} {DPPM}")
            E(f"v_cvt_pk_bf16_f32 v{base+2}, v{base}, v{base+1}")
            E(f"ds_bpermute_b32 v{base}, v{aBP}, v{base+2}")
            E(f"ds_bpermute_b32 v{base+1}, v{aBP+1}, v{base+2}")
            E("s_waitcnt lgkmcnt(0)")
        else:
            for pm in ("quad_perm:[1,0,3,2]", "quad_perm:[2,3,0,1]", "row_half_mirror"):
                for r in range(4): E(f"v_add_f32_dpp v{base+r}, v{base+r}, v{base+r} {pm} {DPPM}")
            E(f"v_cvt_pk_bf16_f32 v{base}, v{base}, v{base+1}")
            E(f"v_cvt_pk_bf16_f32 v{base+1}, v{base+2}, v{base+3}")
        for r in range(4):
            for d in range(4): E(f"v_perm_b32 v{frag+4*r+d}, v{base+(r>>1)}, v{base+(r>>1)}, v{sb+4*(r&1)+d}")
    if aearly:
        A("L_oachk:")
        strip(gx, True)
        strip(gx + 4, False)
        check("L_oaretry")
    accaddr()
    fact(M_)
    gatef(M_, gB)
    if aearly: oprep(gx, bA, M_)
    nwo = woe
    if not pafirst:
        for k in range(woburst): wold(nwo); nwo += 1
    per = -(-len(misc) // (P - 2))
    nx = 0 if (aside or aearly) else 1
    for k in range(-1, P):
        if k >= 0:
            A(f"s_waitcnt vmcnt({(P - 1 - k) + nwo - woe + nx})")
            if nwo < 8 and k >= wodelay: wold(nwo); nwo += 1
        if k == pollak and not aearly:
            afterA = 8 - nwo
            A(f"s_cmp_lg_u32 s{sFast}, 0")
            A("s_cbranch_scc0 L_lda_slow")
            oald("nt")
            A("L_lda_back:")
            nx += 2
            if obe:
                A(f"v_lshlrev_b32 v{a+40}, 7, v0")
                A(f"v_sub_u32 v{a+40}, v{a+40}, v{v.lin}")
                A(f"v_add_u32 v{a+40}, v{a+40}, v{aPO}")
                A("s_mov_b64 exec, 0xffff")
                A(f"buffer_load_dword v{a+40}, v{a+40}, {sr(sWS)}, s17 offen nt")
                A("s_mov_b64 exec, -1")
                nx += 1
        if k < 0:
            if pafirst:
                for z in range(woburst): wold(nwo); nwo += 1
            continue
        procV(128 + k - P, (k - P) & 7, end=True)
        drain(per)
    assert not misc
    while nwo < 8 - wolate: wold(nwo); nwo += 1
    accout()
    stamp(5)
    A(f"s_cmp_ge_u32 s{sWave}, 2")
    A("s_waitcnt lgkmcnt(0)")
    A("s_barrier")
    if cut in (1, 2): A("s_branch L_fin")
    stamp(1, True)
    A("s_cbranch_scc1 L_bfirst" if bafter else "s_cbranch_scc1 L_bsel")
    oo = a
    def stageA(br, dst):
        for w in range(4): A(f"ds_read_b128 {vr(oo+4*w,4)}, v{aLO} offset:{L_O+8192*br+2048*w}")
        A(f"s_cmp_lg_u32 s{sFast}, 0")
        for w in range(4):
            A(f"s_waitcnt lgkmcnt({0 if stamps else 3-w})")
            for r in range(4):
                if w == 0: A(f"v_mul_f32 v{oo+r}, v{oo+r}, v{F}")
                else: A(f"v_fmac_f32 v{oo+r}, v{oo+4*w+r}, v{F+w}")
        for r in range(4): A(f"v_and_or_b32 v{dst+r}, v{oo+r}, v{c00}, s{sTag+r}")
    stageA(1, oo)
    A("s_cbranch_scc0 L_oslow")
    A(f"buffer_store_dwordx4 {vr(oo,4)}, v{aSO}, {sr(sWS)}, s17 offen {ofl}")
    pa = a + 16
    bb = a + 24
    def bpoll(fl):
        A(f"buffer_load_dwordx4 {vr(pa,4)}, v{aPO}, {sr(sWS)}, s17 offen {fl}")
        A(f"buffer_load_dwordx4 {vr(pa+4,4)}, v{aPO}, {sr(sWS)}, s17 offen offset:1024 {fl}")
    A("L_bfirst:")
    stamp(6)
    if not bafter: bpoll("nt")
    A("L_bmfa:")
    while nwo < 8: wold(nwo); nwo += 1
    nb = 0 if bafter else 2
    if not aearly:
        A(f"s_waitcnt vmcnt({afterA + nb})")
        A("L_oachk:")
        strip(gx, True)
        strip(gx + 4, False)
        check("L_oaretry")
        oprep(gx, bA, A)
    def bfirst():
        A(f"s_cmp_lg_u32 s{sFast}, 0")
        A("s_cbranch_scc0 L_bp_slow")
        bpoll("nt")
        A("L_bp_back:")
    if bafter and bpw is None: bfirst()
    A(f"s_waitcnt vmcnt({(6 if bpw is None else 4) - (3 if woil else 0)})")
    for r in range(4):
        c = "0" if r == 0 else vr(v.D, 4)
        A(f"v_mfma_f32_16x16x32_bf16 {vr(v.D,4)}, {vr(wor+4*r,4)}, {vr(bA+4*r,4)}, {c}")
    if bpw is not None:
        A(f"s_waitcnt vmcnt({bpw})")
        bfirst()
    if tst == 2:
        A("s_waitcnt vmcnt(2)")
        stamp(2, 2)
        A("s_waitcnt vmcnt(0)")
        stamp(3, 2)
    A("L_bchk:")
    A("s_waitcnt vmcnt(1)")
    strip(pa, True)
    A("s_waitcnt vmcnt(0)")
    strip(pa + 4, False)
    check("L_bretry")
    A("s_mov_b64 exec, -1")
    stamp(7)
    code = []
    oprep(pa, bb, code.append)
    for c_ in code[:-12]: A(c_)
    for r in range(4):
        for c_ in code[len(code) - 12 + 4 * r: len(code) - 8 + 4 * r]: A(c_)
        A(f"v_mfma_f32_16x16x32_bf16 {vr(v.D,4)}, {vr(wor+16+4*r,4)}, {vr(bb+4*r,4)}, {vr(v.D,4)}")
    A(f"s_cmp_lg_u32 s{sWave}, 0")
    A(f"ds_write_b128 v{aLP}, {vr(v.D,4)} offset:{L_P}")
    stamp(4, True)
    A("s_waitcnt lgkmcnt(0)")
    A("s_barrier")
    A("s_cbranch_scc1 L_cother" if c4 else "s_cbranch_scc1 L_fin")
    for w in range(1, 4): A(f"ds_read_b128 {vr(a+4*w,4)}, v{v.lin} offset:{L_P+1024*w}")
    A("s_cmp_ge_u32 s2, 32")
    A("s_waitcnt lgkmcnt(0)")
    for r in range(4): A(f"v_add_f32 v{a+4+r}, v{a+4+r}, v{v.D+r}")
    for r in range(4): A(f"v_add_f32 v{a+8+r}, v{a+8+r}, v{a+12+r}")
    for r in range(4): A(f"v_add_f32 v{a+4+r}, v{a+4+r}, v{a+8+r}")
    for r in range(4): A(f"v_and_or_b32 v{a+4+r}, v{a+4+r}, v{c00}, s{sTag+r}")
    A(f"buffer_store_dwordx4 {vr(a+4,4)}, v{v.lin}, {sr(sWS)}, s16 offen sc1")
    stamp(2, True)
    A("s_cbranch_scc1 L_fin")
    if amp:
        A("s_cmp_ge_u32 s2, 8")
        A("s_cbranch_scc1 L_noamp")
        A("s_getreg_b32 s84, hwreg(HW_REG_XCC_ID)")
        A("s_and_b32 s84, s84, 7")
        A("s_lshl_b32 s84, s84, 7")
        A("s_add_u32 s84, s84, 0x60000")
        A(f"v_mov_b32 v{v.W}, s80")
        A(f"v_mov_b32 v{v.W+1}, s82")
        A("s_mov_b64 exec, 1")
        A(f"buffer_store_dwordx2 {vr(v.W,2)}, v0, {sr(sWS)}, s84 offen sc1")
        A("s_mov_b64 exec, -1")
        A("L_noamp:")
    pc = a + 8
    if cwait: A("s_waitcnt vmcnt(0)")
    A("L_cbar:")
    mk = 0x00030003 if c4 else 0x00ff00ff
    A(f"s_mov_b32 s4, {mk:#x}")
    A(f"s_mov_b32 s5, {mk:#x}")
    if c4 and cwait == 1: A("s_barrier")
    stamp(3, True)
    A("L_cpoll:")
    nl = 2 if c4 else 8
    for k in range(nl): A(f"buffer_load_dwordx4 {vr(pc+4*k,4)}, v{aPC}, {sr(sWS)}, {'s%d' % (8+(4*k if c4 else k)) if k else 0} offen sc1")
    for k in range(nl):
        A(f"s_waitcnt vmcnt({nl-1-k})")
        strip(pc + 4 * k, k == 0)
    check("L_cretry")
    A("s_mov_b64 exec, -1")
    stamp(8)
    for n_ in ((4,) if c4 else (16, 8, 4)):
        for r in range(n_): A(f"v_add_f32 v{pc+r}, v{pc+r}, v{pc+n_+r}")
    for r in range(2): A(f"v_permlane32_swap_b32 v{pc+r}, v{pc+2+r}")
    for r in range(2): A(f"v_add_f32 v{pc+r}, v{pc+r}, v{pc+2+r}")
    A(f"v_permlane16_swap_b32 v{pc}, v{pc+1}")
    A(f"v_add_f32 v{pc}, v{pc}, v{pc+1}")
    A(f"v_add_f32_dpp v{pc}, v{pc}, v{pc} row_ror:8 {DPPM}")
    if c4:
        A(f"v_add_f32_dpp v{pc}, v{pc}, v{pc} row_ror:4 {DPPM}")
        A(f"v_add_f32_dpp v{pc}, v{pc}, v{pc} quad_perm:[2,3,0,1] {DPPM}")
    A(f"v_cvt_pk_bf16_f32 v{pc}, v{pc}, v{pc}")
    A("s_mov_b64 exec, s[4:5]")
    A(f"buffer_store_short v{pc}, v{aOUT}, {sr(sOUT)}, 0 offen {outfl}")
    A(f"s_or_b32 s4, s2, s{sWave}")
    A("s_cbranch_scc1 L_fin")
    A("s_mov_b64 exec, 1")
    A(f"v_mov_b32 v{pc+1}, s{sE}")
    A(f"buffer_store_dword v{pc+1}, v0, {sr(sWS)}, 0 offen {efl}")
    if amp:
        A("s_memrealtime s[90:91]")
        A("L_amp1:")
        A("s_memrealtime s[98:99]")
        A("s_waitcnt lgkmcnt(0)")
        A("s_sub_u32 s98, s98, s80")
        A("s_cmp_lt_u32 s98, 9000")
        A("s_cbranch_scc1 L_amp1")
        A("s_mov_b64 exec, -1")
        A(f"v_lshlrev_b32 v{v.W}, 7, v0")
        A("s_mov_b32 s84, 0x60000")
        A(f"buffer_load_dwordx2 {vr(v.W+2,2)}, v{v.W}, {sr(sWS)}, s84 offen sc1")
        A("s_waitcnt vmcnt(0)")
        ka, xa, kb, xb, off = amp
        if ka == 2: A("s_mov_b32 s86, s90")
        else: A(f"v_readlane_b32 s86, v{v.W+2+ka}, {xa}")
        A(f"v_readlane_b32 s87, v{v.W+2+kb}, {xb}")
        A("s_nop 4")
        A("s_sub_u32 s86, s86, s87")
        A(f"s_sub_u32 s86, s86, {off}")
        A("s_mul_i32 s86, s86, 10")
        A("s_add_u32 s86, s86, 13000")
        A("s_max_i32 s86, s86, 9000")
        A("s_min_i32 s86, s86, 30000")
        A("L_amp2:")
        A("s_memrealtime s[98:99]")
        A("s_waitcnt lgkmcnt(0)")
        A("s_sub_u32 s98, s98, s80")
        A("s_cmp_lt_u32 s98, s86")
        A("s_cbranch_scc1 L_amp2")
    if probe:
        A("L_probe:")
        A("s_memrealtime s[98:99]")
        A("s_waitcnt lgkmcnt(0)")
        A("s_sub_u32 s98, s98, s100")
        A(f"s_cmp_lt_u32 s98, {probe}")
        A("s_cbranch_scc1 L_probe")
    A("L_fin:")
    if stamps:
        A("s_mov_b64 exec, 1")
        stamp(9)
        A("s_waitcnt lgkmcnt(0)")
        A(f"s_lshl_b32 s{sTmp}, s2, 2")
        A(f"s_add_u32 s{sTmp}, s{sTmp}, s{sWave}")
        A(f"s_lshl_b32 s{sTmp}, s{sTmp}, 6")
        A(f"s_add_u32 s{sTmp}, s{sTmp}, {WS_ST}")
        A("s_getreg_b32 s4, hwreg(HW_REG_XCC_ID)")
        A("s_getreg_b32 s5, hwreg(HW_REG_HW_ID)")
        b = v.buf
        for k in range(10): A(f"v_mov_b32 v{b+k}, s{sStamp+2*k}")
        A(f"v_mov_b32 v{b+10}, s4")
        A(f"v_mov_b32 v{b+11}, s5")
        A(f"v_mov_b32 v{b+12}, s{sSpin}")
        A(f"v_mov_b32 v{b+13}, s{sHi}")
        A(f"v_mov_b32 v{b+14}, s{sFast}")
        for k in range(4): A(f"buffer_store_dwordx4 {vr(b+4*k,4)}, v0, {sr(sWS)}, s{sTmp} offen offset:{16*k}")
    A("L_end:")
    A("s_endpgm")
    def spinchk():
        A(f"s_sub_u32 s{sSpin}, s{sSpin}, 1")
        A("s_cbranch_scc1 L_end")
    A("L_bretry:")
    spinchk()
    A("s_mov_b64 exec, vcc")
    A(f"s_cmp_lg_u32 s{sFast}, 0")
    A("s_cbranch_scc0 L_bretry_slow")
    bpoll("nt")
    A("s_branch L_bchk")
    if c4:
        A("L_cother:")
        A("s_cmp_ge_u32 s2, 32")
        A("s_cbranch_scc0 L_cbar")
        if wb:
            A(f"s_lshl_b32 s4, s{sWave}, 5")
            A(f"s_add_u32 s4, s4, s{sJ}")
            A("s_cmp_lg_u32 s4, 63")
            A("s_cbranch_scc1 L_fin")
            A("buffer_wbl2 sc1")
        A("s_branch L_fin")
    A("L_cretry:")
    spinchk()
    A("s_mov_b64 exec, vcc")
    A("s_branch L_cpoll")
    A("L_bsel:")
    A(f"s_cmp_lg_u32 s{sFast}, 0")
    A("s_cbranch_scc1 L_bfirst")
    A("s_branch L_bslow")
    A("L_oslow:")
    A(f"buffer_store_dwordx4 {vr(oo,4)}, v{aSO}, {sr(sWS)}, s17 offen sc1")
    A("L_bslow:")
    stamp(6)
    if not bafter: bpoll("sc1")
    A("s_branch L_bmfa")
    if bafter:
        A("L_bp_slow:")
        bpoll("sc1")
        A("s_branch L_bp_back")
    A("L_bretry_slow:")
    bpoll("sc1")
    A("s_branch L_bchk")
    def mlld(fl): A(f"buffer_load_dwordx4 {vr(mlr,4)}, v{v.aML}, {sr(sWS)}, 0 offen {fl}")
    A("L_side:")
    if aearly:
        A(f"s_cmp_lg_u32 s{sPh}, 0")
        A("s_cbranch_scc0 L_side5")
        A(f"s_cmp_lg_u32 s{sFast}, 0")
        A("s_cbranch_scc0 L_lda_slow")
        oald("nt")
        A("L_lda_back:")
        A("s_branch L_side4")
        A("L_side5:")
    A("s_lshr_b32 s5, s2, 7")
    A("s_lshl_b32 s5, s5, 10")
    if aside and not aearly:
        A(f"s_cmp_lg_u32 s{sPh}, 0")
        A("s_cbranch_scc0 L_side0")
        if p2t == 1:
            A(f"v_lshrrev_b32 v{gx}, 2, v{aLO}")
            A(f"buffer_load_dword v{gx}, v{gx}, {sr(sWS)}, s16 offen")
        elif wot:
            A(f"s_lshl_b32 s5, s{sHkv}, 19")
            A("s_mov_b64 exec, 1")
            A(f"buffer_load_dword v{gx}, v0, {sr(sWO)}, s5 offen")
            A(f"buffer_load_dword v{gx+1}, v0, {sr(sWQ)}, s5 offen")
            A("s_mov_b64 exec, -1")
        elif obt:
            A(f"buffer_load_dword v{gx}, v{aSO}, {sr(sWS)}, s17 offen {tchflags}")
        else:
            A(f"buffer_load_dwordx4 {vr(gx,4)}, v{v.lin}, {sr(sX)}, s5 offen")
        if endthr: A(f"s_sub_u32 s{sThr}, s{sThr}, {endthr}")
        sta()
        A("s_branch L_side4")
        A("L_side0:")
    if wot: A(f"buffer_load_dwordx4 {vr(gx,4)}, v{v.lin}, {sr(sX)}, s5 offen")
    A(f"buffer_load_dwordx4 {vr(gx,4)}, v{v.lin}, {sr(sX)}, s5 offen")
    A(f"buffer_load_dwordx4 {vr(gx+4,4)}, v{v.lin}, {sr(sGW)}, 0 offen")
    A("L_side4:")
    A(f"s_cmp_lg_u32 s{sFast}, 0")
    A("s_cbranch_scc1 L_side1")
    mlld("sc1")
    A("s_branch L_sidebody")
    A("L_side1:")
    mlld("nt")
    A("L_sidebody:")
    assert itml < 15
    body("V", procV, whi if sidehi else waits, 6 if wot else 5)
    A("s_branch L_vloop")
    for nm, ld, back in (("ml", mlld, "L_mlchk"), ("oa", oald, "L_oachk")):
        A(f"L_{nm}retry:")
        spinchk()
        A(f"s_cmp_lg_u32 s{sFast}, 0")
        A(f"s_cbranch_scc0 L_{nm}retry_slow")
        ld("nt")
        A("s_waitcnt vmcnt(0)")
        A(f"s_branch {back}")
        A(f"L_{nm}retry_slow:")
        ld("sc1")
        A("s_waitcnt vmcnt(0)")
        A(f"s_branch {back}")
    A("; ---- far behind: refill every slot as soon as it is consumed ----")
    if turbo:
        for nm, kind, proc in (("k", "K", procK), ("v", "V", procV)):
            A(f"L_{nm}turbo:")
            free = 8 - P
            for k in range(free): issue(k, kind, k, loop=True)
            for k in range(8):
                issued_ = min(8, free + k)
                n = (P - 1 - k) + 2 + issued_ if k < P else issued_ - 1 - (k - P)
                A(f"s_waitcnt vmcnt({n})")
                mark = len(L)
                proc(16 + k - P, (k - P) & 7)
                if free + k < 8:
                    nm_ = 1 if kind == "K" else 2
                    rest = L[mark + nm_:]; del L[mark + nm_:]
                    issue(free + k, kind, free + k, loop=True)
                    L.extend(rest)
                if k == 7:
                    A(f"s_add_u32 s{sCnt}, s{sCnt}, 1")
                    sdep(sNo, sCnt, "n", 4, True, 4); xall and A(f"s_xor_b32 s{sNo}, s{sNo}, s{sXm}")
            A(f"s_cmp_lg_u32 s{sCnt}, 16")
            A(f"s_cbranch_scc1 L_{nm}loop")
            A(f"s_branch L_{nm}done")
    A("; ---- checkpoint: arrival rank of this XCD -> number of virtual neighbours ahead ----")
    for nm in ("k", "v"):
        A(f"L_{nm}ctl:")
        A("s_cmp_lg_u32 s5, 0")
        A(f"s_cbranch_scc1 L_{nm}ctl2")
        A(f"s_lshl_b32 s5, s{sJ}, 8")
        A(f"s_add_u32 s5, s5, {WS_C + 256:#x}")
        A(f"s_mov_b32 s{sRk}, 1")
        A(f"s_atomic_add s{sRk}, {sr(sWS,2)}, s5 glc")
        A(f"s_branch L_{nm}ctlb")
        A(f"L_{nm}ctl2:")
        A(f"s_lshl_b32 s5, s{sE}, 12")
        A("s_waitcnt lgkmcnt(0)")
        A(f"s_sub_u32 s{sRk}, s{sRk}, s5")
        A(f"s_cmp_ge_u32 s{sRk}, 8")
        A(f"s_cbranch_scc1 L_{nm}ctlb")
        A(f"s_lshl_b32 s{sRk}, s{sRk}, 2")
        A(f"s_lshr_b32 s{sRk}, {sum(x << (4*k) for k, x in enumerate(xtab)):#x}, s{sRk}")
        A(f"s_and_b32 s{sRk}, s{sRk}, 15")
        A(f"s_add_u32 s{sRk}, s{sRk}, 32")
        A("s_add_u32 s5, s5, 63")
        A(f"v_cmp_gt_u32 vcc, s{sRk}, v0")
        A(f"v_mov_b32 v{t+8}, s5")
        A(f"v_add_u32 v{t+11}, 0x800, v{t+8}")
        A(f"v_cndmask_b32 v{t+8}, v{t+11}, v{t+8}, vcc")
        A("s_mov_b32 exec_lo, 0")
        A(f"buffer_store_dword v{t+8}, v{v.br}, {sr(sWS)}, 0 offen")
        A("s_mov_b32 exec_lo, -1")
        A(f"s_branch L_{nm}ctlb")
    A("L_pubml:")
    mlread()
    A(f"v_lshl_add_u32 v{v.y0}, v{t+6}, 2, v{t+7}")
    A(f"s_and_b32 s4, s{sJ}, 15")
    A(f"v_cmp_eq_u32 vcc, s4, v{v.y0}")
    A("s_waitcnt lgkmcnt(0)")
    A(f"v_max3_f32 v{v.y0}, v{v.D}, v{v.D+2}, v{v.D+4}")
    A(f"v_max_f32 v{v.y0}, v{v.y0}, v{v.D+6}")
    A(f"v_mul_f32 v{v.y1}, s{sL2E}, v{v.y0}")
    for w in range(4): A(f"v_fma_f32 v{v.D+2*w}, v{v.D+2*w}, s{sL2E}, -v{v.y1}")
    for w in range(4): A(f"v_exp_f32 v{v.D+2*w}, v{v.D+2*w}")
    A(f"v_mul_f32 v{v.D+1}, v{v.D}, v{v.D+1}")
    for w in range(1, 4): A(f"v_fmac_f32 v{v.D+1}, v{v.D+2*w}, v{v.D+2*w+1}")
    A(f"v_or_b32 v{v.D}, s{sTag}, v{v.y0}")
    A(f"v_and_or_b32 v{v.D+1}, v{v.D+1}, v{c00}, s{sTag+1}")
    A(f"v_mov_b32 v{v.D+2}, s{sTag+2}")
    A(f"v_mov_b32 v{v.D+3}, s{sTag+3}")
    A("s_mov_b64 exec, vcc")
    A(f"s_cmp_lg_u32 s{sFast}, 0")
    A("s_cbranch_scc0 L_pubml_slow")
    A(f"buffer_store_dwordx4 {vr(v.D,4)}, v{v.aML}, {sr(sWS)}, 0 offen")
    A("s_mov_b64 exec, -1")
    A("s_branch L_vent")
    A("L_pubml_slow:")
    A(f"buffer_store_dwordx4 {vr(v.D,4)}, v{v.aML}, {sr(sWS)}, 0 offen sc1")
    A("s_mov_b64 exec, -1")
    A("s_branch L_vent")
    A("L_puba:")
    stageA(0, oA)
    if aearly: sta()
    A("s_branch L_vent")
    A("L_sta_slow:")
    A(f"buffer_store_dwordx4 {vr(oA,4)}, v{aSO}, {sr(sWS)}, 0 offen sc1")
    A("s_branch L_sta_back")
    A("L_lda_slow:")
    oald("sc1")
    A("s_branch L_lda_back")
    A("L_qslow:")
    A(f"s_cmp_lg_u32 s{sWave}, 0")
    A("s_cbranch_scc1 L_qretry")
    A(f"buffer_store_dword v{v.e0}, v{v.e1}, {sr(sWS)}, 0 offen sc1")
    A("L_qretry:")
    spinchk(); qpoll()
    A("s_waitcnt vmcnt(0)")
    qacc()
    A(f"v_and_b32 v{t+10}, 0x1fff, v{t+8}")
    A(f"v_cmp_ne_u32 vcc, 0, v{t+10}")
    A("s_cbranch_vccnz L_qretry")
    A(f"v_and_b32 v{t+10}, 0xe000, v{t+8}")
    A("L_last:")
    A(f"v_cmp_ne_u32 vcc, 0, v{t+10}")
    A("s_branch L_qok")
    code_ = []
    cnt = 0; npad = 0; on = False
    for ln in pad([x for x in L if x != "@PAD"]):
        isins = ln.startswith("    ")
        if warm and (("only warms" in (code_[-1] if code_ else "")) or (on and isins and cnt >= warm)):
            on = True; cnt = 0
            code_.append(f"L_pad{npad}:")
            code_.append(f"    s_cbranch_execz @T{npad}")
            npad += 1
        code_.append(ln)
        cnt += isins
    if warm and helper:
        for k in range(npad):
            tgt = "L_end" if k == npad - 1 else ("L_hbar" if k == hbar else f"L_pad{k+1}")
            code_ = [x.replace(f"@T{k}", tgt) if x.endswith(f"@T{k}") else x for x in code_]
        hb = ["L_hbar:"]
        if ht:
            hb += ["    s_mov_b64 exec, -1", "    s_waitcnt lgkmcnt(0)",
                   f"    s_mov_b32 s{sWS+2}, {WS_SZ:#x}", f"    s_mov_b32 s{sWS+3}, 0x20000",
                   "    s_and_b32 s4, s2, 7", "    s_lshr_b32 s5, s2, 3", "    v_lshlrev_b32 v1, 7, v0"]
            if ht & 8: hb += ["    s_barrier"]
            if ht & 1:
                hb += ["    s_lshr_b32 s6, s5, 4", "    s_lshl_b32 s6, s6, 3", "    s_add_u32 s6, s6, s4", "    s_lshl_b32 s6, s6, 4", "    s_and_b32 s7, s5, 15",
                       "    s_add_u32 s6, s6, s7", "    s_lshl_b32 s6, s6, 7", f"    s_add_u32 s6, s6, {WS_ML:#x}", "    s_mov_b64 exec, 1",
                       f"    buffer_load_dword v2, v1, {sr(sWS)}, s6 offen"]
            if ht & 2:
                hb += ["    s_lshl_b32 s6, s4, 5", "    s_add_u32 s6, s6, s5", "    s_lshl_b32 s6, s6, 11", f"    s_add_u32 s6, s6, {WS_O:#x}", "    s_add_u32 s7, s6, 0x80000",
                       "    s_mov_b64 exec, 0xffff", f"    buffer_load_dword v2, v1, {sr(sWS)}, s6 offen", f"    buffer_load_dword v3, v1, {sr(sWS)}, s7 offen"]
            if ht & 4:
                hb += ["    s_lshl_b32 s6, s2, 10", f"    s_add_u32 s6, s6, {WS_P2:#x}", "    s_mov_b64 exec, 0xff", f"    buffer_load_dword v4, v1, {sr(sWS)}, s6 offen"]
            if ht & 16:
                hb += ["    s_lshr_b32 s6, s5, 4", "    s_lshl_b32 s6, s6, 3", "    s_add_u32 s6, s6, s4", "    s_lshl_b32 s6, s6, 5", "    s_and_b32 s7, s5, 15",
                       "    s_add_u32 s6, s6, s7", "    s_lshl_b32 s6, s6, 7", f"    s_add_u32 s6, s6, {WS_Q:#x}", "    s_mov_b64 exec, 0x10001",
                       f"    buffer_load_dword v5, v1, {sr(sWS)}, s6 offen"]
            if wot:
                hb += [f"    s_mov_b32 s{sWO+2}, 0x400000", f"    s_mov_b32 s{sWO+3}, 0x20000", f"    s_mov_b32 s{sWQ}, s14", f"    s_mov_b32 s{sWQ+1}, s15",
                       f"    s_mov_b32 s{sWQ+2}, 0x400000", f"    s_mov_b32 s{sWQ+3}, 0x20000", "    s_lshl_b32 s6, s4, 19", "    s_mov_b64 exec, 1",
                       f"    buffer_load_dword v13, v1, {sr(sWO)}, s6 offen", f"    buffer_load_dword v14, v1, {sr(sWQ)}, s6 offen"]
            if ht & 128:
                hb += [f"    s_mov_b32 s{sOUT}, s18", f"    s_mov_b32 s{sOUT+1}, s19", f"    s_movk_i32 s{sOUT+2}, 0x800", f"    s_mov_b32 s{sOUT+3}, 0x20000", "    s_lshl_b32 s6, s2, 7", "    s_mov_b64 exec, 1",
                       f"    buffer_load_dword v15, v1, {sr(sOUT)}, s6 offen"]
            if ht & 256:
                hb += ["    s_lshl_b32 s6, s2, 22", "    s_mov_b64 exec, 1", f"    buffer_load_dword v16, v1, {sr(sWS)}, s6 offen"]
            if ht & 64:
                hb += [f"    s_mov_b32 s{sGW}, s16", f"    s_mov_b32 s{sGW+1}, s17", f"    s_mov_b32 s{sGW+2}, 1024", f"    s_mov_b32 s{sGW+3}, 0x20000", "    s_mov_b64 exec, 0xff",
                       f"    buffer_load_dword v7, v1, {sr(sGW)}, 0 offen"]
            assert ht & 32
            if ht & 32:
                hb += [f"    s_load_dword s8, {sr(sWS,2)}, 0",
                       "    s_getreg_b32 s6, hwreg(HW_REG_XCC_ID)", "    s_and_b32 s6, s6, 7", "    s_lshl_b32 s6, s6, 12", f"    s_add_u32 s6, s6, {WS_B:#x}", "    s_mov_b64 exec, 3",
                       f"    buffer_load_dword v6, v1, {sr(sWS)}, s6 offen",
                       "    s_barrier", "    s_cmp_ge_u32 s2, 8", "    s_cbranch_scc1 L_hnoinit",
                       "    s_waitcnt vmcnt(0) lgkmcnt(0)", "    s_add_u32 s8, s8, 1", "    s_lshl_b32 s8, s8, 12", "    s_add_u32 s9, s8, 63",
                       "    s_mov_b32 exec_lo, -1", f"    v_cmp_gt_u32 vcc, {k0}, v0", "    v_mov_b32 v8, s9", "    v_add_u32 v9, 0x800, v8", "    v_lshlrev_b32 v10, 2, v0",
                       "    v_cndmask_b32 v8, v9, v8, vcc", f"    buffer_store_dword v8, v10, {sr(sWS)}, s6 offen offset:128",
                       "    s_cmp_lg_u32 s2, 0", "    s_cbranch_scc1 L_hnoinit",
                       "    v_mov_b32 v11, s8", "    v_lshlrev_b32 v12, 8, v0", f"    s_mov_b32 s7, {WS_C + 256:#x}", "    s_mov_b64 exec, 0x7fff",
                       f"    buffer_store_dword v11, v12, {sr(sWS)}, s7 offen sc1",
                       "L_hnoinit:"]
            hb += ["    s_mov_b64 exec, 0"]
        assert not ht & 8
        code_ += hb + [f"    s_branch L_pad{hbar+1}"]
    elif warm:
        i0 = code_.index("L_pad0:"); del code_[i0:i0+2]
        for k in range(1, npad):
            tgt = f"L_pad{k+4}" if k + 4 < npad else "L_wret"
            code_ = [x.replace(f"@T{k}", tgt) if x.endswith(f"@T{k}") else x for x in code_]
        for w in range(4): code_ = [x.replace(f"L_seg{w}", f"L_pad{w+1}") for x in code_]
    ref = open(os.path.join(os.path.dirname(os.path.abspath(__file__)), "header.txt")).read().rstrip("\n").split("\n")
    out = ref + [f"; @launch grid=(256,1,1) block=({320 if (warm and helper) else 256},1,1) lds={L_SZ}",
                 '.amdgcn_target "amdgcn-amd-amdhsa--gfx950"', ".text"] + DOC + [f".globl {KNAME}", ".p2align 8",
                 f".type {KNAME},@function"] + code_
    acc = (NV + 3) // 4 * 4
    out += ['.section .rodata,"a"', ".p2align 6", f".amdhsa_kernel {KNAME}",
            f"  .amdhsa_next_free_vgpr {NV}", "  .amdhsa_next_free_sgpr 102", f"  .amdhsa_accum_offset {acc}",
            "  .amdhsa_group_segment_fixed_size 0", "  .amdhsa_kernarg_size 112", "  .amdhsa_user_sgpr_count 2",
            "  .amdhsa_user_sgpr_kernarg_segment_ptr 1", "  .amdhsa_system_sgpr_workgroup_id_x 1",
            "  .amdhsa_float_denorm_mode_32 3", ".end_amdhsa_kernel"]
    return "\n".join(out) + "\n"

if __name__ == "__main__":
    kw = eval("dict(" + (sys.argv[1] if len(sys.argv) > 1 else "") + ")")
    sys.stdout.write(gen(**kw))
```

```python
import sys, os
sys.path.insert(0, os.path.dirname(os.path.abspath(__file__)))
from hz import pad

KNAME = "gated_mix__gqa_block_cached__gqa_block_cached__decode_kernel"
LOG2E = 0x3fb8aa3b
SCALE = 0x3db504f3

WS_Q  = 0x10000
WS_ML = 0x30000
WS_B  = 0x40000
WS_C  = 0x50000
WS_O  = 0x100000
WS_P2 = 0x80000
WS_ST = 0x300000
WS_SZ = 0x400000
L_T, L_O, L_M, L_P, L_SZ = 0, 32768, 49152, 53248, 57344
DPPM = "row_mask:0xf bank_mask:0xf"
PAT1 = "k0 s0 k1 s1 w0 g0 s3 s2 g1 n3 w1 n1 n2 n0 k2"


DOC = """
; ---------------------------------------------------------------------------------------------------------
; out = g*Attn_A(x) + (1-g)*Attn_B(x), one fused launch, 256 workgroups (one per CU) x 4 streaming waves.
; workgroup w: kv head hkv = w&7, j = w>>3 = (batch b, split s of 16); the 32 workgroups with equal hkv form a "set".
;
; 1. q projection: each workgroup computes 32 columns of x@wq (both batches), rounds to bf16 and hands them to
;    its set. K loads already stream into a register backlog meanwhile.
; 2. four streaming phases K_A, V_A, K_B, V_B (one array at a time chip-wide, keys visited in a DRAM friendly
;    permutation, about five 1-KiB loads in flight per wave, data goes straight from HBM into MFMA operands):
;      K phase: scores = bf16(bf16(q.k)*Dh^-0.5) -> LDS, running max / sum of exp per lane
;      V phase: p = exp(score - max of this wave's keys) (exact max), O += p*V
;    (max, sum) of every workgroup are exchanged inside the set during the V phase.
; 3. tail: partial O * g * exp(m-M)/L -> set; every workgroup adds 16 splits, rounds o to bf16 and multiplies
;    with a 64x128 tile of wo_A and of wo_B; 32 workgroups add the 64 partial rows and store bf16.
;
; Hand-offs through d_ws are self-validating: the low bits of every dword carry a tag derived from an epoch word
; (d_ws[0], read on entry, incremented once at the end), so words left by the harness or an earlier launch are
; never taken for this launch's data. Tags are removed before use: results do not depend on d_ws contents.
; Hand-offs inside a set use the XCD's L2 (plain stores, L1-bypassing loads) only if all 32 workgroups reported
; the same XCC id together with their q columns; under any other placement device-scope (sc1) stores and loads are used.
; The last hand-off is always device scope.
; Load balancing (speed hints only, tagged, set up inside the launch; no result depends on them, nothing ever waits on them):
; a per-XCD line holds the loop counters of the workgroups on that XCD; a wave that finds most neighbours ahead keeps six
; loads in flight instead of five for one iteration (up to eight when a whole iteration behind). At 13 checkpoints one wave
; per XCD draws an arrival rank from a counter; a late XCD gets more "virtual" neighbours ahead, i.e. prefetches deeper.
; Wave 4 is a warm-up wave: it walks the code once with EXEC = 0 (pad to pad, branching around everything) to fill the
; instruction cache, loads (and drops) one dword of the few small lines needed mid-stream, sets the start values of the
; load-balancing hints and exits.
; ---------------------------------------------------------------------------------------------------------
""".strip().split("\n")

def gen(NPL=40, waits=(4,)*8, whi=(5,)*8, wepi=None, R=3, XB=2, XT=2, P0=3, pollak=-1, tlb=2, cpf=1, wosw=1, XQ=0, wcat=(5,)*8, warm=96, hbar=3, helper=1, cpfe=0, c4=1, cwait=1, p2t=0, obt=0, sti=(16, 24, 32), KF=0, KM=0, qt=0, endthr=0, sidehi=0, bpw=None, wolate=0, mlt=0, ht=113, wqp=0, wqf1=None, KI=0, cps=(2,6,10,14,18,21,25,29,33,36,40,44,48), xtab=(2,2,3,4,5,7,9,12), k0=4, cw=3, woil=0, obe=0, pafirst=0, wot=0, woe=0, tlo=None, wmin=(3,)*8, turbo=8, xh=0, xs=0, ksat=15, xlate=0, efl='', ofl='', outfl='', wb=0, lastt=0, lastall=0, qloc=1, lasthi=0, CU=16, bafter=1, aside=1, run64=2, aearly=0, thr=(28, 33), wpro=None, wkv=None, pat=PAT1,
        wqflags="nt", woflags="nt", kvflags="nt", tchflags="nt", fast=1, touch=0, woburst=0, itml=12, wqfirst=0, wodelay=0, wvk=None,
        stamps=False, tst=False, spin=1 << 22, cut=0, probe=0, amp=None, ampat=5):
    P = max(max(waits), max(whi)) + 1
    if wepi is None: wepi = (P - 1,) * 8
    assert run64 == 2 and NPL % 8 == 0 and P + XT <= 8 and 5 <= P <= 6
    pos = {n: 8 + i for i, n in enumerate(pat.split())}
    assert len(pos) == 15
    def dep(c, val, nb): return sum(((val >> i) & 1) << pos[f"{c}{i}"] for i in range(nb))
    L = []
    def A(s): L.append(s)
    class V: pass
    v = V(); nv = [0]
    def valloc(name, n=1, al=1):
        nv[0] = (nv[0] + al - 1) // al * al
        setattr(v, name, nv[0]); nv[0] += n
    for nm in ("tid", "koff", "voff", "lin", "mask0", "mask1"): valloc(nm)
    valloc("T", 2, 2); valloc("TV", 2, 2)
    valloc("m", 2, 2); v.l = v.m + 1
    for nm in ("ta", "mL", "e0", "e1", "e2", "y0", "y1", "z", "p", "pd", "bw", "br", "bv", "bl", "aML", "c00"): valloc(nm)
    valloc("q", 4, 2); valloc("qB", 4, 2); valloc("acc", 8, 2); valloc("D", 8, 2)
    valloc("W", 18, 2)
    valloc("t", 12, 2)
    valloc("buf", max(4 * NPL, 160), 4)
    NV = nv[0]
    assert NV <= 256, NV
    def vr(a, n): return f"v[{a}:{a+n-1}]"
    wqr = v.buf + max(4 * NPL, 160) - 32
    xr = wqr - 16
    wor = v.buf + 32
    gx = v.buf + 64
    sb = v.buf + 72
    mlr = v.buf + 80
    (aWO, aLO, aSO, aPO, aPC, aOUT, gA, gB, F) = range(v.buf + 84, v.buf + 93)
    aLP = aLO
    c00 = v.c00
    bA = v.buf + 96
    oA = v.buf + 112
    aBP = v.buf + 116
    a = v.buf + 118
    assert a + 42 <= NV
    sK, sV, sWQ, sWO, sWS, sX, sGW, sOUT = 20, 24, 28, 32, 36, 40, 44, 48
    sWave, sOff, sCnt, sE, sL2E, sTmp, sTmp2, sSpin, sPh = 3, 52, 53, 54, 55, 56, 57, 58, 59
    sQ1, sQ2, sQ3 = 60, 62, 64
    sHi, sFast = 66, 67
    sTag, sTag16, sNo, sN, sThr = 68, 72, 73, 74, 75
    sKB = 76
    sHkv, sJ = 6, 7
    sQT = 96
    sStamp = 80
    def sr(a, n=4): return f"s[{a}:{a+n-1}]"
    def stamp3(k):
        if amp and ampat == 10 + k: A("s_memrealtime s[82:83]")
        if stamps and tst == 3: A(f"s_memrealtime s[{sStamp+2*k}:{sStamp+2*k+1}]")
    def stamp4(ka, kb):
        if stamps and tst == 4:
            n_ = len(L)
            A(f"s_cmp_lg_u32 s{sPh}, 0")
            A(f"s_cbranch_scc1 L_st{n_}")
            A(f"s_memrealtime s[{sStamp+2*ka}:{sStamp+2*ka+1}]")
            A(f"L_st{n_}:")
            A(f"s_memrealtime s[{sStamp+2*kb}:{sStamp+2*kb+1}]")
    def stamp(k, tail=False):
        if amp and k == ampat and not tail: A("s_memrealtime s[82:83]")
        if tst in (3, 4) and k in (6, 7, 8): return
        if stamps and (k not in (1, 2, 3, 4) or tail == tst or (tst == 2 and tail is True and k in (1, 4))): A(f"s_memrealtime s[{sStamp+2*k}:{sStamp+2*k+1}]")
    def sdep(dst, src, c, nb, first, tmp):
        groups = {}
        for i in range(nb): groups.setdefault(pos[f"{c}{i}"] - i, []).append(i)
        for sh, bits in groups.items():
            d = dst if first else tmp
            A(f"s_and_b32 s{d}, s{src}, {sum(1 << i for i in bits)}")
            A(f"s_lshl_b32 s{d}, s{d}, {sh}")
            if not first: A(f"s_add_u32 s{dst}, s{dst}, s{tmp}")
            first = False

    A(f"{KNAME}:")
    A("s_cmp_ge_u32 s2, 256")
    A("s_cbranch_scc1 L_end")
    stamp(0)
    if probe: A("s_memrealtime s[100:101]")
    if amp: A("s_memrealtime s[80:81]")
    A("s_load_dwordx8 s[60:67], s[0:1], 8")
    A("s_load_dwordx8 s[12:19], s[0:1], 64")
    A(f"s_load_dwordx2 {sr(sX,2)}, s[0:1], 0")
    A(f"s_load_dwordx2 {sr(sWS,2)}, s[0:1], 104")
    A(f"s_load_dwordx4 {sr(sKB)}, s[0:1], 48       ; K_B, V_B")
    t = v.t
    A(f"v_lshrrev_b32 v{t}, 6, v0")
    A(f"v_and_b32 v0, 63, v0")
    A(f"v_readfirstlane_b32 s{sWave}, v{t}")
    if cpfe:
        A("s_getpc_b64 s[84:85]")
        A("L_pc:")
        A(f"s_sub_u32 s84, s84, L_pc-{KNAME}")
        A("s_subb_u32 s85, s85, 0")
        A("s_lshr_b32 s86, s2, 3")
        A("s_lshl_b32 s86, s86, 2")
        A(f"s_add_u32 s86, s86, s{sWave}")
        A("s_lshl_b32 s86, s86, 7")
        A(f"s_min_u32 s86, s86, L_last-{KNAME}")
        if cpfe == 1: A("s_load_dword s87, s[84:85], s86")
    if warm and helper:
        A(f"v_cmp_gt_u32 vcc, 4, v{t}")
        A("s_mov_b64 exec, vcc                         ; wave 4 only warms caches: EXEC = 0, hops pad to pad")
        A("@PAD")
    A(f"v_lshrrev_b32 v{t+1}, 3, v0")
    A(f"v_lshl_add_u32 v{t+2}, v{t}, 3, v{t+1}")
    A(f"v_and_b32 v{t+3}, 7, v0")
    A(f"v_lshlrev_b32 v{t+3}, 3, v{t+3}")
    A(f"v_lshl_add_u32 v{t+3}, v{t+2}, 17, v{t+3}")
    xset = [f"v_bfe_u32 v{t+4}, v0, 2, 1", f"v_lshlrev_b32 v{t+8}, 10, v{t+4}", f"v_lshl_add_u32 v{t+8}, v{t+2}, 5, v{t+8}",
            f"s_movk_i32 s{sX+2}, 0x800", f"s_mov_b32 s{sX+3}, 0x20000"]
    if not xlate: L.extend(xset); xset = []
    A(f"s_and_b32 s{sHkv}, s2, 7")
    A(f"s_lshr_b32 s{sJ}, s2, 3")
    A(f"s_and_b32 s{sTmp}, s{sJ}, 15")
    A(f"s_lshl_b32 s{sTmp}, s{sTmp}, 6")
    A(f"s_lshl_b32 s{sTmp2}, s{sHkv}, 10")
    A(f"s_add_u32 s{sTmp}, s{sTmp}, s{sTmp2}")
    A(f"s_mov_b32 s{sWQ+2}, 0x400000")
    A(f"s_mov_b32 s{sWQ+3}, 0x20000")
    mark_k = len(L)
    A(f"s_lshr_b32 s{sTmp2}, s2, 7")
    A(f"s_lshl_b32 s{sTmp2}, s{sTmp2}, 3")
    A(f"s_add_u32 s{sTmp2}, s{sTmp2}, s{sHkv}")
    A(f"s_lshl_b32 s{sTmp2}, s{sTmp2}, 23")
    A(f"s_mov_b32 s{sK+2}, 0x800000")
    A(f"s_mov_b32 s{sK+3}, 0x20000")
    sdep(sNo, sWave, "w", 2, True, sCnt)
    sdep(sNo, sJ, "s", 4, False, sCnt)
    A(f"v_bfe_u32 v{t+5}, v0, 2, 2")
    A(f"v_lshrrev_b32 v{t+6}, 4, v0")
    A(f"v_and_b32 v{t+7}, 3, v0")
    A(f"v_lshlrev_b32 v{v.lin}, 4, v0")
    A(f"v_lshl_add_u32 v{v.koff}, v{t+6}, 6, s{sNo}")
    A(f"v_lshl_add_u32 v{v.koff}, v{t+7}, 4, v{v.koff}")
    A(f"v_lshl_add_u32 v{v.koff}, v{t+4}, {pos['g0']}, v{v.koff}")
    A(f"v_bfe_u32 v{t+9}, v0, 3, 1")
    A(f"v_lshl_add_u32 v{v.koff}, v{t+9}, {pos['g1']}, v{v.koff}")
    last = [None]
    sXm = 100
    xm = [dep("k", m_ & 7, 3) + dep("n", (m_ >> 3) & 15, 4) for m_ in [(xh >> (7*i)) & 127 for i in range(4)] + [(xs >> (7*i)) & 127 for i in range(4)]]
    xall = 0
    for m_ in xm: xall |= m_
    if xall:
        assert tlb < 3 and p2t != 2
        A(f"s_mov_b32 s{sXm}, 0")
        for i_, m_ in enumerate(xm):
            if m_:
                A(f"s_bitcmp1_b32 s2, {(0, 1, 2, 7, 3, 4, 5, 6)[i_]}")
                A(f"s_cselect_b32 s{sCnt}, {m_:#x}, 0")
                A(f"s_xor_b32 s{sXm}, s{sXm}, s{sCnt}")
    def issue(i, kind, sl, loop=False):
        kd = dep("k", i & 7, 3)
        c = kd if loop else kd + dep("n", i >> 3, 4)
        imm = c & 0xfff & ~xall
        hi = c ^ imm
        if loop:
            if hi == 0: so = f"s{sNo}"
            else:
                if last[0] != ("l", hi): A(f"s_xor_b32 s{sOff}, s{sNo}, {hi:#x}")
                last[0] = ("l", hi); so = f"s{sOff}"
        else:
            if hi == 0: so = f"s{sXm}" if xall else "0"
            else:
                if last[0] != ("c", hi): A(f"s_xor_b32 s{sOff}, s{sXm}, {hi:#x}" if xall else f"s_mov_b32 s{sOff}, {hi:#x}")
                last[0] = ("c", hi); so = f"s{sOff}"
        if i & 7 == 7: last[0] = None
        off = f" offset:{imm}" if imm else ""
        r = v.buf + 4 * sl
        if kind == "K": A(f"buffer_load_dwordx4 {vr(r,4)}, v{v.koff}, {sr(sK)}, {so} offen{off} {kvflags}")
        else:           A(f"buffer_load_dwordx4 {vr(r,4)}, v{v.voff}, {sr(sV)}, {so} offen{off} {kvflags}")
    kset = L[mark_k:]; del L[mark_k:]
    A("s_cmp_ge_u32 s2, 128")
    A("s_waitcnt lgkmcnt(0)")
    A(f"s_cselect_b64 {sr(sWQ,2)}, s[12:13], s[64:65]")
    assert KF == 0 and KM == 0 and KI == 0
    stamp3(1)
    if cpfe == 2: A("s_load_dword s87, s[84:85], s86")
    seq = []
    ik = KF
    if wqp:
        A(f"s_and_b32 s4, s{sJ}, 1")
        A("s_lshl_b32 s5, s4, 16")
        A(f"s_add_u32 s{sTmp}, s{sTmp}, s5")
        A(f"s_xor_b32 s{sCnt}, s{sTmp}, 0x10000")
        A("s_lshl_b32 s4, s4, 4")
        A("s_xor_b32 s5, s4, 16")
        A(f"buffer_load_dwordx4 {vr(xr,4)}, v{t+8}, {sr(sX)}, s4 offen")
        A(f"buffer_load_dwordx4 {vr(xr+4,4)}, v{t+8}, {sr(sX)}, s5 offen")
    for tt in range(16):
        if tt == xlate and not wqp:
            L.extend(xset)
            A(f"buffer_load_dwordx4 {vr(xr,4)}, v{t+8}, {sr(sX)}, 0 offen")
            A(f"buffer_load_dwordx4 {vr(xr+4,4)}, v{t+8}, {sr(sX)}, 0 offen offset:16")
            seq += ["x", "x1"]
        if tt == 2: A(f"s_load_dword s{sE}, {sr(sWS,2)}, 0           ; epoch")
        if tt >= 8 and KI and (tt - 8) % KI == 0:
            issue(ik, "K", ik); ik += 1; seq.append("k")
        so = sCnt if (wqp and tt >= 8) else sTmp
        fl = wqf1 if (wqf1 is not None and tt < 8) else wqflags
        A(f"buffer_load_dwordx2 {vr(wqr+2*tt,2)}, v{t+3}, {sr(sWQ)}, s{so} offen {fl}")
        seq.append(tt)
        if tt < 15: A(f"s_addk_i32 s{so}, 0x2000")
        if tt == ksat: L.extend(kset)
        if tt == 7:
            for k in range(KM):
                issue(ik, "K", ik); ik += 1; seq.append("k")
    assert wqfirst <= 2
    A(f"s_mov_b32 s{sWQ}, s14                      ; this descriptor now serves wo_B")
    A(f"s_mov_b32 s{sWQ+1}, s15")
    if qt:
        A(f"s_lshr_b32 s{sTmp}, s2, 7")
        A(f"s_lshl_b32 s{sTmp}, s{sTmp}, 3")
        A(f"s_add_u32 s{sTmp}, s{sTmp}, s{sHkv}")
        A(f"s_lshl_b32 s{sTmp}, s{sTmp}, 1")
        A(f"s_and_b32 s4, s{sWave}, 1")
        A(f"s_add_u32 s{sTmp}, s{sTmp}, s4")
        A(f"s_lshl_b32 s{sTmp}, s{sTmp}, 4")
        A(f"s_and_b32 s4, s{sJ}, 15")
        A(f"s_add_u32 s{sTmp}, s{sTmp}, s4")
        A(f"s_lshl_b32 s{sTmp}, s{sTmp}, 7")
        A(f"s_add_u32 s{sTmp}, s{sTmp}, {WS_Q:#x}")
        A(f"s_load_dword s101, {sr(sWS,2)}, s{sTmp}")
    A(f"s_add_u32 s{sK}, s60, s{sTmp2}")
    A(f"s_addc_u32 s{sK+1}, s61, 0")
    for k in range(ik, ik + P0): issue(k, "K", k)
    A(f"v_and_b32 v{v.voff}, 0xff, v{v.lin}")
    A(f"v_add_u32 v{v.voff}, s{sNo}, v{v.voff}")
    A(f"v_bfe_u32 v{t+8}, v0, 4, 1")
    A(f"v_lshl_add_u32 v{v.voff}, v{t+8}, {pos['g0']}, v{v.voff}")
    A(f"v_lshrrev_b32 v{t+8}, 5, v0")
    A(f"v_lshl_add_u32 v{v.voff}, v{t+8}, {pos['g1']}, v{v.voff}")
    A(f"s_add_u32 s{sV}, s62, s{sTmp2}")
    A(f"s_addc_u32 s{sV+1}, s63, 0")
    A(f"s_add_u32 s{sKB}, s{sKB}, s{sTmp2}")
    A(f"s_addc_u32 s{sKB+1}, s{sKB+1}, 0")
    A(f"s_add_u32 s{sKB+2}, s{sKB+2}, s{sTmp2}")
    A(f"s_addc_u32 s{sKB+3}, s{sKB+3}, 0")
    sel = xr + 8; bq = xr + 12
    for s_, b0, n_ in ((sV, None, 0x800000), (sWS, None, WS_SZ), (sWO, 66, 0x400000), (sGW, 16, 1024), (sOUT, 18, 2048)):
        if b0 is not None:
            A(f"s_mov_b32 s{s_}, s{b0}")
            A(f"s_mov_b32 s{s_+1}, s{b0+1}")
        A(f"s_mov_b32 s{s_+2}, {n_:#x}")
        A(f"s_mov_b32 s{s_+3}, 0x20000")
    A(f"s_mov_b32 s{sL2E}, {LOG2E:#x}")
    A(f"s_mov_b32 s{sPh}, 0")
    for k, s in ((1, sQ1), (2, sQ2), (3, sQ3)):
        A(f"s_mov_b32 s{s}, {0x11111111 << k:#x}")
        A(f"s_mov_b32 s{s+1}, {0x11111111 << k:#x}")
    A(f"v_mov_b32 v{t+8}, 0xffff")
    A(f"v_mov_b32 v{t+9}, 0xffff0000")
    A(f"v_cndmask_b32 v{v.mask1}, 0, v{t+8}, {sr(sQ2,2)}")
    A(f"v_cndmask_b32 v{v.mask1}, v{v.mask1}, v{t+9}, {sr(sQ3,2)}")
    A(f"v_cndmask_b32 v{v.mask0}, v{t+8}, v{t+9}, {sr(sQ1,2)}")
    A(f"v_cmp_gt_u32 vcc, 2, v{t+7}")
    A(f"v_cndmask_b32 v{v.mask0}, 0, v{v.mask0}, vcc")
    A(f"s_mov_b32 s{sTmp}, 0x01000100")
    A(f"s_mov_b32 s{sTmp2}, 0x03020302")
    A(f"v_mov_b32 v{t+8}, 0x0c0c0c0c")
    A(f"v_bfi_b32 v{sel}, v{v.mask0}, s{sTmp}, v{t+8}")
    A(f"v_bfi_b32 v{sel+1}, v{v.mask1}, s{sTmp}, v{t+8}")
    A(f"v_bfi_b32 v{sel+2}, v{v.mask0}, s{sTmp2}, v{t+8}")
    A(f"v_bfi_b32 v{sel+3}, v{v.mask1}, s{sTmp2}, v{t+8}")
    for k in range(18):
        if k % 4 < 2: A(f"v_mov_b32 v{v.W+k}, 0")
    A(f"v_mov_b32 v{v.m}, 0xff800000")
    A(f"v_mov_b32 v{v.l}, 0")
    A(f"v_mov_b32 v{v.e1}, 0x7ffffff0")
    A(f"v_lshlrev_b32 v{v.ta}, 3, v0")
    A(f"v_lshl_add_u32 v{v.ta}, v{t}, 13, v{v.ta}")
    A(f"v_lshl_add_u32 v{t+8}, v{t}, 10, v{v.lin}")
    A("s_getreg_b32 s8, hwreg(HW_REG_XCC_ID)")
    A("s_and_b32 s8, s8, 7")
    if warm and not helper:
        A("s_mov_b64 exec, 0")
        for w in range(1, 4):
            A(f"s_cmp_eq_u32 s{sWave}, {w}")
            A(f"s_cbranch_scc1 L_seg{w}")
        A("s_branch L_seg0")
        A("L_wret:")
        A("s_mov_b64 exec, -1                          ; only warms")
    i = ik + P0
    for m in range(8):
        A(f"s_waitcnt vmcnt({len(seq) - 1 - max(seq.index(2*m + 1), seq.index('x1')) + i - ik})")
        if m == 0: stamp3(2)
        if m == 7: stamp3(3)
        if m >= 8 - (max(waits) + 1) + P0:
            issue(i, "K", i); i += 1
        for k in range(4):
            A(f"v_perm_b32 v{bq+k}, v{xr+m}, v{xr+m}, v{sel+k}")
        c = "0" if m == 0 else vr(v.D, 4)
        A(f"v_mfma_f32_16x16x32_bf16 {vr(v.D,4)}, {vr(wqr+4*m,4)}, {vr(bq,4)}, {c}")
    stamp(1)
    for k in range(XB):
        issue(i, "K", i); i += 1
    A(f"ds_write_b128 v{t+8}, {vr(v.D,4)} offset:{L_P}")
    A(f"v_bfe_u32 v{t+9}, v0, 4, 1")
    A(f"v_lshlrev_b32 v{t+9}, 8, v{t+9}")
    A(f"v_lshrrev_b32 v{t+10}, 5, v0")
    A(f"v_lshl_add_u32 v{t+9}, v{t+10}, 6, v{t+9}")
    A(f"v_lshl_add_u32 v{t+9}, v{t+7}, 4, v{t+9}")
    A(f"v_lshl_add_u32 v{t+9}, v{t+5}, 2, v{t+9}")
    A("s_waitcnt lgkmcnt(0)")
    A("s_barrier")
    A(f"s_add_u32 s{sE}, s{sE}, 1")
    A(f"s_cmp_lg_u32 s{sWave}, 0")
    A("s_cbranch_scc1 L_nopub")
    qr = wqr
    for w in range(4):
        for r1 in range(2):
            A(f"ds_read_b32 v{qr+2*w+r1}, v{t+9} offset:{L_P + 1024*w + 640*r1}")
    A(f"s_lshr_b32 s{sTmp}, s2, 7")
    A(f"s_lshl_b32 s{sTmp}, s{sTmp}, 3")
    A(f"s_add_u32 s{sTmp}, s{sTmp}, s{sHkv}")
    A(f"s_lshl_b32 s{sTmp}, s{sTmp}, 12")
    A(f"s_and_b32 s{sTmp2}, s{sJ}, 15")
    A(f"s_lshl_b32 s{sTmp2}, s{sTmp2}, 7")
    A(f"s_add_u32 s{sTmp}, s{sTmp}, s{sTmp2}")
    A(f"s_add_u32 s{sTmp}, s{sTmp}, {WS_Q:#x}")
    A(f"v_and_b32 v{t+11}, 31, v0")
    A(f"v_lshlrev_b32 v{t+11}, 2, v{t+11}")
    A(f"v_lshl_add_u32 v{t+11}, v{t+10}, 11, v{t+11}")
    A(f"v_mad_u32_u24 v{t+10}, v{t+7}, 6, 7")
    A(f"v_cmp_ne_u32 vcc, 0, v{t+7}")
    A(f"v_lshrrev_b32_e64 v{t+10}, v{t+10}, s{sE}")
    A(f"v_mad_u32_u24 v{t+8}, v{t+7}, 37, s{sE}")
    A(f"v_cndmask_b32 v{t+10}, 0, v{t+10}, vcc")
    A(f"v_add_u32 v{t+10}, v{t+8}, v{t+10}")
    A(f"v_and_b32 v{t+10}, 0x1fff, v{t+10}")
    A(f"v_lshl_or_b32 v{t+10}, s8, 13, v{t+10}")
    A("s_waitcnt lgkmcnt(0)")
    for k in range(4): A(f"v_add_f32 v{qr+k}, v{qr+k}, v{qr+4+k}")
    A(f"v_add_f32 v{qr}, v{qr}, v{qr+2}")
    A(f"v_add_f32 v{qr+1}, v{qr+1}, v{qr+3}")
    A(f"v_add_f32 v{qr}, v{qr}, v{qr+1}")
    A(f"v_cvt_pk_bf16_f32 v{qr}, 0, v{qr}")
    A(f"v_or_b32 v{v.e0}, v{t+10}, v{qr}")
    A(f"v_add_u32 v{v.e1}, s{sTmp}, v{t+11}")
    A(f"buffer_store_dword v{v.e0}, v{v.e1}, {sr(sWS)}, 0 offen{'' if qloc else ' sc1'}")
    A("L_nopub:")
    stamp(2)
    misc = []
    M_ = misc.append
    M_(f"s_lshl_b32 s5, s8, 13")
    for k in range(4):
        M_(f"s_add_u32 s{sTag+k}, s{sE}, {37*k}")
        if k:
            M_(f"s_lshr_b32 s4, s{sE}, {6*k+7}")
            M_(f"s_add_u32 s{sQT+k}, s{sTag+k}, s4")
            M_(f"s_lshr_b32 s4, s{sE}, {8*k}")
            M_(f"s_add_u32 s{sTag+k}, s{sTag+k}, s4")
        M_(f"s_and_b32 s{sQT+k}, s{sQT+k if k else sTag}, 0x1fff")
        M_(f"s_or_b32 s{sQT+k}, s{sQT+k}, s5")
        M_(f"s_and_b32 s{sTag+k}, s{sTag+k}, 0xff")
    M_(f"v_lshl_add_u32 v{t+9}, v{t+5}, 2, v{t+6}")
    M_(f"v_lshlrev_b32 v{t+9}, 7, v{t+9}")
    M_(f"v_lshl_add_u32 v{t+9}, v{t+7}, 5, v{t+9}")
    M_(f"s_lshl_b32 s{sTmp}, s{sHkv}, 1")
    M_(f"s_lshr_b32 s{sTmp2}, s2, 7")
    M_(f"s_add_u32 s{sTmp}, s{sTmp}, s{sTmp2}")
    M_(f"s_lshl_b32 s{sTmp}, s{sTmp}, 11")
    M_(f"s_add_u32 s{sTmp}, s{sTmp}, {WS_Q:#x}")
    M_(f"s_add_u32 s{sTmp2}, s{sTmp}, 32768")
    M_(f"s_mov_b32 s{sSpin}, {spin}")
    if tlb:
        M_(f"s_lshl_b32 s9, s{sWave}, 21")
        M_(f"s_load_dword s10, {sr(sV,2)}, s9")
        M_(f"s_load_dword s11, {sr(sKB,2)}, s9")
        M_(f"s_load_dword s12, {sr(sKB+2,2)}, s9")
        M_(f"s_lshl_b32 s13, s{sHkv}, 19")
        M_(f"s_load_dword s14, {sr(sWO,2)}, s13")
        M_(f"s_load_dword s15, {sr(sWQ,2)}, s13")
        if tlb > 1: M_(f"s_load_dword s16, {sr(sK,2)}, s9")
        if tlb > 2:
            M_(f"s_lshl_b32 s100, s{sJ}, 5")
            M_(f"s_load_dword s100, {sr(sGW,2)}, s100")
        if tlb > 3: M_(f"s_load_dword s101, {sr(sOUT,2)}, 0")
    if cpf and not cpfe:
        M_("s_getpc_b64 s[18:19]")
        M_("L_pc:")
        M_(f"s_sub_u32 s18, s18, L_pc-{KNAME}")
        M_("s_subb_u32 s19, s19, 0")
        M_(f"s_lshl_b32 s17, s{sJ}, 2")
        M_(f"s_add_u32 s17, s17, s{sWave}")
        M_("s_lshl_b32 s17, s17, 7")
        M_(f"s_min_u32 s17, s17, L_last-{KNAME}")
        M_("s_load_dword s17, s[18:19], s17")
    t8 = tuple(thr) * (8 // len(thr))
    M_("s_lshl_b32 s4, s8, 2")
    M_(f"s_lshr_b32 s4, {sum((x - 20) << (4*k) for k, x in enumerate(t8)):#x}, s4")
    M_("s_and_b32 s4, s4, 15")
    M_(f"s_add_u32 s{sThr}, s4, 20")
    sTlo = 19
    if tlo:
        assert tlb < 3
        M_("s_bitcmp1_b32 s8, 0")
        M_(f"s_cselect_b32 s{sTlo}, {tlo[1]}, {tlo[0]}")
    M_("s_lshl_b32 s4, s8, 12")
    M_(f"s_add_u32 s4, s4, {WS_B:#x}")
    M_(f"v_lshl_add_u32 v{v.br}, v0, 2, s4")
    M_(f"v_mov_b32 v{v.bl}, 0x7ffffff0")
    M_(f"s_lshl_b32 s5, s{sWave}, 6")
    M_(f"s_add_u32 s5, s5, s{sJ}")
    M_(f"v_cmp_eq_u32 vcc, s5, v0")
    M_(f"s_lshl_b32 s{sN}, s{sE}, 12")
    M_(f"s_mov_b32 s{sHi}, 0")
    M_(f"v_cndmask_b32 v{v.bw}, v{v.bl}, v{v.br}, vcc")
    M_(f"v_add_u32 v{v.bl}, s{sN}, v{v.bl}")
    sCk, sRk = sTag16, 101
    assert len(cps) <= 15 and max(cps) < 52
    lo = sum(c << (6*k) for k, c in enumerate(cps[:10])); hi = sum(c << (6*k) for k, c in enumerate(cps[10:]))
    M_(f"s_mov_b32 s4, {lo & 0xffffffff:#x}")
    M_(f"s_mov_b32 s5, {lo >> 32:#x}")
    M_(f"s_mul_i32 s{sCk}, s{sJ}, 6")
    M_(f"s_lshr_b64 s[4:5], s[4:5], s{sCk}")
    M_(f"s_sub_u32 s{sCk}, s{sCk}, 60")
    M_(f"s_lshr_b32 s5, {hi:#x}, s{sCk}")
    M_(f"s_cmp_lt_u32 s{sJ}, 10")
    M_("s_cselect_b32 s4, s4, s5")
    M_("s_and_b32 s4, s4, 63")
    M_(f"s_xor_b32 s5, s{sWave}, {cw}")
    M_("s_lshl_b32 s5, s5, 5")
    M_(f"s_add_u32 s5, s5, s{sJ}")
    M_(f"s_cmp_lt_u32 s5, {len(cps)}")
    M_("s_cselect_b32 s4, s4, 0x400")
    M_(f"s_add_u32 s{sCk}, s{sN}, s4")
    M_(f"s_lshl_b32 s4, s{sHkv}, 11")
    M_(f"s_lshr_b32 s5, s2, 7")
    M_("s_lshl_b32 s5, s5, 10")
    M_("s_add_u32 s4, s4, s5")
    M_(f"s_add_u32 s4, s4, {WS_ML:#x}")
    M_(f"v_add_u32 v{v.aML}, s4, v{v.lin}")
    if mlt:
        M_(f"s_and_b32 s5, s{sJ}, 1")
        M_("s_lshl_b32 s5, s5, 2")
        M_(f"s_add_u32 s5, s5, s{sWave}")
        M_("s_lshl_b32 s5, s5, 7")
        M_("s_add_u32 s92, s4, s5")
        M_("s_add_u32 s93, s92, 0x4000")
        M_(f"s_load_dword s94, {sr(sWS,2)}, s92")
        M_(f"s_load_dword s95, {sr(sWS,2)}, s93")
    M_(f"v_mov_b32 v{c00}, 0xffffff00")
    def drain(n):
        for _ in range(n):
            if misc:
                s_ = misc.pop(0); A(s_)
                if s_.startswith(("s_bitcmp", "s_cmp", "s_getpc", "s_sub_u32 s18")): A(misc.pop(0))
    qp = v.acc
    assert v.D == v.acc + 8 and v.qB == v.q + 4
    def qpoll(fl="sc1"):
        A(f"buffer_load_dwordx4 {vr(qp,4)}, v{t+9}, {sr(sWS)}, s{sTmp} offen {fl}")
        A(f"buffer_load_dwordx4 {vr(qp+4,4)}, v{t+9}, {sr(sWS)}, s{sTmp} offen offset:16 {fl}")
        A(f"buffer_load_dwordx4 {vr(qp+8,4)}, v{t+9}, {sr(sWS)}, s{sTmp2} offen {fl}")
        A(f"buffer_load_dwordx4 {vr(qp+12,4)}, v{t+9}, {sr(sWS)}, s{sTmp2} offen offset:16 {fl}")
    ipoll = NPL - P - XQ
    while i < NPL - XQ:
        n = (wpro or waits)[i & 7]
        if i > ipoll and i - n - 1 < ipoll: n += 4
        A(f"s_waitcnt vmcnt({n})")
        if i == ipoll:
            assert not misc
            qpoll("nt" if qloc else "sc1")
        if i in sti: stamp3((4, 6, 7)[sti.index(i)])
        issue(i, "K", i); i += 1
        drain(6 if NPL > 24 else 9)
    A(f"s_waitcnt vmcnt({P})")
    def qacc():
        A(f"v_xor_b32 v{t+8}, s{sQT}, v{qp}")
        for k in range(1, 16): A(f"v_bitop3_b32 v{t+8}, v{qp+k}, s{sQT+(k&3)}, v{t+8} bitop3:0xbe")
    qacc()
    A(f"v_and_b32 v{t+10}, 0xffff, v{t+8}")
    A(f"v_cmp_ne_u32 vcc, 0, v{t+10}")
    A("s_cbranch_vccnz L_qslow")
    A("L_qok:")
    A(f"s_mov_b32 s4, 0x07060302")
    for k in range(8): A(f"v_perm_b32 v{v.q+k}, v{qp+2*k+1}, v{qp+2*k}, s4")
    A("s_cmp_eq_u64 vcc, 0")
    A(f"s_cselect_b32 s{sFast}, {fast}, 0")
    while i < NPL:
        A(f"s_waitcnt vmcnt({(wcat or waits)[i & 7]})")
        issue(i, "K", i); i += 1
    stamp(3)
    def red(u, T):
        D = v.D + 4 * (u & 1)
        A(f"v_add_f32_dpp v{v.y0}, v{D+(u^1)}, v{D+u} quad_perm:[1,0,3,2] {DPPM}")
        A(f"v_add_f32_dpp v{v.y1}, v{D+(u^3)}, v{D+(u^2)} quad_perm:[1,0,3,2] {DPPM}")
        dst = T if u == 0 else v.z
        A(f"v_add_f32_dpp v{dst}, v{v.y1}, v{v.y0} quad_perm:[2,3,0,1] {DPPM}")
        if u: A(f"v_cndmask_b32 v{T}, v{T}, v{v.z}, {sr((sQ1,sQ2,sQ3)[u-1],2)}")
    def finT(par):
        T = v.T + par
        red(3, T)
        A(f"v_cvt_pk_bf16_f32 v{T}, 0, v{T}")
        A(f"v_mul_f32 v{T}, {SCALE:#x}, v{T}")
        A(f"v_cvt_pk_bf16_f32 v{T}, 0, v{T}")
        if par:
            A(f"v_mul_f32 v{v.e2}, s{sL2E}, v{v.m}")
            A(f"v_max3_f32 v{v.m}, v{v.T}, v{v.T+1}, v{v.m}")
            A(f"ds_write_b64 v{v.ta}, {vr(v.T,2)}")
            A(f"v_mul_f32 v{v.p}, s{sL2E}, v{v.m}")
            A(f"v_add_u32 v{v.ta}, 512, v{v.ta}")
            A(f"v_fma_f32 v{v.e0}, v{v.T}, s{sL2E}, -v{v.p}")
            A(f"v_fma_f32 v{v.e1}, v{v.T+1}, s{sL2E}, -v{v.p}")
            A(f"v_sub_f32 v{v.e2}, v{v.e2}, v{v.p}")
    def lacc():
        A(f"v_exp_f32 v{v.e0}, v{v.e0}")
        A(f"v_exp_f32 v{v.e2}, v{v.e2}")
        A(f"v_exp_f32 v{v.e1}, v{v.e1}")
        A(f"v_fma_f32 v{v.l}, v{v.l}, v{v.e2}, v{v.e0}")
        A(f"v_add_f32 v{v.l}, v{v.l}, v{v.e1}")
    def procK(j, sl):
        u = j & 3
        A(f"v_mfma_f32_16x16x32_bf16 {vr(v.D+4*(u&1),4)}, {vr(v.buf+4*sl,4)}, {vr(v.q,4)}, 0")
        if u >= 1: red(u - 1, v.T + ((j >> 2) & 1))
        elif j > 0: finT(((j >> 2) - 1) & 1)
        if j & 7 == 1 and j > 1: lacc()
    def ands(u):
        w = v.W + 2 + 4 * u
        A(f"v_and_b32_dpp v{w}, v{v.pd}, v{v.mask0} quad_perm:[{u},{u},{u},{u}] {DPPM}")
        A(f"v_and_b32_dpp v{w+1}, v{v.pd}, v{v.mask1} quad_perm:[{u},{u},{u},{u}] {DPPM}")
    def prep(par, nextread=True):
        if par == 0: A("s_waitcnt lgkmcnt(0)")
        A(f"v_fma_f32 v{v.p}, v{v.TV+par}, s{sL2E}, -v{v.mL}")
        A(f"v_exp_f32 v{v.p}, v{v.p}")
        if par == 1 and nextread:
            A(f"v_add_u32 v{v.ta}, 512, v{v.ta}")
            A(f"ds_read_b64 {vr(v.TV,2)}, v{v.ta}")
        A(f"v_cvt_pk_bf16_f32 v{v.pd}, v{v.p}, v{v.p}")
        ands(0)
    def procV(j, sl, end=False):
        u = j & 3
        w = v.W + 4 * u
        A(f"v_mfma_f32_16x16x32_bf16 {vr(v.acc,4)}, {vr(v.buf+4*sl,4)}, {vr(w+2,4)}, {vr(v.acc,4)}")
        A(f"v_mfma_f32_16x16x32_bf16 {vr(v.acc+4,4)}, {vr(v.buf+4*sl,4)}, {vr(w,4)}, {vr(v.acc+4,4)}")
        if end and j >= 124: return
        if u < 3: ands(u + 1)
        else:
            prep(((j >> 2) + 1) & 1, nextread=not (end and j == 123))
            if end and j == 123:
                ands(1); ands(2); ands(3)
    def allred(op, r, tmp):
        A(f"{op}_dpp v{r}, v{r}, v{r} quad_perm:[1,0,3,2] {DPPM}")
        A(f"{op}_dpp v{r}, v{r}, v{r} quad_perm:[2,3,0,1] {DPPM}")
        A(f"v_mov_b32 v{tmp}, v{r}")
        A(f"v_permlane16_swap_b32 v{tmp}, v{r}")
        A(f"{op} v{r}, v{r}, v{tmp}")
        A(f"v_mov_b32 v{tmp}, v{r}")
        A(f"v_permlane32_swap_b32 v{tmp}, v{r}")
        A(f"{op} v{r}, v{r}, v{tmp}")
    def accaddr():
        A(f"s_lshl_b32 s4, s{sPh}, 2")
        A(f"s_add_u32 s4, s4, s{sWave}")
        A(f"s_lshl_b32 s5, s4, 11")
        A(f"v_add_u32 v{t+9}, s5, v{v.lin}")
    def accout():
        A(f"ds_write_b128 v{t+9}, {vr(v.acc,4)} offset:{L_O}")
        A(f"ds_write_b128 v{t+9}, {vr(v.acc+4,4)} offset:{L_O+1024}")
    def strip(base, first, emit=None):
        E = emit or A
        for r in range(4): E(f"v_xor_b32 v{base+r}, s{sTag+r}, v{base+r}")
        if first: E(f"v_or_b32 v{t+11}, v{base}, v{base+1}")
        else: E(f"v_or3_b32 v{t+11}, v{base}, v{base+1}, v{t+11}")
        E(f"v_or3_b32 v{t+11}, v{base+2}, v{base+3}, v{t+11}")
    def check(label):
        A(f"v_and_b32 v{t+11}, 0xff, v{t+11}")
        A(f"v_cmp_ne_u32 vcc, 0, v{t+11}")
        A(f"s_cbranch_vccnz {label}")
    A("; ---- catch-up: consume the backlog while the stream goes on ----")
    slotof = {k: k for k in range(NPL)}
    def newslot(i): return (i - NPL) if i < NPL + CU else (i & 7)
    j = 0
    landed = i - P
    while not (j == i - P and i % 8 == 0 and j >= NPL + (CU if CU > 8 else 0)):
        s = newslot(i)
        own = max(k for k in slotof if slotof[k] == s)
        while j <= own:
            assert j < landed, "catch-up needs data not yet landed"
            procK(j, slotof[j]); j += 1
        A(f"s_waitcnt vmcnt({(wcat or waits)[i&7]})")
        landed = max(landed, i - (wcat or waits)[i & 7])
        slotof[i] = s
        issue(i, "K", s); i += 1
        n = 0
        while n < R and j < i - P:
            assert j < landed
            procK(j, slotof[j]); j += 1; n += 1
    assert i < 128
    def enter(n):
        A(f"s_mov_b32 s{sCnt}, {n}")
        A(f"s_xor_b32 s{sNo}, s{sXm}, {dep('n', n, 4):#x}" if xall else f"s_mov_b32 s{sNo}, {dep('n', n, 4):#x}")
    enter(i // 8)
    stamp(4); stamp3(8)
    def body(kind, proc, ww, extra):
        for k in range(8):
            n = ww[k] + (extra if k <= ww[k] else 0)
            issue(k, kind, k, loop=True)
            L.insert(len(L) - 1, f"s_waitcnt vmcnt({n})")
            if k == 7:
                A(f"s_add_u32 s{sCnt}, s{sCnt}, 1")
                sdep(sNo, sCnt, "n", 4, True, 4); xall and A(f"s_xor_b32 s{sNo}, s{sNo}, s{sXm}")
            proc(16 + k - P, (k - P) & 7)
    def loop(name, kind, proc):
        A(".p2align 6")
        A(f"L_{name}loop:")
        dd = t + 2 if turbo else v.bv
        A(f"v_subrev_u32 v{dd}, s{sN}, v{v.bl}")
        A(f"s_add_u32 s{sN}, s{sN}, 1")
        A(f"v_cmp_gt_u32 vcc, 64, v{dd}")
        A(f"v_mov_b32 v{v.bv}, s{sN}")
        A(f"s_bcnt1_i32_b64 s4, vcc")
        A(f"buffer_store_dword v{v.bv}, v{v.bw}, {sr(sWS)}, 0 offen")
        A(f"buffer_load_dword v{v.bl}, v{v.br}, {sr(sWS)}, 0 offen nt")
        A(f"s_sub_u32 s5, s{sN}, s{sCk}")
        A("s_cmp_lt_u32 s5, 2")
        A(f"s_cbranch_scc1 L_{name}ctl")
        A(f"L_{name}ctlb:")
        if kind == "V":
            A(f"s_cmp_eq_u32 s{sCnt}, {itml}")
            A("s_cbranch_scc1 L_side")
        if lastt and kind == "V" and not lastall:
            A(f"s_lshl_b32 s5, s{sPh}, 4")
            A(f"s_add_u32 s5, s5, s{sCnt}")
            A(f"s_cmp_ge_u32 s5, {32 - lastt}")
            A(f"s_cbranch_scc1 L_{name}turbo")
        if lastt and lastall:
            A(f"s_cmp_ge_u32 s{sCnt}, {16 - lastt}")
            A(f"s_cbranch_scc1 L_{name}turbo")
        if lasthi:
            A(f"s_cmp_ge_u32 s{sCnt}, {16 - lasthi}")
            A(f"s_cbranch_scc1 L_{name}hi")
        A(f"s_cmp_ge_u32 s4, s{sThr}")
        A(f"s_cbranch_scc1 L_{name}hi")
        if tlo:
            A("s_sub_u32 s4, s4, 1")
            A(f"s_cmp_lt_u32 s4, s{sTlo}")
            A(f"s_cbranch_scc1 L_{name}min")
        for ver, ww in ((("lo", waits), ("min", wmin), ("hi", whi)) if tlo else (("lo", waits), ("hi", whi))):
            if ver == "min": A(f"L_{name}min:")
            if ver == "hi":
                A(f"L_{name}hi:")
                if stamps: A(f"s_add_u32 s{sHi}, s{sHi}, 1")
                if turbo:
                    A(f"v_add_u32 v{dd}, -1, v{dd}")
                    A(f"v_cmp_gt_u32 vcc, 63, v{dd}")
                    A("s_bcnt1_i32_b32 s4, vcc_lo")
                    A(f"s_cmp_ge_u32 s4, {max(turbo, 0)}")
                    A(f"s_cbranch_scc1 L_{name}turbo")
            body(kind, proc, ww, 2)
            A(f"s_cmp_lg_u32 s{sCnt}, 16")
            A(f"s_cbranch_scc1 L_{name}loop")
            if ver != "hi": A(f"s_branch L_{name}done")
        A(f"L_{name}done:")
    A("; ---- K loop (lo: 5 loads in flight, hi: 6) ----")
    loop("k", "K", procK)
    stamp4(1, 6)
    wk = wkv or waits
    for k in range(P):
        A(f"s_waitcnt vmcnt({wk[k]})")
        issue(k, "V", k)
        procK(128 + k - P, (k - P) & 7)
        if k == 0:
            A(f"v_subrev_u32 v{t+10}, {512*15}, v{v.ta}")
            A(f"ds_read_b64 {vr(v.TV,2)}, v{t+10}")
        if k == 1:
            for r in range(8): A(f"v_mov_b32 v{v.acc+r}, 0")
    for k in range(P, P + XT): issue(k, "V", k)
    finT(1)
    A(f"v_mov_b32 v{v.z}, v{v.p}")
    A(f"v_mov_b32 v{v.ta}, v{t+10}")
    allred("v_max_f32", v.m, v.y0)
    A(f"v_mul_f32 v{v.mL}, s{sL2E}, v{v.m}")
    prep(0)
    sv = L[:]; del L[:]
    lacc()
    A(f"v_sub_f32 v{v.z}, v{v.z}, v{v.mL}")
    A(f"v_exp_f32 v{v.z}, v{v.z}")
    A(f"s_lshl_b32 s5, s{sPh}, 11")
    A(f"s_lshl_b32 s4, s{sWave}, 9")
    A(f"v_mul_f32 v{v.l}, v{v.l}, v{v.z}")
    A(f"s_add_u32 s4, s4, s5")
    A(f"v_lshl_add_u32 v{t+9}, v0, 3, s4")
    allred("v_add_f32", v.l, v.y0)
    A(f"ds_write_b64 v{t+9}, {vr(v.m,2)} offset:{L_M}")
    A(f"v_lshl_add_u32 v{t+10}, v0, 3, s5")
    misc.extend(L); del L[:]; L.extend(sv)
    issued = P + XT
    for k in range(P, 8):
        if k == 7: drain(99)
        if k >= issued:
            A(f"s_waitcnt vmcnt({wk[k]})")
            issue(k, "V", k); issued += 1
        else:
            A(f"s_waitcnt vmcnt({issued - 1 - (k - P)})")
        procV(k - P, k - P)
    A("s_waitcnt lgkmcnt(0)")
    A("s_barrier")
    A(f"s_cmp_eq_u32 s{sWave}, 3")
    A("s_cbranch_scc1 L_pubml")
    A(f"s_lshl_b32 s4, s{sPh}, 1")
    A(f"s_cmp_lt_u32 s{sWave}, s4")
    A("s_cbranch_scc1 L_puba")
    A("L_vent:")
    enter(1)
    stamp4(2, 7)
    A("; ---- V loop ----")
    loop("v", "V", procV)
    stamp4(3, 8)
    A("L_mlchk:")
    strip(mlr, True)
    check("L_mlretry")
    def mlread():
        A(f"ds_read2st64_b64 {vr(v.D,4)}, v{t+10} offset0:{L_M//512} offset1:{L_M//512+1}")
        A(f"ds_read2st64_b64 {vr(v.D+4,4)}, v{t+10} offset0:{L_M//512+2} offset1:{L_M//512+3}")
    mlread()
    def fact(E):
        sv = L[:]; del L[:]
        A(f"v_mov_b32 v{mlr+2}, v{mlr}")
        allred("v_max_f32", mlr + 2, mlr + 3)
        A(f"v_mul_f32 v{mlr+2}, s{sL2E}, v{mlr+2}")
        A(f"v_fma_f32 v{mlr}, v{mlr}, s{sL2E}, -v{mlr+2}")
        A("s_waitcnt lgkmcnt(0)")
        for w in range(4): A(f"v_fma_f32 v{F+w}, v{v.D+2*w}, s{sL2E}, -v{mlr+2}")
        A(f"v_exp_f32 v{mlr}, v{mlr}")
        for w in range(4): A(f"v_exp_f32 v{F+w}, v{F+w}")
        A(f"v_mul_f32 v{mlr+1}, v{mlr+1}, v{mlr}")
        allred("v_add_f32", mlr + 1, mlr + 3)
        A(f"v_rcp_f32 v{mlr+1}, v{mlr+1}")
        code = L[:]; del L[:]; L.extend(sv)
        for c_ in code: E(c_)
    def gatef(E, g):
        E(f"v_mul_f32 v{mlr+1}, v{mlr+1}, v{g}")
        for w in range(4): E(f"v_mul_f32 v{F+w}, v{F+w}, v{mlr+1}")
    A(f"s_cmp_lg_u32 s{sPh}, 0")
    A("s_cbranch_scc1 L_epi")
    A(f"s_mov_b32 s{sK}, s{sKB}")
    A(f"s_mov_b32 s{sK+1}, s{sKB+1}")
    A(f"s_mov_b32 s{sV}, s{sKB+2}")
    A(f"s_mov_b32 s{sV+1}, s{sKB+3}")
    accaddr()
    fact(M_)
    ga = a
    for k in range(4):
        M_(f"v_lshlrev_b32 v{ga+2*k}, 16, v{gx+k}")
        M_(f"v_and_b32 v{ga+2*k+1}, 0xffff0000, v{gx+k}")
        M_(f"v_lshlrev_b32 v{ga+8+2*k}, 16, v{gx+4+k}")
        M_(f"v_and_b32 v{ga+8+2*k+1}, 0xffff0000, v{gx+4+k}")
    for k in range(8): M_(f"v_mul_f32 v{ga+k}, v{ga+k}, v{ga+8+k}")
    for k in range(8): M_(f"v_cvt_pk_bf16_f32 v{ga+k}, 0, v{ga+k}")
    for k in range(4): M_(f"v_add_f32 v{ga+k}, v{ga+k}, v{ga+4+k}")
    M_(f"v_add_f32 v{ga}, v{ga}, v{ga+2}")
    M_(f"v_add_f32 v{ga+1}, v{ga+1}, v{ga+3}")
    M_(f"v_add_f32 v{ga}, v{ga}, v{ga+1}")
    M_(f"v_add_f32_dpp v{ga}, v{ga}, v{ga} row_ror:4 {DPPM}")
    M_(f"v_add_f32_dpp v{ga}, v{ga}, v{ga} row_ror:8 {DPPM}")
    sv = L[:]; del L[:]; allred("v_add_f32", ga, ga + 1); code = L[:]; del L[:]; L.extend(sv)
    for c_ in code: M_(c_)
    M_(f"v_cvt_pk_bf16_f32 v{ga}, 0, v{ga}")
    M_(f"v_mul_f32 v{ga}, {LOG2E | 0x80000000:#x}, v{ga}")
    M_(f"v_exp_f32 v{ga}, v{ga}")
    M_(f"v_add_f32 v{ga}, 1.0, v{ga}")
    M_(f"v_rcp_f32 v{ga}, v{ga}")
    M_(f"v_cvt_pk_bf16_f32 v{gA}, 0, v{ga}")
    M_(f"v_sub_f32 v{gB}, 1.0, v{gA}")
    M_(f"v_cvt_pk_bf16_f32 v{gB}, 0, v{gB}")
    gatef(M_, gA)
    M_(f"s_lshr_b32 s8, s{sJ}, 3")
    M_(f"s_bfe_u32 s9, s{sJ}, 0x10002")
    M_(f"s_and_b32 s10, s{sJ}, 3")
    M_(f"s_lshl_b32 s12, s{sHkv}, 2")
    M_("s_add_u32 s12, s12, s8")
    M_("s_lshl_b32 s12, s12, 2")
    M_(f"s_add_u32 s12, s12, s{sWave}")
    M_("s_lshl_b32 s12, s12, 3")
    M_("s_add_u32 s12, s12, s9")
    M_("s_lshl_b32 s12, s12, 4")
    M_("s_add_u32 s12, s12, s10")
    M_("s_lshl_b32 s12, s12, 8")
    M_(f"v_and_b32 v{aWO}, 0xff, v{v.lin}")
    M_(f"v_lshl_add_u32 v{aWO}, v{t+6}, 10, v{aWO}")
    M_(f"v_add_u32 v{aWO}, s12, v{aWO}")
    M_(f"s_lshl_b32 s13, s{sWave}, 10")
    M_(f"v_add_u32 v{aLO}, s13, v{v.lin}")
    M_(f"s_lshl_b32 s12, s{sHkv}, 16")
    M_(f"s_add_u32 s12, s12, {WS_O:#x}")
    M_(f"s_lshl_b32 s13, s{sWave}, 13")
    M_("s_add_u32 s13, s13, s12")
    M_(f"s_lshr_b32 s14, s{sWave}, 1")
    M_("s_lshl_b32 s14, s14, 28")
    M_("s_add_u32 s13, s13, s14")
    M_(f"s_and_b32 s14, s{sJ}, 1")
    M_("s_lshl_b32 s14, s14, 10")
    M_("s_add_u32 s13, s13, s14")
    M_(f"s_lshr_b32 s14, s{sJ}, 1")
    M_(f"s_lshl_b32 s14, s14, {6 if run64 else 4}")
    M_("s_add_u32 s13, s13, s14")
    M_(f"v_lshl_add_u32 v{aSO}, v{t+5}, 14, s13")
    M_(f"v_lshl_add_u32 v{aSO}, v{t+6}, 11, v{aSO}")
    M_(f"v_lshl_add_u32 v{aSO}, v{t+7}, {4 if run64 else 8}, v{aSO}")
    M_(f"s_lshr_b32 s11, s{sJ}, 2")
    M_("s_lshl_b32 s13, s11, 2")
    M_(f"s_add_u32 s13, s13, s{sWave}")
    M_("s_lshl_b32 s13, s13, 11")
    M_("s_add_u32 s13, s13, s12")
    if run64 == 2:
        M_(f"v_bfe_u32 v{aBP}, v0, 3, 1")
        M_(f"v_lshl_add_u32 v{aBP}, v{aBP}, 5, v{t+6}")
        M_(f"v_lshlrev_b32 v{aBP}, 2, v{aBP}")
        if wosw:
            M_(f"s_and_b32 s14, s{sWave}, 2")
            M_("s_lshl_b32 s14, s14, 5")
            M_(f"v_xor_b32 v{aBP}, s14, v{aBP}")
        M_(f"v_xor_b32 v{aBP+1}, 64, v{aBP}")
    if run64 == 1:
        M_(f"v_and_b32 v{aPO}, 15, v0")
        M_(f"v_lshl_add_u32 v{aPO}, v{aPO}, 6, s13")
        M_(f"v_lshl_add_u32 v{aPO}, v{t+6}, 4, v{aPO}")
    else:
        M_(f"v_add_u32 v{aPO}, s13, v{v.lin}")
    M_(f"v_add_u32 v{v.aML}, 0x4000, v{v.aML}")
    M_("s_lshl_b32 s13, s10, 3")
    M_(f"s_add_u32 s13, s13, s{sHkv}")
    M_("s_lshl_b32 s13, s13, 3")
    M_("s_add_u32 s13, s13, s11")
    M_("s_lshl_b32 s13, s13, 10")
    M_(f"s_add_u32 s16, s13, {WS_P2:#x}")
    M_("s_mov_b32 s17, 0x80000")
    if p2t == 2:
        M_(f"s_lshl_b32 s13, s{sWave}, 8")
        M_("s_add_u32 s18, s13, s16")
        M_("s_add_u32 s19, s18, 128")
        M_(f"s_load_dword s100, {sr(sWS,2)}, s18")
        M_(f"s_load_dword s101, {sr(sWS,2)}, s19")
    M_(f"s_lshl_b32 s13, s{sJ}, 16")
    M_(f"s_lshl_b32 s14, s{sHkv}, 7")
    M_("s_add_u32 s13, s13, s14")
    M_(f"s_add_u32 s13, s13, {WS_P2:#x}")
    if c4:
        M_(f"s_lshl_b32 s14, s{sWave}, 5")
        M_("s_add_u32 s13, s13, s14")
        M_(f"v_and_b32 v{aPC}, 0x10, v{v.lin}")
        M_(f"v_lshrrev_b32 v{aOUT}, 1, v0")
        M_(f"v_lshl_add_u32 v{aPC}, v{aOUT}, 10, v{aPC}")
    else:
        M_(f"v_and_b32 v{aPC}, 0x70, v{v.lin}")
        M_(f"v_lshl_add_u32 v{aPC}, v{t+1}, 10, v{aPC}")
    M_(f"v_add_u32 v{aPC}, s13, v{aPC}")
    M_("s_and_b32 s13, s2, 1")
    M_("s_lshl_b32 s13, s13, 10")
    M_("s_lshr_b32 s14, s2, 1")
    M_("s_lshl_b32 s14, s14, 6")
    M_("s_add_u32 s14, s14, s13")
    if c4:
        M_(f"s_lshl_b32 s13, s{sWave}, 2")
        M_("s_add_u32 s14, s14, s13")
    M_(f"v_and_b32 v{aOUT}, 7, v0")
    M_(f"v_lshl_add_u32 v{aOUT}, v{t+6}, 3, v{aOUT}")
    M_(f"v_lshl_add_u32 v{aOUT}, v{aOUT}, 1, s14")
    M_(f"v_or_b32 v{a}, v{v.mask0}, v{v.mask1}")
    M_(f"v_mov_b32 v{a+1}, 0x0c0c0c0c")
    if wosw:
        M_(f"s_bitcmp1_b32 s{sWave}, 0")
        M_("s_cselect_b32 s12, 0x02020202, 0")
        M_("s_xor_b32 s13, s12, 0x03020302")
        M_("s_xor_b32 s12, s12, 0x01000100")
        for k in range(4):
            M_(f"s_xor_b32 s{sKB+k}, s{sWave}, {k}")
            M_(f"s_lshl_b32 s{sKB+k}, s{sKB+k}, 13")
    else:
        M_("s_mov_b32 s12, 0x01000100")
        M_("s_mov_b32 s13, 0x03020302")
        for k in range(4): M_(f"s_mov_b32 s{sKB+k}, {k << 13}")
    M_(f"v_bfi_b32 v{a+2}, v{a}, s12, v{a+1}")
    M_(f"v_bfi_b32 v{a+3}, v{a}, s13, v{a+1}")
    M_(f"v_bfe_u32 v{a}, v0, 1, 2")
    for d in range(4):
        M_(f"v_cmp_eq_u32 vcc, {d}, v{a}")
        M_(f"v_cndmask_b32 v{sb+d}, v{a+1}, v{a+2}, vcc")
        M_(f"v_cndmask_b32 v{sb+4+d}, v{a+1}, v{a+3}, vcc")
    for k in range(1, 8): M_(f"s_mov_b32 s{8+k}, {8192*k:#x}")
    per = -(-len(misc) // 8)
    for k in range(8):
        A(f"s_waitcnt vmcnt({(wvk or whi)[k]})")
        issue(k, "K", k)
        if k < P:
            procV(128 + k - P, (k - P) & 7, end=True)
            if k == P - 2:
                for r in range(4): A(f"v_mov_b32 v{v.q+r}, v{v.qB+r}")
                A(f"v_mov_b32 v{v.m}, 0xff800000")
                A(f"v_mov_b32 v{v.l}, 0")
                A(f"v_subrev_u32 v{v.ta}, {512*15}, v{v.ta}")
        else:
            procK(k - P, k - P)
            if k == P: accout()
        drain(per)
    def wold(k):
        if woil: k = (k >> 1) + 4 * (k & 1)
        so = f"s{sKB + (k & 3)}"
        A(f"buffer_load_dwordx4 {vr(wor+4*k,4)}, v{aWO}, {sr(sWO if k < 4 else sWQ)}, {so} offen {woflags}")
    assert not misc
    for z in range(woe):
        A(f"s_waitcnt vmcnt({waits[0]})")
        wold(z)
    if stamps and tst == 4: A(f"s_memrealtime s[{sStamp+8}:{sStamp+9}]")
    A(f"s_mov_b32 s{sPh}, 1")
    enter(1)
    A("s_branch L_kloop")
    A("L_epi:")
    if cut in (1, 4):
        A(f"s_mov_b32 s{sWO+2}, 0")
        A(f"s_mov_b32 s{sWQ+2}, 0")
    def sta():
        A(f"s_cmp_lg_u32 s{sFast}, 0")
        A("s_cbranch_scc0 L_sta_slow")
        A(f"buffer_store_dwordx4 {vr(oA,4)}, v{aSO}, {sr(sWS)}, 0 offen {ofl}")
        A("L_sta_back:")
    if not aside and not aearly: sta()
    def oald(fl):
        A(f"buffer_load_dwordx4 {vr(gx,4)}, v{aPO}, {sr(sWS)}, 0 offen {fl}")
        A(f"buffer_load_dwordx4 {vr(gx+4,4)}, v{aPO}, {sr(sWS)}, 0 offen offset:1024 {fl}")
    def oprep(base, frag, E):
        for r in range(4): E(f"v_add_f32 v{base+r}, v{base+r}, v{base+4+r}")
        if run64 == 2:
            for r in range(2): E(f"v_permlane16_swap_b32 v{base+r}, v{base+2+r}")
            for r in range(2): E(f"v_add_f32 v{base+r}, v{base+r}, v{base+2+r}")
            for pm in ("row_ror:4", "row_ror:8"):
                for r in range(2): E(f"v_add_f32_dpp v{base+r}, v{base+r}, v{base+r} {pm} {DPPM}")
            E(f"v_cvt_pk_bf16_f32 v{base+2}, v{base}, v{base+1}")
            E(f"ds_bpermute_b32 v{base}, v{aBP}, v{base+2}")
            E(f"ds_bpermute_b32 v{base+1}, v{aBP+1}, v{base+2}")
            E("s_waitcnt lgkmcnt(0)")
        else:
            for pm in ("quad_perm:[1,0,3,2]", "quad_perm:[2,3,0,1]", "row_half_mirror"):
                for r in range(4): E(f"v_add_f32_dpp v{base+r}, v{base+r}, v{base+r} {pm} {DPPM}")
            E(f"v_cvt_pk_bf16_f32 v{base}, v{base}, v{base+1}")
            E(f"v_cvt_pk_bf16_f32 v{base+1}, v{base+2}, v{base+3}")
        for r in range(4):
            for d in range(4): E(f"v_perm_b32 v{frag+4*r+d}, v{base+(r>>1)}, v{base+(r>>1)}, v{sb+4*(r&1)+d}")
    if aearly:
        A("L_oachk:")
        strip(gx, True)
        strip(gx + 4, False)
        check("L_oaretry")
    accaddr()
    fact(M_)
    gatef(M_, gB)
    if aearly: oprep(gx, bA, M_)
    nwo = woe
    if not pafirst:
        for k in range(woburst): wold(nwo); nwo += 1
    per = -(-len(misc) // (P - 2))
    nx = 0 if (aside or aearly) else 1
    for k in range(-1, P):
        if k >= 0:
            A(f"s_waitcnt vmcnt({(P - 1 - k) + nwo - woe + nx})")
            if nwo < 8 and k >= wodelay: wold(nwo); nwo += 1
        if k == pollak and not aearly:
            afterA = 8 - nwo
            A(f"s_cmp_lg_u32 s{sFast}, 0")
            A("s_cbranch_scc0 L_lda_slow")
            oald("nt")
            A("L_lda_back:")
            nx += 2
            if obe:
                A(f"v_lshlrev_b32 v{a+40}, 7, v0")
                A(f"v_sub_u32 v{a+40}, v{a+40}, v{v.lin}")
                A(f"v_add_u32 v{a+40}, v{a+40}, v{aPO}")
                A("s_mov_b64 exec, 0xffff")
                A(f"buffer_load_dword v{a+40}, v{a+40}, {sr(sWS)}, s17 offen nt")
                A("s_mov_b64 exec, -1")
                nx += 1
        if k < 0:
            if pafirst:
                for z in range(woburst): wold(nwo); nwo += 1
            continue
        procV(128 + k - P, (k - P) & 7, end=True)
        drain(per)
    assert not misc
    while nwo < 8 - wolate: wold(nwo); nwo += 1
    accout()
    stamp(5)
    A(f"s_cmp_ge_u32 s{sWave}, 2")
    A("s_waitcnt lgkmcnt(0)")
    A("s_barrier")
    if cut in (1, 2): A("s_branch L_fin")
    stamp(1, True)
    A("s_cbranch_scc1 L_bfirst" if bafter else "s_cbranch_scc1 L_bsel")
    oo = a
    def stageA(br, dst):
        for w in range(4): A(f"ds_read_b128 {vr(oo+4*w,4)}, v{aLO} offset:{L_O+8192*br+2048*w}")
        A(f"s_cmp_lg_u32 s{sFast}, 0")
        for w in range(4):
            A(f"s_waitcnt lgkmcnt({0 if stamps else 3-w})")
            for r in range(4):
                if w == 0: A(f"v_mul_f32 v{oo+r}, v{oo+r}, v{F}")
                else: A(f"v_fmac_f32 v{oo+r}, v{oo+4*w+r}, v{F+w}")
        for r in range(4): A(f"v_and_or_b32 v{dst+r}, v{oo+r}, v{c00}, s{sTag+r}")
    stageA(1, oo)
    A("s_cbranch_scc0 L_oslow")
    A(f"buffer_store_dwordx4 {vr(oo,4)}, v{aSO}, {sr(sWS)}, s17 offen {ofl}")
    pa = a + 16
    bb = a + 24
    def bpoll(fl):
        A(f"buffer_load_dwordx4 {vr(pa,4)}, v{aPO}, {sr(sWS)}, s17 offen {fl}")
        A(f"buffer_load_dwordx4 {vr(pa+4,4)}, v{aPO}, {sr(sWS)}, s17 offen offset:1024 {fl}")
    A("L_bfirst:")
    stamp(6)
    if not bafter: bpoll("nt")
    A("L_bmfa:")
    while nwo < 8: wold(nwo); nwo += 1
    nb = 0 if bafter else 2
    if not aearly:
        A(f"s_waitcnt vmcnt({afterA + nb})")
        A("L_oachk:")
        strip(gx, True)
        strip(gx + 4, False)
        check("L_oaretry")
        oprep(gx, bA, A)
    def bfirst():
        A(f"s_cmp_lg_u32 s{sFast}, 0")
        A("s_cbranch_scc0 L_bp_slow")
        bpoll("nt")
        A("L_bp_back:")
    if bafter and bpw is None: bfirst()
    A(f"s_waitcnt vmcnt({(6 if bpw is None else 4) - (3 if woil else 0)})")
    for r in range(4):
        c = "0" if r == 0 else vr(v.D, 4)
        A(f"v_mfma_f32_16x16x32_bf16 {vr(v.D,4)}, {vr(wor+4*r,4)}, {vr(bA+4*r,4)}, {c}")
    if bpw is not None:
        A(f"s_waitcnt vmcnt({bpw})")
        bfirst()
    if tst == 2:
        A("s_waitcnt vmcnt(2)")
        stamp(2, 2)
        A("s_waitcnt vmcnt(0)")
        stamp(3, 2)
    A("L_bchk:")
    A("s_waitcnt vmcnt(1)")
    strip(pa, True)
    A("s_waitcnt vmcnt(0)")
    strip(pa + 4, False)
    check("L_bretry")
    A("s_mov_b64 exec, -1")
    stamp(7)
    code = []
    oprep(pa, bb, code.append)
    for c_ in code[:-12]: A(c_)
    for r in range(4):
        for c_ in code[len(code) - 12 + 4 * r: len(code) - 8 + 4 * r]: A(c_)
        A(f"v_mfma_f32_16x16x32_bf16 {vr(v.D,4)}, {vr(wor+16+4*r,4)}, {vr(bb+4*r,4)}, {vr(v.D,4)}")
    A(f"s_cmp_lg_u32 s{sWave}, 0")
    A(f"ds_write_b128 v{aLP}, {vr(v.D,4)} offset:{L_P}")
    stamp(4, True)
    A("s_waitcnt lgkmcnt(0)")
    A("s_barrier")
    A("s_cbranch_scc1 L_cother" if c4 else "s_cbranch_scc1 L_fin")
    for w in range(1, 4): A(f"ds_read_b128 {vr(a+4*w,4)}, v{v.lin} offset:{L_P+1024*w}")
    A("s_cmp_ge_u32 s2, 32")
    A("s_waitcnt lgkmcnt(0)")
    for r in range(4): A(f"v_add_f32 v{a+4+r}, v{a+4+r}, v{v.D+r}")
    for r in range(4): A(f"v_add_f32 v{a+8+r}, v{a+8+r}, v{a+12+r}")
    for r in range(4): A(f"v_add_f32 v{a+4+r}, v{a+4+r}, v{a+8+r}")
    for r in range(4): A(f"v_and_or_b32 v{a+4+r}, v{a+4+r}, v{c00}, s{sTag+r}")
    A(f"buffer_store_dwordx4 {vr(a+4,4)}, v{v.lin}, {sr(sWS)}, s16 offen sc1")
    stamp(2, True)
    A("s_cbranch_scc1 L_fin")
    if amp:
        A("s_cmp_ge_u32 s2, 8")
        A("s_cbranch_scc1 L_noamp")
        A("s_getreg_b32 s84, hwreg(HW_REG_XCC_ID)")
        A("s_and_b32 s84, s84, 7")
        A("s_lshl_b32 s84, s84, 7")
        A("s_add_u32 s84, s84, 0x60000")
        A(f"v_mov_b32 v{v.W}, s80")
        A(f"v_mov_b32 v{v.W+1}, s82")
        A("s_mov_b64 exec, 1")
        A(f"buffer_store_dwordx2 {vr(v.W,2)}, v0, {sr(sWS)}, s84 offen sc1")
        A("s_mov_b64 exec, -1")
        A("L_noamp:")
    pc = a + 8
    if cwait: A("s_waitcnt vmcnt(0)")
    A("L_cbar:")
    mk = 0x00030003 if c4 else 0x00ff00ff
    A(f"s_mov_b32 s4, {mk:#x}")
    A(f"s_mov_b32 s5, {mk:#x}")
    if c4 and cwait == 1: A("s_barrier")
    stamp(3, True)
    A("L_cpoll:")
    nl = 2 if c4 else 8
    for k in range(nl): A(f"buffer_load_dwordx4 {vr(pc+4*k,4)}, v{aPC}, {sr(sWS)}, {'s%d' % (8+(4*k if c4 else k)) if k else 0} offen sc1")
    for k in range(nl):
        A(f"s_waitcnt vmcnt({nl-1-k})")
        strip(pc + 4 * k, k == 0)
    check("L_cretry")
    A("s_mov_b64 exec, -1")
    stamp(8)
    for n_ in ((4,) if c4 else (16, 8, 4)):
        for r in range(n_): A(f"v_add_f32 v{pc+r}, v{pc+r}, v{pc+n_+r}")
    for r in range(2): A(f"v_permlane32_swap_b32 v{pc+r}, v{pc+2+r}")
    for r in range(2): A(f"v_add_f32 v{pc+r}, v{pc+r}, v{pc+2+r}")
    A(f"v_permlane16_swap_b32 v{pc}, v{pc+1}")
    A(f"v_add_f32 v{pc}, v{pc}, v{pc+1}")
    A(f"v_add_f32_dpp v{pc}, v{pc}, v{pc} row_ror:8 {DPPM}")
    if c4:
        A(f"v_add_f32_dpp v{pc}, v{pc}, v{pc} row_ror:4 {DPPM}")
        A(f"v_add_f32_dpp v{pc}, v{pc}, v{pc} quad_perm:[2,3,0,1] {DPPM}")
    A(f"v_cvt_pk_bf16_f32 v{pc}, v{pc}, v{pc}")
    A("s_mov_b64 exec, s[4:5]")
    A(f"buffer_store_short v{pc}, v{aOUT}, {sr(sOUT)}, 0 offen {outfl}")
    A(f"s_or_b32 s4, s2, s{sWave}")
    A("s_cbranch_scc1 L_fin")
    A("s_mov_b64 exec, 1")
    A(f"v_mov_b32 v{pc+1}, s{sE}")
    A(f"buffer_store_dword v{pc+1}, v0, {sr(sWS)}, 0 offen {efl}")
    if amp:
        A("s_memrealtime s[90:91]")
        A("L_amp1:")
        A("s_memrealtime s[98:99]")
        A("s_waitcnt lgkmcnt(0)")
        A("s_sub_u32 s98, s98, s80")
        A("s_cmp_lt_u32 s98, 9000")
        A("s_cbranch_scc1 L_amp1")
        A("s_mov_b64 exec, -1")
        A(f"v_lshlrev_b32 v{v.W}, 7, v0")
        A("s_mov_b32 s84, 0x60000")
        A(f"buffer_load_dwordx2 {vr(v.W+2,2)}, v{v.W}, {sr(sWS)}, s84 offen sc1")
        A("s_waitcnt vmcnt(0)")
        ka, xa, kb, xb, off = amp
        if ka == 2: A("s_mov_b32 s86, s90")
        else: A(f"v_readlane_b32 s86, v{v.W+2+ka}, {xa}")
        A(f"v_readlane_b32 s87, v{v.W+2+kb}, {xb}")
        A("s_nop 4")
        A("s_sub_u32 s86, s86, s87")
        A(f"s_sub_u32 s86, s86, {off}")
        A("s_mul_i32 s86, s86, 10")
        A("s_add_u32 s86, s86, 13000")
        A("s_max_i32 s86, s86, 9000")
        A("s_min_i32 s86, s86, 30000")
        A("L_amp2:")
        A("s_memrealtime s[98:99]")
        A("s_waitcnt lgkmcnt(0)")
        A("s_sub_u32 s98, s98, s80")
        A("s_cmp_lt_u32 s98, s86")
        A("s_cbranch_scc1 L_amp2")
    if probe:
        A("L_probe:")
        A("s_memrealtime s[98:99]")
        A("s_waitcnt lgkmcnt(0)")
        A("s_sub_u32 s98, s98, s100")
        A(f"s_cmp_lt_u32 s98, {probe}")
        A("s_cbranch_scc1 L_probe")
    A("L_fin:")
    if stamps:
        A("s_mov_b64 exec, 1")
        stamp(9)
        A("s_waitcnt lgkmcnt(0)")
        A(f"s_lshl_b32 s{sTmp}, s2, 2")
        A(f"s_add_u32 s{sTmp}, s{sTmp}, s{sWave}")
        A(f"s_lshl_b32 s{sTmp}, s{sTmp}, 6")
        A(f"s_add_u32 s{sTmp}, s{sTmp}, {WS_ST}")
        A("s_getreg_b32 s4, hwreg(HW_REG_XCC_ID)")
        A("s_getreg_b32 s5, hwreg(HW_REG_HW_ID)")
        b = v.buf
        for k in range(10): A(f"v_mov_b32 v{b+k}, s{sStamp+2*k}")
        A(f"v_mov_b32 v{b+10}, s4")
        A(f"v_mov_b32 v{b+11}, s5")
        A(f"v_mov_b32 v{b+12}, s{sSpin}")
        A(f"v_mov_b32 v{b+13}, s{sHi}")
        A(f"v_mov_b32 v{b+14}, s{sFast}")
        for k in range(4): A(f"buffer_store_dwordx4 {vr(b+4*k,4)}, v0, {sr(sWS)}, s{sTmp} offen offset:{16*k}")
    A("L_end:")
    A("s_endpgm")
    def spinchk():
        A(f"s_sub_u32 s{sSpin}, s{sSpin}, 1")
        A("s_cbranch_scc1 L_end")
    A("L_bretry:")
    spinchk()
    A("s_mov_b64 exec, vcc")
    A(f"s_cmp_lg_u32 s{sFast}, 0")
    A("s_cbranch_scc0 L_bretry_slow")
    bpoll("nt")
    A("s_branch L_bchk")
    if c4:
        A("L_cother:")
        A("s_cmp_ge_u32 s2, 32")
        A("s_cbranch_scc0 L_cbar")
        if wb:
            A(f"s_lshl_b32 s4, s{sWave}, 5")
            A(f"s_add_u32 s4, s4, s{sJ}")
            A("s_cmp_lg_u32 s4, 63")
            A("s_cbranch_scc1 L_fin")
            A("buffer_wbl2 sc1")
        A("s_branch L_fin")
    A("L_cretry:")
    spinchk()
    A("s_mov_b64 exec, vcc")
    A("s_branch L_cpoll")
    A("L_bsel:")
    A(f"s_cmp_lg_u32 s{sFast}, 0")
    A("s_cbranch_scc1 L_bfirst")
    A("s_branch L_bslow")
    A("L_oslow:")
    A(f"buffer_store_dwordx4 {vr(oo,4)}, v{aSO}, {sr(sWS)}, s17 offen sc1")
    A("L_bslow:")
    stamp(6)
    if not bafter: bpoll("sc1")
    A("s_branch L_bmfa")
    if bafter:
        A("L_bp_slow:")
        bpoll("sc1")
        A("s_branch L_bp_back")
    A("L_bretry_slow:")
    bpoll("sc1")
    A("s_branch L_bchk")
    def mlld(fl): A(f"buffer_load_dwordx4 {vr(mlr,4)}, v{v.aML}, {sr(sWS)}, 0 offen {fl}")
    A("L_side:")
    if aearly:
        A(f"s_cmp_lg_u32 s{sPh}, 0")
        A("s_cbranch_scc0 L_side5")
        A(f"s_cmp_lg_u32 s{sFast}, 0")
        A("s_cbranch_scc0 L_lda_slow")
        oald("nt")
        A("L_lda_back:")
        A("s_branch L_side4")
        A("L_side5:")
    A("s_lshr_b32 s5, s2, 7")
    A("s_lshl_b32 s5, s5, 10")
    if aside and not aearly:
        A(f"s_cmp_lg_u32 s{sPh}, 0")
        A("s_cbranch_scc0 L_side0")
        if p2t == 1:
            A(f"v_lshrrev_b32 v{gx}, 2, v{aLO}")
            A(f"buffer_load_dword v{gx}, v{gx}, {sr(sWS)}, s16 offen")
        elif wot:
            A(f"s_lshl_b32 s5, s{sHkv}, 19")
            A("s_mov_b64 exec, 1")
            A(f"buffer_load_dword v{gx}, v0, {sr(sWO)}, s5 offen")
            A(f"buffer_load_dword v{gx+1}, v0, {sr(sWQ)}, s5 offen")
            A("s_mov_b64 exec, -1")
        elif obt:
            A(f"buffer_load_dword v{gx}, v{aSO}, {sr(sWS)}, s17 offen {tchflags}")
        else:
            A(f"buffer_load_dwordx4 {vr(gx,4)}, v{v.lin}, {sr(sX)}, s5 offen")
        if endthr: A(f"s_sub_u32 s{sThr}, s{sThr}, {endthr}")
        sta()
        A("s_branch L_side4")
        A("L_side0:")
    if wot: A(f"buffer_load_dwordx4 {vr(gx,4)}, v{v.lin}, {sr(sX)}, s5 offen")
    A(f"buffer_load_dwordx4 {vr(gx,4)}, v{v.lin}, {sr(sX)}, s5 offen")
    A(f"buffer_load_dwordx4 {vr(gx+4,4)}, v{v.lin}, {sr(sGW)}, 0 offen")
    A("L_side4:")
    A(f"s_cmp_lg_u32 s{sFast}, 0")
    A("s_cbranch_scc1 L_side1")
    mlld("sc1")
    A("s_branch L_sidebody")
    A("L_side1:")
    mlld("nt")
    A("L_sidebody:")
    assert itml < 15
    body("V", procV, whi if sidehi else waits, 6 if wot else 5)
    A("s_branch L_vloop")
    for nm, ld, back in (("ml", mlld, "L_mlchk"), ("oa", oald, "L_oachk")):
        A(f"L_{nm}retry:")
        spinchk()
        A(f"s_cmp_lg_u32 s{sFast}, 0")
        A(f"s_cbranch_scc0 L_{nm}retry_slow")
        ld("nt")
        A("s_waitcnt vmcnt(0)")
        A(f"s_branch {back}")
        A(f"L_{nm}retry_slow:")
        ld("sc1")
        A("s_waitcnt vmcnt(0)")
        A(f"s_branch {back}")
    A("; ---- far behind: refill every slot as soon as it is consumed ----")
    if turbo:
        for nm, kind, proc in (("k", "K", procK), ("v", "V", procV)):
            A(f"L_{nm}turbo:")
            free = 8 - P
            for k in range(free): issue(k, kind, k, loop=True)
            for k in range(8):
                issued_ = min(8, free + k)
                n = (P - 1 - k) + 2 + issued_ if k < P else issued_ - 1 - (k - P)
                A(f"s_waitcnt vmcnt({n})")
                mark = len(L)
                proc(16 + k - P, (k - P) & 7)
                if free + k < 8:
                    nm_ = 1 if kind == "K" else 2
                    rest = L[mark + nm_:]; del L[mark + nm_:]
                    issue(free + k, kind, free + k, loop=True)
                    L.extend(rest)
                if k == 7:
                    A(f"s_add_u32 s{sCnt}, s{sCnt}, 1")
                    sdep(sNo, sCnt, "n", 4, True, 4); xall and A(f"s_xor_b32 s{sNo}, s{sNo}, s{sXm}")
            A(f"s_cmp_lg_u32 s{sCnt}, 16")
            A(f"s_cbranch_scc1 L_{nm}loop")
            A(f"s_branch L_{nm}done")
    A("; ---- checkpoint: arrival rank of this XCD -> number of virtual neighbours ahead ----")
    for nm in ("k", "v"):
        A(f"L_{nm}ctl:")
        A("s_cmp_lg_u32 s5, 0")
        A(f"s_cbranch_scc1 L_{nm}ctl2")
        A(f"s_lshl_b32 s5, s{sJ}, 8")
        A(f"s_add_u32 s5, s5, {WS_C + 256:#x}")
        A(f"s_mov_b32 s{sRk}, 1")
        A(f"s_atomic_add s{sRk}, {sr(sWS,2)}, s5 glc")
        A(f"s_branch L_{nm}ctlb")
        A(f"L_{nm}ctl2:")
        A(f"s_lshl_b32 s5, s{sE}, 12")
        A("s_waitcnt lgkmcnt(0)")
        A(f"s_sub_u32 s{sRk}, s{sRk}, s5")
        A(f"s_cmp_ge_u32 s{sRk}, 8")
        A(f"s_cbranch_scc1 L_{nm}ctlb")
        A(f"s_lshl_b32 s{sRk}, s{sRk}, 2")
        A(f"s_lshr_b32 s{sRk}, {sum(x << (4*k) for k, x in enumerate(xtab)):#x}, s{sRk}")
        A(f"s_and_b32 s{sRk}, s{sRk}, 15")
        A(f"s_add_u32 s{sRk}, s{sRk}, 32")
        A("s_add_u32 s5, s5, 63")
        A(f"v_cmp_gt_u32 vcc, s{sRk}, v0")
        A(f"v_mov_b32 v{t+8}, s5")
        A(f"v_add_u32 v{t+11}, 0x800, v{t+8}")
        A(f"v_cndmask_b32 v{t+8}, v{t+11}, v{t+8}, vcc")
        A("s_mov_b32 exec_lo, 0")
        A(f"buffer_store_dword v{t+8}, v{v.br}, {sr(sWS)}, 0 offen")
        A("s_mov_b32 exec_lo, -1")
        A(f"s_branch L_{nm}ctlb")
    A("L_pubml:")
    mlread()
    A(f"v_lshl_add_u32 v{v.y0}, v{t+6}, 2, v{t+7}")
    A(f"s_and_b32 s4, s{sJ}, 15")
    A(f"v_cmp_eq_u32 vcc, s4, v{v.y0}")
    A("s_waitcnt lgkmcnt(0)")
    A(f"v_max3_f32 v{v.y0}, v{v.D}, v{v.D+2}, v{v.D+4}")
    A(f"v_max_f32 v{v.y0}, v{v.y0}, v{v.D+6}")
    A(f"v_mul_f32 v{v.y1}, s{sL2E}, v{v.y0}")
    for w in range(4): A(f"v_fma_f32 v{v.D+2*w}, v{v.D+2*w}, s{sL2E}, -v{v.y1}")
    for w in range(4): A(f"v_exp_f32 v{v.D+2*w}, v{v.D+2*w}")
    A(f"v_mul_f32 v{v.D+1}, v{v.D}, v{v.D+1}")
    for w in range(1, 4): A(f"v_fmac_f32 v{v.D+1}, v{v.D+2*w}, v{v.D+2*w+1}")
    A(f"v_or_b32 v{v.D}, s{sTag}, v{v.y0}")
    A(f"v_and_or_b32 v{v.D+1}, v{v.D+1}, v{c00}, s{sTag+1}")
    A(f"v_mov_b32 v{v.D+2}, s{sTag+2}")
    A(f"v_mov_b32 v{v.D+3}, s{sTag+3}")
    A("s_mov_b64 exec, vcc")
    A(f"s_cmp_lg_u32 s{sFast}, 0")
    A("s_cbranch_scc0 L_pubml_slow")
    A(f"buffer_store_dwordx4 {vr(v.D,4)}, v{v.aML}, {sr(sWS)}, 0 offen")
    A("s_mov_b64 exec, -1")
    A("s_branch L_vent")
    A("L_pubml_slow:")
    A(f"buffer_store_dwordx4 {vr(v.D,4)}, v{v.aML}, {sr(sWS)}, 0 offen sc1")
    A("s_mov_b64 exec, -1")
    A("s_branch L_vent")
    A("L_puba:")
    stageA(0, oA)
    if aearly: sta()
    A("s_branch L_vent")
    A("L_sta_slow:")
    A(f"buffer_store_dwordx4 {vr(oA,4)}, v{aSO}, {sr(sWS)}, 0 offen sc1")
    A("s_branch L_sta_back")
    A("L_lda_slow:")
    oald("sc1")
    A("s_branch L_lda_back")
    A("L_qslow:")
    A(f"s_cmp_lg_u32 s{sWave}, 0")
    A("s_cbranch_scc1 L_qretry")
    A(f"buffer_store_dword v{v.e0}, v{v.e1}, {sr(sWS)}, 0 offen sc1")
    A("L_qretry:")
    spinchk(); qpoll()
    A("s_waitcnt vmcnt(0)")
    qacc()
    A(f"v_and_b32 v{t+10}, 0x1fff, v{t+8}")
    A(f"v_cmp_ne_u32 vcc, 0, v{t+10}")
    A("s_cbranch_vccnz L_qretry")
    A(f"v_and_b32 v{t+10}, 0xe000, v{t+8}")
    A("L_last:")
    A(f"v_cmp_ne_u32 vcc, 0, v{t+10}")
    A("s_branch L_qok")
    code_ = []
    cnt = 0; npad = 0; on = False
    for ln in pad([x for x in L if x != "@PAD"]):
        isins = ln.startswith("    ")
        if warm and (("only warms" in (code_[-1] if code_ else "")) or (on and isins and cnt >= warm)):
            on = True; cnt = 0
            code_.append(f"L_pad{npad}:")
            code_.append(f"    s_cbranch_execz @T{npad}")
            npad += 1
        code_.append(ln)
        cnt += isins
    if warm and helper:
        for k in range(npad):
            tgt = "L_end" if k == npad - 1 else ("L_hbar" if k == hbar else f"L_pad{k+1}")
            code_ = [x.replace(f"@T{k}", tgt) if x.endswith(f"@T{k}") else x for x in code_]
        hb = ["L_hbar:"]
        if ht:
            hb += ["    s_mov_b64 exec, -1", "    s_waitcnt lgkmcnt(0)",
                   f"    s_mov_b32 s{sWS+2}, {WS_SZ:#x}", f"    s_mov_b32 s{sWS+3}, 0x20000",
                   "    s_and_b32 s4, s2, 7", "    s_lshr_b32 s5, s2, 3", "    v_lshlrev_b32 v1, 7, v0"]
            if ht & 8: hb += ["    s_barrier"]
            if ht & 1:
                hb += ["    s_lshr_b32 s6, s5, 4", "    s_lshl_b32 s6, s6, 3", "    s_add_u32 s6, s6, s4", "    s_lshl_b32 s6, s6, 4", "    s_and_b32 s7, s5, 15",
                       "    s_add_u32 s6, s6, s7", "    s_lshl_b32 s6, s6, 7", f"    s_add_u32 s6, s6, {WS_ML:#x}", "    s_mov_b64 exec, 1",
                       f"    buffer_load_dword v2, v1, {sr(sWS)}, s6 offen"]
            if ht & 2:
                hb += ["    s_lshl_b32 s6, s4, 5", "    s_add_u32 s6, s6, s5", "    s_lshl_b32 s6, s6, 11", f"    s_add_u32 s6, s6, {WS_O:#x}", "    s_add_u32 s7, s6, 0x80000",
                       "    s_mov_b64 exec, 0xffff", f"    buffer_load_dword v2, v1, {sr(sWS)}, s6 offen", f"    buffer_load_dword v3, v1, {sr(sWS)}, s7 offen"]
            if ht & 4:
                hb += ["    s_lshl_b32 s6, s2, 10", f"    s_add_u32 s6, s6, {WS_P2:#x}", "    s_mov_b64 exec, 0xff", f"    buffer_load_dword v4, v1, {sr(sWS)}, s6 offen"]
            if ht & 16:
                hb += ["    s_lshr_b32 s6, s5, 4", "    s_lshl_b32 s6, s6, 3", "    s_add_u32 s6, s6, s4", "    s_lshl_b32 s6, s6, 5", "    s_and_b32 s7, s5, 15",
                       "    s_add_u32 s6, s6, s7", "    s_lshl_b32 s6, s6, 7", f"    s_add_u32 s6, s6, {WS_Q:#x}", "    s_mov_b64 exec, 0x10001",
                       f"    buffer_load_dword v5, v1, {sr(sWS)}, s6 offen"]
            if wot:
                hb += [f"    s_mov_b32 s{sWO+2}, 0x400000", f"    s_mov_b32 s{sWO+3}, 0x20000", f"    s_mov_b32 s{sWQ}, s14", f"    s_mov_b32 s{sWQ+1}, s15",
                       f"    s_mov_b32 s{sWQ+2}, 0x400000", f"    s_mov_b32 s{sWQ+3}, 0x20000", "    s_lshl_b32 s6, s4, 19", "    s_mov_b64 exec, 1",
                       f"    buffer_load_dword v13, v1, {sr(sWO)}, s6 offen", f"    buffer_load_dword v14, v1, {sr(sWQ)}, s6 offen"]
            if ht & 128:
                hb += [f"    s_mov_b32 s{sOUT}, s18", f"    s_mov_b32 s{sOUT+1}, s19", f"    s_movk_i32 s{sOUT+2}, 0x800", f"    s_mov_b32 s{sOUT+3}, 0x20000", "    s_lshl_b32 s6, s2, 7", "    s_mov_b64 exec, 1",
                       f"    buffer_load_dword v15, v1, {sr(sOUT)}, s6 offen"]
            if ht & 256:
                hb += ["    s_lshl_b32 s6, s2, 22", "    s_mov_b64 exec, 1", f"    buffer_load_dword v16, v1, {sr(sWS)}, s6 offen"]
            if ht & 64:
                hb += [f"    s_mov_b32 s{sGW}, s16", f"    s_mov_b32 s{sGW+1}, s17", f"    s_mov_b32 s{sGW+2}, 1024", f"    s_mov_b32 s{sGW+3}, 0x20000", "    s_mov_b64 exec, 0xff",
                       f"    buffer_load_dword v7, v1, {sr(sGW)}, 0 offen"]
            assert ht & 32
            if ht & 32:
                hb += [f"    s_load_dword s8, {sr(sWS,2)}, 0",
                       "    s_getreg_b32 s6, hwreg(HW_REG_XCC_ID)", "    s_and_b32 s6, s6, 7", "    s_lshl_b32 s6, s6, 12", f"    s_add_u32 s6, s6, {WS_B:#x}", "    s_mov_b64 exec, 3",
                       f"    buffer_load_dword v6, v1, {sr(sWS)}, s6 offen",
                       "    s_barrier", "    s_cmp_ge_u32 s2, 8", "    s_cbranch_scc1 L_hnoinit",
                       "    s_waitcnt vmcnt(0) lgkmcnt(0)", "    s_add_u32 s8, s8, 1", "    s_lshl_b32 s8, s8, 12", "    s_add_u32 s9, s8, 63",
                       "    s_mov_b32 exec_lo, -1", f"    v_cmp_gt_u32 vcc, {k0}, v0", "    v_mov_b32 v8, s9", "    v_add_u32 v9, 0x800, v8", "    v_lshlrev_b32 v10, 2, v0",
                       "    v_cndmask_b32 v8, v9, v8, vcc", f"    buffer_store_dword v8, v10, {sr(sWS)}, s6 offen offset:128",
                       "    s_cmp_lg_u32 s2, 0", "    s_cbranch_scc1 L_hnoinit",
                       "    v_mov_b32 v11, s8", "    v_lshlrev_b32 v12, 8, v0", f"    s_mov_b32 s7, {WS_C + 256:#x}", "    s_mov_b64 exec, 0x7fff",
                       f"    buffer_store_dword v11, v12, {sr(sWS)}, s7 offen sc1",
                       "L_hnoinit:"]
            hb += ["    s_mov_b64 exec, 0"]
        assert not ht & 8
        code_ += hb + [f"    s_branch L_pad{hbar+1}"]
    elif warm:
        i0 = code_.index("L_pad0:"); del code_[i0:i0+2]
        for k in range(1, npad):
            tgt = f"L_pad{k+4}" if k + 4 < npad else "L_wret"
            code_ = [x.replace(f"@T{k}", tgt) if x.endswith(f"@T{k}") else x for x in code_]
        for w in range(4): code_ = [x.replace(f"L_seg{w}", f"L_pad{w+1}") for x in code_]
    ref = open(os.path.join(os.path.dirname(os.path.abspath(__file__)), "header.txt")).read().rstrip("\n").split("\n")
    out = ref + [f"; @launch grid=(256,1,1) block=({320 if (warm and helper) else 256},1,1) lds={L_SZ}",
                 '.amdgcn_target "amdgcn-amd-amdhsa--gfx950"', ".text"] + DOC + [f".globl {KNAME}", ".p2align 8",
                 f".type {KNAME},@function"] + code_
    acc = (NV + 3) // 4 * 4
    out += ['.section .rodata,"a"', ".p2align 6", f".amdhsa_kernel {KNAME}",
            f"  .amdhsa_next_free_vgpr {NV}", "  .amdhsa_next_free_sgpr 102", f"  .amdhsa_accum_offset {acc}",
            "  .amdhsa_group_segment_fixed_size 0", "  .amdhsa_kernarg_size 112", "  .amdhsa_user_sgpr_count 2",
            "  .amdhsa_user_sgpr_kernarg_segment_ptr 1", "  .amdhsa_system_sgpr_workgroup_id_x 1",
            "  .amdhsa_float_denorm_mode_32 3", ".end_amdhsa_kernel"]
    return "\n".join(out) + "\n"

if __name__ == "__main__":
    kw = eval("dict(" + (sys.argv[1] if len(sys.argv) > 1 else "") + ")")
    sys.stdout.write(gen(**kw))
```
